```python
import torch

def _softmax(x, axis=-1):
    return torch.softmax(x, dim=axis)
def _gelu(x):
    return torch.nn.functional.gelu(x, approximate="tanh")
def _silu(x):
    return torch.nn.functional.silu(x)
def _sigmoid(x):
    return torch.sigmoid(x)
def _layernorm(x, axis=-1, eps=1e-5):
    m = x.mean(dim=axis, keepdim=True)
    v = x.var(dim=axis, keepdim=True, unbiased=False)
    return (x - m) / torch.sqrt(v + eps)
def _scatter_add(tgt, idx, src, axis=0):
    return tgt.clone().index_add_(axis, idx, src)
def _segment_sum(src, seg, n):
    out = torch.zeros((n,) + src.shape[1:], dtype=src.dtype)
    return out.index_add_(0, seg, src)
def _pad(x, pw):
    flat = tuple(v for pair in reversed(pw) for v in pair)
    return torch.nn.functional.pad(x, flat)

kernel_name = 'parallel_sum__linear_kernel_hedgehog__moe_arch_mod__prompt'

def setup_inputs():

    _w = (lambda a: (lambda t: t.to(torch.bfloat16) if t.is_floating_point() else t)(torch.as_tensor(a)))
    def _A_setup():
        B, S, D, H = 1, 2048, 640, 32
        Dh = D // H
        return {
            "x": _w((lambda *s: torch.randn(*s, dtype=torch.bfloat16) * 0.05)(B, S, D)),
            "wqkv": _w((lambda *s: torch.randn(*s, dtype=torch.bfloat16) * 0.4)(D, 3 * D)),
            "w_phi": _w((lambda *s: torch.randn(*s, dtype=torch.bfloat16) * 0.4)(H, Dh, Dh) * (Dh ** -0.5)),
            "wo": _w((lambda *s: torch.randn(*s, dtype=torch.bfloat16) * 0.1)(D, D)),
        }
    _A_in = _A_setup()

    def _B_setup():
        B, S, D, F, C = 1, 2048, 640, 1536, 2
        return {
            "x": _w((lambda *s: torch.randn(*s, dtype=torch.bfloat16) * 0.05)(B, S, D)),
            "w_r": _w((lambda *s: torch.randn(*s, dtype=torch.bfloat16) * 0.05)(D)),
            "w_gate": _w((lambda *s: torch.randn(*s, dtype=torch.bfloat16) * 0.05)(D, F)),
            "w_up": _w((lambda *s: torch.randn(*s, dtype=torch.bfloat16) * 0.05)(D, F)),
            "w_down": _w((lambda *s: torch.randn(*s, dtype=torch.bfloat16) * 0.05)(F, D)),
        }
    _B_in = _B_setup()

    return {
        "A_x": _A_in["x"],
        "A_wqkv": _A_in["wqkv"],
        "A_w_phi": _A_in["w_phi"],
        "A_wo": _A_in["wo"],
        "B_x": _B_in["x"],
        "B_w_r": _B_in["w_r"],
        "B_w_gate": _B_in["w_gate"],
        "B_w_up": _B_in["w_up"],
        "B_w_down": _B_in["w_down"],
    }

def reference(A_x, A_wqkv, A_w_phi, A_wo, B_x, B_w_r, B_w_gate, B_w_up, B_w_down):
    def _A_ref(x, wqkv, w_phi, wo):
        B, S, D = x.shape
        H = 32; Dh = D // H
        qkv = (lambda x, *d: x.permute(*d))((x @ wqkv).reshape(B, S, 3, H, Dh), 2, 0, 3, 1, 4)
        q, k, v = qkv[0], qkv[1], qkv[2]
        pq = torch.einsum("bhsd,hdf->bhsf", q, w_phi)
        pk = torch.einsum("bhsd,hdf->bhsf", k, w_phi)
        phi_q = torch.concatenate([_softmax(pq, axis=-1), _softmax(-pq, axis=-1)], axis=-1)
        phi_k = torch.concatenate([_softmax(pk, axis=-1), _softmax(-pk, axis=-1)], axis=-1)
        kv = torch.einsum("bhsf,bhsd->bhfd", phi_k, v)
        z  = torch.einsum("bhsf->bhf", phi_k)
        num = torch.einsum("bhqf,bhfd->bhqd", phi_q, kv)
        den = torch.einsum("bhqf,bhf->bhq", phi_q, z)[..., None] + 1e-6
        o = num / den
        return (lambda x, *d: x.permute(*d))(o, 0, 2, 1, 3).reshape(B, S, D) @ wo

    def _B_ref(x, w_r, w_gate, w_up, w_down):
        B, S, D = x.shape
        C = 2
        r = x @ w_r
        idx = torch.argsort(-r, axis=-1)[:, :C]
        idx_e = (lambda x, n, axis: torch.repeat_interleave(x, n, dim=axis))(idx.reshape(B, C, 1), D, axis=2)
        x_sel = (lambda x, i, axis: torch.take_along_dim(x, i, dim=axis))(x, idx_e, axis=1)
        g = _silu(x_sel @ w_gate)
        u = x_sel @ w_up
        y = (g * u) @ w_down
        r_sel = _sigmoid((lambda x, i, axis: torch.take_along_dim(x, i, dim=axis))(r, idx, axis=1))
        y = y * r_sel.reshape(B, C, 1)
        b_off = (torch.arange(B) * S).reshape(B, 1)
        flat_idx = (idx + b_off).reshape(B * C)
        zero = (x * 0.0).reshape(B * S, D)
        upd = _scatter_add(zero, flat_idx, y.reshape(B * C, D), axis=0)
        return x + upd.reshape(B, S, D)

    x = A_x
    xn = _layernorm(x, axis=-1)
    return x + _A_ref(xn, A_wqkv, A_w_phi, A_wo) + _B_ref(xn, B_w_r, B_w_gate, B_w_up, B_w_down)
```

```python
class Asm:
    def __init__(self):
        self.L = []
        self.nlab = 0
    def __call__(self, s):
        for line in s.split("\n"):
            line = line.strip()
            if line: self.L.append(("" if line.endswith(":") else "    ") + line)
    def label(self, name): self.L.append(name + ":")
    def newlab(self, base="L"):
        self.nlab += 1
        return f"{base}_{self.nlab}"
    def text(self): return "\n".join(self.L) + "\n"
    def srd(self, d, base, nbytes):
        if d != base:
            self(f"s_mov_b32 s{d}, s{base}"); self(f"s_mov_b32 s{d+1}, s{base+1}")
        self(f"s_mov_b32 s{d+2}, {nbytes}"); self(f"s_mov_b32 s{d+3}, 0x20000")

def vr(a, n=1): return f"v{a}" if n == 1 else f"v[{a}:{a+n-1}]"
def sr(a, n=1): return f"s{a}" if n == 1 else f"s[{a}:{a+n-1}]"
```

```python
import re
TRANS = ("v_exp_f32", "v_log_f32", "v_rcp_f32", "v_rsq_f32", "v_sqrt_f32", "v_sin_f32", "v_cos_f32", "v_rcp_iflag_f32")
def regs(tok):
    tok = tok.strip()
    tok = re.sub(r"^-|^abs\(|\)$|^\|", "", tok).rstrip("|")
    m = re.fullmatch(r"([vsa])(\d+)", tok)
    if m: return {(m.group(1), int(m.group(2)))}
    m = re.fullmatch(r"([vsa])\[(\d+):(\d+)\]", tok)
    if m: return {(m.group(1), i) for i in range(int(m.group(2)), int(m.group(3)) + 1)}
    if tok == "vcc": return {("s", "vcc")}
    if tok in ("vcc_lo", "vcc_hi"): return {("s", "vcc")}
    if tok in ("exec", "exec_lo", "exec_hi"): return {("s", "exec")}
    if tok == "m0": return {("s", "m0")}
    return set()
class I:
    def __init__(self, text):
        self.text = text
        t = text.split(";")[0].strip()
        self.label = t[:-1] if t.endswith(":") else None
        self.directive = t.startswith(".")
        self.op = None
        if self.label or self.directive or not t: return
        parts = t.split(None, 1)
        self.op = re.sub(r"_e32$|_e64$", "", parts[0])
        rest = parts[1] if len(parts) > 1 else ""
        ops = [o.strip() for o in re.split(r",(?![^\[]*\])", rest)] if rest else []
        mods = ""
        if ops:
            last = ops[-1].split(None, 1)
            ops[-1] = last[0]; mods = last[1] if len(last) > 1 else ""
        self.ops = ops; self.mods = mods
        op = self.op
        self.valu = op.startswith("v_") and not op.startswith("v_mfma")
        self.mfma = op.startswith("v_mfma")
        self.vmem = op.startswith("buffer_") or op.startswith("global_")
        self.ds = op.startswith("ds_")
        self.salu = op.startswith("s_")
        self.trans = op in TRANS
        self.dot = op.startswith("v_dot")
        self.dpp = op.endswith("_dpp") or "row_" in mods or "quad_perm" in mods
        self.perml = op.startswith("v_permlane")
        self.rdlane = op in ("v_readlane_b32", "v_readfirstlane_b32")
        self.w = set(); self.r = set(); self.data = set()
        R = [regs(o) for o in ops]
        if self.mfma:
            self.w = R[0]; self.A = R[1]; self.B = R[2]; self.C = R[3]; self.r = self.A | self.B | self.C
            self.passes = 8 if "32x32" in op else 4
        elif self.valu:
            nd = 1
            if op.startswith(("v_add_co", "v_sub_co", "v_addc_co", "v_subb_co", "v_mad_u64", "v_div_scale")): nd = 2
            for x in R[:nd]: self.w |= x
            for x in R[nd:]: self.r |= x
            if self.perml: self.w |= R[1]; self.r |= R[0]
            if op.startswith(("v_fmac", "v_dot2c", "v_writelane", "v_pk_fmac")) or self.dpp: self.r |= R[0]
            if op.startswith("v_cmpx"): self.w.add(("s", "exec"))
        elif self.vmem:
            lds = re.search(r"\blds\b", mods) is not None
            self.lds = lds
            if op in ("buffer_wbl2", "buffer_inv"): pass
            elif "load" in op and not lds:
                self.w = R[0]
                for x in R[1:]: self.r |= x
            else:
                for x in R: self.r |= x
                if "store" in op or "atomic" in op:
                    self.data = R[0] if op.startswith("buffer_") else R[1]
                if "atomic" in op and "sc0" in mods: self.w = set(R[0])
                if lds: self.r.add(("s", "m0"))
        elif self.ds:
            if op.startswith(("ds_read", "ds_bpermute", "ds_permute", "ds_swizzle")):
                self.w = R[0]
                for x in R[1:]: self.r |= x
            else:
                for x in R: self.r |= x
        elif self.salu:
            if op.startswith(("s_cmp", "s_bitcmp", "s_waitcnt", "s_barrier", "s_nop", "s_branch", "s_cbranch", "s_endpgm", "s_setprio", "s_sleep")):
                for x in R: self.r |= x
            else:
                if R: self.w = set(R[0])
                for x in R[1:]: self.r |= x
                if "saveexec" in op: self.w.add(("s", "exec"))
    def states(self):
        if self.op == "s_nop": return int(self.ops[0], 0) + 1
        return 1
def V(s): return {x for x in s if x[0] in "va"}
def Sg(s): return {x for x in s if x[0] == "s"}
def need(p, c):
    n = 0
    if p.valu:
        pw = V(p.w); ps = Sg(p.w)
        if c.mfma and pw & c.r: n = max(n, 2)
        if c.mfma and ("s", "exec") in ps: n = max(n, 4)
        if c.valu:
            if c.dpp and pw & c.r: n = max(n, 2)
            if c.perml and pw & c.r: n = max(n, 2)
            if c.rdlane and pw & c.r: n = max(n, 1)
            if p.trans and not c.trans and pw & c.r: n = max(n, 1)
            if ps & c.r: n = max(n, 4 if c.op in ("v_readlane_b32", "v_writelane_b32") else 2)
            if p.dot and (pw & (c.r | c.w)):
                if not (c.op == p.op and not (pw & set().union(*[regs(o) for o in c.ops[1:3]]))): n = max(n, 3)
            if ("s", "exec") in ps and (c.dpp): n = max(n, 5)
            if ("s", "exec") in ps and (c.rdlane or c.perml): n = max(n, 4)
            if ("sdwa" in p.op or "op_sel" in p.mods and not p.op.startswith("v_pk")) and pw & (c.r | c.w): n = max(n, 1)
        if (c.vmem or c.ds) and p.dot and pw & c.r: n = max(n, 3)
        if (c.vmem or c.ds) and p.trans and pw & c.r: n = max(n, 1)
        if c.vmem and ps & c.r: n = max(n, 5)
        if c.salu and ps & c.r and c.op.startswith("s_") and not c.op.startswith("s_cbranch"): n = max(n, 1)
    if p.mfma:
        big = p.passes == 8
        if c.mfma:
            if p.w & (c.A | c.B): n = max(n, 12 if big else 8)
            if p.w & c.C and not (p.w == c.C and p.passes == c.passes): n = max(n, 10 if big else 6)
            if p.w & c.w and not (p.w & c.C): n = max(n, 12 if big else 8)
        elif c.valu or c.vmem or c.ds:
            if p.w & (c.r | c.w): n = max(n, 12 if big else 8)
            if c.valu and V(p.C) & c.w: n = max(n, 7 if big else 3)
    if p.vmem and len(p.data) >= 3 and (c.valu or c.mfma or c.ds or c.vmem) and p.data & c.w: n = max(n, 2)
    if p.salu and ("s", "m0") in p.w and c.vmem and getattr(c, "lds", False): n = max(n, 1)
    return n
def fix(text, verbose=False):
    ins = [I(l) for l in text.split("\n")]
    total = 0
    for rounds in range(10):
        changed = False
        k = 0
        def maps():
            labels = {x.label: x for x in ins if x.label}
            br = {}
            for x in ins:
                if x.op and (x.op == "s_branch" or x.op.startswith("s_cbranch")): br.setdefault(id(labels[x.ops[0]]), []).append(x)
            return br
        br = maps()
        pos = None
        def worst(k):
            nonlocal pos
            c = ins[k]; best = 0; seen = {}
            stack = [(k - 1, 0, True)]
            while stack:
                j, d, fall = stack.pop()
                while j >= 0 and d < 13:
                    x = ins[j]
                    if x.label:
                        for b in br.get(id(x), []):
                            if pos is None: pos = {id(y): n for n, y in enumerate(ins)}
                            bi = pos[id(b)]
                            if seen.get(bi, 99) > d: seen[bi] = d; stack.append((bi, d, False))
                    elif x.op:
                        if fall and x.op in ("s_branch", "s_endpgm"): break
                        best = max(best, need(x, c) - d)
                        d += x.states()
                    fall = True
                    j -= 1
            return best
        while k < len(ins):
            x = ins[k]
            if x.op:
                m = worst(k)
                if m > 0:
                    if verbose: print(f"hazard: +{m} before line {k}: {x.text.strip()}")
                    ins.insert(k, I(f"    s_nop {m-1}")); total += m; changed = True; pos = None; k += 1
            k += 1
        if not changed: break
    return "\n".join(x.text for x in ins), total
```

```python
import sys, os
sys.path.insert(0, os.path.dirname(os.path.abspath(__file__)))
from asmlib import Asm, vr, sr
import hazard

NAME = "parallel_sum__linear_kernel_hedgehog__moe_arch_mod__prompt_kernel"
S, D, F = 2048, 640, 1536
SENT = 0xFF81FF81
OOB = 0x7FF00000
WS_C1 = 0x1000
WS_SM = 0x2000
WS_CS = 0x4000
WS_CLR = 0x10000
WS_Q = WS_CLR
WS_O = WS_Q + 2621440
WS_KV = WS_O + 2621440
WS_YP = WS_KV + 917504
WS_Y = WS_YP + 245760
WS_END = WS_Y + 5120
CLR_PER_WAVE = 13312
assert WS_CLR + 512*CLR_PER_WAVE >= WS_END
WS_DIAG = 0x1000000
WS_BYTES = 1 << 28
WREG = 5152
SLOT = 16384 + 4*WREG
RING = 40960
RING_END = RING + 3*SLOT
TRI = 86016
MISC = RING_END
L_PHIO = MISC
L_STAT = L_PHIO + 1024
L_CS = L_STAT + 2048
L_KVR = L_CS + 1920
L_HM = L_KVR + 2048
L_RES = 102400
L_XCH = L_RES + 10240
L_OUTS = L_XCH + 20480
L_GI, L_UI, L_DI = 0, 40960, 81920
L_GU = 122880
L_HB = L_GU + 4096
L_YR = 0
LDS_BYTES = 163840
sWV, sX, sJ, sJR = 4, 5, 6, 7
rX, rW, rWS, rWO, rOUT, rDBG, rPHI, rWR, rG, rU, rDN = 8, 12, 16, 20, 24, 28, 32, 36, 40, 44, 48
sSENT = 52
LOG2E = 0x3FB8AA3B
SPIN = 200000


class K(Asm):
    def __init__(self, diag):
        super().__init__()
        self.diag = diag
    def srdw(self, r, n):
        self(f"s_mov_b32 s{r+2}, {n}"); self(f"s_mov_b32 s{r+3}, 0x20000")
    def stamp(self, i):
        if self.diag: self(f"s_memrealtime s[{72+2*i}:{73+2*i}]")
    def stampw(self, i):
        if self.diag: self(f"s_memrealtime s[{72+2*i}:{73+2*i}]"); self("s_waitcnt lgkmcnt(0)")
    def maxtree(self, dst, regs):
        regs = list(regs)
        if len(regs) == 1: self(f"v_mov_b32 v{dst}, v{regs[0]}"); return
        if len(regs) == 2: self(f"v_max_u32 v{dst}, v{regs[0]}, v{regs[1]}"); return
        self(f"v_max3_u32 v{dst}, v{regs[0]}, v{regs[1]}, v{regs[2]}"); regs = regs[3:]
        while len(regs) >= 2:
            self(f"v_max3_u32 v{dst}, v{dst}, v{regs[0]}, v{regs[1]}"); regs = regs[2:]
        if regs: self(f"v_max_u32 v{dst}, v{dst}, v{regs[0]}")
    def poll(self, loads, regs, tmp, code, pre_issued=False):
        top = self.newlab("L_poll"); chk = self.newlab("L_chk"); out = self.newlab("L_pdone")
        self("s_mov_b32 s3, 0")
        if pre_issued: self(f"s_branch {chk}")
        self.label(top)
        self("s_add_u32 s3, s3, 1"); self(f"s_cmp_gt_u32 s3, {SPIN}"); self(f"s_cbranch_scc1 {out}")
        for l in loads: self(l)
        self.label(chk)
        self("s_waitcnt vmcnt(0)")
        self.maxtree(tmp, regs)
        self(f"v_cmp_eq_u32 vcc, s{sSENT}, v{tmp}")
        self(f"s_cbranch_vccnz {top}")
        self.label(out)
    def flagpoll(self, v, va):
        top = self.newlab("L_fp"); out = self.newlab("L_fdone")
        self(f"v_and_b32 v{va}, 1, v0"); self(f"v_lshlrev_b32 v{va}, 7, v{va}")
        self("s_mov_b32 s3, 0")
        self.label(top)
        self("s_add_u32 s3, s3, 1"); self(f"s_cmp_gt_u32 s3, {SPIN}"); self(f"s_cbranch_scc1 {out}")
        self(f"buffer_load_dword v{v}, v{va}, s[{rDBG}:{rDBG+3}], 0 offen sc1")
        self("s_waitcnt vmcnt(0)")
        self(f"v_cmp_ne_u32 vcc, 32, v{v}")
        self(f"s_cbranch_vccnz {top}")
        self.label(out)
    def wavemax_u32(self, v, t, sdst):
        self(f"v_max_u32_dpp v{t}, v{v}, v{v} row_ror:8 row_mask:0xf bank_mask:0xf")
        for k in (4, 2, 1): self(f"v_max_u32_dpp v{t}, v{t}, v{t} row_ror:{k} row_mask:0xf bank_mask:0xf")
        self(f"v_readlane_b32 s{sdst}, v{t}, 0"); self(f"v_readlane_b32 s3, v{t}, 16")
        self(f"s_max_u32 s{sdst}, s{sdst}, s3")
        self(f"v_readlane_b32 s3, v{t}, 32"); self(f"s_max_u32 s{sdst}, s{sdst}, s3")
        self(f"v_readlane_b32 s3, v{t}, 48"); self(f"s_max_u32 s{sdst}, s{sdst}, s3")
    def top2(self, k1, k2, t, s1, s2):
        self.wavemax_u32(k1, t, s1)
        self(f"v_cmp_eq_u32 vcc, s{s1}, v{k1}")
        self(f"v_cndmask_b32 v{k1}, v{k1}, v{k2}, vcc")
        self.wavemax_u32(k1, t, s2)
    def rowsum16(self, v):
        for k in (8, 4, 2, 1): self(f"v_add_f32_dpp v{v}, v{v}, v{v} row_ror:{k} row_mask:0xf bank_mask:0xf")


def softmax_ops(P, O, cpair, t0, npair=None):
    L = []
    a, b = t0, t0 + 1
    L.append(f"v_max3_f32 v{a}, v{P[0]}, v{P[1]}, v{P[2]}"); L.append(f"v_max3_f32 v{b}, v{P[3]}, v{P[4]}, v{P[5]}")
    for i in range(6, 18, 4):
        L.append(f"v_max3_f32 v{a}, v{a}, v{P[i]}, v{P[i+1]}"); L.append(f"v_max3_f32 v{b}, v{b}, v{P[i+2]}, v{P[i+3]}")
    L.append(f"v_max3_f32 v{a}, v{a}, v{P[18]}, v{P[19]}"); L.append(f"v_max_f32 v{a}, v{a}, v{b}")
    L.append(f"v_mul_f32 v{cpair+1}, v{cpair}, v{a}")
    for i in range(0, 20, 2):
        L.append(f"v_pk_fma_f32 {vr(P[i],2)}, {vr(P[i],2)}, {vr(cpair,2)}, {vr(cpair,2)} op_sel:[0,0,1] op_sel_hi:[1,0,1] neg_lo:[0,0,1] neg_hi:[0,0,1]")
    for i in range(20): L.append(f"v_exp_f32 v{P[i]}, v{P[i]}")
    L.append(f"v_pk_add_f32 {vr(t0,2)}, {vr(P[0],2)}, {vr(P[2],2)}"); L.append(f"v_pk_add_f32 {vr(t0+2,2)}, {vr(P[4],2)}, {vr(P[6],2)}")
    for i in range(8, 20, 4):
        L.append(f"v_pk_add_f32 {vr(t0,2)}, {vr(t0,2)}, {vr(P[i],2)}"); L.append(f"v_pk_add_f32 {vr(t0+2,2)}, {vr(t0+2,2)}, {vr(P[i+2],2)}")
    L.append(f"v_pk_add_f32 {vr(t0,2)}, {vr(t0,2)}, {vr(t0+2,2)}")
    L.append(f"v_add_f32 v{a}, v{a}, v{b}"); L.append(f"v_rcp_f32 v{a}, v{a}")
    if npair is not None: L.append(f"v_mul_f32 v{a}, v{a}, v{npair}")
    for i in range(0, 20, 2): L.append(f"v_pk_mul_f32 {vr(P[i],2)}, {vr(P[i],2)}, {vr(t0,2)} op_sel_hi:[1,0]")
    for i in range(0, 20, 2): L.append(f"v_cvt_pk_bf16_f32 v{O+i//2}, v{P[i]}, v{P[i+1]}")
    return L


def gen(diag=False, touch=4, defer=8):
    a = K(diag)
    a("s_cmp_ge_u32 s2, 256"); a("s_cbranch_scc1 L_end")
    a.stamp(0)
    for r, off in ((rX, 0), (rW, 8), (rWS, 88), (rPHI, 16), (rWO, 24), (rOUT, 72), (rDBG, 80), (rWR, 40), (rG, 48), (rU, 56), (rDN, 64)):
        a(f"s_load_dwordx2 s[{r}:{r+1}], s[0:1], {off}")
    a("v_lshrrev_b32 v1, 6, v0"); a("v_and_b32 v0, 63, v0")
    a(f"s_and_b32 s{sX}, s2, 7"); a(f"v_readfirstlane_b32 s{sWV}, v1")
    a(f"s_lshr_b32 s{sJ}, s2, 3"); a(f"s_add_u32 s{sJR}, s{sJ}, 24"); a(f"s_and_b32 s{sJR}, s{sJR}, 31")
    a.srdw(rX, S*D*2); a.srdw(rW, D*3*D*2); a.srdw(rWS, WS_BYTES); a.srdw(rPHI, 32*800); a.srdw(rWO, D*D*2); a.srdw(rOUT, S*D*2); a.srdw(rDBG, 256)
    a(f"s_mov_b32 s{sSENT}, {SENT:#x}")
    a(f"s_cmp_ge_u32 s{sJR}, 24"); a("s_cbranch_scc1 L_helper")
    a(f"s_lshr_b32 s54, s{sX}, 1"); a(f"s_and_b32 s3, s{sJR}, 3"); a("s_lshl2_add_u32 s54, s54, s3")
    a(f"s_and_b32 s3, s{sX}, 1"); a(f"s_lshr_b32 s57, s{sJR}, 2"); a("s_mul_i32 s55, s3, 640")
    a("s_mul_i32 s58, s57, 160"); a("s_sub_u32 s59, s58, 1280")
    a("s_cmp_lt_u32 s57, 4")
    a("s_cselect_b32 s56, 1120, 0"); a("s_cselect_b32 s59, 1280, s59")
    a("s_add_u32 s55, s55, s58"); a("s_add_u32 s55, s55, s59")
    a(f"s_cmp_lt_u32 s{sWV}, 4"); a("s_cbranch_scc1 L_mfma")

    a("s_setprio 3")
    a(f"s_sub_u32 s60, s{sWV}, 4")
    XV = [16, 17, 18, 19]; WV = [20, 21, 22, 23, 24]; WOV = [2, 3, 4, 5, 6]
    a("v_lshrrev_b32 v8, 3, v0"); a("v_and_b32 v9, 7, v0")
    a("v_bfe_u32 v10, v0, 4, 1"); a("v_lshrrev_b32 v11, 5, v0"); a("v_lshl_add_u32 v10, v10, 1, v11")
    a("s_lshl_b32 s3, s54, 2"); a("s_add_u32 s3, s3, s60"); a("s_mul_i32 s3, s3, 40960")
    a("v_mul_u32_u24 v8, 1280, v8"); a("v_xor_b32 v9, v9, v10"); a("v_add_u32 v8, s3, v8")
    a(f"v_lshl_add_u32 v{XV[0]}, v9, 4, v8"); a(f"v_xor_b32 v11, 64, v{XV[0]}")
    a(f"v_add_u32 v{XV[1]}, {10240-1024}, v11"); a(f"v_add_u32 v{XV[2]}, {20480-2048}, v{XV[0]}"); a(f"v_add_u32 v{XV[3]}, {30720-3072}, v11")
    a("s_mul_i32 s3, s60, 61440"); a("s_add_u32 s3, s3, s55")
    a("s_lshl_b32 s61, s60, 12")
    a(f"s_mul_i32 s62, s60, {WREG}"); a("s_add_u32 s62, s62, 16384")
    a("s_movk_i32 s63, 3520")
    a("v_lshl_add_u32 v12, v0, 4, s3"); a("v_mul_u32_u24 v13, 6554, v0")
    for i in range(5):
        if i: a(f"v_add_u32 v13, {64*6554}, v13")
        a("v_lshrrev_b32 v10, 17, v13"); a("v_bfe_u32 v9, v13, 16, 1")
        a("v_mad_u32_u24 v8, v10, s63, v12"); a(f"v_mad_u32_u24 v{WV[i]}, v9, s56, v8")
    a(f"v_add_u32 v{WV[4]}, 4096, v{WV[4]}")
    a(f"s_mov_b32 s64, {RING}"); a("s_mov_b32 s65, 0"); a("s_mov_b32 s66, 0")
    a("s_waitcnt lgkmcnt(0)")
    def issue():
        a("s_add_u32 m0, s64, s61")
        for i in range(4): a(f"buffer_load_dwordx4 v{XV[i]}, s[{rX}:{rX+3}], s65 offen offset:{1024*i} lds")
        a("s_add_u32 m0, s64, s62")
        a("s_add_u32 s65, s65, 128")
        for i in range(4): a(f"buffer_load_dwordx4 v{WV[i]}, s[{rW}:{rW+3}], s66 offen offset:{1024*i} lds")
        a("s_add_u32 m0, m0, 4096")
        a(f"s_add_u32 s64, s64, {SLOT}")
        a(f"buffer_load_dwordx4 v{WV[4]}, s[{rW}:{rW+3}], s66 offen lds")
        a("s_add_u32 s66, s66, 245760")
        a(f"s_cmp_eq_u32 s64, {RING_END}"); a(f"s_cselect_b32 s64, {RING}, s64")
    a.label("L_lloop")
    issue()
    a("s_cmpk_lt_u32 s65, 256"); a("s_cbranch_scc1 L_lloop")
    a("s_waitcnt vmcnt(9)"); a("s_barrier")
    a(f"s_cmpk_lt_u32 s65, {9*128}"); a("s_cbranch_scc1 L_lloop")
    a("v_and_b32 v26, 1, v0"); a("v_lshlrev_b32 v26, 7, v26")
    a(f"buffer_load_dword v27, v26, s[{rDBG}:{rDBG+3}], 0 offen sc1")
    issue()
    def wo_addr():
        a("v_mul_u32_u24 v13, 6554, v0"); a("v_lshlrev_b32 v12, 4, v0"); a("s_movk_i32 s3, 1120")
        for i in range(5):
            if i: a(f"v_add_u32 v13, {64*6554}, v13")
            a("v_lshrrev_b32 v10, 16, v13"); a(f"v_mad_u32_u24 v{WOV[i]}, v10, s3, v12")
        a(f"v_add_u32 v{WOV[4]}, 4096, v{WOV[4]}")
        a(f"s_and_b32 s67, s{sJ}, 7"); a("s_mul_i32 s67, s67, 160")
        a("s_mul_i32 s68, s60, 40960"); a("s_add_u32 s68, s68, s67")
        a("s_mul_i32 s69, s60, 5120")
    def unit(srd, soff, m0):
        a(f"s_mov_b32 m0, {m0}")
        for i in range(4): a(f"buffer_load_dwordx4 v{WOV[i]}, s[{srd}:{srd+3}], {soff} offen offset:{1024*i} lds")
        a("s_add_u32 m0, m0, 4096")
        a(f"buffer_load_dwordx4 v{WOV[4]}, s[{srd}:{srd+3}], {soff} offen lds")
    def wo_round():
        unit(rWO, "s68", "s69")
        a("s_add_u32 s68, s68, 163840"); a("s_add_u32 s69, s69, 20480")
    wo_addr()
    a("v_and_b32 v28, 31, v0"); a("s_lshl_b32 s3, s54, 2"); a("s_add_u32 s3, s3, s60"); a("s_lshl_b32 s3, s3, 7"); a(f"s_add_u32 s3, s3, {WS_SM}")
    a("v_lshl_add_u32 v29, v28, 2, s3")
    a("s_lshr_b32 s58, s60, 1"); a("s_and_b32 s59, s60, 1")
    a("s_add_u32 s3, s56, 160"); a("s_mul_i32 s3, s3, s58"); a("s_add_u32 s3, s3, s55"); a("s_lshl_b32 s3, s3, 1")
    a("s_mul_i32 s53, s59, 7680"); a("s_add_u32 s3, s3, s53"); a(f"s_add_u32 s3, s3, {WS_CS}")
    a("v_min_u32 v31, 39, v0"); a("v_lshl_add_u32 v30, v31, 3, s3")
    statloads = [f"buffer_load_dword v32, v29, s[{rWS}:{rWS+3}], 0 offen sc1", f"buffer_load_dwordx2 v[34:35], v30, s[{rWS}:{rWS+3}], 0 offen sc1"]
    a("s_waitcnt vmcnt(9)"); a("s_barrier")
    for l in statloads: a(l)
    wo_round()
    a("s_waitcnt vmcnt(5)"); a("s_barrier")
    a("v_cmp_ne_u32 vcc, 32, v27"); a("s_cbranch_vccz L_flagok")
    a.flagpoll(27, 26)
    for l in statloads: a(l)
    a("s_waitcnt vmcnt(0)")
    a.label("L_flagok")
    a("v_and_b32 v38, 0xffff0000, v32"); a("v_rcp_f32 v38, v38")
    a("v_and_b32 v36, 0xffff, v32"); a("v_lshl_or_b32 v36, v36, 16, v36"); a("v_xor_b32 v36, 0x80008000, v36")
    a("v_lshrrev_b32 v37, 16, v32"); a(f"v_mul_f32 v39, {LOG2E:#x}, v38")
    a("s_lshl_b32 s3, s60, 9"); a(f"s_add_u32 s3, s3, {L_STAT}"); a("v_lshl_add_u32 v28, v28, 4, s3")
    a("ds_write_b128 v28, v[36:39]")
    a("s_mul_i32 s3, s59, 640"); a("s_mul_i32 s53, s58, 320"); a("s_add_u32 s3, s3, s53"); a(f"s_add_u32 s3, s3, {L_CS}")
    a("v_lshl_add_u32 v28, v31, 3, s3"); a("ds_write_b64 v28, v[34:35]")
    a("s_mul_i32 s3, s60, 160"); a(f"s_add_u32 s3, s3, {L_CS+1280}"); a("v_lshl_add_u32 v28, v31, 2, s3"); a("v_mov_b32 v33, 0")
    a("ds_write_b32 v28, v33")
    wo_round()
    a("s_waitcnt lgkmcnt(0)"); a("s_barrier")
    wo_round(); wo_round()
    a("s_setprio 0")
    a("s_cmp_lt_u32 s57, 4"); a("s_cbranch_scc0 L_common")
    a("s_barrier")
    a("s_barrier")
    a("s_branch L_common")

    a.label("L_mfma")
    ACC = 16; SET = [96, 132]; XA = [168, 169]; MK, MV, EX = 170, 171, 172
    PA = 176; PX = 196; STAT = 208; AUG = 224
    a(f"s_and_b32 s60, s{sWV}, 1"); a(f"s_lshr_b32 s61, s{sWV}, 1")
    a(f"s_and_b32 s3, s{sX}, 1"); a("s_lshl2_add_u32 s62, s3, s57")
    a("s_lshl1_add_u32 s63, s62, s60"); a("s_mul_i32 s63, s63, 1600")
    a(f"s_lshr_b32 s64, s{sJ}, 1"); a("s_lshl4_add_u32 s64, s3, s64"); a("s_mul_i32 s64, s64, 800")
    a(f"s_lshl_b32 s65, s{sWV}, 11"); a("v_lshlrev_b32 v2, 4, v0"); a("s_mov_b32 m0, s65")
    a("s_waitcnt lgkmcnt(0)")
    a(f"buffer_load_dwordx4 v2, s[{rPHI}:{rPHI+3}], s63 offen lds")
    a(f"buffer_load_dwordx4 v2, s[{rPHI}:{rPHI+3}], s63 offen offset:1024 lds")
    a(f"s_mov_b32 m0, {L_PHIO}")
    a(f"buffer_load_dwordx4 v2, s[{rPHI}:{rPHI+3}], s64 offen lds")
    a("v_lshrrev_b32 v3, 4, v0"); a("v_bfe_u32 v4, v0, 2, 2"); a("v_and_b32 v5, 3, v0"); a("v_and_b32 v6, 15, v0")
    a(f"v_mul_u32_u24 v7, {WREG}, v3"); a("v_mul_u32_u24 v12, 320, v4"); a("s_movk_i32 s3, 16384"); a("v_add3_u32 v7, v7, v12, s3")
    a("s_mul_i32 s66, s60, 80"); a("s_sub_u32 s67, 240, s66")
    a("v_lshl_add_u32 v12, v5, 3, v7"); a("v_add_u32 v9, s66, v12"); a("v_add_u32 v10, s67, v12")
    a("v_mov_b32 v12, s66"); a("v_mov_b32 v13, s67"); a("v_cmp_lt_u32 vcc, 1, v5"); a("v_and_b32 v14, 1, v5"); a("v_mul_u32_u24 v14, 72, v14")
    a("v_cndmask_b32 v15, v12, v13, vcc"); a("v_add3_u32 v11, v7, v15, v14")
    a("v_and_b32 v7, 2, v0"); a("v_bfe_u32 v14, v0, 2, 1"); a("v_or_b32 v7, v7, v14"); a("v_bfe_u32 v14, v0, 3, 1"); a("v_lshl_add_u32 v7, v14, 2, v7")
    a("v_lshlrev_b32 v14, 1, v3"); a("v_xor_b32 v7, v7, v14"); a("v_lshlrev_b32 v7, 4, v7"); a("v_lshl_add_u32 v7, v6, 7, v7")
    a("s_lshl_b32 s3, s61, 13"); a("v_add_u32 v8, s3, v7")
    a(f"v_add_u32 v{XA[0]}, {RING}, v8"); a(f"v_add_u32 v{MK}, {RING}, v9"); a(f"v_add_u32 v{MV}, {RING}, v10"); a(f"v_add_u32 v{EX}, {RING}, v11")
    a(f"v_xor_b32 v{XA[1]}, 16, v{XA[0]}")
    a("v_min_u32 v7, 2, v3"); a("v_mul_u32_u24 v7, 640, v7"); a(f"v_add_u32 v7, {L_CS}, v7")
    a("v_lshl_add_u32 v14, v6, 2, v7"); a("v_lshl_add_u32 v173, v12, 1, v14"); a("v_lshl_add_u32 v174, v13, 1, v14")
    a("v_cmp_lt_u32 vcc, 1, v4"); a("v_and_b32 v14, 1, v4"); a("v_mul_u32_u24 v14, 144, v14")
    a("v_cndmask_b32 v15, v12, v13, vcc"); a("v_lshl_add_u32 v15, v15, 1, v14"); a("v_lshl_add_u32 v14, v5, 2, v7"); a("v_add_u32 v175, v14, v15")
    a("s_lshl_b32 s3, s61, 10"); a(f"s_add_u32 s3, s3, {L_STAT}"); a("v_lshl_add_u32 v206, v6, 4, s3")
    for r in range(0, 80, 2): a(f"v_mov_b64 {vr(ACC+r,2)}, 0")
    for r in range(0, 36, 2): a(f"v_mov_b64 {vr(SET[1]+r,2)}, 0")
    for t in range(5): a(f"v_mov_b32 v{AUG+2*t+1}, 0")
    a("v_lshrrev_b32 v7, 1, v5")
    a("v_mul_u32_u24 v12, 640, v7"); a("v_lshl_add_u32 v13, v3, 2, v4"); a("v_mul_u32_u24 v13, 40, v13"); a("v_add3_u32 v12, v12, v13, s65")
    a("v_mul_u32_u24 v13, 1440, v7"); a("v_mul_u32_u24 v14, 40, v4"); a("v_add3_u32 v13, v13, v14, s65")
    a("v_bfe_u32 v7, v0, 3, 1"); a("v_add_u32 v14, -1, v7"); a("v_not_b32 v15, v14")
    a("v_cmp_eq_u32 vcc, v7, v3"); a("v_bfe_i32 v2, v0, 2, 1"); a("v_and_b32 v2, 0x80008000, v2"); a("v_cndmask_b32 v7, 0, -1, vcc")
    a("s_waitcnt vmcnt(0)")
    for T in range(5):
        a(f"ds_read_b64_tr_b16 {vr(PA+4*T,2)}, v12 offset:{160+8*T}"); a(f"ds_read_b64_tr_b16 {vr(PX+2*T,2)}, v13 offset:{8*T}")
    a("s_waitcnt lgkmcnt(0)")
    for T in range(5):
        for q in range(2):
            a(f"v_bitop3_b32 v{PA+4*T+2+q}, v{PA+4*T+q}, v2, v15 bitop3:0x28")
            a(f"v_bitop3_b32 v{PA+4*T+q}, v{PA+4*T+q}, v2, v14 bitop3:0x28")
            a(f"v_bitop3_b32 v{PX+2*T+q}, v{PX+2*T+q}, v2, v7 bitop3:0x28")
    a("s_mov_b32 s68, 0"); a(f"s_mov_b32 s69, {RING}")
    def reads(s, st):
        X = [f"ds_read_b128 {vr(st+4*m,4)}, v{XA[s]} offset:{2048*m}" for m in range(4)]
        Wr = []
        for t in range(5):
            for j in range(2):
                reg = [MK, MK, MV, MV, EX][t]; off = s*2560 + j*1280 + [8, 40, 8, 40, 0][t]
                Wr.append(f"ds_read_b64_tr_b16 {vr(st+16+4*t+2*j,2)}, v{reg} offset:{off}")
        return [X[0]] + Wr[0:2] + X[1:] + Wr[2:]
    def mf(i, st):
        t, m = divmod(i, 4)
        return f"v_mfma_f32_16x16x32_bf16 {vr(ACC+20*m+4*t,4)}, {vr(st+16+4*t,4)}, {vr(st+4*m,4)}, {vr(ACC+20*m+4*t,4)}"
    need = lambda i: (3 + i if i < 4 else 6 + 2*(i//4))
    R0 = reads(0, SET[0]); R1 = reads(1, SET[1])
    seq = [(i, 1) for i in range(20 - defer, 20)] + [(i, 0) for i in range(20)] + [(i, 1) for i in range(20 - defer)]
    fill = [[] for _ in seq]
    k = 0; g = 0
    while k < 14: fill[g] += R0[k:k+2]; k += 2; g += 1
    g = max(g, defer); k = 0
    while k < 14: fill[g].append(R1[k]); k += 1; g += 1
    fill[g] += [f"s_add_u32 s69, s69, {SLOT}", f"s_cmp_eq_u32 s69, {RING_END}", f"s_cselect_b32 s69, {RING}, s69"]
    for q, h in enumerate([f"v_add_u32 v{XA[0]}, s69, v8", f"v_add_u32 v{MK}, s69, v9", f"v_add_u32 v{MV}, s69, v10", f"v_add_u32 v{EX}, s69, v11", f"v_xor_b32 v{XA[1]}, 16, v{XA[0]}"]):
        fill[g+1+q].append(h)
    fill[g+6] += ["s_add_u32 s68, s68, 1", "s_cmp_lt_u32 s68, 10"]
    a.stampw(1)
    a.label("L_mloop")
    a("s_barrier")
    issued = 0; done = 0
    for idx, (i, st) in enumerate(seq):
        if idx >= defer:
            n = need(i) + (14 if st == 1 else 0)
            if idx == len(seq) - 1: n = 28
            if n > done: a(f"s_waitcnt lgkmcnt({min(15, issued - n)})"); done = n
        a(mf(i, SET[st]))
        for f in fill[idx]:
            if f.startswith("ds_"): issued += 1
            a(f)
    a("s_cbranch_scc1 L_mloop")
    a("s_barrier")
    RA = [f"ds_read_b128 {vr(STAT+4*m,4)}, v206 offset:{256*m}" for m in range(4)]
    RA += [f"ds_read_b32 v{AUG+2*t}, v{[173,173,174,174,175][t]} offset:{[16,80,16,80,0][t]}" for t in range(5)]
    k = 0
    for i in range(20 - defer, 20):
        a(mf(i, SET[1]))
        for r in RA[k:k+2]: a(r)
        k += 2
    for r in RA[k:]: a(r)
    a("s_waitcnt lgkmcnt(0)")
    for m in range(4):
        for t in range(5):
            a(f"v_mfma_f32_16x16x16_bf16 {vr(ACC+20*m+4*t,4)}, {vr(AUG+2*t,2)}, {vr(STAT+4*m,2)}, {vr(ACC+20*m+4*t,4)}")
    a.stampw(2)
    a("s_cmp_lt_u32 s57, 4"); a("s_cbranch_scc0 L_qepi")

    a("v_and_b32 v7, 1, v0"); a("v_bfe_u32 v12, v0, 1, 1"); a("v_lshl_or_b32 v7, v12, 2, v7"); a("v_bfe_u32 v12, v0, 2, 1"); a("v_lshl_or_b32 v7, v12, 1, v7")
    a("v_lshlrev_b32 v7, 4, v7")
    a("s_lshl_b32 s3, s61, 13"); a(f"s_add_u32 s3, s3, {TRI}"); a("v_lshl_add_u32 v7, v6, 7, v7"); a("v_add_u32 v7, s3, v7")
    a("s_lshl_b32 s58, s60, 15"); a("s_sub_u32 s59, 32768, s58")
    a("v_lshrrev_b32 v12, 1, v3"); a("v_and_b32 v13, 1, v3")
    a("v_lshl_add_u32 v14, v12, 14, v7"); a("v_add_u32 v14, s58, v14")
    a("v_lshlrev_b32 v15, 5, v13"); a("v_xor_b32 v8, v14, v15"); a("v_xor_b32 v9, 16, v8")
    a("v_xor_b32 v10, 96, v14"); a("v_lshl_add_u32 v10, v13, 3, v10")
    a("v_add_u32 v14, s59, v7"); a("v_lshlrev_b32 v15, 4, v12"); a("v_xor_b32 v11, 64, v14"); a("v_xor_b32 v11, v11, v15"); a("v_lshl_add_u32 v11, v13, 3, v11")
    a("v_xor_b32 v14, 112, v14"); a("v_lshl_add_u32 v14, v13, 14, v14"); a("v_xor_b32 v12, 1, v12"); a("v_lshl_add_u32 v2, v12, 3, v14")
    a("v_cmp_gt_u32 vcc, 32, v0")
    Pb = [96, 116]; Tb = [136, 146]; PH = 156; CP = 234; TT = 236
    def front(m):
        A = ACC + 20*m; T = Tb[m & 1]; P = Pb[m & 1]
        cv = []
        for q, (t, h) in enumerate([(0,0),(0,1),(1,0),(1,1),(4,0),(4,1),(2,0),(2,1),(3,0),(3,1)]):
            cv.append(f"v_cvt_pk_bf16_f32 v{T+q}, v{A+4*t+2*h}, v{A+4*t+2*h+1}")
        mm = [f"v_mfma_f32_16x16x32_bf16 {vr(P+4*u,4)}, {vr(PA+4*u,4)}, {vr(T,4)}, 0" for u in range(5)]
        mm += [f"v_mfma_f32_16x16x16_bf16 {vr(P+4*u,4)}, {vr(PX+2*u,2)}, {vr(T+4,2)}, {vr(P+4*u,4)}" for u in range(5)]
        post = [f"ds_write_b64 v11, {vr(T+6,2)} offset:{2048*m}", f"ds_write_b64 v11, {vr(T+8,2)} offset:{16384+2048*m}",
                f"v_cndmask_b32 v{T+4}, v{T+4}, v{STAT+4*m+1}, vcc", f"v_cndmask_b32 v{T+5}, v{T+5}, v{AUG+1}, vcc",
                f"ds_write_b64 v2, {vr(T+4,2)} offset:{2048*m}"]
        return cv, mm, post
    cv, mm, post = front(0)
    for x in cv + mm + post: a(x)
    for m in range(4):
        P = Pb[m & 1]
        sm = [f"v_mov_b32 v{CP}, v{STAT+4*m+3}"] + softmax_ops(list(range(P, P+20)), PH, CP, TT, npair=STAT+4*m+2)
        if m < 3:
            cv, mm, post = front(m+1)
            for x in cv: a(x)
            ins = mm + post
        else: ins = []
        k = 0
        for idx, x in enumerate(sm):
            a(x)
            if idx % 3 == 2 and k < len(ins): a(ins[k]); k += 1
        assert k == len(ins)
        a(f"ds_write_b128 v8, {vr(PH,4)} offset:{2048*m}"); a(f"ds_write_b128 v9, {vr(PH+4,4)} offset:{2048*m}"); a(f"ds_write_b64 v10, {vr(PH+8,2)} offset:{2048*m}")
    a("v_lshrrev_b32 v7, 5, v0"); a("v_lshl_add_u32 v12, v7, 3, v4"); a("v_lshlrev_b32 v12, 7, v12")
    a("v_and_b32 v13, 1, v4"); a("v_lshrrev_b32 v14, 1, v4"); a("v_lshl_or_b32 v13, v14, 2, v13"); a("v_lshl_or_b32 v12, v13, 4, v12")
    a(f"s_lshl_b32 s3, s{sWV}, 14"); a(f"s_add_u32 s3, s3, {TRI}"); a("v_add_u32 v12, s3, v12")
    a("v_and_b32 v13, 1, v5"); a("v_lshrrev_b32 v14, 1, v5"); a("v_and_b32 v15, 1, v3")
    a("v_lshl_or_b32 v168, v13, 1, v15"); a("v_lshlrev_b32 v168, 4, v168"); a("v_xor_b32 v168, v168, v12"); a("v_lshl_add_u32 v168, v14, 3, v168")
    a("v_xor_b32 v170, 96, v12"); a("v_lshl_add_u32 v170, v13, 3, v170")
    a(f"s_and_b32 s3, s{sWV}, 1"); a("s_cmp_eq_u32 s3, 0"); a("s_mov_b32 s3, 0xfffeba98"); a("s_cselect_b32 s3, 0xfffba98e, s3")
    a("v_lshl_add_u32 v13, v15, 2, v5"); a("v_lshlrev_b32 v13, 2, v13"); a("v_bfe_u32 v13, s3, v13, 4"); a("v_lshlrev_b32 v13, 3, v13")
    a("v_xor_b32 v172, v13, v12")
    for r in (168, 170, 172): a(f"v_xor_b32 v{r+1}, 32, v{r}")
    a("v_and_b32 v13, 31, v0"); a("v_mul_u32_u24 v14, 21, v7"); a("v_add_u32 v14, v14, v13"); a("v_cmp_lt_u32 vcc, 20, v13")
    a(f"v_mov_b32 v15, {OOB:#x}"); a("v_lshlrev_b32 v174, 4, v14"); a("v_lshlrev_b32 v175, 3, v14")
    a("v_cndmask_b32 v174, v174, v15, vcc"); a("v_cndmask_b32 v175, v175, v15, vcc")
    a(f"s_lshl2_add_u32 s3, s62, s{sWV}"); a("s_lshl4_add_u32 s3, s3, s54"); a("s_mul_i32 s58, s3, 1792"); a(f"s_add_u32 s58, s58, {WS_KV}")
    a("s_waitcnt lgkmcnt(0)"); a("s_barrier")
    a.stampw(3)
    D0, D1, FR = 16, 32, 48
    def kvreads(ks):
        f = FR + 12*(ks % 3)
        return [f"ds_read_b64_tr_b16 {vr(f+4*o+2*j,2)}, v{[172,168,170][o]+j} offset:{2048*ks+512*j}" for o in range(3) for j in range(2)]
    for x in kvreads(0) + kvreads(1): a(x)
    for ks in range(8):
        f = FR + 12*(ks % 3)
        a(f"s_waitcnt lgkmcnt({6 if ks < 7 else 0})")
        a(f"v_mfma_f32_32x32x16_bf16 {vr(D0,16)}, {vr(f+4,4)}, {vr(f,4)}, {vr(D0,16) if ks else 0}")
        if ks < 6:
            for x in kvreads(ks+2)[:3]: a(x)
        a(f"v_mfma_f32_32x32x16_bf16 {vr(D1,16)}, {vr(f+8,4)}, {vr(f,4)}, {vr(D1,16) if ks else 0}")
        if ks < 6:
            for x in kvreads(ks+2)[3:]: a(x)
    a("s_barrier")
    for q in range(10): a(f"v_cvt_pk_bf16_f32 v{FR+q}, v{D0+2*q}, v{D0+2*q+1}")
    a(f"buffer_store_dwordx4 {vr(FR,4)}, v174, s[{rWS}:{rWS+3}], s58 offen sc1")
    a(f"buffer_store_dwordx4 {vr(FR+4,4)}, v174, s[{rWS}:{rWS+3}], s58 offen offset:672 sc1")
    a(f"buffer_store_dwordx2 {vr(FR+8,2)}, v175, s[{rWS}:{rWS+3}], s58 offen offset:1344 sc1")
    a("s_branch L_common")

    a.label("L_qepi")
    a(f"s_and_b32 s3, s{sX}, 1"); a("s_lshl1_add_u32 s3, s3, s57"); a("s_sub_u32 s3, s3, 4"); a("s_mul_i32 s58, s3, 655360")
    a("s_lshl1_add_u32 s3, s54, s61"); a("s_mul_i32 s3, s3, 2560"); a("s_add_u32 s58, s58, s3"); a(f"s_add_u32 s58, s58, {WS_Q}")
    a("s_mul_i32 s3, s60, 163840"); a("s_sub_u32 s53, 491520, s3")
    a("v_mov_b32 v12, s3"); a("v_mov_b32 v13, s53"); a("v_cmp_gt_u32 vcc, 32, v0")
    a("s_add_u32 s59, s58, s53"); a("s_add_u32 s53, s58, s3")
    a("v_and_b32 v7, 1, v3"); a("v_mul_u32_u24 v7, 81920, v7"); a("v_cndmask_b32 v12, v13, v12, vcc")
    a("v_lshrrev_b32 v14, 5, v0"); a("v_lshl_add_u32 v14, v14, 9, v7"); a("v_lshl_add_u32 v8, v6, 4, v14")
    a("v_add_u32 v12, v12, v7"); a("v_lshl_add_u32 v9, v6, 3, v12")
    for m in range(4):
        A = ACC + 20*m; T = 96 + 12*m
        for r in range(0, 20, 2): a(f"v_pk_mul_f32 {vr(A+r,2)}, {vr(A+r,2)}, {vr(STAT+4*m+2,2)} op_sel_hi:[1,0]")
        for q in range(10): a(f"v_cvt_pk_bf16_f32 v{T+q}, v{A+2*q}, v{A+2*q+1}")
        for q in (0, 1, 4, 5): a(f"v_permlane16_swap_b32 v{T+q}, v{T+q+2}")
        a(f"buffer_store_dwordx4 {vr(T,4)}, v8, s[{rWS}:{rWS+3}], s53 offen offset:{(m>>1)*1280+(m&1)*256} sc1")
        a(f"buffer_store_dwordx4 {vr(T+4,4)}, v8, s[{rWS}:{rWS+3}], s59 offen offset:{(m>>1)*1280+(m&1)*256} sc1")
        a(f"buffer_store_dwordx2 {vr(T+8,2)}, v9, s[{rWS}:{rWS+3}], s58 offen offset:{1024+(m>>1)*1280+(m&1)*128} sc1")
    a.stampw(3)
    a("s_branch L_common")

    a.label("L_helper")
    a.srdw(rWR, D*2); a.srdw(rG, D*F*2); a.srdw(rU, D*F*2); a.srdw(rDN, D*F*2)
    XR, CR, WR, FF = 16, 36, 56, 76
    a(f"s_sub_u32 s54, s{sJR}, 24"); a(f"s_lshl3_add_u32 s55, s{sX}, s54")
    a(f"s_lshl3_add_u32 s56, s55, s{sWV}")
    a("v_lshrrev_b32 v3, 4, v0"); a("v_and_b32 v4, 15, v0"); a("v_lshlrev_b32 v4, 4, v4")
    a("s_lshl_b32 s3, s56, 2"); a("v_add_u32 v5, s3, v3"); a("s_movk_i32 s3, 1280"); a("v_mad_u32_u24 v6, v5, s3, v4")
    a(f"s_lshr_b32 s57, s{sX}, 1"); a(f"s_and_b32 s58, s{sX}, 1")
    a("s_lshl3_add_u32 s59, s57, s54"); a("s_lshr_b32 s60, s59, 1"); a("s_and_b32 s59, s59, 1")
    a("s_mul_i32 s3, s60, 52"); a("s_lshr_b32 s3, s3, 8"); a("s_add_u32 s3, s3, s58"); a("s_mul_i32 s3, s3, 640"); a("s_lshl_b32 s61, s60, 7"); a("s_add_u32 s61, s61, s3")
    a(f"s_lshr_b32 s3, s{sWV}, 2"); a("s_lshl1_add_u32 s3, s3, s59"); a(f"s_and_b32 s53, s{sWV}, 3"); a("s_lshl2_add_u32 s3, s3, s53"); a("s_mul_i32 s3, s3, 30720"); a("s_add_u32 s3, s3, s61")
    a("s_cmp_eq_u32 s60, 15"); a(f"s_cselect_b32 s3, {OOB:#x}, s3")
    a("v_lshrrev_b32 v7, 3, v0"); a("v_mul_u32_u24 v7, 3840, v7"); a("v_and_b32 v8, 7, v0"); a("v_lshl_add_u32 v7, v8, 4, v7"); a("v_add_u32 v7, s3, v7")
    a("s_mov_b32 s62, 0")
    a("s_waitcnt lgkmcnt(0)")
    for i in range(5):
        a(f"buffer_load_dwordx4 {vr(XR+4*i,4)}, v6, s[{rX}:{rX+3}], 0 offen offset:{256*i}")
        a(f"buffer_load_dwordx4 {vr(CR+4*i,4)}, v7, s[{rW}:{rW+3}], s62 offen")
        if i < 4: a("s_add_u32 s62, s62, 491520")
    for i in range(5): a(f"buffer_load_dwordx4 {vr(WR+4*i,4)}, v4, s[{rWR}:{rWR+3}], 0 offen offset:{256*i}")
    a(f"s_lshr_b32 s3, s{sJ}, 1"); a("s_lshl4_add_u32 s3, s58, s3"); a("s_mul_i32 s3, s3, 800"); a("v_lshlrev_b32 v2, 4, v0"); a(f"s_mov_b32 m0, {L_PHIO}")
    a(f"buffer_load_dwordx4 v2, s[{rPHI}:{rPHI+3}], s3 offen lds")
    for q in range(4): a(f"v_mov_b32 v{12+q}, s{sSENT}")
    a(f"s_mul_i32 s62, s56, {CLR_PER_WAVE}"); a(f"s_add_u32 s62, s62, {WS_CLR}")
    for i in range(13):
        a(f"buffer_store_dwordx4 v[12:15], v2, s[{rWS}:{rWS+3}], s62 offen offset:{1024*(i%4)} sc1")
        if i % 4 == 3: a("s_add_u32 s62, s62, 4096")
    a("s_lshl3_add_u32 s3, s57, s54"); a("s_lshl_b32 s3, s3, 6"); a("v_add_u32 v9, s3, v0"); a("v_mul_u32_u24 v9, 1280, v9")
    a("s_mul_i32 s3, s58, 640"); a("s_mul_i32 s53, s54, 30720"); a("s_add_u32 s3, s3, s53")
    for i in range(2):
        a(f"v_add_u32 v116, {64*i}, v0"); a("v_mul_u32_u24 v117, 13108, v116"); a("v_lshrrev_b32 v117, 16, v117")
        a("v_mul_u32_u24 v117, 640, v117"); a("v_lshl_add_u32 v117, v116, 7, v117"); a(f"v_add_u32 v{10+i}, s3, v117")
    a("v_cmp_lt_u32 vcc, 55, v0"); a(f"v_mov_b32 v116, {OOB:#x}"); a("v_cndmask_b32 v11, v11, v116, vcc")
    a(f"s_add_u32 s3, s{sWV}, {touch}"); a("s_lshl_b32 s62, s3, 7"); a("s_mul_i32 s63, s3, 245760")
    a("s_cmp_ge_u32 s3, 10"); a(f"s_cselect_b32 s62, {OOB:#x}, s62")
    a(f"buffer_load_dword v116, v9, s[{rX}:{rX+3}], s62 offen")
    a(f"buffer_load_dword v117, v10, s[{rW}:{rW+3}], s63 offen")
    a(f"buffer_load_dword v118, v11, s[{rW}:{rW+3}], s63 offen")
    a("s_waitcnt vmcnt(17)")
    a.stampw(1)
    for q in range(20):
        a(f"v_lshlrev_b32 v{FF+2*q}, 16, v{XR+q}"); a(f"v_and_b32 v{FF+2*q+1}, 0xffff0000, v{XR+q}")
    a(f"v_pk_add_f32 v[120:121], {vr(FF,2)}, {vr(FF+2,2)}"); a(f"v_pk_add_f32 v[122:123], {vr(FF+4,2)}, {vr(FF+6,2)}")
    for q in range(8, 40, 4):
        a(f"v_pk_add_f32 v[120:121], v[120:121], {vr(FF+q,2)}"); a(f"v_pk_add_f32 v[122:123], v[122:123], {vr(FF+q+2,2)}")
    a("v_pk_add_f32 v[120:121], v[120:121], v[122:123]"); a("v_add_f32 v120, v120, v121")
    a.rowsum16(120)
    a("v_mul_f32 v120, 0x3acccccd, v120")
    a("v_mov_b64 v[122:123], 0"); a("v_mov_b64 v[124:125], 0")
    for q in range(0, 40, 4):
        a(f"v_pk_add_f32 v[126:127], {vr(FF+q,2)}, v[120:121] op_sel_hi:[1,0] neg_lo:[0,1] neg_hi:[0,1]")
        a(f"v_pk_add_f32 v[128:129], {vr(FF+q+2,2)}, v[120:121] op_sel_hi:[1,0] neg_lo:[0,1] neg_hi:[0,1]")
        a("v_pk_fma_f32 v[122:123], v[126:127], v[126:127], v[122:123]"); a("v_pk_fma_f32 v[124:125], v[128:129], v[128:129], v[124:125]")
    a("v_pk_add_f32 v[122:123], v[122:123], v[124:125]"); a("v_add_f32 v122, v122, v123")
    a.rowsum16(122)
    a("v_mul_f32 v122, 0x3acccccd, v122")
    a("v_cvt_pk_bf16_f32 v122, v122, v122"); a("v_and_b32 v122, 0xffff0000, v122"); a("v_add_f32 v122, 0x3727c5ac, v122")
    a("v_cvt_pk_bf16_f32 v122, v122, v122"); a("v_and_b32 v122, 0xffff0000, v122"); a("v_sqrt_f32 v122, v122")
    a("v_cvt_pk_bf16_f32 v126, v120, v122")
    a("v_and_b32 v122, 0xffff0000, v126"); a("v_rcp_f32 v124, v122"); a("v_lshlrev_b32 v120, 16, v126")
    a("v_mov_b32 v128, 0"); a("v_mov_b32 v129, 0")
    for q in range(20):
        a(f"v_pk_add_f32 {vr(FF+2*q,2)}, {vr(FF+2*q,2)}, v[120:121] op_sel_hi:[1,0] neg_lo:[0,1] neg_hi:[0,1]")
    for q in range(20): a(f"v_pk_mul_f32 {vr(FF+2*q,2)}, {vr(FF+2*q,2)}, v[124:125] op_sel_hi:[1,0]")
    for q in range(20): a(f"v_cvt_pk_bf16_f32 v{XR+q}, v{FF+2*q}, v{FF+2*q+1}")
    for q in range(20): a(f"v_dot2c_f32_bf16 v{128+(q&1)}, v{XR+q}, v{WR+q}")
    a("v_add_f32 v128, v128, v129")
    a.rowsum16(128)
    a("v_cvt_pk_bf16_f32 v128, v128, v128"); a("v_ashrrev_i32 v129, 31, v128"); a("v_or_b32 v129, 0x80000000, v129"); a("v_xor_b32 v128, v128, v129")
    a("v_and_b32 v128, 0xffff0000, v128"); a("v_sub_u32 v129, 2047, v5"); a("v_or_b32 v127, v128, v129")
    a(f"s_lshl_b32 s3, s{sWV}, 5"); a(f"s_add_u32 s3, s3, {L_HM}"); a("v_lshl_add_u32 v129, v3, 3, s3")
    a("ds_write_b64 v129, v[126:127]")
    a("s_mov_b32 s62, 0x00003f80"); a("s_mov_b32 s63, 0x3f800000")
    for r in range(0, 8, 2): a(f"v_mov_b64 {vr(FF+r,2)}, 0")
    for i in range(5):
        for q in range(4):
            a(f"v_dot2c_f32_bf16 v{FF+2*q}, s62, v{CR+4*i+q}"); a(f"v_dot2c_f32_bf16 v{FF+2*q+1}, s63, v{CR+4*i+q}")
    for q in range(4): a(f"v_permlane32_swap_b32 v{FF+q}, v{FF+q+4}")
    a(f"v_pk_add_f32 {vr(FF,2)}, {vr(FF,2)}, {vr(FF+4,2)}"); a(f"v_pk_add_f32 {vr(FF+2,2)}, {vr(FF+2,2)}, {vr(FF+6,2)}")
    for q in range(2): a(f"v_permlane16_swap_b32 v{FF+q}, v{FF+q+2}")
    a(f"v_pk_add_f32 {vr(FF,2)}, {vr(FF,2)}, {vr(FF+2,2)}")
    for q in range(2): a(f"v_add_f32_dpp v{FF+q}, v{FF+q}, v{FF+q} row_ror:8 row_mask:0xf bank_mask:0xf")
    a(f"s_lshl_b32 s3, s{sWV}, 8"); a(f"s_add_u32 s3, s3, {L_HM+256}"); a("v_lshl_add_u32 v129, v8, 5, s3"); a("v_lshl_add_u32 v129, v3, 3, v129")
    a(f"ds_write_b64 v129, {vr(FF,2)}")
    a("s_waitcnt lgkmcnt(0)"); a("s_barrier")
    a(f"s_cmp_eq_u32 s{sWV}, 0"); a("s_cbranch_scc0 L_h1")
    a("v_and_b32 v129, 31, v0"); a(f"v_lshlrev_b32 v128, 3, v129"); a(f"v_add_u32 v128, {L_HM}, v128"); a("ds_read_b64 v[126:127], v128")
    a("s_lshl_b32 s62, s55, 7"); a(f"s_add_u32 s62, s62, {WS_SM}"); a("v_lshlrev_b32 v129, 2, v129"); a("v_mov_b32 v125, 0")
    a("s_waitcnt lgkmcnt(0)")
    a(f"buffer_store_dword v126, v129, s[{rWS}:{rWS+3}], s62 offen sc1")
    a.top2(127, 125, 124, 62, 63)
    a("v_mov_b32 v122, s62"); a("v_mov_b32 v123, s63"); a("s_lshl_b32 s62, s55, 3"); a(f"s_add_u32 s62, s62, {WS_C1}")
    a("s_mov_b64 exec, 1")
    a(f"buffer_store_dwordx2 v[122:123], off, s[{rWS}:{rWS+3}], s62 sc1")
    a("s_mov_b64 exec, -1")
    a.label("L_h1")
    a(f"s_cmp_eq_u32 s{sWV}, 1"); a("s_cbranch_scc0 L_h2")
    a("v_lshlrev_b32 v129, 2, v0"); a(f"v_add_u32 v128, {L_HM+256}, v129")
    for q in range(8): a(f"ds_read_b32 v{FF+q}, v128 offset:{256*q}")
    a("s_lshl_b32 s62, s61, 1"); a("s_mul_i32 s3, s59, 7680"); a("s_add_u32 s62, s62, s3"); a(f"s_add_u32 s62, s62, {WS_CS}")
    a("s_cmp_eq_u32 s60, 15"); a(f"s_cselect_b32 s62, {OOB:#x}, s62")
    a("s_waitcnt lgkmcnt(0)")
    a(f"v_pk_add_f32 {vr(FF,2)}, {vr(FF,2)}, {vr(FF+2,2)}"); a(f"v_pk_add_f32 {vr(FF+4,2)}, {vr(FF+4,2)}, {vr(FF+6,2)}")
    a(f"v_pk_add_f32 {vr(FF,2)}, {vr(FF,2)}, {vr(FF+4,2)}"); a(f"v_add_f32 v{FF}, v{FF}, v{FF+1}")
    a(f"v_and_b32 v{FF+1}, 0xffff0000, v{FF}"); a(f"v_sub_f32 v{FF}, v{FF}, v{FF+1}"); a(f"v_cvt_pk_bf16_f32 v{FF}, v{FF+1}, v{FF}")
    a(f"buffer_store_dword v{FF}, v129, s[{rWS}:{rWS+3}], s62 offen sc1")
    a.label("L_h2")
    a("s_waitcnt vmcnt(0)"); a("s_barrier")
    a.stampw(2)
    a(f"s_cmp_eq_u32 s{sWV}, 0"); a("s_cbranch_scc0 L_h3")
    a("v_mov_b32 v122, 1"); a("s_and_b32 s3, s55, 1"); a("s_lshl_b32 s3, s3, 7")
    a("s_mov_b64 exec, 1")
    a(f"buffer_atomic_add v122, off, s[{rDBG}:{rDBG+3}], s3 sc1")
    a("s_mov_b64 exec, -1")
    a.label("L_h3")
    a("s_cmp_lt_u32 s54, 6"); a("s_cbranch_scc0 L_h4")
    a(f"s_mul_i32 s64, s{sX}, 6"); a("s_add_u32 s64, s64, s54")
    a("v_lshrrev_b32 v7, 2, v0"); a("v_mul_u32_u24 v7, 3072, v7"); a("v_and_b32 v8, 3, v0"); a("v_lshl_add_u32 v7, v8, 4, v7")
    a(f"s_mul_i32 s62, s{sWV}, 245760"); a("s_lshl_b32 s3, s64, 6"); a("s_add_u32 s62, s62, s3")
    a(f"s_mul_i32 s65, s{sWV}, 5120")
    a("s_mul_i32 s63, s64, 40960"); a("s_add_u32 s63, s63, s65")
    for i in range(5):
        a(f"s_add_u32 m0, s65, {L_GI+1024*i}"); a(f"buffer_load_dwordx4 v7, s[{rG}:{rG+3}], s62 offen lds")
        a(f"s_add_u32 m0, s65, {L_UI+1024*i}"); a(f"buffer_load_dwordx4 v7, s[{rU}:{rU+3}], s62 offen lds")
        a("s_add_u32 s62, s62, 49152")
    a(f"s_add_u32 m0, s65, {L_DI}")
    for i in range(4): a(f"buffer_load_dwordx4 v2, s[{rDN}:{rDN+3}], s63 offen offset:{1024*i} lds")
    a("s_add_u32 m0, m0, 4096"); a("s_add_u32 s63, s63, 4096")
    a(f"buffer_load_dwordx4 v2, s[{rDN}:{rDN+3}], s63 offen lds")
    a.label("L_h4")
    a.flagpoll(122, 123)
    a.stampw(3)
    a("v_lshlrev_b32 v124, 3, v0"); a(f"s_movk_i32 s3, {WS_C1}")
    a(f"buffer_load_dwordx2 v[122:123], v124, s[{rWS}:{rWS+3}], s3 offen sc1")
    a("s_waitcnt vmcnt(0)")
    a.top2(122, 123, 124, 66, 67)
    a("s_cmp_lt_u32 s54, 6"); a("s_cbranch_scc0 L_yred")
    a("s_and_b32 s66, s66, 0x7ff"); a("s_and_b32 s67, s67, 0x7ff"); a("s_sub_u32 s66, 2047, s66"); a("s_sub_u32 s67, 2047, s67")
    a("v_mov_b32 v9, s66"); a("v_mov_b32 v10, s67"); a("v_and_b32 v11, 1, v0"); a("v_cmp_eq_u32 vcc, 1, v11"); a("v_lshrrev_b32 v5, 5, v0")
    a("v_cndmask_b32 v9, v9, v10, vcc"); a("v_lshlrev_b32 v10, 2, v9"); a("v_mul_u32_u24 v9, 1280, v9"); a("v_lshl_add_u32 v9, v5, 4, v9")
    a(f"s_mul_i32 s62, s{sWV}, 160"); a(f"s_movk_i32 s3, {WS_SM}")
    a(f"buffer_load_dword v126, v10, s[{rWS}:{rWS+3}], s3 offen sc1")
    for s_ in range(5): a(f"buffer_load_dwordx4 {vr(XR+4*s_,4)}, v9, s[{rX}:{rX+3}], s62 offen offset:{32*s_}")
    a("v_bfe_u32 v6, v0, 2, 2"); a("v_lshl_add_u32 v6, v5, 3, v6")
    a("v_bfe_u32 v12, v0, 4, 1"); a("v_lshl_add_u32 v12, v12, 2, v8"); a("v_lshlrev_b32 v12, 3, v12")
    a("v_lshl_add_u32 v13, v6, 6, v12"); a("v_add_u32 v13, s65, v13")
    GB, UB = 132, 152
    for s_ in range(5):
        for j in range(2):
            a(f"ds_read_b64_tr_b16 {vr(GB+4*s_+2*j,2)}, v13 offset:{L_GI+1024*s_+256*j}")
    for s_ in range(5):
        for j in range(2):
            a(f"ds_read_b64_tr_b16 {vr(UB+4*s_+2*j,2)}, v13 offset:{L_UI+1024*s_+256*j}")
    a("s_waitcnt vmcnt(0)")
    a("v_and_b32 v122, 0xffff0000, v126"); a("v_rcp_f32 v124, v122"); a("v_lshlrev_b32 v120, 16, v126")
    for q in range(20):
        a(f"v_lshlrev_b32 v{FF+2*q}, 16, v{XR+q}"); a(f"v_and_b32 v{FF+2*q+1}, 0xffff0000, v{XR+q}")
    for q in range(20):
        a(f"v_pk_add_f32 {vr(FF+2*q,2)}, {vr(FF+2*q,2)}, v[120:121] op_sel_hi:[1,0] neg_lo:[0,1] neg_hi:[0,1]")
    for q in range(20): a(f"v_pk_mul_f32 {vr(FF+2*q,2)}, {vr(FF+2*q,2)}, v[124:125] op_sel_hi:[1,0]")
    for q in range(20): a(f"v_cvt_pk_bf16_f32 v{XR+q}, v{FF+2*q}, v{FF+2*q+1}")
    a("s_waitcnt lgkmcnt(0)")
    DG, DU = 176, 192
    for s_ in range(5):
        a(f"v_mfma_f32_32x32x16_bf16 {vr(DG,16)}, {vr(XR+4*s_,4)}, {vr(GB+4*s_,4)}, {vr(DG,16) if s_ else 0}")
        a(f"v_mfma_f32_32x32x16_bf16 {vr(DU,16)}, {vr(XR+4*s_,4)}, {vr(UB+4*s_,4)}, {vr(DU,16) if s_ else 0}")
    a("v_cmp_gt_u32 vcc, 32, v0"); a(f"v_lshlrev_b32 v14, 3, v0"); a(f"v_add_u32 v14, {L_GU}, v14"); a(f"s_lshl_b32 s3, s{sWV}, 9"); a("v_add_u32 v15, s3, v14")
    for q in range(2): a(f"v_cndmask_b32 v{120+q}, v{DU+q}, v{DG+q}, vcc")
    a("ds_write_b64 v15, v[120:121]")
    a("s_waitcnt lgkmcnt(0)"); a("s_barrier")
    for q in range(8): a(f"ds_read_b64 {vr(FF+2*q,2)}, v14 offset:{512*q}")
    a("s_movk_i32 s3, 1280"); a("v_mad_u32_u24 v13, v6, s3, v12"); a(f"s_lshl_b32 s3, s{sWV}, 6"); a(f"s_add_u32 s3, s3, {L_DI}"); a("v_add_u32 v13, s3, v13")
    a("s_waitcnt lgkmcnt(0)")
    for u in range(3):
        for s_ in range(2):
            for j in range(2): a(f"ds_read_b64_tr_b16 {vr(GB+8*u+4*s_+2*j,2)}, v13 offset:{512*u+20480*s_+5120*j}")
    for q in range(4): a(f"v_pk_add_f32 {vr(FF+2*q,2)}, {vr(FF+2*q,2)}, {vr(FF+2*q+8,2)}")
    for q in range(2): a(f"v_pk_add_f32 {vr(FF+2*q,2)}, {vr(FF+2*q,2)}, {vr(FF+2*q+4,2)}")
    a(f"v_pk_add_f32 {vr(FF,2)}, {vr(FF,2)}, {vr(FF+2,2)}")
    a(f"v_permlane32_swap_b32 v{FF}, v{FF+1}")
    a(f"v_cvt_pk_bf16_f32 v120, v{FF}, v{FF+1}"); a("v_lshlrev_b32 v121, 16, v120"); a("v_and_b32 v120, 0xffff0000, v120")
    a(f"v_mul_f32 v122, {LOG2E|0x80000000:#x}, v121"); a("v_exp_f32 v122, v122"); a("v_add_f32 v122, 1.0, v122"); a("v_rcp_f32 v122, v122")
    a("v_mul_f32 v121, v121, v122"); a("v_cvt_pk_bf16_f32 v121, v121, v121"); a("v_and_b32 v121, 0xffff0000, v121")
    a("v_mul_f32 v121, v121, v120"); a("v_cvt_pk_bf16_f32 v121, v121, v121")
    a(f"s_lshl_b32 s3, s{sWV}, 7"); a(f"s_add_u32 s3, s3, {L_HB}"); a("v_lshl_add_u32 v14, v0, 1, s3"); a("ds_write_b16 v14, v121")
    a("v_lshlrev_b32 v14, 6, v11"); a("v_lshl_add_u32 v14, v5, 4, v14"); a("v_add_u32 v14, s3, v14")
    a("s_waitcnt lgkmcnt(0)")
    a(f"ds_read_b128 {vr(XR,4)}, v14"); a(f"ds_read_b128 {vr(XR+4,4)}, v14 offset:32")
    a("v_and_b32 v14, 31, v0"); a("v_lshlrev_b32 v14, 2, v14"); a("s_movk_i32 s3, 2560"); a("v_mad_u32_u24 v14, v5, s3, v14")
    a("s_mul_i32 s62, s64, 5120"); a(f"s_lshl_b32 s3, s{sWV}, 7"); a("s_add_u32 s62, s62, s3"); a(f"s_add_u32 s62, s62, {WS_YP}")
    a(f"s_cmp_lt_u32 s{sWV}, 4"); a(f"s_cselect_b32 s63, s62, {OOB:#x}")
    a("s_waitcnt lgkmcnt(0)")
    for s_ in range(2):
        for u in range(3):
            a(f"v_mfma_f32_32x32x16_bf16 {vr(DG+16*u,16)}, {vr(XR+4*s_,4)}, {vr(GB+8*u+4*s_,4)}, {vr(DG+16*u,16) if s_ else 0}")
    for u in range(3):
        a(f"v_cndmask_b32 v{120+u}, v{DG+16*u+1}, v{DG+16*u}, vcc")
        a(f"buffer_store_dword v{120+u}, v14, s[{rWS}:{rWS+3}], s{63 if u == 2 else 62} offen offset:{1024*u} sc1")
    a("s_branch L_h5")
    a.label("L_yred")
    a("s_cmp_eq_u32 s54, 6"); a("s_cselect_b32 s66, s66, s67")
    a("v_mul_u32_u24 v7, 3277, v0"); a("v_lshrrev_b32 v7, 16, v7"); a("s_movk_i32 s3, 4800"); a("v_mad_u32_u24 v7, v7, s3, v2")
    a("v_cmp_lt_u32 vcc, 59, v0"); a(f"v_mov_b32 v8, {OOB:#x}"); a("s_sub_u32 s63, s54, 6"); a("v_cndmask_b32 v7, v7, v8, vcc")
    a("s_mul_i32 s63, s63, 2560"); a(f"s_mul_i32 s3, s{sX}, 320"); a("s_add_u32 s63, s63, s3")
    a(f"s_mul_i32 s62, s{sWV}, 30720"); a("s_add_u32 s62, s62, s63"); a(f"s_add_u32 s62, s62, {WS_YP}"); a("s_add_u32 s64, s62, 15360")
    a.poll([f"buffer_load_dwordx4 v[16:19], v7, s[{rWS}:{rWS+3}], s62 offen sc1", f"buffer_load_dwordx4 v[20:23], v7, s[{rWS}:{rWS+3}], s64 offen sc1"], range(16, 24), 24, 1)
    a("v_pk_add_f32 v[16:17], v[16:17], v[20:21]"); a("v_pk_add_f32 v[18:19], v[18:19], v[22:23]")
    a(f"s_lshl_b32 s3, s{sWV}, 10"); a("v_add_u32 v8, s3, v2"); a("ds_write_b128 v8, v[16:19]")
    a("s_waitcnt lgkmcnt(0)"); a("s_barrier")
    a(f"s_lshl_b32 s3, s{sWV}, 6"); a("v_add_u32 v8, s3, v0"); a("v_cmp_lt_u32 vcc, 79, v8"); a("v_min_u32 v8, 79, v8"); a("v_lshlrev_b32 v8, 2, v8")
    for q in range(24): a(f"ds_read_b32 v{16+q}, v8 offset:{1024*(q//3)+320*(q%3)}")
    a(f"v_mov_b32 v9, {OOB:#x}"); a("v_cndmask_b32 v9, v8, v9, vcc")
    a("s_and_b32 s66, s66, 0xffff0000"); a("s_cmp_lt_i32 s66, 0"); a("s_mov_b32 s3, 0xffff0000"); a("s_cselect_b32 s3, 0x80000000, s3"); a("s_xor_b32 s66, s66, s3")
    a(f"v_mov_b32 v10, {LOG2E|0x80000000:#x}"); a("v_mul_f32 v10, s66, v10"); a("v_exp_f32 v10, v10"); a("v_add_f32 v10, 1.0, v10"); a("v_rcp_f32 v10, v10")
    a("v_cvt_pk_bf16_f32 v10, v10, v10"); a("v_and_b32 v10, 0xffff0000, v10")
    a("s_waitcnt lgkmcnt(0)")
    for q in range(6): a(f"v_pk_add_f32 {vr(16+2*q,2)}, {vr(16+2*q,2)}, {vr(28+2*q,2)}")
    for q in range(3): a(f"v_pk_add_f32 {vr(16+2*q,2)}, {vr(16+2*q,2)}, {vr(22+2*q,2)}")
    a("v_pk_add_f32 v[16:17], v[16:17], v[18:19]"); a("v_pk_add_f32 v[16:17], v[16:17], v[20:21]"); a("v_add_f32 v16, v16, v17")
    a("v_cvt_pk_bf16_f32 v16, v16, v16"); a("v_and_b32 v16, 0xffff0000, v16"); a("v_mul_f32 v16, v16, v10")
    a(f"s_add_u32 s63, s63, {WS_Y}")
    a(f"buffer_store_dword v16, v9, s[{rWS}:{rWS+3}], s63 offen sc1")
    a.label("L_h5")
    a("s_barrier")
    a(f"s_cmp_lt_u32 s{sWV}, 4"); a("s_cbranch_scc1 L_common")
    a(f"s_sub_u32 s60, s{sWV}, 4")
    wo_addr()
    a.label("L_h6")
    wo_round()
    a("s_cmp_lt_u32 s69, 81920"); a("s_cbranch_scc1 L_h6")

    a.label("L_common")
    a.stampw(4)
    a(f"s_and_b32 s3, s{sX}, 1"); a(f"s_lshr_b32 s54, s{sJ}, 1"); a("s_lshl4_add_u32 s54, s3, s54")
    a(f"s_and_b32 s55, s{sX}, 6"); a(f"s_and_b32 s3, s{sJ}, 1"); a("s_add_u32 s55, s55, s3"); a(f"s_lshl3_add_u32 s55, s55, s{sWV}")
    a(f"s_lshr_b32 s3, s{sJ}, 3"); a(f"s_lshl2_add_u32 s56, s{sX}, s3")
    a(f"s_and_b32 s57, s{sWV}, 3"); a(f"s_lshr_b32 s58, s{sWV}, 2")
    a("s_lshl_b32 s3, s54, 6"); a("s_add_u32 s3, s3, s55"); a("s_mul_i32 s59, s3, 1280"); a(f"s_add_u32 s59, s59, {WS_Q}")
    a("v_lshlrev_b32 v7, 4, v0"); a("v_and_b32 v8, 31, v0"); a("v_lshlrev_b32 v9, 3, v8")
    QF = 16; OA = 24; P0 = 40; P1 = 56; PHQ = 72; KL = 84
    qloads = [f"buffer_load_dwordx4 {vr(QF,4)}, v7, s[{rWS}:{rWS+3}], s59 offen sc1", f"buffer_load_dwordx2 {vr(QF+4,2)}, v9, s[{rWS}:{rWS+3}], s59 offen offset:1024 sc1"]
    for l in qloads: a(l)
    a("s_cmp_eq_u32 s58, 0"); a("s_cbranch_scc1 L_c1")
    wo_round()
    a("s_cmp_lt_u32 s57, 2"); a("s_cbranch_scc0 L_c1")
    a("s_lshl1_add_u32 s3, s56, s57"); a("s_mul_i32 s68, s3, 40960"); a("s_add_u32 s68, s68, s67")
    a("s_mul_i32 s69, s57, 5120"); a(f"s_add_u32 s69, s69, {L_RES}")
    unit(rX, "s68", "s69")
    a.label("L_c1")
    a("v_lshrrev_b32 v10, 5, v0"); a("v_bfe_u32 v11, v0, 2, 2"); a("v_bfe_u32 v12, v0, 4, 1"); a("v_bfe_u32 v13, v0, 1, 1"); a("v_lshl_add_u32 v12, v12, 1, v13")
    a("s_and_b32 s3, s54, 1"); a("s_cmp_eq_u32 s3, 0"); a(f"s_cselect_b32 s60, 160, 0"); a(f"s_cselect_b32 s61, 0, 640")
    a(f"s_add_u32 s60, s60, {L_PHIO}"); a(f"s_add_u32 s61, s61, {L_PHIO}")
    a("v_mul_u32_u24 v13, 40, v11"); a("v_add_u32 v14, s61, v13"); a("v_mul_u32_u24 v15, 320, v10"); a("v_add3_u32 v13, v13, v15, s60")
    a("v_lshl_add_u32 v15, v12, 3, v13"); a("v_lshl_add_u32 v12, v12, 3, v14")
    a(f"ds_read_b64_tr_b16 {vr(OA,2)}, v15"); a(f"ds_read_b64_tr_b16 {vr(OA+2,2)}, v15 offset:160")
    a(f"ds_read_b64_tr_b16 {vr(OA+4,2)}, v13 offset:32"); a(f"ds_read_b64_tr_b16 {vr(OA+6,2)}, v13 offset:192")
    a(f"ds_read_b64_tr_b16 {vr(OA+8,2)}, v12"); a(f"ds_read_b64_tr_b16 {vr(OA+10,2)}, v14 offset:32")
    a("v_bfe_i32 v12, v0, 2, 1"); a("v_and_b32 v12, 0x80008000, v12"); a("v_add_u32 v13, -1, v10")
    a(f"s_lshl_b32 s3, s{sWV}, 6"); a("v_add_u32 v14, s3, v0"); a("v_cmp_lt_u32 vcc, 419, v14"); a("v_lshlrev_b32 v14, 2, v14"); a(f"v_mov_b32 v15, {OOB:#x}")
    a("v_cndmask_b32 v15, v14, v15, vcc")
    a("s_mul_i32 s60, s54, 28672"); a(f"s_add_u32 s60, s60, {WS_KV}")
    a("s_waitcnt lgkmcnt(0)")
    for q in range(8): a(f"v_xor_b32 v{OA+q}, v12, v{OA+q}")
    for q in range(8, 12): a(f"v_bitop3_b32 v{OA+q}, v{OA+q}, v12, v13 bitop3:0x28")
    a.poll(qloads, range(QF, QF+6), 22, 2, pre_issued=True)
    a.stampw(5)
    kloads = ["s_mov_b32 s61, s60"]
    for p in range(16):
        kloads.append(f"buffer_load_dword v{KL+p}, v15, s[{rWS}:{rWS+3}], s61 offen offset:{1792*(p&1)} sc1")
        if p & 1 and p < 15: kloads.append("s_add_u32 s61, s61, 3584")
    a(f"v_mfma_f32_32x32x16_bf16 {vr(P0,16)}, {vr(OA,4)}, {vr(QF,4)}, 0")
    a(f"v_mfma_f32_32x32x16_bf16 {vr(P1,16)}, {vr(OA+4,4)}, {vr(QF,4)}, 0")
    for l in kloads[:12]: a(l)
    a(f"v_mfma_f32_32x32x8_bf16 {vr(P0,16)}, {vr(OA+8,2)}, {vr(QF+4,2)}, {vr(P0,16)}")
    a(f"v_mfma_f32_32x32x8_bf16 {vr(P1,16)}, {vr(OA+10,2)}, {vr(QF+4,2)}, {vr(P1,16)}")
    for l in kloads[12:]: a(l)
    a(f"v_mov_b32 v22, {LOG2E:#x}")
    for x in softmax_ops(list(range(P0, P0+20)), PHQ, 22, 36): a(x)
    a.poll(kloads, range(KL, KL+16), 22, 3, pre_issued=True)
    a.stampw(6)
    a("s_mov_b32 s62, 0x00003f80"); a("s_mov_b32 s63, 0x3f800000")
    a("v_mov_b64 v[16:17], 0"); a("v_mov_b64 v[18:19], 0")
    for p in range(16):
        a(f"v_dot2c_f32_bf16 v{16+2*(p&1)}, s62, v{KL+p}"); a(f"v_dot2c_f32_bf16 v{17+2*(p&1)}, s63, v{KL+p}")
    a(f"v_add_u32 v14, {L_KVR}, v14")
    a("v_min_u32 v12, 20, v8"); a("v_mul_u32_u24 v13, 21, v10"); a("v_add_u32 v12, v12, v13")
    a("v_pk_add_f32 v[16:17], v[16:17], v[18:19]"); a("v_cvt_pk_bf16_f32 v16, v16, v17")
    a("ds_write_b32 v14, v16")
    a(f"s_mov_b32 s3, {L_KVR}"); a("v_lshl_add_u32 v13, v12, 3, s3"); a("v_lshl_add_u32 v12, v12, 4, s3")
    a("s_waitcnt lgkmcnt(0)"); a("s_barrier")
    a(f"ds_read_b128 {vr(OA,4)}, v12"); a(f"ds_read_b128 {vr(OA+4,4)}, v12 offset:672"); a(f"ds_read_b64 {vr(OA+8,2)}, v13 offset:1344")
    a("v_bfe_u32 v12, v0, 4, 1"); a("v_mul_u32_u24 v12, 20480, v12"); a("v_and_b32 v11, 15, v0")
    a("v_lshl_add_u32 v13, v11, 3, v12"); a("v_lshl_add_u32 v12, v11, 4, v12"); a("v_lshl_add_u32 v12, v10, 8, v12")
    a("v_cmp_gt_u32 vcc, 32, v0"); a(f"v_mov_b32 v14, {OOB:#x}")
    a("s_mul_i32 s60, s55, 40960"); a(f"s_add_u32 s60, s60, {WS_O}"); a("s_lshl_b32 s3, s54, 7"); a("s_add_u32 s61, s60, s3"); a("s_add_u32 s61, s61, 16384")
    a("v_cndmask_b32 v13, v14, v13, vcc")
    a("s_lshl2_add_u32 s60, s3, s60")
    a("s_waitcnt lgkmcnt(2)")
    a(f"v_mfma_f32_32x32x16_bf16 {vr(P0,16)}, {vr(OA,4)}, {vr(PHQ,4)}, 0")
    a("s_waitcnt lgkmcnt(1)")
    a(f"v_mfma_f32_32x32x16_bf16 {vr(P0,16)}, {vr(OA+4,4)}, {vr(PHQ+4,4)}, {vr(P0,16)}")
    a("s_waitcnt lgkmcnt(0)")
    a(f"v_mfma_f32_32x32x8_bf16 {vr(P0,16)}, {vr(OA+8,2)}, {vr(PHQ+8,2)}, {vr(P0,16)}")
    a(f"v_add_f32 v16, 0x358637bd, v{P0+12}"); a("v_rcp_f32 v16, v16")
    for q in range(0, 12, 2): a(f"v_pk_mul_f32 {vr(P0+q,2)}, {vr(P0+q,2)}, v[16:17] op_sel_hi:[1,0]")
    for q in range(6): a(f"v_cvt_pk_bf16_f32 v{P1+q}, v{P0+2*q}, v{P0+2*q+1}")
    a(f"buffer_store_dwordx4 {vr(P1,4)}, v12, s[{rWS}:{rWS+3}], s60 offen sc1")
    a(f"buffer_store_dwordx2 {vr(P1+4,2)}, v13, s[{rWS}:{rWS+3}], s61 offen sc1")
    a.stampw(7)
    FA = 16; OF = 36; WF = 76
    a("s_lshl2_add_u32 s59, s56, s57")
    a(f"s_and_b32 s67, s{sJ}, 7")
    a("v_lshrrev_b32 v3, 4, v0"); a("v_bfe_u32 v4, v0, 2, 2"); a("v_and_b32 v5, 3, v0")
    a("s_cmp_eq_u32 s58, 0"); a("s_cbranch_scc0 L_c2")
    a("s_lshl_b32 s3, s59, 6"); a(f"s_add_u32 s3, s3, {WS_SM}"); a("v_lshlrev_b32 v12, 2, v11")
    a(f"buffer_load_dword v14, v12, s[{rWS}:{rWS+3}], s3 offen sc1")
    a("s_branch L_c3")
    a.label("L_c2")
    a("v_lshlrev_b32 v12, 3, v0"); a(f"s_movk_i32 s3, {WS_C1}")
    a(f"buffer_load_dwordx2 v[14:15], v12, s[{rWS}:{rWS+3}], s3 offen sc1")
    a.label("L_c3")
    a("s_mul_i32 s3, s58, 51200"); a("v_mul_u32_u24 v12, 160, v4"); a("v_lshl_add_u32 v12, v5, 3, v12"); a("v_add_u32 v12, s3, v12")
    a("v_mul_u32_u24 v13, 3200, v10"); a("v_and_b32 v6, 1, v3"); a("v_mul_u32_u24 v6, 640, v6"); a("v_add3_u32 v6, v6, v13, v12")
    a("v_mul_u32_u24 v13, 3200, v3"); a("v_add_u32 v2, v13, v12")
    def woreads(st, dst):
        R = []
        for t in range(5):
            for j in range(2):
                if st < 8: R.append(f"ds_read_b64_tr_b16 {vr(dst+4*t+2*j,2)}, v6 offset:{6400*st+1280*j+32*t}")
                else: R.append(f"ds_read_b64_tr_b16 {vr(dst+4*t+2*j,2)}, v2 offset:{2560+25600*(st-8)+12800*j+32*t}")
        return R
    for st in range(9):
        for x in woreads(st, WF + 20*st): a(x)
    a("s_mul_i32 s3, s57, 2560"); a("v_mul_u32_u24 v12, 160, v11"); a("v_lshl_add_u32 v12, v3, 3, v12"); a("v_add_u32 v12, s3, v12")
    a("s_cmp_eq_u32 s58, 0"); a("s_cbranch_scc0 L_c4")
    a(f"v_add_u32 v13, {L_RES}, v12")
    for t in range(5): a(f"ds_read_b64 {vr(OF+2*t,2)}, v13 offset:{32*t}")
    a("s_waitcnt vmcnt(0)")
    a("v_and_b32 v8, 0xffff0000, v14"); a("v_rcp_f32 v8, v8"); a("v_lshlrev_b32 v9, 16, v14")
    a("s_waitcnt lgkmcnt(0)")
    for q in range(10):
        a(f"v_lshlrev_b32 v{FA+2*q}, 16, v{OF+q}"); a(f"v_and_b32 v{FA+2*q+1}, 0xffff0000, v{OF+q}")
    for q in range(10): a(f"v_pk_add_f32 {vr(OF+2*q,2)}, {vr(FA+2*q,2)}, v[8:9] op_sel:[0,1] op_sel_hi:[1,1] neg_lo:[0,1] neg_hi:[0,1]")
    for q in range(10): a(f"v_pk_fma_f32 {vr(FA+2*q,2)}, {vr(OF+2*q,2)}, v[8:9], {vr(FA+2*q,2)} op_sel_hi:[1,0,1]")
    a("s_branch L_c5")
    a.label("L_c4")
    a("s_waitcnt vmcnt(0)")
    a.top2(14, 15, 13, 60, 61)
    a("s_and_b32 s60, s60, 0x7ff"); a("s_and_b32 s61, s61, 0x7ff"); a("s_lshl_b32 s3, s59, 4"); a("s_sub_u32 s3, 2047, s3")
    a("v_sub_u32 v13, s3, v11"); a(f"v_mov_b32 v14, {OOB:#x}"); a("v_lshlrev_b32 v15, 4, v3")
    a("v_cmp_eq_u32 vcc, s60, v13"); a("v_cndmask_b32 v14, v14, v15, vcc")
    a("v_add_u32 v15, 2560, v15"); a("v_cmp_eq_u32 vcc, s61, v13"); a("v_cndmask_b32 v14, v14, v15, vcc")
    a("s_mul_i32 s60, s67, 320"); a(f"s_add_u32 s60, s60, {WS_Y}")
    a.poll([f"buffer_load_dwordx4 {vr(FA+4*t,4)}, v14, s[{rWS}:{rWS+3}], s60 offen offset:{64*t} sc1" for t in range(5)], range(FA, FA+20), 13, 4)
    a.label("L_c5")
    a.stampw(8)
    a("s_mul_i32 s60, s59, 20480"); a(f"s_add_u32 s60, s60, {WS_O}"); a("s_lshl_b32 s3, s58, 11"); a("s_add_u32 s62, s60, s3"); a("s_add_u32 s62, s62, 16384")
    a("s_lshl2_add_u32 s60, s3, s60"); a("s_add_u32 s61, s60, 4096")
    a("v_lshlrev_b32 v9, 3, v0")
    oloads = [f"buffer_load_dwordx4 {vr(OF+4*st,4)}, v7, s[{rWS}:{rWS+3}], s{60+st//4} offen offset:{1024*(st%4)} sc1" for st in range(8)]
    oloads += [f"buffer_load_dwordx2 {vr(OF+32+2*q,2)}, v9, s[{rWS}:{rWS+3}], s62 offen offset:{512*q} sc1" for q in range(4)]
    a.poll(oloads, range(OF, OF+40), 13, 5)
    a.stampw(9)
    a("s_waitcnt lgkmcnt(0)")
    last = woreads(9, WF)
    for st in range(10):
        if st == 9: a("s_waitcnt lgkmcnt(0)")
        for t in range(5):
            a(f"v_mfma_f32_16x16x32_bf16 {vr(FA+4*t,4)}, {vr(WF+20*(st%9)+4*t,4)}, {vr(OF+4*st,4)}, {vr(FA+4*t,4)}")
            if st in (1, 2): a(last[5*(st-1)+t])
    a("s_mul_i32 s3, s57, 5120"); a(f"s_add_u32 s3, s3, {L_XCH}"); a("v_add_u32 v13, s3, v7")
    a("s_cmp_eq_u32 s58, 0"); a("s_cbranch_scc1 L_c6")
    for t in range(5): a(f"ds_write_b128 v13, {vr(FA+4*t,4)} offset:{1024*t}")
    a("s_waitcnt lgkmcnt(0)"); a("s_barrier")
    a("s_branch L_fin")
    a.label("L_c6")
    a(f"v_add_u32 v12, {L_OUTS}, v12")
    a("s_mul_i32 s3, s57, 2560"); a(f"s_add_u32 s3, s3, {L_OUTS}"); a("v_add_u32 v14, s3, v7")
    a("v_mul_u32_u24 v15, 6554, v0"); a("s_movk_i32 s3, 1120")
    for u in range(3):
        if u: a(f"v_add_u32 v15, {64*6554}, v15")
        a("v_lshrrev_b32 v8, 16, v15"); a(f"v_mad_u32_u24 v{4+u}, v8, s3, v7")
    a("v_cmp_gt_u32 vcc, 32, v0"); a(f"v_mov_b32 v8, {OOB:#x}")
    a("s_mul_i32 s60, s59, 20480"); a("s_mul_i32 s3, s67, 160"); a("s_add_u32 s60, s60, s3")
    a("v_cndmask_b32 v6, v8, v6, vcc")
    a("s_barrier")
    for t in range(5): a(f"ds_read_b128 {vr(OF+4*t,4)}, v13 offset:{1024*t}")
    for t in range(5):
        a(f"s_waitcnt lgkmcnt({4 if t == 0 else 4})")
        a(f"v_pk_add_f32 {vr(FA+4*t,2)}, {vr(FA+4*t,2)}, {vr(OF+4*t,2)}"); a(f"v_pk_add_f32 {vr(FA+4*t+2,2)}, {vr(FA+4*t+2,2)}, {vr(OF+4*t+2,2)}")
        a(f"v_cvt_pk_bf16_f32 v{FA+4*t}, v{FA+4*t}, v{FA+4*t+1}"); a(f"v_cvt_pk_bf16_f32 v{FA+4*t+1}, v{FA+4*t+2}, v{FA+4*t+3}")
        a(f"ds_write_b64 v12, {vr(FA+4*t,2)} offset:{32*t}")
    a("s_waitcnt lgkmcnt(0)")
    for u in range(3): a(f"ds_read_b128 {vr(OF+4*u,4)}, v14 offset:{1024*u}")
    for u in range(3):
        a(f"s_waitcnt lgkmcnt({2-u})")
        a(f"buffer_store_dwordx4 {vr(OF+4*u,4)}, v{4+u}, s[{rOUT}:{rOUT+3}], s60 offen offset:{1024*u}")
    a.label("L_fin")
    if diag:
        a.stampw(10)
        a("s_waitcnt vmcnt(0)")
        a.stampw(11)
        a(f"s_lshl3_add_u32 s3, s2, s{sWV}"); a("s_lshl_b32 s3, s3, 6"); a(f"s_add_u32 s3, s3, {WS_DIAG}")
        a("s_mov_b64 exec, 1")
        for i in range(12):
            a(f"v_mov_b32 v8, s{72+2*i}"); a(f"buffer_store_dword v8, off, s[{rWS}:{rWS+3}], s3 offset:{4*i}")
    a.label("L_end")
    body, nn = hazard.fix(a.text() + "    s_endpgm\n")
    return body, nn


HEADER = open(os.path.join(os.path.dirname(os.path.abspath(__file__)), "header.txt")).read()

def full(**kw):
    body, nn = gen(**kw)
    t = HEADER + f"; @launch grid=(256,1,1) block=(512,1,1) lds={LDS_BYTES}\n"
    t += f'.amdgcn_target "amdgcn-amd-amdhsa--gfx950"\n.text\n.globl {NAME}\n.p2align 8\n.type {NAME},@function\n{NAME}:\n'
    t += body
    t += f""".section .rodata,"a"
.p2align 6
.amdhsa_kernel {NAME}
  .amdhsa_next_free_vgpr 256
  .amdhsa_next_free_sgpr 102
  .amdhsa_accum_offset 256
  .amdhsa_group_segment_fixed_size 0
  .amdhsa_kernarg_size 96
  .amdhsa_user_sgpr_count 2
  .amdhsa_user_sgpr_kernarg_segment_ptr 1
  .amdhsa_system_sgpr_workgroup_id_x 1
.end_amdhsa_kernel
"""
    return t

if __name__ == "__main__":
    out = sys.argv[1] if len(sys.argv) > 1 else "parallel_sum__linear_kernel_hedgehog__moe_arch_mod__prompt.s"
    kw = {}
    for x in sys.argv[2:]:
        k, v = x.split("="); kw[k] = int(v)
    open(out, "w").write(full(**kw))
```

```python
import sys, os
sys.path.insert(0, os.path.dirname(os.path.abspath(__file__)))
from asmlib import Asm, vr, sr
import hazard

NAME = "parallel_sum__linear_kernel_hedgehog__moe_arch_mod__prompt_kernel"
S, D, F = 2048, 640, 1536
SENT = 0xFF81FF81
OOB = 0x7FF00000
WS_C1 = 0x1000
WS_SM = 0x2000
WS_CS = 0x4000
WS_CLR = 0x10000
WS_Q = WS_CLR
WS_O = WS_Q + 2621440
WS_KV = WS_O + 2621440
WS_YP = WS_KV + 917504
WS_Y = WS_YP + 245760
WS_END = WS_Y + 5120
CLR_PER_WAVE = 13312
assert WS_CLR + 512*CLR_PER_WAVE >= WS_END
WS_DIAG = 0x1000000
WS_BYTES = 1 << 28
WREG = 5152
SLOT = 16384 + 4*WREG
RING = 40960
RING_END = RING + 3*SLOT
TRI = 86016
MISC = RING_END
L_PHIO = MISC
L_STAT = L_PHIO + 1024
L_CS = L_STAT + 2048
L_KVR = L_CS + 1920
L_HM = L_KVR + 2048
L_RES = 102400
L_XCH = L_RES + 10240
L_OUTS = L_XCH + 20480
L_GI, L_UI, L_DI = 0, 40960, 81920
L_GU = 122880
L_HB = L_GU + 4096
L_YR = 0
LDS_BYTES = 163840
sWV, sX, sJ, sJR = 4, 5, 6, 7
rX, rW, rWS, rWO, rOUT, rDBG, rPHI, rWR, rG, rU, rDN = 8, 12, 16, 20, 24, 28, 32, 36, 40, 44, 48
sSENT = 52
LOG2E = 0x3FB8AA3B
SPIN = 200000


class K(Asm):
    def __init__(self, diag):
        super().__init__()
        self.diag = diag
    def srdw(self, r, n):
        self(f"s_mov_b32 s{r+2}, {n}"); self(f"s_mov_b32 s{r+3}, 0x20000")
    def stamp(self, i):
        if self.diag: self(f"s_memrealtime s[{72+2*i}:{73+2*i}]")
    def stampw(self, i):
        if self.diag: self(f"s_memrealtime s[{72+2*i}:{73+2*i}]"); self("s_waitcnt lgkmcnt(0)")
    def maxtree(self, dst, regs):
        regs = list(regs)
        if len(regs) == 1: self(f"v_mov_b32 v{dst}, v{regs[0]}"); return
        if len(regs) == 2: self(f"v_max_u32 v{dst}, v{regs[0]}, v{regs[1]}"); return
        self(f"v_max3_u32 v{dst}, v{regs[0]}, v{regs[1]}, v{regs[2]}"); regs = regs[3:]
        while len(regs) >= 2:
            self(f"v_max3_u32 v{dst}, v{dst}, v{regs[0]}, v{regs[1]}"); regs = regs[2:]
        if regs: self(f"v_max_u32 v{dst}, v{dst}, v{regs[0]}")
    def poll(self, loads, regs, tmp, code, pre_issued=False):
        top = self.newlab("L_poll"); chk = self.newlab("L_chk"); out = self.newlab("L_pdone")
        self("s_mov_b32 s3, 0")
        if pre_issued: self(f"s_branch {chk}")
        self.label(top)
        self("s_add_u32 s3, s3, 1"); self(f"s_cmp_gt_u32 s3, {SPIN}"); self(f"s_cbranch_scc1 {out}")
        for l in loads: self(l)
        self.label(chk)
        self("s_waitcnt vmcnt(0)")
        self.maxtree(tmp, regs)
        self(f"v_cmp_eq_u32 vcc, s{sSENT}, v{tmp}")
        self(f"s_cbranch_vccnz {top}")
        self.label(out)
    def flagpoll(self, v, va):
        top = self.newlab("L_fp"); out = self.newlab("L_fdone")
        self(f"v_and_b32 v{va}, 1, v0"); self(f"v_lshlrev_b32 v{va}, 7, v{va}")
        self("s_mov_b32 s3, 0")
        self.label(top)
        self("s_add_u32 s3, s3, 1"); self(f"s_cmp_gt_u32 s3, {SPIN}"); self(f"s_cbranch_scc1 {out}")
        self(f"buffer_load_dword v{v}, v{va}, s[{rDBG}:{rDBG+3}], 0 offen sc1")
        self("s_waitcnt vmcnt(0)")
        self(f"v_cmp_gt_u32 vcc, 32, v{v}")
        self(f"s_cbranch_vccnz {top}")
        self.label(out)
    def wavemax_u32(self, v, t, sdst):
        self(f"v_max_u32_dpp v{t}, v{v}, v{v} row_ror:8 row_mask:0xf bank_mask:0xf")
        for k in (4, 2, 1): self(f"v_max_u32_dpp v{t}, v{t}, v{t} row_ror:{k} row_mask:0xf bank_mask:0xf")
        self(f"v_readlane_b32 s{sdst}, v{t}, 0"); self(f"v_readlane_b32 s3, v{t}, 16")
        self(f"s_max_u32 s{sdst}, s{sdst}, s3")
        self(f"v_readlane_b32 s3, v{t}, 32"); self(f"s_max_u32 s{sdst}, s{sdst}, s3")
        self(f"v_readlane_b32 s3, v{t}, 48"); self(f"s_max_u32 s{sdst}, s{sdst}, s3")
    def top2(self, k1, k2, t, s1, s2):
        self.wavemax_u32(k1, t, s1)
        self(f"v_cmp_eq_u32 vcc, s{s1}, v{k1}")
        self(f"v_cndmask_b32 v{k1}, v{k1}, v{k2}, vcc")
        self.wavemax_u32(k1, t, s2)
    def rowsum16(self, v):
        for k in (8, 4, 2, 1): self(f"v_add_f32_dpp v{v}, v{v}, v{v} row_ror:{k} row_mask:0xf bank_mask:0xf")


def softmax_ops(P, O, cpair, t0, npair=None):
    L = []
    a, b = t0, t0 + 1
    L.append(f"v_max3_f32 v{a}, v{P[0]}, v{P[1]}, v{P[2]}"); L.append(f"v_max3_f32 v{b}, v{P[3]}, v{P[4]}, v{P[5]}")
    for i in range(6, 18, 4):
        L.append(f"v_max3_f32 v{a}, v{a}, v{P[i]}, v{P[i+1]}"); L.append(f"v_max3_f32 v{b}, v{b}, v{P[i+2]}, v{P[i+3]}")
    L.append(f"v_max3_f32 v{a}, v{a}, v{P[18]}, v{P[19]}"); L.append(f"v_max_f32 v{a}, v{a}, v{b}")
    L.append(f"v_mul_f32 v{cpair+1}, v{cpair}, v{a}")
    for i in range(0, 20, 2):
        L.append(f"v_pk_fma_f32 {vr(P[i],2)}, {vr(P[i],2)}, {vr(cpair,2)}, {vr(cpair,2)} op_sel:[0,0,1] op_sel_hi:[1,0,1] neg_lo:[0,0,1] neg_hi:[0,0,1]")
    for i in range(20): L.append(f"v_exp_f32 v{P[i]}, v{P[i]}")
    L.append(f"v_pk_add_f32 {vr(t0,2)}, {vr(P[0],2)}, {vr(P[2],2)}"); L.append(f"v_pk_add_f32 {vr(t0+2,2)}, {vr(P[4],2)}, {vr(P[6],2)}")
    for i in range(8, 20, 4):
        L.append(f"v_pk_add_f32 {vr(t0,2)}, {vr(t0,2)}, {vr(P[i],2)}"); L.append(f"v_pk_add_f32 {vr(t0+2,2)}, {vr(t0+2,2)}, {vr(P[i+2],2)}")
    L.append(f"v_pk_add_f32 {vr(t0,2)}, {vr(t0,2)}, {vr(t0+2,2)}")
    L.append(f"v_add_f32 v{a}, v{a}, v{b}"); L.append(f"v_rcp_f32 v{a}, v{a}")
    if npair is not None: L.append(f"v_mul_f32 v{a}, v{a}, v{npair}")
    for i in range(0, 20, 2): L.append(f"v_pk_mul_f32 {vr(P[i],2)}, {vr(P[i],2)}, {vr(t0,2)} op_sel_hi:[1,0]")
    for i in range(0, 20, 2): L.append(f"v_cvt_pk_bf16_f32 v{O+i//2}, v{P[i]}, v{P[i+1]}")
    return L


def gen(diag=False, touch=4, defer=8, probe=0, pn=0, pslot=32, pstride=8192):
    a = K(diag)
    a("s_cmp_ge_u32 s2, 256"); a("s_cbranch_scc1 L_end")
    a.stamp(0)
    if probe == 1: a("s_memrealtime s[98:99]")
    for r, off in ((rX, 0), (rW, 8), (rWS, 88), (rPHI, 16), (rWO, 24), (rOUT, 72), (rDBG, 80), (rWR, 40), (rG, 48), (rU, 56), (rDN, 64)):
        a(f"s_load_dwordx2 s[{r}:{r+1}], s[0:1], {off}")
    a("v_lshrrev_b32 v1, 6, v0"); a("v_and_b32 v0, 63, v0")
    a(f"s_and_b32 s{sX}, s2, 7"); a(f"v_readfirstlane_b32 s{sWV}, v1")
    a(f"s_lshr_b32 s{sJ}, s2, 3"); a(f"s_add_u32 s{sJR}, s{sJ}, 24"); a(f"s_and_b32 s{sJR}, s{sJR}, 31")
    a.srdw(rX, S*D*2); a.srdw(rW, D*3*D*2); a.srdw(rWS, WS_BYTES); a.srdw(rPHI, 32*800); a.srdw(rWO, D*D*2); a.srdw(rOUT, S*D*2); a.srdw(rDBG, 256)
    a(f"s_mov_b32 s{sSENT}, {SENT:#x}")
    a(f"s_cmp_ge_u32 s{sJR}, 24"); a("s_cbranch_scc1 L_helper")
    a(f"s_lshr_b32 s54, s{sX}, 1"); a(f"s_and_b32 s3, s{sJR}, 3"); a("s_lshl2_add_u32 s54, s54, s3")
    a(f"s_and_b32 s3, s{sX}, 1"); a(f"s_lshr_b32 s57, s{sJR}, 2"); a("s_mul_i32 s55, s3, 640")
    a("s_mul_i32 s58, s57, 160"); a("s_sub_u32 s59, s58, 1280")
    a("s_cmp_lt_u32 s57, 4")
    a("s_cselect_b32 s56, 1120, 0"); a("s_cselect_b32 s59, 1280, s59")
    a("s_add_u32 s55, s55, s58"); a("s_add_u32 s55, s55, s59")
    a(f"s_cmp_lt_u32 s{sWV}, 4"); a("s_cbranch_scc1 L_mfma")

    a("s_setprio 3")
    a(f"s_sub_u32 s60, s{sWV}, 4")
    XV = [16, 17, 18, 19]; WV = [20, 21, 22, 23, 24]; WOV = [2, 3, 4, 5, 6]
    a("v_lshrrev_b32 v8, 3, v0"); a("v_and_b32 v9, 7, v0")
    a("v_bfe_u32 v10, v0, 4, 1"); a("v_lshrrev_b32 v11, 5, v0"); a("v_lshl_add_u32 v10, v10, 1, v11")
    a("s_lshl_b32 s3, s54, 2"); a("s_add_u32 s3, s3, s60"); a("s_mul_i32 s3, s3, 40960")
    a("v_mul_u32_u24 v8, 1280, v8"); a("v_xor_b32 v9, v9, v10"); a("v_add_u32 v8, s3, v8")
    a(f"v_lshl_add_u32 v{XV[0]}, v9, 4, v8"); a(f"v_xor_b32 v11, 64, v{XV[0]}")
    a(f"v_add_u32 v{XV[1]}, {10240-1024}, v11"); a(f"v_add_u32 v{XV[2]}, {20480-2048}, v{XV[0]}"); a(f"v_add_u32 v{XV[3]}, {30720-3072}, v11")
    a("s_mul_i32 s3, s60, 61440"); a("s_add_u32 s3, s3, s55")
    a("s_lshl_b32 s61, s60, 12")
    a(f"s_mul_i32 s62, s60, {WREG}"); a("s_add_u32 s62, s62, 16384")
    a("s_movk_i32 s63, 3520")
    a("v_lshl_add_u32 v12, v0, 4, s3"); a("v_mul_u32_u24 v13, 6554, v0")
    for i in range(5):
        if i: a(f"v_add_u32 v13, {64*6554}, v13")
        a("v_lshrrev_b32 v10, 17, v13"); a("v_bfe_u32 v9, v13, 16, 1")
        a("v_mad_u32_u24 v8, v10, s63, v12"); a(f"v_mad_u32_u24 v{WV[i]}, v9, s56, v8")
    a(f"v_add_u32 v{WV[4]}, 4096, v{WV[4]}")
    a(f"s_mov_b32 s64, {RING}"); a("s_mov_b32 s65, 0"); a("s_mov_b32 s66, 0")
    a("s_waitcnt lgkmcnt(0)")
    def issue():
        a("s_add_u32 m0, s64, s61")
        for i in range(4): a(f"buffer_load_dwordx4 v{XV[i]}, s[{rX}:{rX+3}], s65 offen offset:{1024*i} lds")
        a("s_add_u32 m0, s64, s62")
        a("s_add_u32 s65, s65, 128")
        for i in range(4): a(f"buffer_load_dwordx4 v{WV[i]}, s[{rW}:{rW+3}], s66 offen offset:{1024*i} lds")
        a("s_add_u32 m0, m0, 4096")
        a(f"s_add_u32 s64, s64, {SLOT}")
        a(f"buffer_load_dwordx4 v{WV[4]}, s[{rW}:{rW+3}], s66 offen lds")
        a("s_add_u32 s66, s66, 245760")
        a(f"s_cmp_eq_u32 s64, {RING_END}"); a(f"s_cselect_b32 s64, {RING}, s64")
    a.label("L_lloop")
    issue()
    a("s_cmpk_lt_u32 s65, 256"); a("s_cbranch_scc1 L_lloop")
    a("s_waitcnt vmcnt(9)"); a("s_barrier")
    a(f"s_cmpk_lt_u32 s65, {9*128}"); a("s_cbranch_scc1 L_lloop")
    a("v_and_b32 v26, 1, v0"); a("v_lshlrev_b32 v26, 7, v26")
    a(f"buffer_load_dword v27, v26, s[{rDBG}:{rDBG+3}], 0 offen sc1")
    issue()
    def wo_addr():
        a("v_mul_u32_u24 v13, 6554, v0"); a("v_lshlrev_b32 v12, 4, v0"); a("s_movk_i32 s3, 1120")
        for i in range(5):
            if i: a(f"v_add_u32 v13, {64*6554}, v13")
            a("v_lshrrev_b32 v10, 16, v13"); a(f"v_mad_u32_u24 v{WOV[i]}, v10, s3, v12")
        a(f"v_add_u32 v{WOV[4]}, 4096, v{WOV[4]}")
        a(f"s_and_b32 s67, s{sJ}, 7"); a("s_mul_i32 s67, s67, 160")
        a("s_mul_i32 s68, s60, 40960"); a("s_add_u32 s68, s68, s67")
        a("s_mul_i32 s69, s60, 5120")
    def unit(srd, soff, m0):
        a(f"s_mov_b32 m0, {m0}")
        for i in range(4): a(f"buffer_load_dwordx4 v{WOV[i]}, s[{srd}:{srd+3}], {soff} offen offset:{1024*i} lds")
        a("s_add_u32 m0, m0, 4096")
        a(f"buffer_load_dwordx4 v{WOV[4]}, s[{srd}:{srd+3}], {soff} offen lds")
    def wo_round():
        unit(rWO, "s68", "s69")
        a("s_add_u32 s68, s68, 163840"); a("s_add_u32 s69, s69, 20480")
    wo_addr()
    a("v_and_b32 v28, 31, v0"); a("s_lshl_b32 s3, s54, 2"); a("s_add_u32 s3, s3, s60"); a("s_lshl_b32 s3, s3, 7"); a(f"s_add_u32 s3, s3, {WS_SM}")
    a("v_lshl_add_u32 v29, v28, 2, s3")
    a("s_lshr_b32 s58, s60, 1"); a("s_and_b32 s59, s60, 1")
    a("s_add_u32 s3, s56, 160"); a("s_mul_i32 s3, s3, s58"); a("s_add_u32 s3, s3, s55"); a("s_lshl_b32 s3, s3, 1")
    a("s_mul_i32 s53, s59, 7680"); a("s_add_u32 s3, s3, s53"); a(f"s_add_u32 s3, s3, {WS_CS}")
    a("v_min_u32 v31, 39, v0"); a("v_lshl_add_u32 v30, v31, 3, s3")
    statloads = [f"buffer_load_dword v32, v29, s[{rWS}:{rWS+3}], 0 offen sc1", f"buffer_load_dwordx2 v[34:35], v30, s[{rWS}:{rWS+3}], 0 offen sc1"]
    a("s_waitcnt vmcnt(9)"); a("s_barrier")
    for l in statloads: a(l)
    wo_round()
    a("s_waitcnt vmcnt(5)"); a("s_barrier")
    a("v_cmp_gt_u32 vcc, 32, v27"); a("s_cbranch_vccz L_flagok")
    a.flagpoll(27, 26)
    for l in statloads: a(l)
    a("s_waitcnt vmcnt(0)")
    a.label("L_flagok")
    a("v_and_b32 v38, 0xffff0000, v32"); a("v_rcp_f32 v38, v38")
    a("v_and_b32 v36, 0xffff, v32"); a("v_lshl_or_b32 v36, v36, 16, v36"); a("v_xor_b32 v36, 0x80008000, v36")
    a("v_lshrrev_b32 v37, 16, v32"); a(f"v_mul_f32 v39, {LOG2E:#x}, v38")
    a("s_lshl_b32 s3, s60, 9"); a(f"s_add_u32 s3, s3, {L_STAT}"); a("v_lshl_add_u32 v28, v28, 4, s3")
    a("ds_write_b128 v28, v[36:39]")
    a("s_mul_i32 s3, s59, 640"); a("s_mul_i32 s53, s58, 320"); a("s_add_u32 s3, s3, s53"); a(f"s_add_u32 s3, s3, {L_CS}")
    a("v_lshl_add_u32 v28, v31, 3, s3"); a("ds_write_b64 v28, v[34:35]")
    a("s_mul_i32 s3, s60, 160"); a(f"s_add_u32 s3, s3, {L_CS+1280}"); a("v_lshl_add_u32 v28, v31, 2, s3"); a("v_mov_b32 v33, 0")
    a("ds_write_b32 v28, v33")
    wo_round()
    a("s_waitcnt lgkmcnt(0)"); a("s_barrier")
    wo_round(); wo_round()
    a("s_setprio 0")
    a("s_cmp_lt_u32 s57, 4"); a("s_cbranch_scc0 L_common")
    a("s_barrier")
    a("s_barrier")
    a("s_branch L_common")

    a.label("L_mfma")
    ACC = 16; SET = [96, 132]; XA = [168, 169]; MK, MV, EX = 170, 171, 172
    PA = 176; PX = 196; STAT = 208; AUG = 224
    a(f"s_and_b32 s60, s{sWV}, 1"); a(f"s_lshr_b32 s61, s{sWV}, 1")
    a(f"s_and_b32 s3, s{sX}, 1"); a("s_lshl2_add_u32 s62, s3, s57")
    a("s_lshl1_add_u32 s63, s62, s60"); a("s_mul_i32 s63, s63, 1600")
    a(f"s_lshr_b32 s64, s{sJ}, 1"); a("s_lshl4_add_u32 s64, s3, s64"); a("s_mul_i32 s64, s64, 800")
    a(f"s_lshl_b32 s65, s{sWV}, 11"); a("v_lshlrev_b32 v2, 4, v0"); a("s_mov_b32 m0, s65")
    a("s_waitcnt lgkmcnt(0)")
    a(f"buffer_load_dwordx4 v2, s[{rPHI}:{rPHI+3}], s63 offen lds")
    a(f"buffer_load_dwordx4 v2, s[{rPHI}:{rPHI+3}], s63 offen offset:1024 lds")
    a(f"s_mov_b32 m0, {L_PHIO}")
    a(f"buffer_load_dwordx4 v2, s[{rPHI}:{rPHI+3}], s64 offen lds")
    a("v_lshrrev_b32 v3, 4, v0"); a("v_bfe_u32 v4, v0, 2, 2"); a("v_and_b32 v5, 3, v0"); a("v_and_b32 v6, 15, v0")
    a(f"v_mul_u32_u24 v7, {WREG}, v3"); a("v_mul_u32_u24 v12, 320, v4"); a("s_movk_i32 s3, 16384"); a("v_add3_u32 v7, v7, v12, s3")
    a("s_mul_i32 s66, s60, 80"); a("s_sub_u32 s67, 240, s66")
    a("v_lshl_add_u32 v12, v5, 3, v7"); a("v_add_u32 v9, s66, v12"); a("v_add_u32 v10, s67, v12")
    a("v_mov_b32 v12, s66"); a("v_mov_b32 v13, s67"); a("v_cmp_lt_u32 vcc, 1, v5"); a("v_and_b32 v14, 1, v5"); a("v_mul_u32_u24 v14, 72, v14")
    a("v_cndmask_b32 v15, v12, v13, vcc"); a("v_add3_u32 v11, v7, v15, v14")
    a("v_and_b32 v7, 2, v0"); a("v_bfe_u32 v14, v0, 2, 1"); a("v_or_b32 v7, v7, v14"); a("v_bfe_u32 v14, v0, 3, 1"); a("v_lshl_add_u32 v7, v14, 2, v7")
    a("v_lshlrev_b32 v14, 1, v3"); a("v_xor_b32 v7, v7, v14"); a("v_lshlrev_b32 v7, 4, v7"); a("v_lshl_add_u32 v7, v6, 7, v7")
    a("s_lshl_b32 s3, s61, 13"); a("v_add_u32 v8, s3, v7")
    a(f"v_add_u32 v{XA[0]}, {RING}, v8"); a(f"v_add_u32 v{MK}, {RING}, v9"); a(f"v_add_u32 v{MV}, {RING}, v10"); a(f"v_add_u32 v{EX}, {RING}, v11")
    a(f"v_xor_b32 v{XA[1]}, 16, v{XA[0]}")
    a("v_min_u32 v7, 2, v3"); a("v_mul_u32_u24 v7, 640, v7"); a(f"v_add_u32 v7, {L_CS}, v7")
    a("v_lshl_add_u32 v14, v6, 2, v7"); a("v_lshl_add_u32 v173, v12, 1, v14"); a("v_lshl_add_u32 v174, v13, 1, v14")
    a("v_cmp_lt_u32 vcc, 1, v4"); a("v_and_b32 v14, 1, v4"); a("v_mul_u32_u24 v14, 144, v14")
    a("v_cndmask_b32 v15, v12, v13, vcc"); a("v_lshl_add_u32 v15, v15, 1, v14"); a("v_lshl_add_u32 v14, v5, 2, v7"); a("v_add_u32 v175, v14, v15")
    a("s_lshl_b32 s3, s61, 10"); a(f"s_add_u32 s3, s3, {L_STAT}"); a("v_lshl_add_u32 v206, v6, 4, s3")
    for r in range(0, 80, 2): a(f"v_mov_b64 {vr(ACC+r,2)}, 0")
    for r in range(0, 36, 2): a(f"v_mov_b64 {vr(SET[1]+r,2)}, 0")
    for t in range(5): a(f"v_mov_b32 v{AUG+2*t+1}, 0")
    a("v_lshrrev_b32 v7, 1, v5")
    a("v_mul_u32_u24 v12, 640, v7"); a("v_lshl_add_u32 v13, v3, 2, v4"); a("v_mul_u32_u24 v13, 40, v13"); a("v_add3_u32 v12, v12, v13, s65")
    a("v_mul_u32_u24 v13, 1440, v7"); a("v_mul_u32_u24 v14, 40, v4"); a("v_add3_u32 v13, v13, v14, s65")
    a("v_bfe_u32 v7, v0, 3, 1"); a("v_add_u32 v14, -1, v7"); a("v_not_b32 v15, v14")
    a("v_cmp_eq_u32 vcc, v7, v3"); a("v_bfe_i32 v2, v0, 2, 1"); a("v_and_b32 v2, 0x80008000, v2"); a("v_cndmask_b32 v7, 0, -1, vcc")
    a("s_waitcnt vmcnt(0)")
    for T in range(5):
        a(f"ds_read_b64_tr_b16 {vr(PA+4*T,2)}, v12 offset:{160+8*T}"); a(f"ds_read_b64_tr_b16 {vr(PX+2*T,2)}, v13 offset:{8*T}")
    a("s_waitcnt lgkmcnt(0)")
    for T in range(5):
        for q in range(2):
            a(f"v_bitop3_b32 v{PA+4*T+2+q}, v{PA+4*T+q}, v2, v15 bitop3:0x28")
            a(f"v_bitop3_b32 v{PA+4*T+q}, v{PA+4*T+q}, v2, v14 bitop3:0x28")
            a(f"v_bitop3_b32 v{PX+2*T+q}, v{PX+2*T+q}, v2, v7 bitop3:0x28")
    a("s_mov_b32 s68, 0"); a(f"s_mov_b32 s69, {RING}")
    def reads(s, st):
        X = [f"ds_read_b128 {vr(st+4*m,4)}, v{XA[s]} offset:{2048*m}" for m in range(4)]
        Wr = []
        for t in range(5):
            for j in range(2):
                reg = [MK, MK, MV, MV, EX][t]; off = s*2560 + j*1280 + [8, 40, 8, 40, 0][t]
                Wr.append(f"ds_read_b64_tr_b16 {vr(st+16+4*t+2*j,2)}, v{reg} offset:{off}")
        return [X[0]] + Wr[0:2] + X[1:] + Wr[2:]
    def mf(i, st):
        t, m = divmod(i, 4)
        return f"v_mfma_f32_16x16x32_bf16 {vr(ACC+20*m+4*t,4)}, {vr(st+16+4*t,4)}, {vr(st+4*m,4)}, {vr(ACC+20*m+4*t,4)}"
    need = lambda i: (3 + i if i < 4 else 6 + 2*(i//4))
    R0 = reads(0, SET[0]); R1 = reads(1, SET[1])
    seq = [(i, 1) for i in range(20 - defer, 20)] + [(i, 0) for i in range(20)] + [(i, 1) for i in range(20 - defer)]
    fill = [[] for _ in seq]
    k = 0; g = 0
    while k < 14: fill[g] += R0[k:k+2]; k += 2; g += 1
    g = max(g, defer); k = 0
    while k < 14: fill[g].append(R1[k]); k += 1; g += 1
    fill[g] += [f"s_add_u32 s69, s69, {SLOT}", f"s_cmp_eq_u32 s69, {RING_END}", f"s_cselect_b32 s69, {RING}, s69"]
    for q, h in enumerate([f"v_add_u32 v{XA[0]}, s69, v8", f"v_add_u32 v{MK}, s69, v9", f"v_add_u32 v{MV}, s69, v10", f"v_add_u32 v{EX}, s69, v11", f"v_xor_b32 v{XA[1]}, 16, v{XA[0]}"]):
        fill[g+1+q].append(h)
    fill[g+6] += ["s_add_u32 s68, s68, 1", "s_cmp_lt_u32 s68, 10"]
    a.stampw(1)
    a.label("L_mloop")
    a("s_barrier")
    issued = 0; done = 0
    for idx, (i, st) in enumerate(seq):
        if idx >= defer:
            n = need(i) + (14 if st == 1 else 0)
            if idx == len(seq) - 1: n = 28
            if n > done: a(f"s_waitcnt lgkmcnt({min(15, issued - n)})"); done = n
        a(mf(i, SET[st]))
        for f in fill[idx]:
            if f.startswith("ds_"): issued += 1
            a(f)
    a("s_cbranch_scc1 L_mloop")
    a("s_barrier")
    RA = [f"ds_read_b128 {vr(STAT+4*m,4)}, v206 offset:{256*m}" for m in range(4)]
    RA += [f"ds_read_b32 v{AUG+2*t}, v{[173,173,174,174,175][t]} offset:{[16,80,16,80,0][t]}" for t in range(5)]
    k = 0
    for i in range(20 - defer, 20):
        a(mf(i, SET[1]))
        for r in RA[k:k+2]: a(r)
        k += 2
    for r in RA[k:]: a(r)
    a("s_waitcnt lgkmcnt(0)")
    for m in range(4):
        for t in range(5):
            a(f"v_mfma_f32_16x16x16_bf16 {vr(ACC+20*m+4*t,4)}, {vr(AUG+2*t,2)}, {vr(STAT+4*m,2)}, {vr(ACC+20*m+4*t,4)}")
    a.stampw(2)
    a("s_cmp_lt_u32 s57, 4"); a("s_cbranch_scc0 L_qepi")

    a("v_and_b32 v7, 1, v0"); a("v_bfe_u32 v12, v0, 1, 1"); a("v_lshl_or_b32 v7, v12, 2, v7"); a("v_bfe_u32 v12, v0, 2, 1"); a("v_lshl_or_b32 v7, v12, 1, v7")
    a("v_lshlrev_b32 v7, 4, v7")
    a("s_lshl_b32 s3, s61, 13"); a(f"s_add_u32 s3, s3, {TRI}"); a("v_lshl_add_u32 v7, v6, 7, v7"); a("v_add_u32 v7, s3, v7")
    a("s_lshl_b32 s58, s60, 15"); a("s_sub_u32 s59, 32768, s58")
    a("v_lshrrev_b32 v12, 1, v3"); a("v_and_b32 v13, 1, v3")
    a("v_lshl_add_u32 v14, v12, 14, v7"); a("v_add_u32 v14, s58, v14")
    a("v_lshlrev_b32 v15, 5, v13"); a("v_xor_b32 v8, v14, v15"); a("v_xor_b32 v9, 16, v8")
    a("v_xor_b32 v10, 96, v14"); a("v_lshl_add_u32 v10, v13, 3, v10")
    a("v_add_u32 v14, s59, v7"); a("v_lshlrev_b32 v15, 4, v12"); a("v_xor_b32 v11, 64, v14"); a("v_xor_b32 v11, v11, v15"); a("v_lshl_add_u32 v11, v13, 3, v11")
    a("v_xor_b32 v14, 112, v14"); a("v_lshl_add_u32 v14, v13, 14, v14"); a("v_xor_b32 v12, 1, v12"); a("v_lshl_add_u32 v2, v12, 3, v14")
    a("v_cmp_gt_u32 vcc, 32, v0")
    Pb = [96, 116]; Tb = [136, 146]; PH = 156; CP = 234; TT = 236
    def front(m):
        A = ACC + 20*m; T = Tb[m & 1]; P = Pb[m & 1]
        cv = []
        for q, (t, h) in enumerate([(0,0),(0,1),(1,0),(1,1),(4,0),(4,1),(2,0),(2,1),(3,0),(3,1)]):
            cv.append(f"v_cvt_pk_bf16_f32 v{T+q}, v{A+4*t+2*h}, v{A+4*t+2*h+1}")
        mm = [f"v_mfma_f32_16x16x32_bf16 {vr(P+4*u,4)}, {vr(PA+4*u,4)}, {vr(T,4)}, 0" for u in range(5)]
        mm += [f"v_mfma_f32_16x16x16_bf16 {vr(P+4*u,4)}, {vr(PX+2*u,2)}, {vr(T+4,2)}, {vr(P+4*u,4)}" for u in range(5)]
        post = [f"ds_write_b64 v11, {vr(T+6,2)} offset:{2048*m}", f"ds_write_b64 v11, {vr(T+8,2)} offset:{16384+2048*m}",
                f"v_cndmask_b32 v{T+4}, v{T+4}, v{STAT+4*m+1}, vcc", f"v_cndmask_b32 v{T+5}, v{T+5}, v{AUG+1}, vcc",
                f"ds_write_b64 v2, {vr(T+4,2)} offset:{2048*m}"]
        return cv, mm, post
    cv, mm, post = front(0)
    for x in cv + mm + post: a(x)
    for m in range(4):
        P = Pb[m & 1]
        sm = [f"v_mov_b32 v{CP}, v{STAT+4*m+3}"] + softmax_ops(list(range(P, P+20)), PH, CP, TT, npair=STAT+4*m+2)
        if m < 3:
            cv, mm, post = front(m+1)
            for x in cv: a(x)
            ins = mm + post
        else: ins = []
        k = 0
        for idx, x in enumerate(sm):
            a(x)
            if idx % 3 == 2 and k < len(ins): a(ins[k]); k += 1
        assert k == len(ins)
        a(f"ds_write_b128 v8, {vr(PH,4)} offset:{2048*m}"); a(f"ds_write_b128 v9, {vr(PH+4,4)} offset:{2048*m}"); a(f"ds_write_b64 v10, {vr(PH+8,2)} offset:{2048*m}")
    a("v_lshrrev_b32 v7, 5, v0"); a("v_lshl_add_u32 v12, v7, 3, v4"); a("v_lshlrev_b32 v12, 7, v12")
    a("v_and_b32 v13, 1, v4"); a("v_lshrrev_b32 v14, 1, v4"); a("v_lshl_or_b32 v13, v14, 2, v13"); a("v_lshl_or_b32 v12, v13, 4, v12")
    a(f"s_lshl_b32 s3, s{sWV}, 14"); a(f"s_add_u32 s3, s3, {TRI}"); a("v_add_u32 v12, s3, v12")
    a("v_and_b32 v13, 1, v5"); a("v_lshrrev_b32 v14, 1, v5"); a("v_and_b32 v15, 1, v3")
    a("v_lshl_or_b32 v168, v13, 1, v15"); a("v_lshlrev_b32 v168, 4, v168"); a("v_xor_b32 v168, v168, v12"); a("v_lshl_add_u32 v168, v14, 3, v168")
    a("v_xor_b32 v170, 96, v12"); a("v_lshl_add_u32 v170, v13, 3, v170")
    a(f"s_and_b32 s3, s{sWV}, 1"); a("s_cmp_eq_u32 s3, 0"); a("s_mov_b32 s3, 0xfffeba98"); a("s_cselect_b32 s3, 0xfffba98e, s3")
    a("v_lshl_add_u32 v13, v15, 2, v5"); a("v_lshlrev_b32 v13, 2, v13"); a("v_bfe_u32 v13, s3, v13, 4"); a("v_lshlrev_b32 v13, 3, v13")
    a("v_xor_b32 v172, v13, v12")
    for r in (168, 170, 172): a(f"v_xor_b32 v{r+1}, 32, v{r}")
    a("v_and_b32 v13, 31, v0"); a("v_mul_u32_u24 v14, 21, v7"); a("v_add_u32 v14, v14, v13"); a("v_cmp_lt_u32 vcc, 20, v13")
    a(f"v_mov_b32 v15, {OOB:#x}"); a("v_lshlrev_b32 v174, 4, v14"); a("v_lshlrev_b32 v175, 3, v14")
    a("v_cndmask_b32 v174, v174, v15, vcc"); a("v_cndmask_b32 v175, v175, v15, vcc")
    a(f"s_lshl2_add_u32 s3, s62, s{sWV}"); a("s_lshl4_add_u32 s3, s3, s54"); a("s_mul_i32 s58, s3, 1792"); a(f"s_add_u32 s58, s58, {WS_KV}")
    a("s_waitcnt lgkmcnt(0)"); a("s_barrier")
    a.stampw(3)
    D0, D1, FR = 16, 32, 48
    def kvreads(ks):
        f = FR + 12*(ks % 3)
        return [f"ds_read_b64_tr_b16 {vr(f+4*o+2*j,2)}, v{[172,168,170][o]+j} offset:{2048*ks+512*j}" for o in range(3) for j in range(2)]
    for x in kvreads(0) + kvreads(1): a(x)
    for ks in range(8):
        f = FR + 12*(ks % 3)
        a(f"s_waitcnt lgkmcnt({6 if ks < 7 else 0})")
        a(f"v_mfma_f32_32x32x16_bf16 {vr(D0,16)}, {vr(f+4,4)}, {vr(f,4)}, {vr(D0,16) if ks else 0}")
        if ks < 6:
            for x in kvreads(ks+2)[:3]: a(x)
        a(f"v_mfma_f32_32x32x16_bf16 {vr(D1,16)}, {vr(f+8,4)}, {vr(f,4)}, {vr(D1,16) if ks else 0}")
        if ks < 6:
            for x in kvreads(ks+2)[3:]: a(x)
    a("s_barrier")
    for q in range(10): a(f"v_cvt_pk_bf16_f32 v{FR+q}, v{D0+2*q}, v{D0+2*q+1}")
    a(f"buffer_store_dwordx4 {vr(FR,4)}, v174, s[{rWS}:{rWS+3}], s58 offen sc1")
    a(f"buffer_store_dwordx4 {vr(FR+4,4)}, v174, s[{rWS}:{rWS+3}], s58 offen offset:672 sc1")
    a(f"buffer_store_dwordx2 {vr(FR+8,2)}, v175, s[{rWS}:{rWS+3}], s58 offen offset:1344 sc1")
    a("s_branch L_common")

    a.label("L_qepi")
    a(f"s_and_b32 s3, s{sX}, 1"); a("s_lshl1_add_u32 s3, s3, s57"); a("s_sub_u32 s3, s3, 4"); a("s_mul_i32 s58, s3, 655360")
    a("s_lshl1_add_u32 s3, s54, s61"); a("s_mul_i32 s3, s3, 2560"); a("s_add_u32 s58, s58, s3"); a(f"s_add_u32 s58, s58, {WS_Q}")
    a("s_mul_i32 s3, s60, 163840"); a("s_sub_u32 s53, 491520, s3")
    a("v_mov_b32 v12, s3"); a("v_mov_b32 v13, s53"); a("v_cmp_gt_u32 vcc, 32, v0")
    a("s_add_u32 s59, s58, s53"); a("s_add_u32 s53, s58, s3")
    a("v_and_b32 v7, 1, v3"); a("v_mul_u32_u24 v7, 81920, v7"); a("v_cndmask_b32 v12, v13, v12, vcc")
    a("v_lshrrev_b32 v14, 5, v0"); a("v_lshl_add_u32 v14, v14, 9, v7"); a("v_lshl_add_u32 v8, v6, 4, v14")
    a("v_add_u32 v12, v12, v7"); a("v_lshl_add_u32 v9, v6, 3, v12")
    for m in range(4):
        A = ACC + 20*m; T = 96 + 12*m
        for r in range(0, 20, 2): a(f"v_pk_mul_f32 {vr(A+r,2)}, {vr(A+r,2)}, {vr(STAT+4*m+2,2)} op_sel_hi:[1,0]")
        for q in range(10): a(f"v_cvt_pk_bf16_f32 v{T+q}, v{A+2*q}, v{A+2*q+1}")
        for q in (0, 1, 4, 5): a(f"v_permlane16_swap_b32 v{T+q}, v{T+q+2}")
        a(f"buffer_store_dwordx4 {vr(T,4)}, v8, s[{rWS}:{rWS+3}], s53 offen offset:{(m>>1)*1280+(m&1)*256} sc1")
        a(f"buffer_store_dwordx4 {vr(T+4,4)}, v8, s[{rWS}:{rWS+3}], s59 offen offset:{(m>>1)*1280+(m&1)*256} sc1")
        a(f"buffer_store_dwordx2 {vr(T+8,2)}, v9, s[{rWS}:{rWS+3}], s58 offen offset:{1024+(m>>1)*1280+(m&1)*128} sc1")
    a.stampw(3)
    a("s_branch L_common")

    a.label("L_helper")
    a.srdw(rWR, D*2); a.srdw(rG, D*F*2); a.srdw(rU, D*F*2); a.srdw(rDN, D*F*2)
    XR, CR, WR, FF = 16, 36, 56, 76
    a(f"s_sub_u32 s54, s{sJR}, 24"); a(f"s_lshl3_add_u32 s55, s{sX}, s54")
    a(f"s_lshl3_add_u32 s56, s55, s{sWV}")
    a("v_lshrrev_b32 v3, 4, v0"); a("v_and_b32 v4, 15, v0"); a("v_lshlrev_b32 v4, 4, v4")
    a("s_lshl_b32 s3, s56, 2"); a("v_add_u32 v5, s3, v3"); a("s_movk_i32 s3, 1280"); a("v_mad_u32_u24 v6, v5, s3, v4")
    a(f"s_lshr_b32 s57, s{sX}, 1"); a(f"s_and_b32 s58, s{sX}, 1")
    a("s_lshl3_add_u32 s59, s57, s54"); a("s_lshr_b32 s60, s59, 1"); a("s_and_b32 s59, s59, 1")
    a("s_mul_i32 s3, s60, 52"); a("s_lshr_b32 s3, s3, 8"); a("s_add_u32 s3, s3, s58"); a("s_mul_i32 s3, s3, 640"); a("s_lshl_b32 s61, s60, 7"); a("s_add_u32 s61, s61, s3")
    a(f"s_lshr_b32 s3, s{sWV}, 2"); a("s_lshl1_add_u32 s3, s3, s59"); a(f"s_and_b32 s53, s{sWV}, 3"); a("s_lshl2_add_u32 s3, s3, s53"); a("s_mul_i32 s3, s3, 30720"); a("s_add_u32 s3, s3, s61")
    a("s_cmp_eq_u32 s60, 15"); a(f"s_cselect_b32 s3, {OOB:#x}, s3")
    a("v_lshrrev_b32 v7, 3, v0"); a("v_mul_u32_u24 v7, 3840, v7"); a("v_and_b32 v8, 7, v0"); a("v_lshl_add_u32 v7, v8, 4, v7"); a("v_add_u32 v7, s3, v7")
    a("s_mov_b32 s62, 0")
    a("s_waitcnt lgkmcnt(0)")
    for i in range(5):
        a(f"buffer_load_dwordx4 {vr(XR+4*i,4)}, v6, s[{rX}:{rX+3}], 0 offen offset:{256*i}")
        a(f"buffer_load_dwordx4 {vr(CR+4*i,4)}, v7, s[{rW}:{rW+3}], s62 offen")
        if i < 4: a("s_add_u32 s62, s62, 491520")
    for i in range(5): a(f"buffer_load_dwordx4 {vr(WR+4*i,4)}, v4, s[{rWR}:{rWR+3}], 0 offen offset:{256*i}")
    a(f"s_lshr_b32 s3, s{sJ}, 1"); a("s_lshl4_add_u32 s3, s58, s3"); a("s_mul_i32 s3, s3, 800"); a("v_lshlrev_b32 v2, 4, v0"); a(f"s_mov_b32 m0, {L_PHIO}")
    a(f"buffer_load_dwordx4 v2, s[{rPHI}:{rPHI+3}], s3 offen lds")
    for q in range(4): a(f"v_mov_b32 v{12+q}, s{sSENT}")
    a(f"s_mul_i32 s62, s56, {CLR_PER_WAVE}"); a(f"s_add_u32 s62, s62, {WS_CLR}")
    for i in range(13):
        a(f"buffer_store_dwordx4 v[12:15], v2, s[{rWS}:{rWS+3}], s62 offen offset:{1024*(i%4)} sc1")
        if i % 4 == 3: a("s_add_u32 s62, s62, 4096")
    a("s_lshl3_add_u32 s3, s57, s54"); a("s_lshl_b32 s3, s3, 6"); a("v_add_u32 v9, s3, v0"); a("v_mul_u32_u24 v9, 1280, v9")
    a("s_mul_i32 s3, s58, 640"); a("s_mul_i32 s53, s54, 30720"); a("s_add_u32 s3, s3, s53")
    for i in range(2):
        a(f"v_add_u32 v116, {64*i}, v0"); a("v_mul_u32_u24 v117, 13108, v116"); a("v_lshrrev_b32 v117, 16, v117")
        a("v_mul_u32_u24 v117, 640, v117"); a("v_lshl_add_u32 v117, v116, 7, v117"); a(f"v_add_u32 v{10+i}, s3, v117")
    a("v_cmp_lt_u32 vcc, 55, v0"); a(f"v_mov_b32 v116, {OOB:#x}"); a("v_cndmask_b32 v11, v11, v116, vcc")
    a(f"s_add_u32 s3, s{sWV}, {touch}"); a("s_lshl_b32 s62, s3, 7"); a("s_mul_i32 s63, s3, 245760")
    a("s_cmp_ge_u32 s3, 10"); a(f"s_cselect_b32 s62, {OOB:#x}, s62")
    a(f"buffer_load_dword v116, v9, s[{rX}:{rX+3}], s62 offen")
    a(f"buffer_load_dword v117, v10, s[{rW}:{rW+3}], s63 offen")
    a(f"buffer_load_dword v118, v11, s[{rW}:{rW+3}], s63 offen")
    a("s_waitcnt vmcnt(17)")
    a.stampw(1)
    for q in range(20):
        a(f"v_lshlrev_b32 v{FF+2*q}, 16, v{XR+q}"); a(f"v_and_b32 v{FF+2*q+1}, 0xffff0000, v{XR+q}")
    a(f"v_pk_add_f32 v[120:121], {vr(FF,2)}, {vr(FF+2,2)}"); a(f"v_pk_add_f32 v[122:123], {vr(FF+4,2)}, {vr(FF+6,2)}")
    for q in range(8, 40, 4):
        a(f"v_pk_add_f32 v[120:121], v[120:121], {vr(FF+q,2)}"); a(f"v_pk_add_f32 v[122:123], v[122:123], {vr(FF+q+2,2)}")
    a("v_pk_add_f32 v[120:121], v[120:121], v[122:123]"); a("v_add_f32 v120, v120, v121")
    a.rowsum16(120)
    a("v_mul_f32 v120, 0x3acccccd, v120")
    a("v_mov_b64 v[122:123], 0"); a("v_mov_b64 v[124:125], 0")
    for q in range(0, 40, 4):
        a(f"v_pk_add_f32 v[126:127], {vr(FF+q,2)}, v[120:121] op_sel_hi:[1,0] neg_lo:[0,1] neg_hi:[0,1]")
        a(f"v_pk_add_f32 v[128:129], {vr(FF+q+2,2)}, v[120:121] op_sel_hi:[1,0] neg_lo:[0,1] neg_hi:[0,1]")
        a("v_pk_fma_f32 v[122:123], v[126:127], v[126:127], v[122:123]"); a("v_pk_fma_f32 v[124:125], v[128:129], v[128:129], v[124:125]")
    a("v_pk_add_f32 v[122:123], v[122:123], v[124:125]"); a("v_add_f32 v122, v122, v123")
    a.rowsum16(122)
    a("v_mul_f32 v122, 0x3acccccd, v122")
    a("v_cvt_pk_bf16_f32 v122, v122, v122"); a("v_and_b32 v122, 0xffff0000, v122"); a("v_add_f32 v122, 0x3727c5ac, v122")
    a("v_cvt_pk_bf16_f32 v122, v122, v122"); a("v_and_b32 v122, 0xffff0000, v122"); a("v_sqrt_f32 v122, v122")
    a("v_cvt_pk_bf16_f32 v126, v120, v122")
    a("v_and_b32 v122, 0xffff0000, v126"); a("v_rcp_f32 v124, v122"); a("v_lshlrev_b32 v120, 16, v126")
    a("v_mov_b32 v128, 0"); a("v_mov_b32 v129, 0")
    for q in range(20):
        a(f"v_pk_add_f32 {vr(FF+2*q,2)}, {vr(FF+2*q,2)}, v[120:121] op_sel_hi:[1,0] neg_lo:[0,1] neg_hi:[0,1]")
    for q in range(20): a(f"v_pk_mul_f32 {vr(FF+2*q,2)}, {vr(FF+2*q,2)}, v[124:125] op_sel_hi:[1,0]")
    for q in range(20): a(f"v_cvt_pk_bf16_f32 v{XR+q}, v{FF+2*q}, v{FF+2*q+1}")
    for q in range(20): a(f"v_dot2c_f32_bf16 v{128+(q&1)}, v{XR+q}, v{WR+q}")
    a("v_add_f32 v128, v128, v129")
    a.rowsum16(128)
    a("v_cvt_pk_bf16_f32 v128, v128, v128"); a("v_ashrrev_i32 v129, 31, v128"); a("v_or_b32 v129, 0x80000000, v129"); a("v_xor_b32 v128, v128, v129")
    a("v_and_b32 v128, 0xffff0000, v128"); a("v_sub_u32 v129, 2047, v5"); a("v_or_b32 v127, v128, v129")
    a(f"s_lshl_b32 s3, s{sWV}, 5"); a(f"s_add_u32 s3, s3, {L_HM}"); a("v_lshl_add_u32 v129, v3, 3, s3")
    a("ds_write_b64 v129, v[126:127]")
    a("s_mov_b32 s62, 0x00003f80"); a("s_mov_b32 s63, 0x3f800000")
    for r in range(0, 8, 2): a(f"v_mov_b64 {vr(FF+r,2)}, 0")
    for i in range(5):
        for q in range(4):
            a(f"v_dot2c_f32_bf16 v{FF+2*q}, s62, v{CR+4*i+q}"); a(f"v_dot2c_f32_bf16 v{FF+2*q+1}, s63, v{CR+4*i+q}")
    for q in range(4): a(f"v_permlane32_swap_b32 v{FF+q}, v{FF+q+4}")
    a(f"v_pk_add_f32 {vr(FF,2)}, {vr(FF,2)}, {vr(FF+4,2)}"); a(f"v_pk_add_f32 {vr(FF+2,2)}, {vr(FF+2,2)}, {vr(FF+6,2)}")
    for q in range(2): a(f"v_permlane16_swap_b32 v{FF+q}, v{FF+q+2}")
    a(f"v_pk_add_f32 {vr(FF,2)}, {vr(FF,2)}, {vr(FF+2,2)}")
    for q in range(2): a(f"v_add_f32_dpp v{FF+q}, v{FF+q}, v{FF+q} row_ror:8 row_mask:0xf bank_mask:0xf")
    a(f"s_lshl_b32 s3, s{sWV}, 8"); a(f"s_add_u32 s3, s3, {L_HM+256}"); a("v_lshl_add_u32 v129, v8, 5, s3"); a("v_lshl_add_u32 v129, v3, 3, v129")
    a(f"ds_write_b64 v129, {vr(FF,2)}")
    a("s_waitcnt lgkmcnt(0)"); a("s_barrier")
    a(f"s_cmp_eq_u32 s{sWV}, 0"); a("s_cbranch_scc0 L_h1")
    a("v_and_b32 v129, 31, v0"); a(f"v_lshlrev_b32 v128, 3, v129"); a(f"v_add_u32 v128, {L_HM}, v128"); a("ds_read_b64 v[126:127], v128")
    a("s_lshl_b32 s62, s55, 7"); a(f"s_add_u32 s62, s62, {WS_SM}"); a("v_lshlrev_b32 v129, 2, v129"); a("v_mov_b32 v125, 0")
    a("s_waitcnt lgkmcnt(0)")
    a(f"buffer_store_dword v126, v129, s[{rWS}:{rWS+3}], s62 offen sc1")
    a.top2(127, 125, 124, 62, 63)
    a("v_mov_b32 v122, s62"); a("v_mov_b32 v123, s63"); a("s_lshl_b32 s62, s55, 3"); a(f"s_add_u32 s62, s62, {WS_C1}")
    a("s_mov_b64 exec, 1")
    a(f"buffer_store_dwordx2 v[122:123], off, s[{rWS}:{rWS+3}], s62 sc1")
    a("s_mov_b64 exec, -1")
    a.label("L_h1")
    a(f"s_cmp_eq_u32 s{sWV}, 1"); a("s_cbranch_scc0 L_h2")
    a("v_lshlrev_b32 v129, 2, v0"); a(f"v_add_u32 v128, {L_HM+256}, v129")
    for q in range(8): a(f"ds_read_b32 v{FF+q}, v128 offset:{256*q}")
    a("s_lshl_b32 s62, s61, 1"); a("s_mul_i32 s3, s59, 7680"); a("s_add_u32 s62, s62, s3"); a(f"s_add_u32 s62, s62, {WS_CS}")
    a("s_cmp_eq_u32 s60, 15"); a(f"s_cselect_b32 s62, {OOB:#x}, s62")
    a("s_waitcnt lgkmcnt(0)")
    a(f"v_pk_add_f32 {vr(FF,2)}, {vr(FF,2)}, {vr(FF+2,2)}"); a(f"v_pk_add_f32 {vr(FF+4,2)}, {vr(FF+4,2)}, {vr(FF+6,2)}")
    a(f"v_pk_add_f32 {vr(FF,2)}, {vr(FF,2)}, {vr(FF+4,2)}"); a(f"v_add_f32 v{FF}, v{FF}, v{FF+1}")
    a(f"v_and_b32 v{FF+1}, 0xffff0000, v{FF}"); a(f"v_sub_f32 v{FF}, v{FF}, v{FF+1}"); a(f"v_cvt_pk_bf16_f32 v{FF}, v{FF+1}, v{FF}")
    a(f"buffer_store_dword v{FF}, v129, s[{rWS}:{rWS+3}], s62 offen sc1")
    a.label("L_h2")
    a("s_waitcnt vmcnt(0)"); a("s_barrier")
    a.stampw(2)
    a(f"s_cmp_eq_u32 s{sWV}, 0"); a("s_cbranch_scc0 L_h3")
    a("v_mov_b32 v122, 1"); a("s_and_b32 s3, s55, 1"); a("s_lshl_b32 s3, s3, 7")
    a("s_mov_b64 exec, 1")
    a(f"buffer_atomic_add v122, off, s[{rDBG}:{rDBG+3}], s3 sc1")
    a("s_mov_b64 exec, -1")
    a.label("L_h3")
    a("s_cmp_lt_u32 s54, 6"); a("s_cbranch_scc0 L_h4")
    a(f"s_mul_i32 s64, s{sX}, 6"); a("s_add_u32 s64, s64, s54")
    a("v_lshrrev_b32 v7, 2, v0"); a("v_mul_u32_u24 v7, 3072, v7"); a("v_and_b32 v8, 3, v0"); a("v_lshl_add_u32 v7, v8, 4, v7")
    a(f"s_mul_i32 s62, s{sWV}, 245760"); a("s_lshl_b32 s3, s64, 6"); a("s_add_u32 s62, s62, s3")
    a(f"s_mul_i32 s65, s{sWV}, 5120")
    a("s_mul_i32 s63, s64, 40960"); a("s_add_u32 s63, s63, s65")
    for i in range(5):
        a(f"s_add_u32 m0, s65, {L_GI+1024*i}"); a(f"buffer_load_dwordx4 v7, s[{rG}:{rG+3}], s62 offen lds")
        a(f"s_add_u32 m0, s65, {L_UI+1024*i}"); a(f"buffer_load_dwordx4 v7, s[{rU}:{rU+3}], s62 offen lds")
        a("s_add_u32 s62, s62, 49152")
    a(f"s_add_u32 m0, s65, {L_DI}")
    for i in range(4): a(f"buffer_load_dwordx4 v2, s[{rDN}:{rDN+3}], s63 offen offset:{1024*i} lds")
    a("s_add_u32 m0, m0, 4096"); a("s_add_u32 s63, s63, 4096")
    a(f"buffer_load_dwordx4 v2, s[{rDN}:{rDN+3}], s63 offen lds")
    a.label("L_h4")
    a.flagpoll(122, 123)
    a.stampw(3)
    a("v_lshlrev_b32 v124, 3, v0"); a(f"s_movk_i32 s3, {WS_C1}")
    a(f"buffer_load_dwordx2 v[122:123], v124, s[{rWS}:{rWS+3}], s3 offen sc1")
    a("s_waitcnt vmcnt(0)")
    a.top2(122, 123, 124, 66, 67)
    a("s_cmp_lt_u32 s54, 6"); a("s_cbranch_scc0 L_yred")
    a("s_and_b32 s66, s66, 0x7ff"); a("s_and_b32 s67, s67, 0x7ff"); a("s_sub_u32 s66, 2047, s66"); a("s_sub_u32 s67, 2047, s67")
    a("v_mov_b32 v9, s66"); a("v_mov_b32 v10, s67"); a("v_and_b32 v11, 1, v0"); a("v_cmp_eq_u32 vcc, 1, v11"); a("v_lshrrev_b32 v5, 5, v0")
    a("v_cndmask_b32 v9, v9, v10, vcc"); a("v_lshlrev_b32 v10, 2, v9"); a("v_mul_u32_u24 v9, 1280, v9"); a("v_lshl_add_u32 v9, v5, 4, v9")
    a(f"s_mul_i32 s62, s{sWV}, 160"); a(f"s_movk_i32 s3, {WS_SM}")
    a(f"buffer_load_dword v126, v10, s[{rWS}:{rWS+3}], s3 offen sc1")
    for s_ in range(5): a(f"buffer_load_dwordx4 {vr(XR+4*s_,4)}, v9, s[{rX}:{rX+3}], s62 offen offset:{32*s_}")
    a("v_bfe_u32 v6, v0, 2, 2"); a("v_lshl_add_u32 v6, v5, 3, v6")
    a("v_bfe_u32 v12, v0, 4, 1"); a("v_lshl_add_u32 v12, v12, 2, v8"); a("v_lshlrev_b32 v12, 3, v12")
    a("v_lshl_add_u32 v13, v6, 6, v12"); a("v_add_u32 v13, s65, v13")
    GB, UB = 132, 152
    for s_ in range(5):
        for j in range(2):
            a(f"ds_read_b64_tr_b16 {vr(GB+4*s_+2*j,2)}, v13 offset:{L_GI+1024*s_+256*j}")
    for s_ in range(5):
        for j in range(2):
            a(f"ds_read_b64_tr_b16 {vr(UB+4*s_+2*j,2)}, v13 offset:{L_UI+1024*s_+256*j}")
    a("s_waitcnt vmcnt(0)")
    a("v_and_b32 v122, 0xffff0000, v126"); a("v_rcp_f32 v124, v122"); a("v_lshlrev_b32 v120, 16, v126")
    for q in range(20):
        a(f"v_lshlrev_b32 v{FF+2*q}, 16, v{XR+q}"); a(f"v_and_b32 v{FF+2*q+1}, 0xffff0000, v{XR+q}")
    for q in range(20):
        a(f"v_pk_add_f32 {vr(FF+2*q,2)}, {vr(FF+2*q,2)}, v[120:121] op_sel_hi:[1,0] neg_lo:[0,1] neg_hi:[0,1]")
    for q in range(20): a(f"v_pk_mul_f32 {vr(FF+2*q,2)}, {vr(FF+2*q,2)}, v[124:125] op_sel_hi:[1,0]")
    for q in range(20): a(f"v_cvt_pk_bf16_f32 v{XR+q}, v{FF+2*q}, v{FF+2*q+1}")
    a("s_waitcnt lgkmcnt(0)")
    DG, DU = 176, 192
    for s_ in range(5):
        a(f"v_mfma_f32_32x32x16_bf16 {vr(DG,16)}, {vr(XR+4*s_,4)}, {vr(GB+4*s_,4)}, {vr(DG,16) if s_ else 0}")
        a(f"v_mfma_f32_32x32x16_bf16 {vr(DU,16)}, {vr(XR+4*s_,4)}, {vr(UB+4*s_,4)}, {vr(DU,16) if s_ else 0}")
    a("v_cmp_gt_u32 vcc, 32, v0"); a(f"v_lshlrev_b32 v14, 3, v0"); a(f"v_add_u32 v14, {L_GU}, v14"); a(f"s_lshl_b32 s3, s{sWV}, 9"); a("v_add_u32 v15, s3, v14")
    for q in range(2): a(f"v_cndmask_b32 v{120+q}, v{DU+q}, v{DG+q}, vcc")
    a("ds_write_b64 v15, v[120:121]")
    a("s_waitcnt lgkmcnt(0)"); a("s_barrier")
    for q in range(8): a(f"ds_read_b64 {vr(FF+2*q,2)}, v14 offset:{512*q}")
    a("s_movk_i32 s3, 1280"); a("v_mad_u32_u24 v13, v6, s3, v12"); a(f"s_lshl_b32 s3, s{sWV}, 6"); a(f"s_add_u32 s3, s3, {L_DI}"); a("v_add_u32 v13, s3, v13")
    a("s_waitcnt lgkmcnt(0)")
    for u in range(3):
        for s_ in range(2):
            for j in range(2): a(f"ds_read_b64_tr_b16 {vr(GB+8*u+4*s_+2*j,2)}, v13 offset:{512*u+20480*s_+5120*j}")
    for q in range(4): a(f"v_pk_add_f32 {vr(FF+2*q,2)}, {vr(FF+2*q,2)}, {vr(FF+2*q+8,2)}")
    for q in range(2): a(f"v_pk_add_f32 {vr(FF+2*q,2)}, {vr(FF+2*q,2)}, {vr(FF+2*q+4,2)}")
    a(f"v_pk_add_f32 {vr(FF,2)}, {vr(FF,2)}, {vr(FF+2,2)}")
    a(f"v_permlane32_swap_b32 v{FF}, v{FF+1}")
    a(f"v_cvt_pk_bf16_f32 v120, v{FF}, v{FF+1}"); a("v_lshlrev_b32 v121, 16, v120"); a("v_and_b32 v120, 0xffff0000, v120")
    a(f"v_mul_f32 v122, {LOG2E|0x80000000:#x}, v121"); a("v_exp_f32 v122, v122"); a("v_add_f32 v122, 1.0, v122"); a("v_rcp_f32 v122, v122")
    a("v_mul_f32 v121, v121, v122"); a("v_cvt_pk_bf16_f32 v121, v121, v121"); a("v_and_b32 v121, 0xffff0000, v121")
    a("v_mul_f32 v121, v121, v120"); a("v_cvt_pk_bf16_f32 v121, v121, v121")
    a(f"s_lshl_b32 s3, s{sWV}, 7"); a(f"s_add_u32 s3, s3, {L_HB}"); a("v_lshl_add_u32 v14, v0, 1, s3"); a("ds_write_b16 v14, v121")
    a("v_lshlrev_b32 v14, 6, v11"); a("v_lshl_add_u32 v14, v5, 4, v14"); a("v_add_u32 v14, s3, v14")
    a("s_waitcnt lgkmcnt(0)")
    a(f"ds_read_b128 {vr(XR,4)}, v14"); a(f"ds_read_b128 {vr(XR+4,4)}, v14 offset:32")
    a("v_and_b32 v14, 31, v0"); a("v_lshlrev_b32 v14, 2, v14"); a("s_movk_i32 s3, 2560"); a("v_mad_u32_u24 v14, v5, s3, v14")
    a("s_mul_i32 s62, s64, 5120"); a(f"s_lshl_b32 s3, s{sWV}, 7"); a("s_add_u32 s62, s62, s3"); a(f"s_add_u32 s62, s62, {WS_YP}")
    a(f"s_cmp_lt_u32 s{sWV}, 4"); a(f"s_cselect_b32 s63, s62, {OOB:#x}")
    a("s_waitcnt lgkmcnt(0)")
    for s_ in range(2):
        for u in range(3):
            a(f"v_mfma_f32_32x32x16_bf16 {vr(DG+16*u,16)}, {vr(XR+4*s_,4)}, {vr(GB+8*u+4*s_,4)}, {vr(DG+16*u,16) if s_ else 0}")
    for u in range(3):
        a(f"v_cndmask_b32 v{120+u}, v{DG+16*u+1}, v{DG+16*u}, vcc")
        a(f"buffer_store_dword v{120+u}, v14, s[{rWS}:{rWS+3}], s{63 if u == 2 else 62} offen offset:{1024*u} sc1")
    a("s_branch L_h5")
    a.label("L_yred")
    a("s_cmp_eq_u32 s54, 6"); a("s_cselect_b32 s66, s66, s67")
    a("v_mul_u32_u24 v7, 3277, v0"); a("v_lshrrev_b32 v7, 16, v7"); a("s_movk_i32 s3, 4800"); a("v_mad_u32_u24 v7, v7, s3, v2")
    a("v_cmp_lt_u32 vcc, 59, v0"); a(f"v_mov_b32 v8, {OOB:#x}"); a("s_sub_u32 s63, s54, 6"); a("v_cndmask_b32 v7, v7, v8, vcc")
    a("s_mul_i32 s63, s63, 2560"); a(f"s_mul_i32 s3, s{sX}, 320"); a("s_add_u32 s63, s63, s3")
    a(f"s_mul_i32 s62, s{sWV}, 30720"); a("s_add_u32 s62, s62, s63"); a(f"s_add_u32 s62, s62, {WS_YP}"); a("s_add_u32 s64, s62, 15360")
    a.poll([f"buffer_load_dwordx4 v[16:19], v7, s[{rWS}:{rWS+3}], s62 offen sc1", f"buffer_load_dwordx4 v[20:23], v7, s[{rWS}:{rWS+3}], s64 offen sc1"], range(16, 24), 24, 1)
    a("v_pk_add_f32 v[16:17], v[16:17], v[20:21]"); a("v_pk_add_f32 v[18:19], v[18:19], v[22:23]")
    a(f"s_lshl_b32 s3, s{sWV}, 10"); a("v_add_u32 v8, s3, v2"); a("ds_write_b128 v8, v[16:19]")
    a("s_waitcnt lgkmcnt(0)"); a("s_barrier")
    a(f"s_lshl_b32 s3, s{sWV}, 6"); a("v_add_u32 v8, s3, v0"); a("v_cmp_lt_u32 vcc, 79, v8"); a("v_min_u32 v8, 79, v8"); a("v_lshlrev_b32 v8, 2, v8")
    for q in range(24): a(f"ds_read_b32 v{16+q}, v8 offset:{1024*(q//3)+320*(q%3)}")
    a(f"v_mov_b32 v9, {OOB:#x}"); a("v_cndmask_b32 v9, v8, v9, vcc")
    a("s_and_b32 s66, s66, 0xffff0000"); a("s_cmp_lt_i32 s66, 0"); a("s_mov_b32 s3, 0xffff0000"); a("s_cselect_b32 s3, 0x80000000, s3"); a("s_xor_b32 s66, s66, s3")
    a(f"v_mov_b32 v10, {LOG2E|0x80000000:#x}"); a("v_mul_f32 v10, s66, v10"); a("v_exp_f32 v10, v10"); a("v_add_f32 v10, 1.0, v10"); a("v_rcp_f32 v10, v10")
    a("v_cvt_pk_bf16_f32 v10, v10, v10"); a("v_and_b32 v10, 0xffff0000, v10")
    a("s_waitcnt lgkmcnt(0)")
    for q in range(6): a(f"v_pk_add_f32 {vr(16+2*q,2)}, {vr(16+2*q,2)}, {vr(28+2*q,2)}")
    for q in range(3): a(f"v_pk_add_f32 {vr(16+2*q,2)}, {vr(16+2*q,2)}, {vr(22+2*q,2)}")
    a("v_pk_add_f32 v[16:17], v[16:17], v[18:19]"); a("v_pk_add_f32 v[16:17], v[16:17], v[20:21]"); a("v_add_f32 v16, v16, v17")
    a("v_cvt_pk_bf16_f32 v16, v16, v16"); a("v_and_b32 v16, 0xffff0000, v16"); a("v_mul_f32 v16, v16, v10")
    a(f"s_add_u32 s63, s63, {WS_Y}")
    a(f"buffer_store_dword v16, v9, s[{rWS}:{rWS+3}], s63 offen sc1")
    a.label("L_h5")
    a("s_barrier")
    a(f"s_cmp_lt_u32 s{sWV}, 4"); a("s_cbranch_scc1 L_common")
    a(f"s_sub_u32 s60, s{sWV}, 4")
    wo_addr()
    a.label("L_h6")
    wo_round()
    a("s_cmp_lt_u32 s69, 81920"); a("s_cbranch_scc1 L_h6")

    a.label("L_common")
    a.stampw(4)
    a(f"s_and_b32 s3, s{sX}, 1"); a(f"s_lshr_b32 s54, s{sJ}, 1"); a("s_lshl4_add_u32 s54, s3, s54")
    a(f"s_and_b32 s55, s{sX}, 6"); a(f"s_and_b32 s3, s{sJ}, 1"); a("s_add_u32 s55, s55, s3"); a(f"s_lshl3_add_u32 s55, s55, s{sWV}")
    a(f"s_lshr_b32 s3, s{sJ}, 3"); a(f"s_lshl2_add_u32 s56, s{sX}, s3")
    a(f"s_and_b32 s57, s{sWV}, 3"); a(f"s_lshr_b32 s58, s{sWV}, 2")
    a("s_lshl_b32 s3, s54, 6"); a("s_add_u32 s3, s3, s55"); a("s_mul_i32 s59, s3, 1280"); a(f"s_add_u32 s59, s59, {WS_Q}")
    a("v_lshlrev_b32 v7, 4, v0"); a("v_and_b32 v8, 31, v0"); a("v_lshlrev_b32 v9, 3, v8")
    QF = 16; OA = 24; P0 = 40; P1 = 56; PHQ = 72; KL = 84
    qloads = [f"buffer_load_dwordx4 {vr(QF,4)}, v7, s[{rWS}:{rWS+3}], s59 offen sc1", f"buffer_load_dwordx2 {vr(QF+4,2)}, v9, s[{rWS}:{rWS+3}], s59 offen offset:1024 sc1"]
    for l in qloads: a(l)
    a("s_cmp_eq_u32 s58, 0"); a("s_cbranch_scc1 L_c1")
    wo_round()
    a("s_cmp_lt_u32 s57, 2"); a("s_cbranch_scc0 L_c1")
    a("s_lshl1_add_u32 s3, s56, s57"); a("s_mul_i32 s68, s3, 40960"); a("s_add_u32 s68, s68, s67")
    a("s_mul_i32 s69, s57, 5120"); a(f"s_add_u32 s69, s69, {L_RES}")
    unit(rX, "s68", "s69")
    a.label("L_c1")
    a("v_lshrrev_b32 v10, 5, v0"); a("v_bfe_u32 v11, v0, 2, 2"); a("v_bfe_u32 v12, v0, 4, 1"); a("v_bfe_u32 v13, v0, 1, 1"); a("v_lshl_add_u32 v12, v12, 1, v13")
    a("s_and_b32 s3, s54, 1"); a("s_cmp_eq_u32 s3, 0"); a(f"s_cselect_b32 s60, 160, 0"); a(f"s_cselect_b32 s61, 0, 640")
    a(f"s_add_u32 s60, s60, {L_PHIO}"); a(f"s_add_u32 s61, s61, {L_PHIO}")
    a("v_mul_u32_u24 v13, 40, v11"); a("v_add_u32 v14, s61, v13"); a("v_mul_u32_u24 v15, 320, v10"); a("v_add3_u32 v13, v13, v15, s60")
    a("v_lshl_add_u32 v15, v12, 3, v13"); a("v_lshl_add_u32 v12, v12, 3, v14")
    a(f"ds_read_b64_tr_b16 {vr(OA,2)}, v15"); a(f"ds_read_b64_tr_b16 {vr(OA+2,2)}, v15 offset:160")
    a(f"ds_read_b64_tr_b16 {vr(OA+4,2)}, v13 offset:32"); a(f"ds_read_b64_tr_b16 {vr(OA+6,2)}, v13 offset:192")
    a(f"ds_read_b64_tr_b16 {vr(OA+8,2)}, v12"); a(f"ds_read_b64_tr_b16 {vr(OA+10,2)}, v14 offset:32")
    a("v_bfe_i32 v12, v0, 2, 1"); a("v_and_b32 v12, 0x80008000, v12"); a("v_add_u32 v13, -1, v10")
    a(f"s_lshl_b32 s3, s{sWV}, 6"); a("v_add_u32 v14, s3, v0"); a("v_cmp_lt_u32 vcc, 419, v14"); a("v_lshlrev_b32 v14, 2, v14"); a(f"v_mov_b32 v15, {OOB:#x}")
    a("v_cndmask_b32 v15, v14, v15, vcc")
    a("s_mul_i32 s60, s54, 28672"); a(f"s_add_u32 s60, s60, {WS_KV}")
    a("s_waitcnt lgkmcnt(0)")
    for q in range(8): a(f"v_xor_b32 v{OA+q}, v12, v{OA+q}")
    for q in range(8, 12): a(f"v_bitop3_b32 v{OA+q}, v{OA+q}, v12, v13 bitop3:0x28")
    a.poll(qloads, range(QF, QF+6), 22, 2, pre_issued=True)
    a.stampw(5)
    kloads = ["s_mov_b32 s61, s60"]
    for p in range(16):
        kloads.append(f"buffer_load_dword v{KL+p}, v15, s[{rWS}:{rWS+3}], s61 offen offset:{1792*(p&1)} sc1")
        if p & 1 and p < 15: kloads.append("s_add_u32 s61, s61, 3584")
    a(f"v_mfma_f32_32x32x16_bf16 {vr(P0,16)}, {vr(OA,4)}, {vr(QF,4)}, 0")
    a(f"v_mfma_f32_32x32x16_bf16 {vr(P1,16)}, {vr(OA+4,4)}, {vr(QF,4)}, 0")
    for l in kloads[:12]: a(l)
    a(f"v_mfma_f32_32x32x8_bf16 {vr(P0,16)}, {vr(OA+8,2)}, {vr(QF+4,2)}, {vr(P0,16)}")
    a(f"v_mfma_f32_32x32x8_bf16 {vr(P1,16)}, {vr(OA+10,2)}, {vr(QF+4,2)}, {vr(P1,16)}")
    for l in kloads[12:]: a(l)
    a(f"v_mov_b32 v22, {LOG2E:#x}")
    for x in softmax_ops(list(range(P0, P0+20)), PHQ, 22, 36): a(x)
    a.poll(kloads, range(KL, KL+16), 22, 3, pre_issued=True)
    a.stampw(6)
    a("s_mov_b32 s62, 0x00003f80"); a("s_mov_b32 s63, 0x3f800000")
    a("v_mov_b64 v[16:17], 0"); a("v_mov_b64 v[18:19], 0")
    for p in range(16):
        a(f"v_dot2c_f32_bf16 v{16+2*(p&1)}, s62, v{KL+p}"); a(f"v_dot2c_f32_bf16 v{17+2*(p&1)}, s63, v{KL+p}")
    a(f"v_add_u32 v14, {L_KVR}, v14")
    a("v_min_u32 v12, 20, v8"); a("v_mul_u32_u24 v13, 21, v10"); a("v_add_u32 v12, v12, v13")
    a("v_pk_add_f32 v[16:17], v[16:17], v[18:19]"); a("v_cvt_pk_bf16_f32 v16, v16, v17")
    a("ds_write_b32 v14, v16")
    a(f"s_mov_b32 s3, {L_KVR}"); a("v_lshl_add_u32 v13, v12, 3, s3"); a("v_lshl_add_u32 v12, v12, 4, s3")
    a("s_waitcnt lgkmcnt(0)"); a("s_barrier")
    a(f"ds_read_b128 {vr(OA,4)}, v12"); a(f"ds_read_b128 {vr(OA+4,4)}, v12 offset:672"); a(f"ds_read_b64 {vr(OA+8,2)}, v13 offset:1344")
    a("v_bfe_u32 v12, v0, 4, 1"); a("v_mul_u32_u24 v12, 20480, v12"); a("v_and_b32 v11, 15, v0")
    a("v_lshl_add_u32 v13, v11, 3, v12"); a("v_lshl_add_u32 v12, v11, 4, v12"); a("v_lshl_add_u32 v12, v10, 8, v12")
    a("v_cmp_gt_u32 vcc, 32, v0"); a(f"v_mov_b32 v14, {OOB:#x}")
    a("s_mul_i32 s60, s55, 40960"); a(f"s_add_u32 s60, s60, {WS_O}"); a("s_lshl_b32 s3, s54, 7"); a("s_add_u32 s61, s60, s3"); a("s_add_u32 s61, s61, 16384")
    a("v_cndmask_b32 v13, v14, v13, vcc")
    a("s_lshl2_add_u32 s60, s3, s60")
    a("s_waitcnt lgkmcnt(2)")
    a(f"v_mfma_f32_32x32x16_bf16 {vr(P0,16)}, {vr(OA,4)}, {vr(PHQ,4)}, 0")
    a("s_waitcnt lgkmcnt(1)")
    a(f"v_mfma_f32_32x32x16_bf16 {vr(P0,16)}, {vr(OA+4,4)}, {vr(PHQ+4,4)}, {vr(P0,16)}")
    a("s_waitcnt lgkmcnt(0)")
    a(f"v_mfma_f32_32x32x8_bf16 {vr(P0,16)}, {vr(OA+8,2)}, {vr(PHQ+8,2)}, {vr(P0,16)}")
    a(f"v_add_f32 v16, 0x358637bd, v{P0+12}"); a("v_rcp_f32 v16, v16")
    for q in range(0, 12, 2): a(f"v_pk_mul_f32 {vr(P0+q,2)}, {vr(P0+q,2)}, v[16:17] op_sel_hi:[1,0]")
    for q in range(6): a(f"v_cvt_pk_bf16_f32 v{P1+q}, v{P0+2*q}, v{P0+2*q+1}")
    a(f"buffer_store_dwordx4 {vr(P1,4)}, v12, s[{rWS}:{rWS+3}], s60 offen sc1")
    a(f"buffer_store_dwordx2 {vr(P1+4,2)}, v13, s[{rWS}:{rWS+3}], s61 offen sc1")
    a.stampw(7)
    FA = 16; OF = 36; WF = 76
    a("s_lshl2_add_u32 s59, s56, s57")
    a(f"s_and_b32 s67, s{sJ}, 7")
    a("v_lshrrev_b32 v3, 4, v0"); a("v_bfe_u32 v4, v0, 2, 2"); a("v_and_b32 v5, 3, v0")
    a("s_cmp_eq_u32 s58, 0"); a("s_cbranch_scc0 L_c2")
    a("s_lshl_b32 s3, s59, 6"); a(f"s_add_u32 s3, s3, {WS_SM}"); a("v_lshlrev_b32 v12, 2, v11")
    a(f"buffer_load_dword v14, v12, s[{rWS}:{rWS+3}], s3 offen sc1")
    a("s_branch L_c3")
    a.label("L_c2")
    a("v_lshlrev_b32 v12, 3, v0"); a(f"s_movk_i32 s3, {WS_C1}")
    a(f"buffer_load_dwordx2 v[14:15], v12, s[{rWS}:{rWS+3}], s3 offen sc1")
    a.label("L_c3")
    a("s_mul_i32 s3, s58, 51200"); a("v_mul_u32_u24 v12, 160, v4"); a("v_lshl_add_u32 v12, v5, 3, v12"); a("v_add_u32 v12, s3, v12")
    a("v_mul_u32_u24 v13, 3200, v10"); a("v_and_b32 v6, 1, v3"); a("v_mul_u32_u24 v6, 640, v6"); a("v_add3_u32 v6, v6, v13, v12")
    a("v_mul_u32_u24 v13, 3200, v3"); a("v_add_u32 v2, v13, v12")
    def woreads(st, dst):
        R = []
        for t in range(5):
            for j in range(2):
                if st < 8: R.append(f"ds_read_b64_tr_b16 {vr(dst+4*t+2*j,2)}, v6 offset:{6400*st+1280*j+32*t}")
                else: R.append(f"ds_read_b64_tr_b16 {vr(dst+4*t+2*j,2)}, v2 offset:{2560+25600*(st-8)+12800*j+32*t}")
        return R
    for st in range(9):
        for x in woreads(st, WF + 20*st): a(x)
    a("s_mul_i32 s3, s57, 2560"); a("v_mul_u32_u24 v12, 160, v11"); a("v_lshl_add_u32 v12, v3, 3, v12"); a("v_add_u32 v12, s3, v12")
    a("s_cmp_eq_u32 s58, 0"); a("s_cbranch_scc0 L_c4")
    a(f"v_add_u32 v13, {L_RES}, v12")
    for t in range(5): a(f"ds_read_b64 {vr(OF+2*t,2)}, v13 offset:{32*t}")
    a("s_waitcnt vmcnt(0)")
    a("v_and_b32 v8, 0xffff0000, v14"); a("v_rcp_f32 v8, v8"); a("v_lshlrev_b32 v9, 16, v14")
    a("s_waitcnt lgkmcnt(0)")
    for q in range(10):
        a(f"v_lshlrev_b32 v{FA+2*q}, 16, v{OF+q}"); a(f"v_and_b32 v{FA+2*q+1}, 0xffff0000, v{OF+q}")
    for q in range(10): a(f"v_pk_add_f32 {vr(OF+2*q,2)}, {vr(FA+2*q,2)}, v[8:9] op_sel:[0,1] op_sel_hi:[1,1] neg_lo:[0,1] neg_hi:[0,1]")
    for q in range(10): a(f"v_pk_fma_f32 {vr(FA+2*q,2)}, {vr(OF+2*q,2)}, v[8:9], {vr(FA+2*q,2)} op_sel_hi:[1,0,1]")
    a("s_branch L_c5")
    a.label("L_c4")
    a("s_waitcnt vmcnt(0)")
    a.top2(14, 15, 13, 60, 61)
    a("s_and_b32 s60, s60, 0x7ff"); a("s_and_b32 s61, s61, 0x7ff"); a("s_lshl_b32 s3, s59, 4"); a("s_sub_u32 s3, 2047, s3")
    a("v_sub_u32 v13, s3, v11"); a(f"v_mov_b32 v14, {OOB:#x}"); a("v_lshlrev_b32 v15, 4, v3")
    a("v_cmp_eq_u32 vcc, s60, v13"); a("v_cndmask_b32 v14, v14, v15, vcc")
    a("v_add_u32 v15, 2560, v15"); a("v_cmp_eq_u32 vcc, s61, v13"); a("v_cndmask_b32 v14, v14, v15, vcc")
    a("s_mul_i32 s60, s67, 320"); a(f"s_add_u32 s60, s60, {WS_Y}")
    a.poll([f"buffer_load_dwordx4 {vr(FA+4*t,4)}, v14, s[{rWS}:{rWS+3}], s60 offen offset:{64*t} sc1" for t in range(5)], range(FA, FA+20), 13, 4)
    a.label("L_c5")
    a.stampw(8)
    a("s_mul_i32 s60, s59, 20480"); a(f"s_add_u32 s60, s60, {WS_O}"); a("s_lshl_b32 s3, s58, 11"); a("s_add_u32 s62, s60, s3"); a("s_add_u32 s62, s62, 16384")
    a("s_lshl2_add_u32 s60, s3, s60"); a("s_add_u32 s61, s60, 4096")
    a("v_lshlrev_b32 v9, 3, v0")
    oloads = [f"buffer_load_dwordx4 {vr(OF+4*st,4)}, v7, s[{rWS}:{rWS+3}], s{60+st//4} offen offset:{1024*(st%4)} sc1" for st in range(8)]
    oloads += [f"buffer_load_dwordx2 {vr(OF+32+2*q,2)}, v9, s[{rWS}:{rWS+3}], s62 offen offset:{512*q} sc1" for q in range(4)]
    a.poll(oloads, range(OF, OF+40), 13, 5)
    a.stampw(9)
    a("s_waitcnt lgkmcnt(0)")
    last = woreads(9, WF)
    for st in range(10):
        if st == 9: a("s_waitcnt lgkmcnt(0)")
        for t in range(5):
            a(f"v_mfma_f32_16x16x32_bf16 {vr(FA+4*t,4)}, {vr(WF+20*(st%9)+4*t,4)}, {vr(OF+4*st,4)}, {vr(FA+4*t,4)}")
            if st in (1, 2): a(last[5*(st-1)+t])
    a("s_mul_i32 s3, s57, 5120"); a(f"s_add_u32 s3, s3, {L_XCH}"); a("v_add_u32 v13, s3, v7")
    a("s_cmp_eq_u32 s58, 0"); a("s_cbranch_scc1 L_c6")
    for t in range(5): a(f"ds_write_b128 v13, {vr(FA+4*t,4)} offset:{1024*t}")
    a("s_waitcnt lgkmcnt(0)"); a("s_barrier")
    a("s_branch L_fin")
    a.label("L_c6")
    a(f"v_add_u32 v12, {L_OUTS}, v12")
    a("s_mul_i32 s3, s57, 2560"); a(f"s_add_u32 s3, s3, {L_OUTS}"); a("v_add_u32 v14, s3, v7")
    a("v_mul_u32_u24 v15, 6554, v0"); a("s_movk_i32 s3, 1120")
    for u in range(3):
        if u: a(f"v_add_u32 v15, {64*6554}, v15")
        a("v_lshrrev_b32 v8, 16, v15"); a(f"v_mad_u32_u24 v{4+u}, v8, s3, v7")
    a("v_cmp_gt_u32 vcc, 32, v0"); a(f"v_mov_b32 v8, {OOB:#x}")
    a("s_mul_i32 s60, s59, 20480"); a("s_mul_i32 s3, s67, 160"); a("s_add_u32 s60, s60, s3")
    a("v_cndmask_b32 v6, v8, v6, vcc")
    a("s_barrier")
    for t in range(5): a(f"ds_read_b128 {vr(OF+4*t,4)}, v13 offset:{1024*t}")
    for t in range(5):
        a(f"s_waitcnt lgkmcnt({4 if t == 0 else 4})")
        a(f"v_pk_add_f32 {vr(FA+4*t,2)}, {vr(FA+4*t,2)}, {vr(OF+4*t,2)}"); a(f"v_pk_add_f32 {vr(FA+4*t+2,2)}, {vr(FA+4*t+2,2)}, {vr(OF+4*t+2,2)}")
        a(f"v_cvt_pk_bf16_f32 v{FA+4*t}, v{FA+4*t}, v{FA+4*t+1}"); a(f"v_cvt_pk_bf16_f32 v{FA+4*t+1}, v{FA+4*t+2}, v{FA+4*t+3}")
        a(f"ds_write_b64 v12, {vr(FA+4*t,2)} offset:{32*t}")
    a("s_waitcnt lgkmcnt(0)")
    for u in range(3): a(f"ds_read_b128 {vr(OF+4*u,4)}, v14 offset:{1024*u}")
    for u in range(3):
        a(f"s_waitcnt lgkmcnt({2-u})")
        a(f"buffer_store_dwordx4 {vr(OF+4*u,4)}, v{4+u}, s[{rOUT}:{rOUT+3}], s60 offen offset:{1024*u}")
    a.label("L_fin")
    if probe == 1:
        a.label("L_pr"); a("s_memrealtime s[96:97]"); a("s_waitcnt lgkmcnt(0)"); a("s_sub_u32 s96, s96, s98"); a(f"s_cmp_lt_u32 s96, {pn}"); a("s_cbranch_scc1 L_pr")
    if probe == 2:
        a(f"s_lshl3_add_u32 s3, s2, s{sWV}"); a("s_cmp_eq_u32 s3, 7"); a("s_cbranch_scc0 L_prd")
        a(f"s_load_dwordx2 s[{rWR}:{rWR+1}], s[0:1], {pslot}"); a("s_waitcnt lgkmcnt(0)"); a.srdw(rWR, (S*D*2) if pslot == 32 else WS_BYTES)
        a(f"s_mov_b32 s3, {0 if pslot == 32 else 0x4000000}"); a("s_mov_b32 s53, 0"); a("s_mov_b64 exec, 1")
        a.label("L_pr"); a(f"buffer_load_dword v8, off, s[{rWR}:{rWR+3}], s3"); a("s_waitcnt vmcnt(0)")
        a(f"s_add_u32 s3, s3, {pstride}"); a("s_add_u32 s53, s53, 1"); a(f"s_cmp_lt_u32 s53, {pn}"); a("s_cbranch_scc1 L_pr")
        a.label("L_prd")
    if diag:
        a.stampw(10)
        a("s_waitcnt vmcnt(0)")
        a.stampw(11)
        a(f"s_lshl3_add_u32 s3, s2, s{sWV}"); a("s_lshl_b32 s3, s3, 6"); a(f"s_add_u32 s3, s3, {WS_DIAG}")
        a("s_mov_b64 exec, 1")
        for i in range(12):
            a(f"v_mov_b32 v8, s{72+2*i}"); a(f"buffer_store_dword v8, off, s[{rWS}:{rWS+3}], s3 offset:{4*i}")
    a.label("L_end")
    body, nn = hazard.fix(a.text() + "    s_endpgm\n")
    return body, nn


HEADER = open(os.path.join(os.path.dirname(os.path.abspath(__file__)), "header.txt")).read()

def full(**kw):
    body, nn = gen(**kw)
    t = HEADER + f"; @launch grid=(256,1,1) block=(512,1,1) lds={LDS_BYTES}\n"
    t += f'.amdgcn_target "amdgcn-amd-amdhsa--gfx950"\n.text\n.globl {NAME}\n.p2align 8\n.type {NAME},@function\n{NAME}:\n'
    t += body
    t += f""".section .rodata,"a"
.p2align 6
.amdhsa_kernel {NAME}
  .amdhsa_next_free_vgpr 256
  .amdhsa_next_free_sgpr 102
  .amdhsa_accum_offset 256
  .amdhsa_group_segment_fixed_size 0
  .amdhsa_kernarg_size 96
  .amdhsa_user_sgpr_count 2
  .amdhsa_user_sgpr_kernarg_segment_ptr 1
  .amdhsa_system_sgpr_workgroup_id_x 1
.end_amdhsa_kernel
"""
    return t

if __name__ == "__main__":
    out = sys.argv[1] if len(sys.argv) > 1 else "parallel_sum__linear_kernel_hedgehog__moe_arch_mod__prompt.s"
    kw = {}
    for x in sys.argv[2:]:
        k, v = x.split("="); kw[k] = int(v)
    open(out, "w").write(full(**kw))
```

```python
import sys, os
sys.path.insert(0, os.path.dirname(os.path.abspath(__file__)))
from asmlib import Asm, vr, sr
import hazard

NAME = "parallel_sum__linear_kernel_hedgehog__moe_arch_mod__prompt_kernel"
S, D, F = 2048, 640, 1536
SENT = 0xFF81FF81
OOB = 0x7FF00000
WS_C1 = 0x1000
WS_SM = 0x2000
WS_CS = 0x4000
WS_CLR = 0x10000
WS_Q = WS_CLR
WS_O = WS_Q + 2621440
WS_KV = WS_O + 2621440
WS_YP = WS_KV + 917504
WS_Y = WS_YP + 245760
WS_END = WS_Y + 5120
CLR_PER_WAVE = 13312
assert WS_CLR + 512*CLR_PER_WAVE >= WS_END
WS_DIAG = 0x1000000
WS_BYTES = 1 << 28
WREG = 5152
SLOT = 16384 + 4*WREG
RING = 40960
RING_END = RING + 3*SLOT
TRI = 86016
MISC = RING_END
L_PHIO = MISC
L_STAT = L_PHIO + 1024
L_CS = L_STAT + 2048
L_KVR = L_CS + 1920
L_HM = L_KVR + 2048
L_RES = 102400
L_XCH = L_RES + 10240
L_OUTS = L_XCH + 20480
L_GI, L_UI, L_DI = 0, 40960, 81920
L_GU = 122880
L_HB = L_GU + 4096
L_YR = 0
LDS_BYTES = 163840
sWV, sX, sJ, sJR = 4, 5, 6, 7
rX, rW, rWS, rWO, rOUT, rDBG, rPHI, rWR, rG, rU, rDN = 8, 12, 16, 20, 24, 28, 32, 36, 40, 44, 48
sSENT = 52
LOG2E = 0x3FB8AA3B
SPIN = 200000


class K(Asm):
    def __init__(self, diag):
        super().__init__()
        self.diag = diag
    def srdw(self, r, n):
        self(f"s_mov_b32 s{r+2}, {n}"); self(f"s_mov_b32 s{r+3}, 0x20000")
    def stamp(self, i):
        if self.diag: self(f"s_memrealtime s[{72+2*i}:{73+2*i}]")
    def stampw(self, i):
        if self.diag: self(f"s_memrealtime s[{72+2*i}:{73+2*i}]"); self("s_waitcnt lgkmcnt(0)")
    def maxtree(self, dst, regs):
        regs = list(regs)
        if len(regs) == 1: self(f"v_mov_b32 v{dst}, v{regs[0]}"); return
        if len(regs) == 2: self(f"v_max_u32 v{dst}, v{regs[0]}, v{regs[1]}"); return
        self(f"v_max3_u32 v{dst}, v{regs[0]}, v{regs[1]}, v{regs[2]}"); regs = regs[3:]
        while len(regs) >= 2:
            self(f"v_max3_u32 v{dst}, v{dst}, v{regs[0]}, v{regs[1]}"); regs = regs[2:]
        if regs: self(f"v_max_u32 v{dst}, v{dst}, v{regs[0]}")
    def poll(self, loads, regs, tmp, code, pre_issued=False):
        top = self.newlab("L_poll"); chk = self.newlab("L_chk"); out = self.newlab("L_pdone")
        self("s_mov_b32 s3, 0")
        if pre_issued: self(f"s_branch {chk}")
        self.label(top)
        self("s_add_u32 s3, s3, 1"); self(f"s_cmp_gt_u32 s3, {SPIN}"); self(f"s_cbranch_scc1 {out}")
        for l in loads: self(l)
        self.label(chk)
        self("s_waitcnt vmcnt(0)")
        self.maxtree(tmp, regs)
        self(f"v_cmp_eq_u32 vcc, s{sSENT}, v{tmp}")
        self(f"s_cbranch_vccnz {top}")
        self.label(out)
    def flagpoll(self, v, va):
        top = self.newlab("L_fp"); out = self.newlab("L_fdone")
        self(f"v_and_b32 v{va}, 1, v0"); self(f"v_lshlrev_b32 v{va}, 7, v{va}")
        self("s_mov_b32 s3, 0")
        self.label(top)
        self("s_add_u32 s3, s3, 1"); self(f"s_cmp_gt_u32 s3, {SPIN}"); self(f"s_cbranch_scc1 {out}")
        self(f"buffer_load_dword v{v}, v{va}, s[{rDBG}:{rDBG+3}], 0 offen sc1")
        self("s_waitcnt vmcnt(0)")
        self(f"v_cmp_gt_u32 vcc, 32, v{v}")
        self(f"s_cbranch_vccnz {top}")
        self.label(out)
    def wavemax_u32(self, v, t, sdst):
        self(f"v_max_u32_dpp v{t}, v{v}, v{v} row_ror:8 row_mask:0xf bank_mask:0xf")
        for k in (4, 2, 1): self(f"v_max_u32_dpp v{t}, v{t}, v{t} row_ror:{k} row_mask:0xf bank_mask:0xf")
        self(f"v_readlane_b32 s{sdst}, v{t}, 0"); self(f"v_readlane_b32 s3, v{t}, 16")
        self(f"s_max_u32 s{sdst}, s{sdst}, s3")
        self(f"v_readlane_b32 s3, v{t}, 32"); self(f"s_max_u32 s{sdst}, s{sdst}, s3")
        self(f"v_readlane_b32 s3, v{t}, 48"); self(f"s_max_u32 s{sdst}, s{sdst}, s3")
    def top2(self, k1, k2, t, s1, s2):
        self.wavemax_u32(k1, t, s1)
        self(f"v_cmp_eq_u32 vcc, s{s1}, v{k1}")
        self(f"v_cndmask_b32 v{k1}, v{k1}, v{k2}, vcc")
        self.wavemax_u32(k1, t, s2)
    def rowsum16(self, v):
        for k in (8, 4, 2, 1): self(f"v_add_f32_dpp v{v}, v{v}, v{v} row_ror:{k} row_mask:0xf bank_mask:0xf")


def softmax_ops(P, O, cpair, t0, npair=None):
    L = []
    a, b = t0, t0 + 1
    L.append(f"v_max3_f32 v{a}, v{P[0]}, v{P[1]}, v{P[2]}"); L.append(f"v_max3_f32 v{b}, v{P[3]}, v{P[4]}, v{P[5]}")
    for i in range(6, 18, 4):
        L.append(f"v_max3_f32 v{a}, v{a}, v{P[i]}, v{P[i+1]}"); L.append(f"v_max3_f32 v{b}, v{b}, v{P[i+2]}, v{P[i+3]}")
    L.append(f"v_max3_f32 v{a}, v{a}, v{P[18]}, v{P[19]}"); L.append(f"v_max_f32 v{a}, v{a}, v{b}")
    L.append(f"v_mul_f32 v{cpair+1}, v{cpair}, v{a}")
    for i in range(0, 20, 2):
        L.append(f"v_pk_fma_f32 {vr(P[i],2)}, {vr(P[i],2)}, {vr(cpair,2)}, {vr(cpair,2)} op_sel:[0,0,1] op_sel_hi:[1,0,1] neg_lo:[0,0,1] neg_hi:[0,0,1]")
    for i in range(20): L.append(f"v_exp_f32 v{P[i]}, v{P[i]}")
    L.append(f"v_pk_add_f32 {vr(t0,2)}, {vr(P[0],2)}, {vr(P[2],2)}"); L.append(f"v_pk_add_f32 {vr(t0+2,2)}, {vr(P[4],2)}, {vr(P[6],2)}")
    for i in range(8, 20, 4):
        L.append(f"v_pk_add_f32 {vr(t0,2)}, {vr(t0,2)}, {vr(P[i],2)}"); L.append(f"v_pk_add_f32 {vr(t0+2,2)}, {vr(t0+2,2)}, {vr(P[i+2],2)}")
    L.append(f"v_pk_add_f32 {vr(t0,2)}, {vr(t0,2)}, {vr(t0+2,2)}")
    L.append(f"v_add_f32 v{a}, v{a}, v{b}"); L.append(f"v_rcp_f32 v{a}, v{a}")
    if npair is not None: L.append(f"v_mul_f32 v{a}, v{a}, v{npair}")
    for i in range(0, 20, 2): L.append(f"v_pk_mul_f32 {vr(P[i],2)}, {vr(P[i],2)}, {vr(t0,2)} op_sel_hi:[1,0]")
    for i in range(0, 20, 2): L.append(f"v_cvt_pk_bf16_f32 v{O+i//2}, v{P[i]}, v{P[i+1]}")
    return L


def gen(diag=False, touch=4, defer=8, probe=0, pn=0, pslot=32, pstride=8192, outfl=0):
    a = K(diag)
    a("s_cmp_ge_u32 s2, 256"); a("s_cbranch_scc1 L_end")
    a.stamp(0)
    if probe in (1, 3): a("s_memrealtime s[98:99]")
    for r, off in ((rX, 0), (rW, 8), (rWS, 88), (rPHI, 16), (rWO, 24), (rOUT, 72), (rDBG, 80), (rWR, 40), (rG, 48), (rU, 56), (rDN, 64)):
        a(f"s_load_dwordx2 s[{r}:{r+1}], s[0:1], {off}")
    a("v_lshrrev_b32 v1, 6, v0"); a("v_and_b32 v0, 63, v0")
    a(f"s_and_b32 s{sX}, s2, 7"); a(f"v_readfirstlane_b32 s{sWV}, v1")
    a(f"s_lshr_b32 s{sJ}, s2, 3"); a(f"s_add_u32 s{sJR}, s{sJ}, 24"); a(f"s_and_b32 s{sJR}, s{sJR}, 31")
    a.srdw(rX, S*D*2); a.srdw(rW, D*3*D*2); a.srdw(rWS, WS_BYTES); a.srdw(rPHI, 32*800); a.srdw(rWO, D*D*2); a.srdw(rOUT, S*D*2); a.srdw(rDBG, 256)
    a(f"s_mov_b32 s{sSENT}, {SENT:#x}")
    a(f"s_cmp_ge_u32 s{sJR}, 24"); a("s_cbranch_scc1 L_helper")
    a(f"s_lshr_b32 s54, s{sX}, 1"); a(f"s_and_b32 s3, s{sJR}, 3"); a("s_lshl2_add_u32 s54, s54, s3")
    a(f"s_and_b32 s3, s{sX}, 1"); a(f"s_lshr_b32 s57, s{sJR}, 2"); a("s_mul_i32 s55, s3, 640")
    a("s_mul_i32 s58, s57, 160"); a("s_sub_u32 s59, s58, 1280")
    a("s_cmp_lt_u32 s57, 4")
    a("s_cselect_b32 s56, 1120, 0"); a("s_cselect_b32 s59, 1280, s59")
    a("s_add_u32 s55, s55, s58"); a("s_add_u32 s55, s55, s59")
    a(f"s_cmp_lt_u32 s{sWV}, 4"); a("s_cbranch_scc1 L_mfma")

    a("s_setprio 3")
    a(f"s_sub_u32 s60, s{sWV}, 4")
    XV = [16, 17, 18, 19]; WV = [20, 21, 22, 23, 24]; WOV = [2, 3, 4, 5, 6]
    a("v_lshrrev_b32 v8, 3, v0"); a("v_and_b32 v9, 7, v0")
    a("v_bfe_u32 v10, v0, 4, 1"); a("v_lshrrev_b32 v11, 5, v0"); a("v_lshl_add_u32 v10, v10, 1, v11")
    a("s_lshl_b32 s3, s54, 2"); a("s_add_u32 s3, s3, s60"); a("s_mul_i32 s3, s3, 40960")
    a("v_mul_u32_u24 v8, 1280, v8"); a("v_xor_b32 v9, v9, v10"); a("v_add_u32 v8, s3, v8")
    a(f"v_lshl_add_u32 v{XV[0]}, v9, 4, v8"); a(f"v_xor_b32 v11, 64, v{XV[0]}")
    a(f"v_add_u32 v{XV[1]}, {10240-1024}, v11"); a(f"v_add_u32 v{XV[2]}, {20480-2048}, v{XV[0]}"); a(f"v_add_u32 v{XV[3]}, {30720-3072}, v11")
    a("s_mul_i32 s3, s60, 61440"); a("s_add_u32 s3, s3, s55")
    a("s_lshl_b32 s61, s60, 12")
    a(f"s_mul_i32 s62, s60, {WREG}"); a("s_add_u32 s62, s62, 16384")
    a("s_movk_i32 s63, 3520")
    a("v_lshl_add_u32 v12, v0, 4, s3"); a("v_mul_u32_u24 v13, 6554, v0")
    for i in range(5):
        if i: a(f"v_add_u32 v13, {64*6554}, v13")
        a("v_lshrrev_b32 v10, 17, v13"); a("v_bfe_u32 v9, v13, 16, 1")
        a("v_mad_u32_u24 v8, v10, s63, v12"); a(f"v_mad_u32_u24 v{WV[i]}, v9, s56, v8")
    a(f"v_add_u32 v{WV[4]}, 4096, v{WV[4]}")
    a(f"s_mov_b32 s64, {RING}"); a("s_mov_b32 s65, 0"); a("s_mov_b32 s66, 0")
    a("s_waitcnt lgkmcnt(0)")
    def issue():
        a("s_add_u32 m0, s64, s61")
        for i in range(4): a(f"buffer_load_dwordx4 v{XV[i]}, s[{rX}:{rX+3}], s65 offen offset:{1024*i} lds")
        a("s_add_u32 m0, s64, s62")
        a("s_add_u32 s65, s65, 128")
        for i in range(4): a(f"buffer_load_dwordx4 v{WV[i]}, s[{rW}:{rW+3}], s66 offen offset:{1024*i} lds")
        a("s_add_u32 m0, m0, 4096")
        a(f"s_add_u32 s64, s64, {SLOT}")
        a(f"buffer_load_dwordx4 v{WV[4]}, s[{rW}:{rW+3}], s66 offen lds")
        a("s_add_u32 s66, s66, 245760")
        a(f"s_cmp_eq_u32 s64, {RING_END}"); a(f"s_cselect_b32 s64, {RING}, s64")
    a.label("L_lloop")
    issue()
    a("s_cmpk_lt_u32 s65, 256"); a("s_cbranch_scc1 L_lloop")
    a("s_waitcnt vmcnt(9)"); a("s_barrier")
    a(f"s_cmpk_lt_u32 s65, {9*128}"); a("s_cbranch_scc1 L_lloop")
    a("v_and_b32 v26, 1, v0"); a("v_lshlrev_b32 v26, 7, v26")
    a(f"buffer_load_dword v27, v26, s[{rDBG}:{rDBG+3}], 0 offen sc1")
    issue()
    def wo_addr():
        a("v_mul_u32_u24 v13, 6554, v0"); a("v_lshlrev_b32 v12, 4, v0"); a("s_movk_i32 s3, 1120")
        for i in range(5):
            if i: a(f"v_add_u32 v13, {64*6554}, v13")
            a("v_lshrrev_b32 v10, 16, v13"); a(f"v_mad_u32_u24 v{WOV[i]}, v10, s3, v12")
        a(f"v_add_u32 v{WOV[4]}, 4096, v{WOV[4]}")
        a(f"s_and_b32 s67, s{sJ}, 7"); a("s_mul_i32 s67, s67, 160")
        a("s_mul_i32 s68, s60, 40960"); a("s_add_u32 s68, s68, s67")
        a("s_mul_i32 s69, s60, 5120")
    def unit(srd, soff, m0):
        a(f"s_mov_b32 m0, {m0}")
        for i in range(4): a(f"buffer_load_dwordx4 v{WOV[i]}, s[{srd}:{srd+3}], {soff} offen offset:{1024*i} lds")
        a("s_add_u32 m0, m0, 4096")
        a(f"buffer_load_dwordx4 v{WOV[4]}, s[{srd}:{srd+3}], {soff} offen lds")
    def wo_round():
        unit(rWO, "s68", "s69")
        a("s_add_u32 s68, s68, 163840"); a("s_add_u32 s69, s69, 20480")
    wo_addr()
    a("v_and_b32 v28, 31, v0"); a("s_lshl_b32 s3, s54, 2"); a("s_add_u32 s3, s3, s60"); a("s_lshl_b32 s3, s3, 7"); a(f"s_add_u32 s3, s3, {WS_SM}")
    a("v_lshl_add_u32 v29, v28, 2, s3")
    a("s_lshr_b32 s58, s60, 1"); a("s_and_b32 s59, s60, 1")
    a("s_add_u32 s3, s56, 160"); a("s_mul_i32 s3, s3, s58"); a("s_add_u32 s3, s3, s55"); a("s_lshl_b32 s3, s3, 1")
    a("s_mul_i32 s53, s59, 7680"); a("s_add_u32 s3, s3, s53"); a(f"s_add_u32 s3, s3, {WS_CS}")
    a("v_min_u32 v31, 39, v0"); a("v_lshl_add_u32 v30, v31, 3, s3")
    statloads = [f"buffer_load_dword v32, v29, s[{rWS}:{rWS+3}], 0 offen sc1", f"buffer_load_dwordx2 v[34:35], v30, s[{rWS}:{rWS+3}], 0 offen sc1"]
    a("s_waitcnt vmcnt(9)"); a("s_barrier")
    for l in statloads: a(l)
    wo_round()
    a("s_waitcnt vmcnt(5)"); a("s_barrier")
    a("v_cmp_gt_u32 vcc, 32, v27"); a("s_cbranch_vccz L_flagok")
    a.flagpoll(27, 26)
    for l in statloads: a(l)
    a("s_waitcnt vmcnt(0)")
    a.label("L_flagok")
    a("v_and_b32 v38, 0xffff0000, v32"); a("v_rcp_f32 v38, v38")
    a("v_and_b32 v36, 0xffff, v32"); a("v_lshl_or_b32 v36, v36, 16, v36"); a("v_xor_b32 v36, 0x80008000, v36")
    a("v_lshrrev_b32 v37, 16, v32"); a(f"v_mul_f32 v39, {LOG2E:#x}, v38")
    a("s_lshl_b32 s3, s60, 9"); a(f"s_add_u32 s3, s3, {L_STAT}"); a("v_lshl_add_u32 v28, v28, 4, s3")
    a("ds_write_b128 v28, v[36:39]")
    a("s_mul_i32 s3, s59, 640"); a("s_mul_i32 s53, s58, 320"); a("s_add_u32 s3, s3, s53"); a(f"s_add_u32 s3, s3, {L_CS}")
    a("v_lshl_add_u32 v28, v31, 3, s3"); a("ds_write_b64 v28, v[34:35]")
    a("s_mul_i32 s3, s60, 160"); a(f"s_add_u32 s3, s3, {L_CS+1280}"); a("v_lshl_add_u32 v28, v31, 2, s3"); a("v_mov_b32 v33, 0")
    a("ds_write_b32 v28, v33")
    wo_round()
    a("s_waitcnt lgkmcnt(0)"); a("s_barrier")
    wo_round(); wo_round()
    a("s_setprio 0")
    a("s_cmp_lt_u32 s57, 4"); a("s_cbranch_scc0 L_common")
    a("s_barrier")
    a("s_barrier")
    a("s_branch L_common")

    a.label("L_mfma")
    ACC = 16; SET = [96, 132]; XA = [168, 169]; MK, MV, EX = 170, 171, 172
    PA = 176; PX = 196; STAT = 208; AUG = 224
    a(f"s_and_b32 s60, s{sWV}, 1"); a(f"s_lshr_b32 s61, s{sWV}, 1")
    a(f"s_and_b32 s3, s{sX}, 1"); a("s_lshl2_add_u32 s62, s3, s57")
    a("s_lshl1_add_u32 s63, s62, s60"); a("s_mul_i32 s63, s63, 1600")
    a(f"s_lshr_b32 s64, s{sJ}, 1"); a("s_lshl4_add_u32 s64, s3, s64"); a("s_mul_i32 s64, s64, 800")
    a(f"s_lshl_b32 s65, s{sWV}, 11"); a("v_lshlrev_b32 v2, 4, v0"); a("s_mov_b32 m0, s65")
    a("s_waitcnt lgkmcnt(0)")
    a(f"buffer_load_dwordx4 v2, s[{rPHI}:{rPHI+3}], s63 offen lds")
    a(f"buffer_load_dwordx4 v2, s[{rPHI}:{rPHI+3}], s63 offen offset:1024 lds")
    a(f"s_mov_b32 m0, {L_PHIO}")
    a(f"buffer_load_dwordx4 v2, s[{rPHI}:{rPHI+3}], s64 offen lds")
    a("v_lshrrev_b32 v3, 4, v0"); a("v_bfe_u32 v4, v0, 2, 2"); a("v_and_b32 v5, 3, v0"); a("v_and_b32 v6, 15, v0")
    a(f"v_mul_u32_u24 v7, {WREG}, v3"); a("v_mul_u32_u24 v12, 320, v4"); a("s_movk_i32 s3, 16384"); a("v_add3_u32 v7, v7, v12, s3")
    a("s_mul_i32 s66, s60, 80"); a("s_sub_u32 s67, 240, s66")
    a("v_lshl_add_u32 v12, v5, 3, v7"); a("v_add_u32 v9, s66, v12"); a("v_add_u32 v10, s67, v12")
    a("v_mov_b32 v12, s66"); a("v_mov_b32 v13, s67"); a("v_cmp_lt_u32 vcc, 1, v5"); a("v_and_b32 v14, 1, v5"); a("v_mul_u32_u24 v14, 72, v14")
    a("v_cndmask_b32 v15, v12, v13, vcc"); a("v_add3_u32 v11, v7, v15, v14")
    a("v_and_b32 v7, 2, v0"); a("v_bfe_u32 v14, v0, 2, 1"); a("v_or_b32 v7, v7, v14"); a("v_bfe_u32 v14, v0, 3, 1"); a("v_lshl_add_u32 v7, v14, 2, v7")
    a("v_lshlrev_b32 v14, 1, v3"); a("v_xor_b32 v7, v7, v14"); a("v_lshlrev_b32 v7, 4, v7"); a("v_lshl_add_u32 v7, v6, 7, v7")
    a("s_lshl_b32 s3, s61, 13"); a("v_add_u32 v8, s3, v7")
    a(f"v_add_u32 v{XA[0]}, {RING}, v8"); a(f"v_add_u32 v{MK}, {RING}, v9"); a(f"v_add_u32 v{MV}, {RING}, v10"); a(f"v_add_u32 v{EX}, {RING}, v11")
    a(f"v_xor_b32 v{XA[1]}, 16, v{XA[0]}")
    a("v_min_u32 v7, 2, v3"); a("v_mul_u32_u24 v7, 640, v7"); a(f"v_add_u32 v7, {L_CS}, v7")
    a("v_lshl_add_u32 v14, v6, 2, v7"); a("v_lshl_add_u32 v173, v12, 1, v14"); a("v_lshl_add_u32 v174, v13, 1, v14")
    a("v_cmp_lt_u32 vcc, 1, v4"); a("v_and_b32 v14, 1, v4"); a("v_mul_u32_u24 v14, 144, v14")
    a("v_cndmask_b32 v15, v12, v13, vcc"); a("v_lshl_add_u32 v15, v15, 1, v14"); a("v_lshl_add_u32 v14, v5, 2, v7"); a("v_add_u32 v175, v14, v15")
    a("s_lshl_b32 s3, s61, 10"); a(f"s_add_u32 s3, s3, {L_STAT}"); a("v_lshl_add_u32 v206, v6, 4, s3")
    for r in range(0, 80, 2): a(f"v_mov_b64 {vr(ACC+r,2)}, 0")
    for r in range(0, 36, 2): a(f"v_mov_b64 {vr(SET[1]+r,2)}, 0")
    for t in range(5): a(f"v_mov_b32 v{AUG+2*t+1}, 0")
    a("v_lshrrev_b32 v7, 1, v5")
    a("v_mul_u32_u24 v12, 640, v7"); a("v_lshl_add_u32 v13, v3, 2, v4"); a("v_mul_u32_u24 v13, 40, v13"); a("v_add3_u32 v12, v12, v13, s65")
    a("v_mul_u32_u24 v13, 1440, v7"); a("v_mul_u32_u24 v14, 40, v4"); a("v_add3_u32 v13, v13, v14, s65")
    a("v_bfe_u32 v7, v0, 3, 1"); a("v_add_u32 v14, -1, v7"); a("v_not_b32 v15, v14")
    a("v_cmp_eq_u32 vcc, v7, v3"); a("v_bfe_i32 v2, v0, 2, 1"); a("v_and_b32 v2, 0x80008000, v2"); a("v_cndmask_b32 v7, 0, -1, vcc")
    a("s_waitcnt vmcnt(0)")
    for T in range(5):
        a(f"ds_read_b64_tr_b16 {vr(PA+4*T,2)}, v12 offset:{160+8*T}"); a(f"ds_read_b64_tr_b16 {vr(PX+2*T,2)}, v13 offset:{8*T}")
    a("s_waitcnt lgkmcnt(0)")
    for T in range(5):
        for q in range(2):
            a(f"v_bitop3_b32 v{PA+4*T+2+q}, v{PA+4*T+q}, v2, v15 bitop3:0x28")
            a(f"v_bitop3_b32 v{PA+4*T+q}, v{PA+4*T+q}, v2, v14 bitop3:0x28")
            a(f"v_bitop3_b32 v{PX+2*T+q}, v{PX+2*T+q}, v2, v7 bitop3:0x28")
    a("s_mov_b32 s68, 0"); a(f"s_mov_b32 s69, {RING}")
    def reads(s, st):
        X = [f"ds_read_b128 {vr(st+4*m,4)}, v{XA[s]} offset:{2048*m}" for m in range(4)]
        Wr = []
        for t in range(5):
            for j in range(2):
                reg = [MK, MK, MV, MV, EX][t]; off = s*2560 + j*1280 + [8, 40, 8, 40, 0][t]
                Wr.append(f"ds_read_b64_tr_b16 {vr(st+16+4*t+2*j,2)}, v{reg} offset:{off}")
        return [X[0]] + Wr[0:2] + X[1:] + Wr[2:]
    def mf(i, st):
        t, m = divmod(i, 4)
        return f"v_mfma_f32_16x16x32_bf16 {vr(ACC+20*m+4*t,4)}, {vr(st+16+4*t,4)}, {vr(st+4*m,4)}, {vr(ACC+20*m+4*t,4)}"
    need = lambda i: (3 + i if i < 4 else 6 + 2*(i//4))
    R0 = reads(0, SET[0]); R1 = reads(1, SET[1])
    seq = [(i, 1) for i in range(20 - defer, 20)] + [(i, 0) for i in range(20)] + [(i, 1) for i in range(20 - defer)]
    fill = [[] for _ in seq]
    k = 0; g = 0
    while k < 14: fill[g] += R0[k:k+2]; k += 2; g += 1
    g = max(g, defer); k = 0
    while k < 14: fill[g].append(R1[k]); k += 1; g += 1
    fill[g] += [f"s_add_u32 s69, s69, {SLOT}", f"s_cmp_eq_u32 s69, {RING_END}", f"s_cselect_b32 s69, {RING}, s69"]
    for q, h in enumerate([f"v_add_u32 v{XA[0]}, s69, v8", f"v_add_u32 v{MK}, s69, v9", f"v_add_u32 v{MV}, s69, v10", f"v_add_u32 v{EX}, s69, v11", f"v_xor_b32 v{XA[1]}, 16, v{XA[0]}"]):
        fill[g+1+q].append(h)
    fill[g+6] += ["s_add_u32 s68, s68, 1", "s_cmp_lt_u32 s68, 10"]
    a.stampw(1)
    a.label("L_mloop")
    a("s_barrier")
    issued = 0; done = 0
    for idx, (i, st) in enumerate(seq):
        if idx >= defer:
            n = need(i) + (14 if st == 1 else 0)
            if idx == len(seq) - 1: n = 28
            if n > done: a(f"s_waitcnt lgkmcnt({min(15, issued - n)})"); done = n
        a(mf(i, SET[st]))
        for f in fill[idx]:
            if f.startswith("ds_"): issued += 1
            a(f)
    a("s_cbranch_scc1 L_mloop")
    a("s_barrier")
    RA = [f"ds_read_b128 {vr(STAT+4*m,4)}, v206 offset:{256*m}" for m in range(4)]
    RA += [f"ds_read_b32 v{AUG+2*t}, v{[173,173,174,174,175][t]} offset:{[16,80,16,80,0][t]}" for t in range(5)]
    k = 0
    for i in range(20 - defer, 20):
        a(mf(i, SET[1]))
        for r in RA[k:k+2]: a(r)
        k += 2
    for r in RA[k:]: a(r)
    a("s_waitcnt lgkmcnt(0)")
    for m in range(4):
        for t in range(5):
            a(f"v_mfma_f32_16x16x16_bf16 {vr(ACC+20*m+4*t,4)}, {vr(AUG+2*t,2)}, {vr(STAT+4*m,2)}, {vr(ACC+20*m+4*t,4)}")
    a.stampw(2)
    a("s_cmp_lt_u32 s57, 4"); a("s_cbranch_scc0 L_qepi")

    a("v_and_b32 v7, 1, v0"); a("v_bfe_u32 v12, v0, 1, 1"); a("v_lshl_or_b32 v7, v12, 2, v7"); a("v_bfe_u32 v12, v0, 2, 1"); a("v_lshl_or_b32 v7, v12, 1, v7")
    a("v_lshlrev_b32 v7, 4, v7")
    a("s_lshl_b32 s3, s61, 13"); a(f"s_add_u32 s3, s3, {TRI}"); a("v_lshl_add_u32 v7, v6, 7, v7"); a("v_add_u32 v7, s3, v7")
    a("s_lshl_b32 s58, s60, 15"); a("s_sub_u32 s59, 32768, s58")
    a("v_lshrrev_b32 v12, 1, v3"); a("v_and_b32 v13, 1, v3")
    a("v_lshl_add_u32 v14, v12, 14, v7"); a("v_add_u32 v14, s58, v14")
    a("v_lshlrev_b32 v15, 5, v13"); a("v_xor_b32 v8, v14, v15"); a("v_xor_b32 v9, 16, v8")
    a("v_xor_b32 v10, 96, v14"); a("v_lshl_add_u32 v10, v13, 3, v10")
    a("v_add_u32 v14, s59, v7"); a("v_lshlrev_b32 v15, 4, v12"); a("v_xor_b32 v11, 64, v14"); a("v_xor_b32 v11, v11, v15"); a("v_lshl_add_u32 v11, v13, 3, v11")
    a("v_xor_b32 v14, 112, v14"); a("v_lshl_add_u32 v14, v13, 14, v14"); a("v_xor_b32 v12, 1, v12"); a("v_lshl_add_u32 v2, v12, 3, v14")
    a("v_cmp_gt_u32 vcc, 32, v0")
    Pb = [96, 116]; Tb = [136, 146]; PH = 156; CP = 234; TT = 236
    def front(m):
        A = ACC + 20*m; T = Tb[m & 1]; P = Pb[m & 1]
        cv = []
        for q, (t, h) in enumerate([(0,0),(0,1),(1,0),(1,1),(4,0),(4,1),(2,0),(2,1),(3,0),(3,1)]):
            cv.append(f"v_cvt_pk_bf16_f32 v{T+q}, v{A+4*t+2*h}, v{A+4*t+2*h+1}")
        mm = [f"v_mfma_f32_16x16x32_bf16 {vr(P+4*u,4)}, {vr(PA+4*u,4)}, {vr(T,4)}, 0" for u in range(5)]
        mm += [f"v_mfma_f32_16x16x16_bf16 {vr(P+4*u,4)}, {vr(PX+2*u,2)}, {vr(T+4,2)}, {vr(P+4*u,4)}" for u in range(5)]
        post = [f"ds_write_b64 v11, {vr(T+6,2)} offset:{2048*m}", f"ds_write_b64 v11, {vr(T+8,2)} offset:{16384+2048*m}",
                f"v_cndmask_b32 v{T+4}, v{T+4}, v{STAT+4*m+1}, vcc", f"v_cndmask_b32 v{T+5}, v{T+5}, v{AUG+1}, vcc",
                f"ds_write_b64 v2, {vr(T+4,2)} offset:{2048*m}"]
        return cv, mm, post
    cv, mm, post = front(0)
    for x in cv + mm + post: a(x)
    for m in range(4):
        P = Pb[m & 1]
        sm = [f"v_mov_b32 v{CP}, v{STAT+4*m+3}"] + softmax_ops(list(range(P, P+20)), PH, CP, TT, npair=STAT+4*m+2)
        if m < 3:
            cv, mm, post = front(m+1)
            for x in cv: a(x)
            ins = mm + post
        else: ins = []
        k = 0
        for idx, x in enumerate(sm):
            a(x)
            if idx % 3 == 2 and k < len(ins): a(ins[k]); k += 1
        assert k == len(ins)
        a(f"ds_write_b128 v8, {vr(PH,4)} offset:{2048*m}"); a(f"ds_write_b128 v9, {vr(PH+4,4)} offset:{2048*m}"); a(f"ds_write_b64 v10, {vr(PH+8,2)} offset:{2048*m}")
    a("v_lshrrev_b32 v7, 5, v0"); a("v_lshl_add_u32 v12, v7, 3, v4"); a("v_lshlrev_b32 v12, 7, v12")
    a("v_and_b32 v13, 1, v4"); a("v_lshrrev_b32 v14, 1, v4"); a("v_lshl_or_b32 v13, v14, 2, v13"); a("v_lshl_or_b32 v12, v13, 4, v12")
    a(f"s_lshl_b32 s3, s{sWV}, 14"); a(f"s_add_u32 s3, s3, {TRI}"); a("v_add_u32 v12, s3, v12")
    a("v_and_b32 v13, 1, v5"); a("v_lshrrev_b32 v14, 1, v5"); a("v_and_b32 v15, 1, v3")
    a("v_lshl_or_b32 v168, v13, 1, v15"); a("v_lshlrev_b32 v168, 4, v168"); a("v_xor_b32 v168, v168, v12"); a("v_lshl_add_u32 v168, v14, 3, v168")
    a("v_xor_b32 v170, 96, v12"); a("v_lshl_add_u32 v170, v13, 3, v170")
    a(f"s_and_b32 s3, s{sWV}, 1"); a("s_cmp_eq_u32 s3, 0"); a("s_mov_b32 s3, 0xfffeba98"); a("s_cselect_b32 s3, 0xfffba98e, s3")
    a("v_lshl_add_u32 v13, v15, 2, v5"); a("v_lshlrev_b32 v13, 2, v13"); a("v_bfe_u32 v13, s3, v13, 4"); a("v_lshlrev_b32 v13, 3, v13")
    a("v_xor_b32 v172, v13, v12")
    for r in (168, 170, 172): a(f"v_xor_b32 v{r+1}, 32, v{r}")
    a("v_and_b32 v13, 31, v0"); a("v_mul_u32_u24 v14, 21, v7"); a("v_add_u32 v14, v14, v13"); a("v_cmp_lt_u32 vcc, 20, v13")
    a(f"v_mov_b32 v15, {OOB:#x}"); a("v_lshlrev_b32 v174, 4, v14"); a("v_lshlrev_b32 v175, 3, v14")
    a("v_cndmask_b32 v174, v174, v15, vcc"); a("v_cndmask_b32 v175, v175, v15, vcc")
    a(f"s_lshl2_add_u32 s3, s62, s{sWV}"); a("s_lshl4_add_u32 s3, s3, s54"); a("s_mul_i32 s58, s3, 1792"); a(f"s_add_u32 s58, s58, {WS_KV}")
    a("s_waitcnt lgkmcnt(0)"); a("s_barrier")
    a.stampw(3)
    D0, D1, FR = 16, 32, 48
    def kvreads(ks):
        f = FR + 12*(ks % 3)
        return [f"ds_read_b64_tr_b16 {vr(f+4*o+2*j,2)}, v{[172,168,170][o]+j} offset:{2048*ks+512*j}" for o in range(3) for j in range(2)]
    for x in kvreads(0) + kvreads(1): a(x)
    for ks in range(8):
        f = FR + 12*(ks % 3)
        a(f"s_waitcnt lgkmcnt({6 if ks < 7 else 0})")
        a(f"v_mfma_f32_32x32x16_bf16 {vr(D0,16)}, {vr(f+4,4)}, {vr(f,4)}, {vr(D0,16) if ks else 0}")
        if ks < 6:
            for x in kvreads(ks+2)[:3]: a(x)
        a(f"v_mfma_f32_32x32x16_bf16 {vr(D1,16)}, {vr(f+8,4)}, {vr(f,4)}, {vr(D1,16) if ks else 0}")
        if ks < 6:
            for x in kvreads(ks+2)[3:]: a(x)
    a("s_barrier")
    for q in range(10): a(f"v_cvt_pk_bf16_f32 v{FR+q}, v{D0+2*q}, v{D0+2*q+1}")
    a(f"buffer_store_dwordx4 {vr(FR,4)}, v174, s[{rWS}:{rWS+3}], s58 offen sc1")
    a(f"buffer_store_dwordx4 {vr(FR+4,4)}, v174, s[{rWS}:{rWS+3}], s58 offen offset:672 sc1")
    a(f"buffer_store_dwordx2 {vr(FR+8,2)}, v175, s[{rWS}:{rWS+3}], s58 offen offset:1344 sc1")
    a("s_branch L_common")

    a.label("L_qepi")
    a(f"s_and_b32 s3, s{sX}, 1"); a("s_lshl1_add_u32 s3, s3, s57"); a("s_sub_u32 s3, s3, 4"); a("s_mul_i32 s58, s3, 655360")
    a("s_lshl1_add_u32 s3, s54, s61"); a("s_mul_i32 s3, s3, 2560"); a("s_add_u32 s58, s58, s3"); a(f"s_add_u32 s58, s58, {WS_Q}")
    a("s_mul_i32 s3, s60, 163840"); a("s_sub_u32 s53, 491520, s3")
    a("v_mov_b32 v12, s3"); a("v_mov_b32 v13, s53"); a("v_cmp_gt_u32 vcc, 32, v0")
    a("s_add_u32 s59, s58, s53"); a("s_add_u32 s53, s58, s3")
    a("v_and_b32 v7, 1, v3"); a("v_mul_u32_u24 v7, 81920, v7"); a("v_cndmask_b32 v12, v13, v12, vcc")
    a("v_lshrrev_b32 v14, 5, v0"); a("v_lshl_add_u32 v14, v14, 9, v7"); a("v_lshl_add_u32 v8, v6, 4, v14")
    a("v_add_u32 v12, v12, v7"); a("v_lshl_add_u32 v9, v6, 3, v12")
    for m in range(4):
        A = ACC + 20*m; T = 96 + 12*m
        for r in range(0, 20, 2): a(f"v_pk_mul_f32 {vr(A+r,2)}, {vr(A+r,2)}, {vr(STAT+4*m+2,2)} op_sel_hi:[1,0]")
        for q in range(10): a(f"v_cvt_pk_bf16_f32 v{T+q}, v{A+2*q}, v{A+2*q+1}")
        for q in (0, 1, 4, 5): a(f"v_permlane16_swap_b32 v{T+q}, v{T+q+2}")
        a(f"buffer_store_dwordx4 {vr(T,4)}, v8, s[{rWS}:{rWS+3}], s53 offen offset:{(m>>1)*1280+(m&1)*256} sc1")
        a(f"buffer_store_dwordx4 {vr(T+4,4)}, v8, s[{rWS}:{rWS+3}], s59 offen offset:{(m>>1)*1280+(m&1)*256} sc1")
        a(f"buffer_store_dwordx2 {vr(T+8,2)}, v9, s[{rWS}:{rWS+3}], s58 offen offset:{1024+(m>>1)*1280+(m&1)*128} sc1")
    a.stampw(3)
    a("s_branch L_common")

    a.label("L_helper")
    a.srdw(rWR, D*2); a.srdw(rG, D*F*2); a.srdw(rU, D*F*2); a.srdw(rDN, D*F*2)
    XR, CR, WR, FF = 16, 36, 56, 76
    a(f"s_sub_u32 s54, s{sJR}, 24"); a(f"s_lshl3_add_u32 s55, s{sX}, s54")
    a(f"s_lshl3_add_u32 s56, s55, s{sWV}")
    a("v_lshrrev_b32 v3, 4, v0"); a("v_and_b32 v4, 15, v0"); a("v_lshlrev_b32 v4, 4, v4")
    a("s_lshl_b32 s3, s56, 2"); a("v_add_u32 v5, s3, v3"); a("s_movk_i32 s3, 1280"); a("v_mad_u32_u24 v6, v5, s3, v4")
    a(f"s_lshr_b32 s57, s{sX}, 1"); a(f"s_and_b32 s58, s{sX}, 1")
    a("s_lshl3_add_u32 s59, s57, s54"); a("s_lshr_b32 s60, s59, 1"); a("s_and_b32 s59, s59, 1")
    a("s_mul_i32 s3, s60, 52"); a("s_lshr_b32 s3, s3, 8"); a("s_add_u32 s3, s3, s58"); a("s_mul_i32 s3, s3, 640"); a("s_lshl_b32 s61, s60, 7"); a("s_add_u32 s61, s61, s3")
    a(f"s_lshr_b32 s3, s{sWV}, 2"); a("s_lshl1_add_u32 s3, s3, s59"); a(f"s_and_b32 s53, s{sWV}, 3"); a("s_lshl2_add_u32 s3, s3, s53"); a("s_mul_i32 s3, s3, 30720"); a("s_add_u32 s3, s3, s61")
    a("s_cmp_eq_u32 s60, 15"); a(f"s_cselect_b32 s3, {OOB:#x}, s3")
    a("v_lshrrev_b32 v7, 3, v0"); a("v_mul_u32_u24 v7, 3840, v7"); a("v_and_b32 v8, 7, v0"); a("v_lshl_add_u32 v7, v8, 4, v7"); a("v_add_u32 v7, s3, v7")
    a("s_mov_b32 s62, 0")
    a("s_waitcnt lgkmcnt(0)")
    for i in range(5):
        a(f"buffer_load_dwordx4 {vr(XR+4*i,4)}, v6, s[{rX}:{rX+3}], 0 offen offset:{256*i}")
        a(f"buffer_load_dwordx4 {vr(CR+4*i,4)}, v7, s[{rW}:{rW+3}], s62 offen")
        if i < 4: a("s_add_u32 s62, s62, 491520")
    for i in range(5): a(f"buffer_load_dwordx4 {vr(WR+4*i,4)}, v4, s[{rWR}:{rWR+3}], 0 offen offset:{256*i}")
    a(f"s_lshr_b32 s3, s{sJ}, 1"); a("s_lshl4_add_u32 s3, s58, s3"); a("s_mul_i32 s3, s3, 800"); a("v_lshlrev_b32 v2, 4, v0"); a(f"s_mov_b32 m0, {L_PHIO}")
    a(f"buffer_load_dwordx4 v2, s[{rPHI}:{rPHI+3}], s3 offen lds")
    for q in range(4): a(f"v_mov_b32 v{12+q}, s{sSENT}")
    a(f"s_mul_i32 s62, s56, {CLR_PER_WAVE}"); a(f"s_add_u32 s62, s62, {WS_CLR}")
    for i in range(13):
        a(f"buffer_store_dwordx4 v[12:15], v2, s[{rWS}:{rWS+3}], s62 offen offset:{1024*(i%4)} sc1")
        if i % 4 == 3: a("s_add_u32 s62, s62, 4096")
    a("s_lshl3_add_u32 s3, s57, s54"); a("s_lshl_b32 s3, s3, 6"); a("v_add_u32 v9, s3, v0"); a("v_mul_u32_u24 v9, 1280, v9")
    a("s_mul_i32 s3, s58, 640"); a("s_mul_i32 s53, s54, 30720"); a("s_add_u32 s3, s3, s53")
    for i in range(2):
        a(f"v_add_u32 v116, {64*i}, v0"); a("v_mul_u32_u24 v117, 13108, v116"); a("v_lshrrev_b32 v117, 16, v117")
        a("v_mul_u32_u24 v117, 640, v117"); a("v_lshl_add_u32 v117, v116, 7, v117"); a(f"v_add_u32 v{10+i}, s3, v117")
    a("v_cmp_lt_u32 vcc, 55, v0"); a(f"v_mov_b32 v116, {OOB:#x}"); a("v_cndmask_b32 v11, v11, v116, vcc")
    a(f"s_add_u32 s3, s{sWV}, {touch}"); a("s_lshl_b32 s62, s3, 7"); a("s_mul_i32 s63, s3, 245760")
    a("s_cmp_ge_u32 s3, 10"); a(f"s_cselect_b32 s62, {OOB:#x}, s62")
    a(f"buffer_load_dword v116, v9, s[{rX}:{rX+3}], s62 offen")
    a(f"buffer_load_dword v117, v10, s[{rW}:{rW+3}], s63 offen")
    a(f"buffer_load_dword v118, v11, s[{rW}:{rW+3}], s63 offen")
    a("s_waitcnt vmcnt(17)")
    a.stampw(1)
    for q in range(20):
        a(f"v_lshlrev_b32 v{FF+2*q}, 16, v{XR+q}"); a(f"v_and_b32 v{FF+2*q+1}, 0xffff0000, v{XR+q}")
    a(f"v_pk_add_f32 v[120:121], {vr(FF,2)}, {vr(FF+2,2)}"); a(f"v_pk_add_f32 v[122:123], {vr(FF+4,2)}, {vr(FF+6,2)}")
    for q in range(8, 40, 4):
        a(f"v_pk_add_f32 v[120:121], v[120:121], {vr(FF+q,2)}"); a(f"v_pk_add_f32 v[122:123], v[122:123], {vr(FF+q+2,2)}")
    a("v_pk_add_f32 v[120:121], v[120:121], v[122:123]"); a("v_add_f32 v120, v120, v121")
    a.rowsum16(120)
    a("v_mul_f32 v120, 0x3acccccd, v120")
    a("v_mov_b64 v[122:123], 0"); a("v_mov_b64 v[124:125], 0")
    for q in range(0, 40, 4):
        a(f"v_pk_add_f32 v[126:127], {vr(FF+q,2)}, v[120:121] op_sel_hi:[1,0] neg_lo:[0,1] neg_hi:[0,1]")
        a(f"v_pk_add_f32 v[128:129], {vr(FF+q+2,2)}, v[120:121] op_sel_hi:[1,0] neg_lo:[0,1] neg_hi:[0,1]")
        a("v_pk_fma_f32 v[122:123], v[126:127], v[126:127], v[122:123]"); a("v_pk_fma_f32 v[124:125], v[128:129], v[128:129], v[124:125]")
    a("v_pk_add_f32 v[122:123], v[122:123], v[124:125]"); a("v_add_f32 v122, v122, v123")
    a.rowsum16(122)
    a("v_mul_f32 v122, 0x3acccccd, v122")
    a("v_cvt_pk_bf16_f32 v122, v122, v122"); a("v_and_b32 v122, 0xffff0000, v122"); a("v_add_f32 v122, 0x3727c5ac, v122")
    a("v_cvt_pk_bf16_f32 v122, v122, v122"); a("v_and_b32 v122, 0xffff0000, v122"); a("v_sqrt_f32 v122, v122")
    a("v_cvt_pk_bf16_f32 v126, v120, v122")
    a("v_and_b32 v122, 0xffff0000, v126"); a("v_rcp_f32 v124, v122"); a("v_lshlrev_b32 v120, 16, v126")
    a("v_mov_b32 v128, 0"); a("v_mov_b32 v129, 0")
    for q in range(20):
        a(f"v_pk_add_f32 {vr(FF+2*q,2)}, {vr(FF+2*q,2)}, v[120:121] op_sel_hi:[1,0] neg_lo:[0,1] neg_hi:[0,1]")
    for q in range(20): a(f"v_pk_mul_f32 {vr(FF+2*q,2)}, {vr(FF+2*q,2)}, v[124:125] op_sel_hi:[1,0]")
    for q in range(20): a(f"v_cvt_pk_bf16_f32 v{XR+q}, v{FF+2*q}, v{FF+2*q+1}")
    for q in range(20): a(f"v_dot2c_f32_bf16 v{128+(q&1)}, v{XR+q}, v{WR+q}")
    a("v_add_f32 v128, v128, v129")
    a.rowsum16(128)
    a("v_cvt_pk_bf16_f32 v128, v128, v128"); a("v_ashrrev_i32 v129, 31, v128"); a("v_or_b32 v129, 0x80000000, v129"); a("v_xor_b32 v128, v128, v129")
    a("v_and_b32 v128, 0xffff0000, v128"); a("v_sub_u32 v129, 2047, v5"); a("v_or_b32 v127, v128, v129")
    a(f"s_lshl_b32 s3, s{sWV}, 5"); a(f"s_add_u32 s3, s3, {L_HM}"); a("v_lshl_add_u32 v129, v3, 3, s3")
    a("ds_write_b64 v129, v[126:127]")
    a("s_mov_b32 s62, 0x00003f80"); a("s_mov_b32 s63, 0x3f800000")
    for r in range(0, 8, 2): a(f"v_mov_b64 {vr(FF+r,2)}, 0")
    for i in range(5):
        for q in range(4):
            a(f"v_dot2c_f32_bf16 v{FF+2*q}, s62, v{CR+4*i+q}"); a(f"v_dot2c_f32_bf16 v{FF+2*q+1}, s63, v{CR+4*i+q}")
    for q in range(4): a(f"v_permlane32_swap_b32 v{FF+q}, v{FF+q+4}")
    a(f"v_pk_add_f32 {vr(FF,2)}, {vr(FF,2)}, {vr(FF+4,2)}"); a(f"v_pk_add_f32 {vr(FF+2,2)}, {vr(FF+2,2)}, {vr(FF+6,2)}")
    for q in range(2): a(f"v_permlane16_swap_b32 v{FF+q}, v{FF+q+2}")
    a(f"v_pk_add_f32 {vr(FF,2)}, {vr(FF,2)}, {vr(FF+2,2)}")
    for q in range(2): a(f"v_add_f32_dpp v{FF+q}, v{FF+q}, v{FF+q} row_ror:8 row_mask:0xf bank_mask:0xf")
    a(f"s_lshl_b32 s3, s{sWV}, 8"); a(f"s_add_u32 s3, s3, {L_HM+256}"); a("v_lshl_add_u32 v129, v8, 5, s3"); a("v_lshl_add_u32 v129, v3, 3, v129")
    a(f"ds_write_b64 v129, {vr(FF,2)}")
    a("s_waitcnt lgkmcnt(0)"); a("s_barrier")
    a(f"s_cmp_eq_u32 s{sWV}, 0"); a("s_cbranch_scc0 L_h1")
    a("v_and_b32 v129, 31, v0"); a(f"v_lshlrev_b32 v128, 3, v129"); a(f"v_add_u32 v128, {L_HM}, v128"); a("ds_read_b64 v[126:127], v128")
    a("s_lshl_b32 s62, s55, 7"); a(f"s_add_u32 s62, s62, {WS_SM}"); a("v_lshlrev_b32 v129, 2, v129"); a("v_mov_b32 v125, 0")
    a("s_waitcnt lgkmcnt(0)")
    a(f"buffer_store_dword v126, v129, s[{rWS}:{rWS+3}], s62 offen sc1")
    a.top2(127, 125, 124, 62, 63)
    a("v_mov_b32 v122, s62"); a("v_mov_b32 v123, s63"); a("s_lshl_b32 s62, s55, 3"); a(f"s_add_u32 s62, s62, {WS_C1}")
    a("s_mov_b64 exec, 1")
    a(f"buffer_store_dwordx2 v[122:123], off, s[{rWS}:{rWS+3}], s62 sc1")
    a("s_mov_b64 exec, -1")
    a.label("L_h1")
    a(f"s_cmp_eq_u32 s{sWV}, 1"); a("s_cbranch_scc0 L_h2")
    a("v_lshlrev_b32 v129, 2, v0"); a(f"v_add_u32 v128, {L_HM+256}, v129")
    for q in range(8): a(f"ds_read_b32 v{FF+q}, v128 offset:{256*q}")
    a("s_lshl_b32 s62, s61, 1"); a("s_mul_i32 s3, s59, 7680"); a("s_add_u32 s62, s62, s3"); a(f"s_add_u32 s62, s62, {WS_CS}")
    a("s_cmp_eq_u32 s60, 15"); a(f"s_cselect_b32 s62, {OOB:#x}, s62")
    a("s_waitcnt lgkmcnt(0)")
    a(f"v_pk_add_f32 {vr(FF,2)}, {vr(FF,2)}, {vr(FF+2,2)}"); a(f"v_pk_add_f32 {vr(FF+4,2)}, {vr(FF+4,2)}, {vr(FF+6,2)}")
    a(f"v_pk_add_f32 {vr(FF,2)}, {vr(FF,2)}, {vr(FF+4,2)}"); a(f"v_add_f32 v{FF}, v{FF}, v{FF+1}")
    a(f"v_and_b32 v{FF+1}, 0xffff0000, v{FF}"); a(f"v_sub_f32 v{FF}, v{FF}, v{FF+1}"); a(f"v_cvt_pk_bf16_f32 v{FF}, v{FF+1}, v{FF}")
    a(f"buffer_store_dword v{FF}, v129, s[{rWS}:{rWS+3}], s62 offen sc1")
    a.label("L_h2")
    a("s_waitcnt vmcnt(0)"); a("s_barrier")
    a.stampw(2)
    a(f"s_cmp_eq_u32 s{sWV}, 0"); a("s_cbranch_scc0 L_h3")
    a("v_mov_b32 v122, 1"); a("s_and_b32 s3, s55, 1"); a("s_lshl_b32 s3, s3, 7")
    a("s_mov_b64 exec, 1")
    a(f"buffer_atomic_add v122, off, s[{rDBG}:{rDBG+3}], s3 sc1")
    a("s_mov_b64 exec, -1")
    a.label("L_h3")
    a("s_cmp_lt_u32 s54, 6"); a("s_cbranch_scc0 L_h4")
    a(f"s_mul_i32 s64, s{sX}, 6"); a("s_add_u32 s64, s64, s54")
    a("v_lshrrev_b32 v7, 2, v0"); a("v_mul_u32_u24 v7, 3072, v7"); a("v_and_b32 v8, 3, v0"); a("v_lshl_add_u32 v7, v8, 4, v7")
    a(f"s_mul_i32 s62, s{sWV}, 245760"); a("s_lshl_b32 s3, s64, 6"); a("s_add_u32 s62, s62, s3")
    a(f"s_mul_i32 s65, s{sWV}, 5120")
    a("s_mul_i32 s63, s64, 40960"); a("s_add_u32 s63, s63, s65")
    for i in range(5):
        a(f"s_add_u32 m0, s65, {L_GI+1024*i}"); a(f"buffer_load_dwordx4 v7, s[{rG}:{rG+3}], s62 offen lds")
        a(f"s_add_u32 m0, s65, {L_UI+1024*i}"); a(f"buffer_load_dwordx4 v7, s[{rU}:{rU+3}], s62 offen lds")
        a("s_add_u32 s62, s62, 49152")
    a(f"s_add_u32 m0, s65, {L_DI}")
    for i in range(4): a(f"buffer_load_dwordx4 v2, s[{rDN}:{rDN+3}], s63 offen offset:{1024*i} lds")
    a("s_add_u32 m0, m0, 4096"); a("s_add_u32 s63, s63, 4096")
    a(f"buffer_load_dwordx4 v2, s[{rDN}:{rDN+3}], s63 offen lds")
    a.label("L_h4")
    a.flagpoll(122, 123)
    a.stampw(3)
    a("v_lshlrev_b32 v124, 3, v0"); a(f"s_movk_i32 s3, {WS_C1}")
    a(f"buffer_load_dwordx2 v[122:123], v124, s[{rWS}:{rWS+3}], s3 offen sc1")
    a("s_waitcnt vmcnt(0)")
    a.top2(122, 123, 124, 66, 67)
    a("s_cmp_lt_u32 s54, 6"); a("s_cbranch_scc0 L_yred")
    a("s_and_b32 s66, s66, 0x7ff"); a("s_and_b32 s67, s67, 0x7ff"); a("s_sub_u32 s66, 2047, s66"); a("s_sub_u32 s67, 2047, s67")
    a("v_mov_b32 v9, s66"); a("v_mov_b32 v10, s67"); a("v_and_b32 v11, 1, v0"); a("v_cmp_eq_u32 vcc, 1, v11"); a("v_lshrrev_b32 v5, 5, v0")
    a("v_cndmask_b32 v9, v9, v10, vcc"); a("v_lshlrev_b32 v10, 2, v9"); a("v_mul_u32_u24 v9, 1280, v9"); a("v_lshl_add_u32 v9, v5, 4, v9")
    a(f"s_mul_i32 s62, s{sWV}, 160"); a(f"s_movk_i32 s3, {WS_SM}")
    a(f"buffer_load_dword v126, v10, s[{rWS}:{rWS+3}], s3 offen sc1")
    for s_ in range(5): a(f"buffer_load_dwordx4 {vr(XR+4*s_,4)}, v9, s[{rX}:{rX+3}], s62 offen offset:{32*s_}")
    a("v_bfe_u32 v6, v0, 2, 2"); a("v_lshl_add_u32 v6, v5, 3, v6")
    a("v_bfe_u32 v12, v0, 4, 1"); a("v_lshl_add_u32 v12, v12, 2, v8"); a("v_lshlrev_b32 v12, 3, v12")
    a("v_lshl_add_u32 v13, v6, 6, v12"); a("v_add_u32 v13, s65, v13")
    GB, UB = 132, 152
    for s_ in range(5):
        for j in range(2):
            a(f"ds_read_b64_tr_b16 {vr(GB+4*s_+2*j,2)}, v13 offset:{L_GI+1024*s_+256*j}")
    for s_ in range(5):
        for j in range(2):
            a(f"ds_read_b64_tr_b16 {vr(UB+4*s_+2*j,2)}, v13 offset:{L_UI+1024*s_+256*j}")
    a("s_waitcnt vmcnt(0)")
    a("v_and_b32 v122, 0xffff0000, v126"); a("v_rcp_f32 v124, v122"); a("v_lshlrev_b32 v120, 16, v126")
    for q in range(20):
        a(f"v_lshlrev_b32 v{FF+2*q}, 16, v{XR+q}"); a(f"v_and_b32 v{FF+2*q+1}, 0xffff0000, v{XR+q}")
    for q in range(20):
        a(f"v_pk_add_f32 {vr(FF+2*q,2)}, {vr(FF+2*q,2)}, v[120:121] op_sel_hi:[1,0] neg_lo:[0,1] neg_hi:[0,1]")
    for q in range(20): a(f"v_pk_mul_f32 {vr(FF+2*q,2)}, {vr(FF+2*q,2)}, v[124:125] op_sel_hi:[1,0]")
    for q in range(20): a(f"v_cvt_pk_bf16_f32 v{XR+q}, v{FF+2*q}, v{FF+2*q+1}")
    a("s_waitcnt lgkmcnt(0)")
    DG, DU = 176, 192
    for s_ in range(5):
        a(f"v_mfma_f32_32x32x16_bf16 {vr(DG,16)}, {vr(XR+4*s_,4)}, {vr(GB+4*s_,4)}, {vr(DG,16) if s_ else 0}")
        a(f"v_mfma_f32_32x32x16_bf16 {vr(DU,16)}, {vr(XR+4*s_,4)}, {vr(UB+4*s_,4)}, {vr(DU,16) if s_ else 0}")
    a("v_cmp_gt_u32 vcc, 32, v0"); a(f"v_lshlrev_b32 v14, 3, v0"); a(f"v_add_u32 v14, {L_GU}, v14"); a(f"s_lshl_b32 s3, s{sWV}, 9"); a("v_add_u32 v15, s3, v14")
    for q in range(2): a(f"v_cndmask_b32 v{120+q}, v{DU+q}, v{DG+q}, vcc")
    a("ds_write_b64 v15, v[120:121]")
    a("s_waitcnt lgkmcnt(0)"); a("s_barrier")
    for q in range(8): a(f"ds_read_b64 {vr(FF+2*q,2)}, v14 offset:{512*q}")
    a("s_movk_i32 s3, 1280"); a("v_mad_u32_u24 v13, v6, s3, v12"); a(f"s_lshl_b32 s3, s{sWV}, 6"); a(f"s_add_u32 s3, s3, {L_DI}"); a("v_add_u32 v13, s3, v13")
    a("s_waitcnt lgkmcnt(0)")
    for u in range(3):
        for s_ in range(2):
            for j in range(2): a(f"ds_read_b64_tr_b16 {vr(GB+8*u+4*s_+2*j,2)}, v13 offset:{512*u+20480*s_+5120*j}")
    for q in range(4): a(f"v_pk_add_f32 {vr(FF+2*q,2)}, {vr(FF+2*q,2)}, {vr(FF+2*q+8,2)}")
    for q in range(2): a(f"v_pk_add_f32 {vr(FF+2*q,2)}, {vr(FF+2*q,2)}, {vr(FF+2*q+4,2)}")
    a(f"v_pk_add_f32 {vr(FF,2)}, {vr(FF,2)}, {vr(FF+2,2)}")
    a(f"v_permlane32_swap_b32 v{FF}, v{FF+1}")
    a(f"v_cvt_pk_bf16_f32 v120, v{FF}, v{FF+1}"); a("v_lshlrev_b32 v121, 16, v120"); a("v_and_b32 v120, 0xffff0000, v120")
    a(f"v_mul_f32 v122, {LOG2E|0x80000000:#x}, v121"); a("v_exp_f32 v122, v122"); a("v_add_f32 v122, 1.0, v122"); a("v_rcp_f32 v122, v122")
    a("v_mul_f32 v121, v121, v122"); a("v_cvt_pk_bf16_f32 v121, v121, v121"); a("v_and_b32 v121, 0xffff0000, v121")
    a("v_mul_f32 v121, v121, v120"); a("v_cvt_pk_bf16_f32 v121, v121, v121")
    a(f"s_lshl_b32 s3, s{sWV}, 7"); a(f"s_add_u32 s3, s3, {L_HB}"); a("v_lshl_add_u32 v14, v0, 1, s3"); a("ds_write_b16 v14, v121")
    a("v_lshlrev_b32 v14, 6, v11"); a("v_lshl_add_u32 v14, v5, 4, v14"); a("v_add_u32 v14, s3, v14")
    a("s_waitcnt lgkmcnt(0)")
    a(f"ds_read_b128 {vr(XR,4)}, v14"); a(f"ds_read_b128 {vr(XR+4,4)}, v14 offset:32")
    a("v_and_b32 v14, 31, v0"); a("v_lshlrev_b32 v14, 2, v14"); a("s_movk_i32 s3, 2560"); a("v_mad_u32_u24 v14, v5, s3, v14")
    a("s_mul_i32 s62, s64, 5120"); a(f"s_lshl_b32 s3, s{sWV}, 7"); a("s_add_u32 s62, s62, s3"); a(f"s_add_u32 s62, s62, {WS_YP}")
    a(f"s_cmp_lt_u32 s{sWV}, 4"); a(f"s_cselect_b32 s63, s62, {OOB:#x}")
    a("s_waitcnt lgkmcnt(0)")
    for s_ in range(2):
        for u in range(3):
            a(f"v_mfma_f32_32x32x16_bf16 {vr(DG+16*u,16)}, {vr(XR+4*s_,4)}, {vr(GB+8*u+4*s_,4)}, {vr(DG+16*u,16) if s_ else 0}")
    for u in range(3):
        a(f"v_cndmask_b32 v{120+u}, v{DG+16*u+1}, v{DG+16*u}, vcc")
        a(f"buffer_store_dword v{120+u}, v14, s[{rWS}:{rWS+3}], s{63 if u == 2 else 62} offen offset:{1024*u} sc1")
    a("s_branch L_h5")
    a.label("L_yred")
    a("s_cmp_eq_u32 s54, 6"); a("s_cselect_b32 s66, s66, s67")
    a("v_mul_u32_u24 v7, 3277, v0"); a("v_lshrrev_b32 v7, 16, v7"); a("s_movk_i32 s3, 4800"); a("v_mad_u32_u24 v7, v7, s3, v2")
    a("v_cmp_lt_u32 vcc, 59, v0"); a(f"v_mov_b32 v8, {OOB:#x}"); a("s_sub_u32 s63, s54, 6"); a("v_cndmask_b32 v7, v7, v8, vcc")
    a("s_mul_i32 s63, s63, 2560"); a(f"s_mul_i32 s3, s{sX}, 320"); a("s_add_u32 s63, s63, s3")
    a(f"s_mul_i32 s62, s{sWV}, 30720"); a("s_add_u32 s62, s62, s63"); a(f"s_add_u32 s62, s62, {WS_YP}"); a("s_add_u32 s64, s62, 15360")
    a.poll([f"buffer_load_dwordx4 v[16:19], v7, s[{rWS}:{rWS+3}], s62 offen sc1", f"buffer_load_dwordx4 v[20:23], v7, s[{rWS}:{rWS+3}], s64 offen sc1"], range(16, 24), 24, 1)
    a("v_pk_add_f32 v[16:17], v[16:17], v[20:21]"); a("v_pk_add_f32 v[18:19], v[18:19], v[22:23]")
    a(f"s_lshl_b32 s3, s{sWV}, 10"); a("v_add_u32 v8, s3, v2"); a("ds_write_b128 v8, v[16:19]")
    a("s_waitcnt lgkmcnt(0)"); a("s_barrier")
    a(f"s_lshl_b32 s3, s{sWV}, 6"); a("v_add_u32 v8, s3, v0"); a("v_cmp_lt_u32 vcc, 79, v8"); a("v_min_u32 v8, 79, v8"); a("v_lshlrev_b32 v8, 2, v8")
    for q in range(24): a(f"ds_read_b32 v{16+q}, v8 offset:{1024*(q//3)+320*(q%3)}")
    a(f"v_mov_b32 v9, {OOB:#x}"); a("v_cndmask_b32 v9, v8, v9, vcc")
    a("s_and_b32 s66, s66, 0xffff0000"); a("s_cmp_lt_i32 s66, 0"); a("s_mov_b32 s3, 0xffff0000"); a("s_cselect_b32 s3, 0x80000000, s3"); a("s_xor_b32 s66, s66, s3")
    a(f"v_mov_b32 v10, {LOG2E|0x80000000:#x}"); a("v_mul_f32 v10, s66, v10"); a("v_exp_f32 v10, v10"); a("v_add_f32 v10, 1.0, v10"); a("v_rcp_f32 v10, v10")
    a("v_cvt_pk_bf16_f32 v10, v10, v10"); a("v_and_b32 v10, 0xffff0000, v10")
    a("s_waitcnt lgkmcnt(0)")
    for q in range(6): a(f"v_pk_add_f32 {vr(16+2*q,2)}, {vr(16+2*q,2)}, {vr(28+2*q,2)}")
    for q in range(3): a(f"v_pk_add_f32 {vr(16+2*q,2)}, {vr(16+2*q,2)}, {vr(22+2*q,2)}")
    a("v_pk_add_f32 v[16:17], v[16:17], v[18:19]"); a("v_pk_add_f32 v[16:17], v[16:17], v[20:21]"); a("v_add_f32 v16, v16, v17")
    a("v_cvt_pk_bf16_f32 v16, v16, v16"); a("v_and_b32 v16, 0xffff0000, v16"); a("v_mul_f32 v16, v16, v10")
    a(f"s_add_u32 s63, s63, {WS_Y}")
    a(f"buffer_store_dword v16, v9, s[{rWS}:{rWS+3}], s63 offen sc1")
    a.label("L_h5")
    a("s_barrier")
    a(f"s_cmp_lt_u32 s{sWV}, 4"); a("s_cbranch_scc1 L_common")
    a(f"s_sub_u32 s60, s{sWV}, 4")
    wo_addr()
    a.label("L_h6")
    wo_round()
    a("s_cmp_lt_u32 s69, 81920"); a("s_cbranch_scc1 L_h6")

    a.label("L_common")
    a.stampw(4)
    a(f"s_and_b32 s3, s{sX}, 1"); a(f"s_lshr_b32 s54, s{sJ}, 1"); a("s_lshl4_add_u32 s54, s3, s54")
    a(f"s_and_b32 s55, s{sX}, 6"); a(f"s_and_b32 s3, s{sJ}, 1"); a("s_add_u32 s55, s55, s3"); a(f"s_lshl3_add_u32 s55, s55, s{sWV}")
    a(f"s_lshr_b32 s3, s{sJ}, 3"); a(f"s_lshl2_add_u32 s56, s{sX}, s3")
    a(f"s_and_b32 s57, s{sWV}, 3"); a(f"s_lshr_b32 s58, s{sWV}, 2")
    a("s_lshl_b32 s3, s54, 6"); a("s_add_u32 s3, s3, s55"); a("s_mul_i32 s59, s3, 1280"); a(f"s_add_u32 s59, s59, {WS_Q}")
    a("v_lshlrev_b32 v7, 4, v0"); a("v_and_b32 v8, 31, v0"); a("v_lshlrev_b32 v9, 3, v8")
    QF = 16; OA = 24; P0 = 40; P1 = 56; PHQ = 72; KL = 84
    qloads = [f"buffer_load_dwordx4 {vr(QF,4)}, v7, s[{rWS}:{rWS+3}], s59 offen sc1", f"buffer_load_dwordx2 {vr(QF+4,2)}, v9, s[{rWS}:{rWS+3}], s59 offen offset:1024 sc1"]
    for l in qloads: a(l)
    a("s_cmp_eq_u32 s58, 0"); a("s_cbranch_scc1 L_c1")
    wo_round()
    a("s_cmp_lt_u32 s57, 2"); a("s_cbranch_scc0 L_c1")
    a("s_lshl1_add_u32 s3, s56, s57"); a("s_mul_i32 s68, s3, 40960"); a("s_add_u32 s68, s68, s67")
    a("s_mul_i32 s69, s57, 5120"); a(f"s_add_u32 s69, s69, {L_RES}")
    unit(rX, "s68", "s69")
    a.label("L_c1")
    a("v_lshrrev_b32 v10, 5, v0"); a("v_bfe_u32 v11, v0, 2, 2"); a("v_bfe_u32 v12, v0, 4, 1"); a("v_bfe_u32 v13, v0, 1, 1"); a("v_lshl_add_u32 v12, v12, 1, v13")
    a("s_and_b32 s3, s54, 1"); a("s_cmp_eq_u32 s3, 0"); a(f"s_cselect_b32 s60, 160, 0"); a(f"s_cselect_b32 s61, 0, 640")
    a(f"s_add_u32 s60, s60, {L_PHIO}"); a(f"s_add_u32 s61, s61, {L_PHIO}")
    a("v_mul_u32_u24 v13, 40, v11"); a("v_add_u32 v14, s61, v13"); a("v_mul_u32_u24 v15, 320, v10"); a("v_add3_u32 v13, v13, v15, s60")
    a("v_lshl_add_u32 v15, v12, 3, v13"); a("v_lshl_add_u32 v12, v12, 3, v14")
    a(f"ds_read_b64_tr_b16 {vr(OA,2)}, v15"); a(f"ds_read_b64_tr_b16 {vr(OA+2,2)}, v15 offset:160")
    a(f"ds_read_b64_tr_b16 {vr(OA+4,2)}, v13 offset:32"); a(f"ds_read_b64_tr_b16 {vr(OA+6,2)}, v13 offset:192")
    a(f"ds_read_b64_tr_b16 {vr(OA+8,2)}, v12"); a(f"ds_read_b64_tr_b16 {vr(OA+10,2)}, v14 offset:32")
    a("v_bfe_i32 v12, v0, 2, 1"); a("v_and_b32 v12, 0x80008000, v12"); a("v_add_u32 v13, -1, v10")
    a(f"s_lshl_b32 s3, s{sWV}, 6"); a("v_add_u32 v14, s3, v0"); a("v_cmp_lt_u32 vcc, 419, v14"); a("v_lshlrev_b32 v14, 2, v14"); a(f"v_mov_b32 v15, {OOB:#x}")
    a("v_cndmask_b32 v15, v14, v15, vcc")
    a("s_mul_i32 s60, s54, 28672"); a(f"s_add_u32 s60, s60, {WS_KV}")
    a("s_waitcnt lgkmcnt(0)")
    for q in range(8): a(f"v_xor_b32 v{OA+q}, v12, v{OA+q}")
    for q in range(8, 12): a(f"v_bitop3_b32 v{OA+q}, v{OA+q}, v12, v13 bitop3:0x28")
    a.poll(qloads, range(QF, QF+6), 22, 2, pre_issued=True)
    a.stampw(5)
    kloads = ["s_mov_b32 s61, s60"]
    for p in range(16):
        kloads.append(f"buffer_load_dword v{KL+p}, v15, s[{rWS}:{rWS+3}], s61 offen offset:{1792*(p&1)} sc1")
        if p & 1 and p < 15: kloads.append("s_add_u32 s61, s61, 3584")
    a(f"v_mfma_f32_32x32x16_bf16 {vr(P0,16)}, {vr(OA,4)}, {vr(QF,4)}, 0")
    a(f"v_mfma_f32_32x32x16_bf16 {vr(P1,16)}, {vr(OA+4,4)}, {vr(QF,4)}, 0")
    for l in kloads[:12]: a(l)
    a(f"v_mfma_f32_32x32x8_bf16 {vr(P0,16)}, {vr(OA+8,2)}, {vr(QF+4,2)}, {vr(P0,16)}")
    a(f"v_mfma_f32_32x32x8_bf16 {vr(P1,16)}, {vr(OA+10,2)}, {vr(QF+4,2)}, {vr(P1,16)}")
    for l in kloads[12:]: a(l)
    a(f"v_mov_b32 v22, {LOG2E:#x}")
    for x in softmax_ops(list(range(P0, P0+20)), PHQ, 22, 36): a(x)
    a.poll(kloads, range(KL, KL+16), 22, 3, pre_issued=True)
    a.stampw(6)
    a("s_mov_b32 s62, 0x00003f80"); a("s_mov_b32 s63, 0x3f800000")
    a("v_mov_b64 v[16:17], 0"); a("v_mov_b64 v[18:19], 0")
    for p in range(16):
        a(f"v_dot2c_f32_bf16 v{16+2*(p&1)}, s62, v{KL+p}"); a(f"v_dot2c_f32_bf16 v{17+2*(p&1)}, s63, v{KL+p}")
    a(f"v_add_u32 v14, {L_KVR}, v14")
    a("v_min_u32 v12, 20, v8"); a("v_mul_u32_u24 v13, 21, v10"); a("v_add_u32 v12, v12, v13")
    a("v_pk_add_f32 v[16:17], v[16:17], v[18:19]"); a("v_cvt_pk_bf16_f32 v16, v16, v17")
    a("ds_write_b32 v14, v16")
    a(f"s_mov_b32 s3, {L_KVR}"); a("v_lshl_add_u32 v13, v12, 3, s3"); a("v_lshl_add_u32 v12, v12, 4, s3")
    a("s_waitcnt lgkmcnt(0)"); a("s_barrier")
    a(f"ds_read_b128 {vr(OA,4)}, v12"); a(f"ds_read_b128 {vr(OA+4,4)}, v12 offset:672"); a(f"ds_read_b64 {vr(OA+8,2)}, v13 offset:1344")
    a("v_bfe_u32 v12, v0, 4, 1"); a("v_mul_u32_u24 v12, 20480, v12"); a("v_and_b32 v11, 15, v0")
    a("v_lshl_add_u32 v13, v11, 3, v12"); a("v_lshl_add_u32 v12, v11, 4, v12"); a("v_lshl_add_u32 v12, v10, 8, v12")
    a("v_cmp_gt_u32 vcc, 32, v0"); a(f"v_mov_b32 v14, {OOB:#x}")
    a("s_mul_i32 s60, s55, 40960"); a(f"s_add_u32 s60, s60, {WS_O}"); a("s_lshl_b32 s3, s54, 7"); a("s_add_u32 s61, s60, s3"); a("s_add_u32 s61, s61, 16384")
    a("v_cndmask_b32 v13, v14, v13, vcc")
    a("s_lshl2_add_u32 s60, s3, s60")
    a("s_waitcnt lgkmcnt(2)")
    a(f"v_mfma_f32_32x32x16_bf16 {vr(P0,16)}, {vr(OA,4)}, {vr(PHQ,4)}, 0")
    a("s_waitcnt lgkmcnt(1)")
    a(f"v_mfma_f32_32x32x16_bf16 {vr(P0,16)}, {vr(OA+4,4)}, {vr(PHQ+4,4)}, {vr(P0,16)}")
    a("s_waitcnt lgkmcnt(0)")
    a(f"v_mfma_f32_32x32x8_bf16 {vr(P0,16)}, {vr(OA+8,2)}, {vr(PHQ+8,2)}, {vr(P0,16)}")
    a(f"v_add_f32 v16, 0x358637bd, v{P0+12}"); a("v_rcp_f32 v16, v16")
    for q in range(0, 12, 2): a(f"v_pk_mul_f32 {vr(P0+q,2)}, {vr(P0+q,2)}, v[16:17] op_sel_hi:[1,0]")
    for q in range(6): a(f"v_cvt_pk_bf16_f32 v{P1+q}, v{P0+2*q}, v{P0+2*q+1}")
    a(f"buffer_store_dwordx4 {vr(P1,4)}, v12, s[{rWS}:{rWS+3}], s60 offen sc1")
    a(f"buffer_store_dwordx2 {vr(P1+4,2)}, v13, s[{rWS}:{rWS+3}], s61 offen sc1")
    a.stampw(7)
    FA = 16; OF = 36; WF = 76
    a("s_lshl2_add_u32 s59, s56, s57")
    a(f"s_and_b32 s67, s{sJ}, 7")
    a("v_lshrrev_b32 v3, 4, v0"); a("v_bfe_u32 v4, v0, 2, 2"); a("v_and_b32 v5, 3, v0")
    a("s_cmp_eq_u32 s58, 0"); a("s_cbranch_scc0 L_c2")
    a("s_lshl_b32 s3, s59, 6"); a(f"s_add_u32 s3, s3, {WS_SM}"); a("v_lshlrev_b32 v12, 2, v11")
    a(f"buffer_load_dword v14, v12, s[{rWS}:{rWS+3}], s3 offen sc1")
    a("s_branch L_c3")
    a.label("L_c2")
    a("v_lshlrev_b32 v12, 3, v0"); a(f"s_movk_i32 s3, {WS_C1}")
    a(f"buffer_load_dwordx2 v[14:15], v12, s[{rWS}:{rWS+3}], s3 offen sc1")
    a.label("L_c3")
    a("s_mul_i32 s3, s58, 51200"); a("v_mul_u32_u24 v12, 160, v4"); a("v_lshl_add_u32 v12, v5, 3, v12"); a("v_add_u32 v12, s3, v12")
    a("v_mul_u32_u24 v13, 3200, v10"); a("v_and_b32 v6, 1, v3"); a("v_mul_u32_u24 v6, 640, v6"); a("v_add3_u32 v6, v6, v13, v12")
    a("v_mul_u32_u24 v13, 3200, v3"); a("v_add_u32 v2, v13, v12")
    def woreads(st, dst):
        R = []
        for t in range(5):
            for j in range(2):
                if st < 8: R.append(f"ds_read_b64_tr_b16 {vr(dst+4*t+2*j,2)}, v6 offset:{6400*st+1280*j+32*t}")
                else: R.append(f"ds_read_b64_tr_b16 {vr(dst+4*t+2*j,2)}, v2 offset:{2560+25600*(st-8)+12800*j+32*t}")
        return R
    for st in range(9):
        for x in woreads(st, WF + 20*st): a(x)
    a("s_mul_i32 s3, s57, 2560"); a("v_mul_u32_u24 v12, 160, v11"); a("v_lshl_add_u32 v12, v3, 3, v12"); a("v_add_u32 v12, s3, v12")
    a("s_cmp_eq_u32 s58, 0"); a("s_cbranch_scc0 L_c4")
    a(f"v_add_u32 v13, {L_RES}, v12")
    for t in range(5): a(f"ds_read_b64 {vr(OF+2*t,2)}, v13 offset:{32*t}")
    a("s_waitcnt vmcnt(0)")
    a("v_and_b32 v8, 0xffff0000, v14"); a("v_rcp_f32 v8, v8"); a("v_lshlrev_b32 v9, 16, v14")
    a("s_waitcnt lgkmcnt(0)")
    for q in range(10):
        a(f"v_lshlrev_b32 v{FA+2*q}, 16, v{OF+q}"); a(f"v_and_b32 v{FA+2*q+1}, 0xffff0000, v{OF+q}")
    for q in range(10): a(f"v_pk_add_f32 {vr(OF+2*q,2)}, {vr(FA+2*q,2)}, v[8:9] op_sel:[0,1] op_sel_hi:[1,1] neg_lo:[0,1] neg_hi:[0,1]")
    for q in range(10): a(f"v_pk_fma_f32 {vr(FA+2*q,2)}, {vr(OF+2*q,2)}, v[8:9], {vr(FA+2*q,2)} op_sel_hi:[1,0,1]")
    a("s_branch L_c5")
    a.label("L_c4")
    a("s_waitcnt vmcnt(0)")
    a.top2(14, 15, 13, 60, 61)
    a("s_and_b32 s60, s60, 0x7ff"); a("s_and_b32 s61, s61, 0x7ff"); a("s_lshl_b32 s3, s59, 4"); a("s_sub_u32 s3, 2047, s3")
    a("v_sub_u32 v13, s3, v11"); a(f"v_mov_b32 v14, {OOB:#x}"); a("v_lshlrev_b32 v15, 4, v3")
    a("v_cmp_eq_u32 vcc, s60, v13"); a("v_cndmask_b32 v14, v14, v15, vcc")
    a("v_add_u32 v15, 2560, v15"); a("v_cmp_eq_u32 vcc, s61, v13"); a("v_cndmask_b32 v14, v14, v15, vcc")
    a("s_mul_i32 s60, s67, 320"); a(f"s_add_u32 s60, s60, {WS_Y}")
    a.poll([f"buffer_load_dwordx4 {vr(FA+4*t,4)}, v14, s[{rWS}:{rWS+3}], s60 offen offset:{64*t} sc1" for t in range(5)], range(FA, FA+20), 13, 4)
    a.label("L_c5")
    a.stampw(8)
    a("s_mul_i32 s60, s59, 20480"); a(f"s_add_u32 s60, s60, {WS_O}"); a("s_lshl_b32 s3, s58, 11"); a("s_add_u32 s62, s60, s3"); a("s_add_u32 s62, s62, 16384")
    a("s_lshl2_add_u32 s60, s3, s60"); a("s_add_u32 s61, s60, 4096")
    a("v_lshlrev_b32 v9, 3, v0")
    oloads = [f"buffer_load_dwordx4 {vr(OF+4*st,4)}, v7, s[{rWS}:{rWS+3}], s{60+st//4} offen offset:{1024*(st%4)} sc1" for st in range(8)]
    oloads += [f"buffer_load_dwordx2 {vr(OF+32+2*q,2)}, v9, s[{rWS}:{rWS+3}], s62 offen offset:{512*q} sc1" for q in range(4)]
    a.poll(oloads, range(OF, OF+40), 13, 5)
    a.stampw(9)
    a("s_waitcnt lgkmcnt(0)")
    last = woreads(9, WF)
    for st in range(10):
        if st == 9: a("s_waitcnt lgkmcnt(0)")
        for t in range(5):
            a(f"v_mfma_f32_16x16x32_bf16 {vr(FA+4*t,4)}, {vr(WF+20*(st%9)+4*t,4)}, {vr(OF+4*st,4)}, {vr(FA+4*t,4)}")
            if st in (1, 2): a(last[5*(st-1)+t])
    a("s_mul_i32 s3, s57, 5120"); a(f"s_add_u32 s3, s3, {L_XCH}"); a("v_add_u32 v13, s3, v7")
    a("s_cmp_eq_u32 s58, 0"); a("s_cbranch_scc1 L_c6")
    for t in range(5): a(f"ds_write_b128 v13, {vr(FA+4*t,4)} offset:{1024*t}")
    a("s_waitcnt lgkmcnt(0)"); a("s_barrier")
    a("s_branch L_fin")
    a.label("L_c6")
    a(f"v_add_u32 v12, {L_OUTS}, v12")
    a("s_mul_i32 s3, s57, 2560"); a(f"s_add_u32 s3, s3, {L_OUTS}"); a("v_add_u32 v14, s3, v7")
    a("v_mul_u32_u24 v15, 6554, v0"); a("s_movk_i32 s3, 1120")
    for u in range(3):
        if u: a(f"v_add_u32 v15, {64*6554}, v15")
        a("v_lshrrev_b32 v8, 16, v15"); a(f"v_mad_u32_u24 v{4+u}, v8, s3, v7")
    a("v_cmp_gt_u32 vcc, 32, v0"); a(f"v_mov_b32 v8, {OOB:#x}")
    a("s_mul_i32 s60, s59, 20480"); a("s_mul_i32 s3, s67, 160"); a("s_add_u32 s60, s60, s3")
    a("v_cndmask_b32 v6, v8, v6, vcc")
    a("s_barrier")
    for t in range(5): a(f"ds_read_b128 {vr(OF+4*t,4)}, v13 offset:{1024*t}")
    for t in range(5):
        a(f"s_waitcnt lgkmcnt({4 if t == 0 else 4})")
        a(f"v_pk_add_f32 {vr(FA+4*t,2)}, {vr(FA+4*t,2)}, {vr(OF+4*t,2)}"); a(f"v_pk_add_f32 {vr(FA+4*t+2,2)}, {vr(FA+4*t+2,2)}, {vr(OF+4*t+2,2)}")
        a(f"v_cvt_pk_bf16_f32 v{FA+4*t}, v{FA+4*t}, v{FA+4*t+1}"); a(f"v_cvt_pk_bf16_f32 v{FA+4*t+1}, v{FA+4*t+2}, v{FA+4*t+3}")
        a(f"ds_write_b64 v12, {vr(FA+4*t,2)} offset:{32*t}")
    a("s_waitcnt lgkmcnt(0)")
    for u in range(3): a(f"ds_read_b128 {vr(OF+4*u,4)}, v14 offset:{1024*u}")
    for u in range(3):
        a(f"s_waitcnt lgkmcnt({2-u})")
        a(f"buffer_store_dwordx4 {vr(OF+4*u,4)}, v{4+u}, s[{rOUT}:{rOUT+3}], s60 offen offset:{1024*u} {['', 'sc1', 'nt', 'sc0 sc1'][outfl]}")
    a.label("L_fin")
    if probe == 3:
        a("s_not_b32 s3, s98"); a("v_mov_b32 v8, s3"); a("s_mov_b64 exec, 1")
        a(f"buffer_atomic_umax v8, off, s[{rDBG}:{rDBG+3}], 0 offset:64 sc1"); a("s_waitcnt vmcnt(0)")
        a.label("L_pq"); a("s_memrealtime s[96:97]"); a("s_waitcnt lgkmcnt(0)"); a("s_sub_u32 s96, s96, s98"); a(f"s_cmp_lt_u32 s96, {pn-2500}"); a("s_cbranch_scc1 L_pq")
        a(f"buffer_load_dword v8, off, s[{rDBG}:{rDBG+3}], 0 offset:64 sc1"); a("s_waitcnt vmcnt(0)"); a("v_readfirstlane_b32 s3, v8"); a("s_not_b32 s3, s3")
        a("s_sub_u32 s96, s98, s3"); a("s_cmp_lt_u32 s96, 2000"); a("s_cselect_b32 s98, s3, s98")
    if probe in (1, 3):
        a.label("L_pr"); a("s_memrealtime s[96:97]"); a("s_waitcnt lgkmcnt(0)"); a("s_sub_u32 s96, s96, s98"); a(f"s_cmp_lt_u32 s96, {pn}"); a("s_cbranch_scc1 L_pr")
    if probe == 2:
        a(f"s_lshl3_add_u32 s3, s2, s{sWV}"); a("s_cmp_eq_u32 s3, 7"); a("s_cbranch_scc0 L_prd")
        a(f"s_load_dwordx2 s[{rWR}:{rWR+1}], s[0:1], {pslot}"); a("s_waitcnt lgkmcnt(0)"); a.srdw(rWR, (S*D*2) if pslot == 32 else WS_BYTES)
        a(f"s_mov_b32 s3, {0 if pslot == 32 else 0x4000000}"); a("s_mov_b32 s53, 0"); a("s_mov_b64 exec, 1")
        a.label("L_pr"); a(f"buffer_load_dword v8, off, s[{rWR}:{rWR+3}], s3"); a("s_waitcnt vmcnt(0)")
        a(f"s_add_u32 s3, s3, {pstride}"); a("s_add_u32 s53, s53, 1"); a(f"s_cmp_lt_u32 s53, {pn}"); a("s_cbranch_scc1 L_pr")
        a.label("L_prd")
    if diag:
        a.stampw(10)
        a("s_waitcnt vmcnt(0)")
        a.stampw(11)
        a(f"s_lshl3_add_u32 s3, s2, s{sWV}"); a("s_lshl_b32 s3, s3, 6"); a(f"s_add_u32 s3, s3, {WS_DIAG}")
        a("s_mov_b64 exec, 1")
        for i in range(12):
            a(f"v_mov_b32 v8, s{72+2*i}"); a(f"buffer_store_dword v8, off, s[{rWS}:{rWS+3}], s3 offset:{4*i}")
    a.label("L_end")
    body, nn = hazard.fix(a.text() + "    s_endpgm\n")
    return body, nn


HEADER = open(os.path.join(os.path.dirname(os.path.abspath(__file__)), "header.txt")).read()

def full(extra=0, **kw):
    body, nn = gen(**kw)
    t = HEADER + f"; @launch grid=(256,1,1) block=(512,1,1) lds={LDS_BYTES}\n"
    if extra:
        l0 = f"; @launch kernel={NAME} grid=(256,1,1) block=(512,1,1) lds={LDS_BYTES}\n"
        l1 = "; @launch kernel=nop_kernel grid=(256,1,1) block=(256,1,1) lds=0\n"
        t = HEADER + (l0 + l1*extra if extra > 0 else l1*(-extra) + l0)
        body += ".p2align 8\n.globl nop_kernel\n.type nop_kernel,@function\nnop_kernel:\n    s_endpgm\n"
    t += f'.amdgcn_target "amdgcn-amd-amdhsa--gfx950"\n.text\n.globl {NAME}\n.p2align 8\n.type {NAME},@function\n{NAME}:\n'
    t += body
    t += f""".section .rodata,"a"
.p2align 6
.amdhsa_kernel {NAME}
  .amdhsa_next_free_vgpr 256
  .amdhsa_next_free_sgpr 102
  .amdhsa_accum_offset 256
  .amdhsa_group_segment_fixed_size 0
  .amdhsa_kernarg_size 96
  .amdhsa_user_sgpr_count 2
  .amdhsa_user_sgpr_kernarg_segment_ptr 1
  .amdhsa_system_sgpr_workgroup_id_x 1
.end_amdhsa_kernel
"""
    if extra:
        t += """.p2align 6
.amdhsa_kernel nop_kernel
  .amdhsa_next_free_vgpr 8
  .amdhsa_next_free_sgpr 16
  .amdhsa_accum_offset 8
  .amdhsa_group_segment_fixed_size 0
  .amdhsa_kernarg_size 96
  .amdhsa_user_sgpr_count 2
  .amdhsa_user_sgpr_kernarg_segment_ptr 1
  .amdhsa_system_sgpr_workgroup_id_x 1
.end_amdhsa_kernel
"""
    return t

if __name__ == "__main__":
    out = sys.argv[1] if len(sys.argv) > 1 else "parallel_sum__linear_kernel_hedgehog__moe_arch_mod__prompt.s"
    kw = {}
    for x in sys.argv[2:]:
        k, v = x.split("="); kw[k] = int(v)
    open(out, "w").write(full(**kw))
```

```python
import sys, os
sys.path.insert(0, os.path.dirname(os.path.abspath(__file__)))
from asmlib import Asm, vr, sr
import hazard

NAME = "parallel_sum__linear_kernel_hedgehog__moe_arch_mod__prompt_kernel"
S, D, F = 2048, 640, 1536
SENT = 0xFF81FF81
OOB = 0x7FF00000
WS_SM = 0x2000
WS_CS = 0x4000
WS_C1 = 0x8000
WS_FQ = 0xB000
WS_AH = 0x0000
WS_FH = 0x1000
WS_GH = 0x1800
WS_YH = 0x1C00
WS_KH = 0xD000
WS_OH = 0xE000
WS_TOP = 0xA800
WS_Q = 0x10000
WS_CLR = WS_Q + 2621440
WS_GP = WS_CLR
WS_YP = WS_GP + 196608
WS_Y = WS_YP + 327680
WS_KV = WS_Y + 5120
assert WS_KV + 917504 <= WS_CLR + 512*3072
WS_O = WS_CLR + 512*3072
WS_END = WS_O + 2621440
WS_DIAG = 0x1000000
WS_BYTES = 1 << 28
WREG = 5152
SLOT = 16384 + 4*WREG
RING = 40960
RING_END = RING + 3*SLOT
TRI = 86016
MISC = RING_END
L_PHIO = MISC
L_STAT = L_PHIO + 1024
L_CS = L_STAT + 2048
L_KVR = L_CS + 1920
L_HM = L_KVR + 2048
L_RES = 102400
L_XCH = L_RES + 10240
L_OUTS = L_XCH + 20480
L_DI = 112640
L_YR = L_DI + 30720
L_XN = L_STAT
L_HB = L_CS
LDS_BYTES = 163840
sWV, sX, sJ, sJR = 4, 5, 6, 7
rX, rW, rWS, rWO, rOUT, rDBG, rPHI, rWR, rG, rU, rDN = 8, 12, 16, 20, 24, 28, 32, 36, 40, 44, 48
sSENT = 52
LOG2E = 0x3FB8AA3B
SPIN = 200000


class K(Asm):
    def __init__(self, diag):
        super().__init__()
        self.diag = diag
    def srdw(self, r, n):
        self(f"s_mov_b32 s{r+2}, {n}"); self(f"s_mov_b32 s{r+3}, 0x20000")
    def stamp(self, i):
        if self.diag == 3: self(f"s_memtime s[{72+2*i}:{73+2*i}]")
        elif self.diag == 1 or (self.diag and i in (0, 11)): self(f"s_memrealtime s[{72+2*i}:{73+2*i}]")
    def stampw(self, i):
        if self.diag == 3: self(f"s_memtime s[{72+2*i}:{73+2*i}]"); self("s_waitcnt lgkmcnt(0)")
        elif self.diag == 1 or (self.diag and i in (0, 11)): self(f"s_memrealtime s[{72+2*i}:{73+2*i}]"); self("s_waitcnt lgkmcnt(0)")
    def maxtree(self, dst, regs):
        regs = list(regs)
        if len(regs) == 1: self(f"v_mov_b32 v{dst}, v{regs[0]}"); return
        if len(regs) == 2: self(f"v_max_u32 v{dst}, v{regs[0]}, v{regs[1]}"); return
        self(f"v_max3_u32 v{dst}, v{regs[0]}, v{regs[1]}, v{regs[2]}"); regs = regs[3:]
        while len(regs) >= 2:
            self(f"v_max3_u32 v{dst}, v{dst}, v{regs[0]}, v{regs[1]}"); regs = regs[2:]
        if regs: self(f"v_max_u32 v{dst}, v{dst}, v{regs[0]}")
    def poll(self, loads, regs, tmp, code, pre_issued=False, sleep=0):
        top = self.newlab("L_poll"); chk = self.newlab("L_chk"); out = self.newlab("L_pdone")
        self("s_mov_b32 s3, 0")
        if pre_issued: self(f"s_branch {chk}")
        self.label(top)
        self("s_add_u32 s3, s3, 1"); self(f"s_cmp_gt_u32 s3, {SPIN}"); self(f"s_cbranch_scc1 {out}")
        if sleep: self(f"s_sleep {sleep}")
        for l in loads: self(l)
        self.label(chk)
        self("s_waitcnt vmcnt(0)")
        self.maxtree(tmp, regs)
        self(f"v_cmp_eq_u32 vcc, s{sSENT}, v{tmp}")
        self(f"s_cbranch_vccnz {top}")
        self.label(out)
    def cnt_add(self, n, soff, t, stride=7):
        self(f"v_lshlrev_b32 v{t}, {stride}, v0"); self(f"v_mov_b32 v{t+1}, 1")
        self(f"s_mov_b64 exec, {(1 << n) - 1:#x}")
        self(f"buffer_atomic_add v{t+1}, v{t}, s[{rWS}:{rWS+3}], {soff} offen sc1")
        self("s_mov_b64 exec, -1")
    def cnt_poll(self, n, va, soff, ve, t, cmp="ne"):
        top = self.newlab("L_cp"); out = self.newlab("L_cdone")
        self(f"s_mov_b64 exec, {(1 << n) - 1:#x}"); self("s_mov_b32 s3, 0")
        self.label(top)
        self(f"v_mov_b32 v{t}, 0")
        self("s_add_u32 s3, s3, 1"); self(f"s_cmp_gt_u32 s3, {SPIN}"); self(f"s_cbranch_scc1 {out}")
        self(f"buffer_atomic_or v{t}, v{va}, s[{rWS}:{rWS+3}], {soff} offen sc0 sc1")
        self("s_waitcnt vmcnt(0)")
        self(f"v_cmp_{cmp}_u32 vcc, {ve}, v{t}"); self(f"s_cbranch_vccnz {top}")
        self.label(out)
        self("s_mov_b64 exec, -1")
    def readyload(self, v, va): return f"buffer_load_dword v{v}, v{va}, s[{rDBG}:{rDBG+3}], 0 offen sc1"
    def readyaddr(self, va): self(f"v_and_b32 v{va}, 31, v0"); self(f"v_lshlrev_b32 v{va}, 3, v{va}")
    def readycheck(self, v, va):
        top = self.newlab("L_rp"); out = self.newlab("L_rdone")
        self("s_mov_b32 s3, 0")
        self.label(top)
        self(f"v_cmp_eq_u32 vcc, 0, v{v}"); self(f"s_cbranch_vccz {out}")
        self("s_add_u32 s3, s3, 1"); self(f"s_cmp_gt_u32 s3, {SPIN}"); self(f"s_cbranch_scc1 {out}")
        self("s_sleep 8")
        self(self.readyload(v, va)); self("s_waitcnt vmcnt(0)")
        self(f"s_branch {top}")
        self.label(out)
    def recheck(self, loads, regs, tmp, sleep=0):
        ok = self.newlab("L_ok")
        self.maxtree(tmp, regs); self(f"v_cmp_eq_u32 vcc, s{sSENT}, v{tmp}"); self(f"s_cbranch_vccz {ok}")
        self.poll(loads, regs, tmp, 0, sleep=sleep)
        self.label(ok)
    def wavemax_u32(self, v, t, sdst):
        self(f"v_max_u32_dpp v{t}, v{v}, v{v} row_ror:8 row_mask:0xf bank_mask:0xf")
        for k in (4, 2, 1): self(f"v_max_u32_dpp v{t}, v{t}, v{t} row_ror:{k} row_mask:0xf bank_mask:0xf")
        self(f"v_readlane_b32 s{sdst}, v{t}, 0"); self(f"v_readlane_b32 s3, v{t}, 16")
        self(f"s_max_u32 s{sdst}, s{sdst}, s3")
        self(f"v_readlane_b32 s3, v{t}, 32"); self(f"s_max_u32 s{sdst}, s{sdst}, s3")
        self(f"v_readlane_b32 s3, v{t}, 48"); self(f"s_max_u32 s{sdst}, s{sdst}, s3")
    def top2(self, k1, k2, t, s1, s2):
        self.wavemax_u32(k1, t, s1)
        self(f"v_cmp_eq_u32 vcc, s{s1}, v{k1}")
        self(f"v_cndmask_b32 v{k1}, v{k1}, v{k2}, vcc")
        self.wavemax_u32(k1, t, s2)
    def rowsum16(self, v):
        for k in (8, 4, 2, 1): self(f"v_add_f32_dpp v{v}, v{v}, v{v} row_ror:{k} row_mask:0xf bank_mask:0xf")


def softmax_ops(P, O, cpair, t0, npair=None):
    L = []
    a, b = t0, t0 + 1
    L.append(f"v_max3_f32 v{a}, v{P[0]}, v{P[1]}, v{P[2]}"); L.append(f"v_max3_f32 v{b}, v{P[3]}, v{P[4]}, v{P[5]}")
    for i in range(6, 18, 4):
        L.append(f"v_max3_f32 v{a}, v{a}, v{P[i]}, v{P[i+1]}"); L.append(f"v_max3_f32 v{b}, v{b}, v{P[i+2]}, v{P[i+3]}")
    L.append(f"v_max3_f32 v{a}, v{a}, v{P[18]}, v{P[19]}"); L.append(f"v_max_f32 v{a}, v{a}, v{b}")
    L.append(f"v_mul_f32 v{cpair+1}, v{cpair}, v{a}")
    for i in range(0, 20, 2):
        L.append(f"v_pk_fma_f32 {vr(P[i],2)}, {vr(P[i],2)}, {vr(cpair,2)}, {vr(cpair,2)} op_sel:[0,0,1] op_sel_hi:[1,0,1] neg_lo:[0,0,1] neg_hi:[0,0,1]")
    for i in range(20): L.append(f"v_exp_f32 v{P[i]}, v{P[i]}")
    L.append(f"v_pk_add_f32 {vr(t0,2)}, {vr(P[0],2)}, {vr(P[2],2)}"); L.append(f"v_pk_add_f32 {vr(t0+2,2)}, {vr(P[4],2)}, {vr(P[6],2)}")
    for i in range(8, 20, 4):
        L.append(f"v_pk_add_f32 {vr(t0,2)}, {vr(t0,2)}, {vr(P[i],2)}"); L.append(f"v_pk_add_f32 {vr(t0+2,2)}, {vr(t0+2,2)}, {vr(P[i+2],2)}")
    L.append(f"v_pk_add_f32 {vr(t0,2)}, {vr(t0,2)}, {vr(t0+2,2)}")
    L.append(f"v_add_f32 v{a}, v{a}, v{b}"); L.append(f"v_rcp_f32 v{a}, v{a}")
    if npair is not None: L.append(f"v_mul_f32 v{a}, v{a}, v{npair}")
    for i in range(0, 20, 2): L.append(f"v_pk_mul_f32 {vr(P[i],2)}, {vr(P[i],2)}, {vr(t0,2)} op_sel_hi:[1,0]")
    for i in range(0, 20, 2): L.append(f"v_cvt_pk_bf16_f32 v{O+i//2}, v{P[i]}, v{P[i+1]}")
    return L


class VM:
    def __init__(self, a): self.a = a; self.ops = []
    def __call__(self, text, tag): self.a(text); self.ops.append(tag)
    def count(self, *tags, opt=False):
        last = max(i for i, t in enumerate(self.ops) if t in tags)
        return sum(1 for t in self.ops[last+1:] if opt or t != "opt")
    def wait(self, *tags, lgkm=False): self.a(f"s_waitcnt vmcnt({self.count(*tags)})" + (" lgkmcnt(0)" if lgkm else ""))


def gen(diag=False, touch=10, defer=8, rot=1, cpf=1, cut=0, noclr=0, outfl=2, f0=4, tch=0, hord=0, wot=0, nowo=0, nofh=0):
    a = K(diag)
    WS = f"s[{rWS}:{rWS+3}]"
    sK1, sK2 = 100, 101
    ACC = 16; SET = [96, 132]; XA = [168, 169]; MK, MV, EX = 170, 171, 172
    PA = 176; PX = 196; STAT = 208; AUG = 224
    E0, E1, E2, E3, E4 = 240, 241, 242, 243, 244
    KB, KA0, KA1, KP = 245, 247, 249, 251
    Pb = [96, 116]; PH = 156; CP = 234; TT = 236
    QF = 16; QF2 = 22; OA = 28; P0 = 40; P1 = 56; PHQ = 72; PHQ2 = 82; OT = 92; KL = 40
    FA = 16; OF = 36; WF = 76; WST = 176
    def lanefields():
        a("v_lshrrev_b32 v3, 4, v0"); a("v_bfe_u32 v4, v0, 2, 2"); a("v_and_b32 v5, 3, v0"); a("v_and_b32 v6, 15, v0")
    def kepi_addr(th, ch):
        a("v_and_b32 v7, 1, v0"); a("v_bfe_u32 v12, v0, 1, 1"); a("v_lshl_or_b32 v7, v12, 2, v7"); a("v_bfe_u32 v12, v0, 2, 1"); a("v_lshl_or_b32 v7, v12, 1, v7")
        a("v_lshlrev_b32 v7, 4, v7")
        a(f"s_lshl_b32 s3, {th}, 13"); a(f"s_add_u32 s3, s3, {TRI}"); a("v_lshl_add_u32 v7, v6, 7, v7"); a("v_add_u32 v7, s3, v7")
        a(f"s_lshl_b32 s58, {ch}, 15")
        a("v_lshrrev_b32 v12, 1, v3"); a("v_and_b32 v13, 1, v3")
        a("v_lshl_add_u32 v14, v12, 14, v7"); a("v_add_u32 v14, s58, v14")
        a("v_lshlrev_b32 v15, 5, v13"); a(f"v_xor_b32 v{E0}, v14, v15"); a(f"v_xor_b32 v{E1}, 16, v{E0}")
        a(f"v_xor_b32 v{E2}, 96, v14"); a(f"v_lshl_add_u32 v{E2}, v13, 3, v{E2}")
    def phi_addr(base):
        a("v_lshrrev_b32 v7, 1, v5")
        a("v_mul_u32_u24 v12, 640, v7"); a("v_lshl_add_u32 v13, v3, 2, v4"); a("v_mul_u32_u24 v13, 40, v13"); a(f"v_add3_u32 v12, v12, v13, {base}")
        a("v_mul_u32_u24 v13, 1440, v7"); a("v_mul_u32_u24 v14, 40, v4"); a(f"v_add3_u32 v13, v13, v14, {base}")
        a("v_bfe_u32 v7, v0, 3, 1"); a("v_add_u32 v14, -1, v7"); a("v_not_b32 v15, v14")
        a("v_cmp_eq_u32 vcc, v7, v3"); a("v_bfe_i32 v2, v0, 2, 1"); a("v_and_b32 v2, 0x80008000, v2"); a("v_cndmask_b32 v7, 0, -1, vcc")
    def phi_build():
        for T in range(5):
            a(f"ds_read_b64_tr_b16 {vr(PA+4*T,2)}, v12 offset:{160+8*T}"); a(f"ds_read_b64_tr_b16 {vr(PX+2*T,2)}, v13 offset:{8*T}")
        a("s_waitcnt lgkmcnt(0)")
        for T in range(5):
            for q in range(2):
                a(f"v_bitop3_b32 v{PA+4*T+2+q}, v{PA+4*T+q}, v2, v15 bitop3:0x28")
                a(f"v_bitop3_b32 v{PA+4*T+q}, v{PA+4*T+q}, v2, v14 bitop3:0x28")
                a(f"v_bitop3_b32 v{PX+2*T+q}, v{PX+2*T+q}, v2, v7 bitop3:0x28")
    def phi_mm(P, T):
        mm = [f"v_mfma_f32_16x16x32_bf16 {vr(P+4*u,4)}, {vr(PA+4*u,4)}, {vr(T,4)}, 0" for u in range(5)]
        return mm + [f"v_mfma_f32_16x16x16_bf16 {vr(P+4*u,4)}, {vr(PX+2*u,2)}, {vr(T+4,2)}, {vr(P+4*u,4)}" for u in range(5)]
    def ktile(m, P, ins):
        sm = [f"v_mov_b32 v{CP}, v{STAT+4*m+3}"] + softmax_ops(list(range(P, P+20)), PH, CP, TT, npair=STAT+4*m+2)
        slots = [i for i, x in enumerate(sm) if x.startswith(("v_max3", "v_exp"))]
        at = {}
        for q, x in enumerate(ins): at.setdefault(slots[q*len(slots)//len(ins)], []).append(x)
        for idx, x in enumerate(sm):
            a(x)
            for y in at.get(idx, []): a(y)
        a(f"ds_write_b128 v{E0}, {vr(PH,4)} offset:{2048*m}"); a(f"ds_write_b128 v{E1}, {vr(PH+4,4)} offset:{2048*m}"); a(f"ds_write_b64 v{E2}, {vr(PH+8,2)} offset:{2048*m}")
    def qsetup():
        ohead(54)
        a(f"s_and_b32 s3, s{sJR}, 1"); a("s_cmp_lt_u32 s57, 4"); a("s_cselect_b32 s3, s3, 0")
        a(f"s_and_b32 s55, s{sX}, 6"); a("s_add_u32 s55, s55, s3"); a(f"s_lshl3_add_u32 s55, s55, s{sWV}")
        a("s_lshl_b32 s3, s54, 6"); a("s_add_u32 s3, s3, s55"); a("s_mul_i32 s59, s3, 1280"); a(f"s_add_u32 s59, s59, {WS_Q}")
        a("s_and_b32 s53, s55, 60"); a("s_lshr_b32 s3, s54, 3"); a("s_add_u32 s53, s53, s3"); a("s_lshl_b32 s53, s53, 7"); a(f"s_add_u32 s53, s53, {WS_FQ}")
        a("v_lshlrev_b32 v7, 4, v0"); a("v_and_b32 v8, 31, v0"); a("v_lshlrev_b32 v9, 3, v8")
    qloads = [f"buffer_load_dwordx4 {vr(QF,4)}, v7, {WS}, s59 offen sc1", f"buffer_load_dwordx2 {vr(QF+4,2)}, v9, {WS}, s59 offen offset:1024 sc1"]
    fload = f"v_mov_b32 v253, 0\ns_mov_b64 exec, 1\nbuffer_atomic_or v253, off, {WS}, s53 sc0 sc1\ns_mov_b64 exec, -1"
    a("s_cmp_ge_u32 s2, 256"); a("s_cbranch_scc1 L_end")
    for r, off in ((rX, 0), (rW, 8), (rWS, 88), (rPHI, 16), (rWO, 24), (rOUT, 72), (rDBG, 80)):
        a(f"s_load_dwordx2 s[{r}:{r+1}], s[0:1], {off}")
    a.stamp(0)
    a("v_lshrrev_b32 v1, 6, v0"); a("v_and_b32 v0, 63, v0")
    a(f"s_lshr_b32 s{sJ}, s2, 3"); a(f"v_readfirstlane_b32 s{sWV}, v1")
    a(f"s_and_b32 s{sX}, s2, 7"); a(f"s_add_u32 s{sJR}, s{sJ}, 24"); a(f"s_and_b32 s{sJR}, s{sJR}, 31")
    if cpf:
        a(f"s_cmp_eq_u32 s{sWV}, 0"); a("s_cbranch_scc0 L_nopf")
        a("s_getpc_b64 s[96:97]"); a.label("L_pc")
        a("s_mov_b32 s98, L_end-L_pc"); a("s_mov_b32 s99, 0x20000")
        a(f"s_and_b32 s3, s{sJ}, 3"); a("s_lshl_b32 s3, s3, 13"); a("v_lshlrev_b32 v1, 7, v0")
        a("buffer_load_dword v255, v1, s[96:99], s3 offen")
        a.label("L_nopf")
    def srds():
        a.srdw(rWS, WS_BYTES); a.srdw(rPHI, 32*800); a.srdw(rWO, 0 if nowo else D*D*2); a.srdw(rOUT, S*D*2); a.srdw(rDBG, 256)
        a(f"s_mov_b32 s{sSENT}, {SENT:#x}")
    a.srdw(rX, S*D*2); a.srdw(rW, D*3*D*2)
    a(f"s_cmp_ge_u32 s{sJR}, 24"); a("s_cbranch_scc1 L_helper")
    a(f"s_lshr_b32 s54, s{sX}, 1"); a(f"s_and_b32 s3, s{sJR}, 3"); a("s_lshl2_add_u32 s54, s54, s3"); a(f"s_lshr_b32 s57, s{sJR}, 2")
    def ohead(dst):
        a(f"s_lshr_b32 s{dst}, s{sJR}, 1"); a(f"s_sub_u32 s3, s{sJR}, 8"); a("s_cmp_lt_u32 s57, 4"); a(f"s_cselect_b32 s{dst}, s{dst}, s3")
        a(f"s_and_b32 s3, s{sX}, 1"); a(f"s_lshl4_add_u32 s{dst}, s3, s{dst}")
    a(f"s_cmp_lt_u32 s{sWV}, 4"); a("s_cbranch_scc0 L_loader")
    a("s_setprio 3")
    a.srdw(rPHI, 32*800)
    ohead(59)
    a("s_lshl2_add_u32 s3, s3, s57"); a(f"s_and_b32 s60, s{sWV}, 1"); a("s_lshl1_add_u32 s3, s3, s60"); a("s_mul_i32 s58, s3, 1600")
    a(f"s_lshl_b32 s65, s{sWV}, 11"); a("s_mov_b32 m0, s65"); a("v_lshlrev_b32 v2, 4, v0"); a("v_lshlrev_b32 v3, 2, v0")
    a("s_mul_i32 s59, s59, 800"); a(f"s_lshl_b32 s3, s{sWV}, 8"); a("s_add_u32 s59, s59, s3")
    a("s_waitcnt lgkmcnt(0)")
    a(f"buffer_load_dwordx4 v2, s[{rPHI}:{rPHI+3}], s58 offen lds")
    a(f"buffer_load_dwordx4 v2, s[{rPHI}:{rPHI+3}], s58 offen offset:1024 lds")
    a(f"s_add_u32 m0, s3, {L_PHIO}")
    a(f"s_cmp_eq_u32 s{sJR}, 16")
    a(f"buffer_load_dword v3, s[{rPHI}:{rPHI+3}], s59 offen lds")
    a("s_cbranch_scc0 L_mfma")
    a.srdw(rWS, WS_BYTES)
    for q in range(4): a(f"v_mov_b32 v{12+q}, {SENT:#x}")
    a(f"s_lshl_b32 s3, s{sX}, 13"); a("s_add_u32 s3, s3, s65")
    for i in range(2): a(f"buffer_store_dwordx4 v[12:15], v2, {WS}, s3 offen offset:{1024*i} sc1")
    a("s_branch L_mfma")

    a.label("L_loader")
    a("s_setprio 2")
    a(f"s_and_b32 s3, s{sX}, 1"); a("s_mul_i32 s55, s3, 640")
    a("s_mul_i32 s58, s57, 160"); a("s_sub_u32 s59, s58, 1280")
    a("s_cmp_lt_u32 s57, 4")
    a("s_cselect_b32 s56, 1120, 0"); a("s_cselect_b32 s59, 1280, s59")
    a("s_add_u32 s55, s55, s58"); a("s_add_u32 s55, s55, s59")
    a(f"s_sub_u32 s60, s{sWV}, 4")
    XV = [16, 17, 18, 19]; WV = [20, 21, 22, 23, 24]; WOV = [2, 3, 4, 5, 6]
    a("v_lshrrev_b32 v8, 3, v0"); a("v_and_b32 v9, 7, v0")
    a("v_bfe_u32 v10, v0, 4, 1"); a("v_lshrrev_b32 v11, 5, v0"); a("v_lshl_add_u32 v10, v10, 1, v11")
    a("s_lshl2_add_u32 s3, s54, s60"); a("s_mul_i32 s3, s3, 40960")
    a("v_mul_u32_u24 v8, 1280, v8"); a("v_xor_b32 v9, v9, v10"); a("v_add_u32 v8, s3, v8")
    a(f"v_lshl_add_u32 v{XV[0]}, v9, 4, v8"); a(f"v_xor_b32 v11, 64, v{XV[0]}")
    a(f"v_add_u32 v{XV[1]}, {10240-1024}, v11"); a(f"v_add_u32 v{XV[2]}, {20480-2048}, v{XV[0]}"); a(f"v_add_u32 v{XV[3]}, {30720-3072}, v11")
    a("s_mul_i32 s3, s60, 61440"); a("s_add_u32 s3, s3, s55")
    a("s_lshl_b32 s61, s60, 12")
    a(f"s_mul_i32 s62, s60, {WREG}"); a("s_add_u32 s62, s62, 16384")
    a("s_movk_i32 s63, 3520")
    a("v_lshl_add_u32 v12, v0, 4, s3"); a("v_mul_u32_u24 v13, 6554, v0")
    for i in range(5):
        if i: a(f"v_add_u32 v13, {64*6554}, v13")
        a("v_lshrrev_b32 v10, 17, v13"); a("v_bfe_u32 v9, v13, 16, 1")
        a("v_mad_u32_u24 v8, v10, s63, v12"); a(f"v_mad_u32_u24 v{WV[i]}, v9, s56, v8")
    a(f"v_add_u32 v{WV[4]}, 4096, v{WV[4]}")
    if rot: a(f"s_xor_b32 s71, s{sJR}, s57"); a("s_and_b32 s71, s71, 1")
    else: a("s_mov_b32 s71, 0")
    a("v_lshlrev_b32 v7, 4, v0")
    a("s_waitcnt lgkmcnt(0)")
    if cut: a.stamp(10)
    vm = VM(a)
    def issue(c):
        slot = RING + (c % 3)*SLOT
        a(f"s_xor_b32 s66, s71, {c}")
        a(f"s_add_u32 m0, s61, {slot}")
        a("s_lshl_b32 s65, s66, 7"); a("s_mul_i32 s66, s66, 245760")
        for i in range(4): vm(f"buffer_load_dwordx4 v{XV[i]}, s[{rX}:{rX+3}], s65 offen offset:{1024*i} lds", c)
        a(f"s_add_u32 m0, s62, {slot}")
        for i in range(4): vm(f"buffer_load_dwordx4 v{WV[i]}, s[{rW}:{rW+3}], s66 offen offset:{1024*i} lds", c)
        a("s_add_u32 m0, m0, 4096")
        vm(f"buffer_load_dwordx4 v{WV[4]}, s[{rW}:{rW+3}], s66 offen lds", c)
    def bar(c, *extra, lgkm=False):
        if vm.count(c, *extra, opt=True) != vm.count(c, *extra):
            lb = a.newlab("L_bw")
            a("s_cmp_lt_u32 s57, 4"); a(f"s_waitcnt vmcnt({vm.count(c, *extra, opt=True)})"); a(f"s_cbranch_scc0 {lb}"); vm.wait(c, *extra); a.label(lb)
        else: vm.wait(c, *extra, lgkm=lgkm)
        a("s_barrier")
        if cut and c < 8: a.stamp(c + 2)
    issue(0); issue(1)
    srds()
    a.readyaddr(43)
    lanefields()
    a("s_lshr_b32 s64, s60, 1"); a("s_and_b32 s53, s60, 1")
    kepi_addr("s64", "s53")
    a("s_lshl_b32 s3, s64, 10"); a(f"s_add_u32 s3, s3, {L_STAT}"); a("v_lshl_add_u32 v206, v6, 4, s3")
    a("s_lshl_b32 s64, s60, 11")
    phi_addr("s64")
    bar(0)
    for c in range(2, 10):
        issue(c)
        if c == 2: phi_build(); a("v_lshlrev_b32 v7, 4, v0")
        if c == 5: vm(a.readyload(42, 43), "rdy")
        if c == 8: a.readycheck(42, 43)
        if c < 9: bar(c - 1)
    def wo_addr():
        a("v_mul_u32_u24 v13, 6554, v0"); a("v_lshlrev_b32 v12, 4, v0"); a("s_movk_i32 s3, 1120")
        for i in range(5):
            if i: a(f"v_add_u32 v13, {64*6554}, v13")
            a("v_lshrrev_b32 v10, 16, v13"); a(f"v_mad_u32_u24 v{WOV[i]}, v10, s3, v12")
        a(f"v_add_u32 v{WOV[4]}, 4096, v{WOV[4]}")
        a(f"s_and_b32 s67, s{sJ}, 7"); a("s_mul_i32 s67, s67, 160")
        a("s_mul_i32 s68, s60, 40960"); a("s_add_u32 s68, s68, s67")
        a("s_mul_i32 s69, s60, 5120")
        a(f"s_bfe_u32 s71, s{sJ}, 0x10003")
    def unit(srd, soff, m0, tag="wo"):
        a(f"s_mov_b32 m0, {m0}")
        for i in range(4): vm(f"buffer_load_dwordx4 v{WOV[i]}, s[{srd}:{srd+3}], {soff} offen offset:{1024*i} lds", tag)
        a("s_add_u32 m0, m0, 4096")
        vm(f"buffer_load_dwordx4 v{WOV[4]}, s[{srd}:{srd+3}], {soff} offen lds", tag)
    def wo_round(r):
        a(f"s_xor_b32 s3, s71, {r}"); a("s_mul_i32 s65, s3, 163840"); a("s_mul_i32 s66, s3, 20480"); a("s_add_u32 s65, s65, s68"); a("s_add_u32 s66, s66, s69")
        unit(rWO, "s65", "s66")
    def wo_list(r):
        L = [f"s_xor_b32 s3, s71, {r}\ns_mul_i32 s65, s3, 163840\ns_mul_i32 s66, s3, 20480\ns_add_u32 s65, s65, s68\ns_add_u32 m0, s66, s69"]
        L += [f"buffer_load_dwordx4 v{WOV[i]}, s[{rWO}:{rWO+3}], s65 offen offset:{1024*i} lds" for i in range(4)]
        L[-1] += "\ns_add_u32 m0, m0, 4096"
        return L + [f"buffer_load_dwordx4 v{WOV[4]}, s[{rWO}:{rWO+3}], s65 offen lds"]
    def wo_last():
        a("s_add_u32 s65, s68, 655360"); a("s_add_u32 s66, s69, 81920")
        unit(rWO, "s65", "s66")
        lb = a.newlab("L_res")
        a(f"s_cmp_lt_u32 s{sWV}, 6"); a(f"s_cbranch_scc0 {lb}")
        a(f"s_lshr_b32 s3, s{sJ}, 3"); a(f"s_lshl2_add_u32 s3, s{sX}, s3"); a("s_mul_i32 s65, s3, 81920"); a("s_add_u32 s65, s65, s68")
        a(f"s_add_u32 s66, s69, {L_RES}")
        unit(rX, "s65", "s66")
        a.label(lb)
    wo_addr()
    a("v_and_b32 v28, 31, v0"); a("s_lshl2_add_u32 s3, s54, s60"); a("s_lshl_b32 s3, s3, 7"); a(f"s_add_u32 s3, s3, {WS_SM}")
    a("v_lshl_add_u32 v29, v28, 2, s3")
    a("s_lshr_b32 s58, s60, 1"); a("s_and_b32 s59, s60, 1")
    a("s_add_u32 s3, s56, 160"); a("s_mul_i32 s3, s3, s58"); a("s_add_u32 s3, s3, s55"); a("s_lshl_b32 s3, s3, 1")
    a("s_mul_i32 s53, s59, 7680"); a("s_add_u32 s3, s3, s53"); a(f"s_add_u32 s3, s3, {WS_CS}")
    a("v_min_u32 v31, 39, v0"); a("v_lshl_add_u32 v30, v31, 3, s3")
    statloads = [f"buffer_load_dword v32, v29, {WS}, 0 offen sc1", f"buffer_load_dwordx2 v[34:35], v30, {WS}, 0 offen sc1"]
    bar(8)
    for l in statloads: vm(l, "st")
    if wot:
        a(f"s_lshl2_add_u32 s3, s{sJR}, s60"); a("s_lshl_b32 s3, s3, 13"); a("v_lshlrev_b32 v26, 7, v0")
        vm(f"buffer_load_dword v27, v26, s[{rWO}:{rWO+3}], s3 offen", "wo")
    else: wo_round(0)
    bar(9, "st")
    a.stamp(1)
    if cut: a("s_barrier"); a("s_branch L_fin")
    a.recheck(statloads, [32, 34, 35], 41)
    a("v_and_b32 v38, 0xffff0000, v32"); a("v_rcp_f32 v38, v38")
    a("v_and_b32 v36, 0xffff, v32"); a("v_lshl_or_b32 v36, v36, 16, v36"); a("v_xor_b32 v36, 0x80008000, v36")
    a("v_lshrrev_b32 v37, 16, v32"); a(f"v_mul_f32 v39, {LOG2E:#x}, v38")
    a("s_lshl_b32 s3, s60, 9"); a(f"s_add_u32 s3, s3, {L_STAT}"); a("v_lshl_add_u32 v28, v28, 4, s3")
    a("ds_write_b128 v28, v[36:39]")
    a("s_mul_i32 s3, s59, 640"); a("s_mul_i32 s53, s58, 320"); a("s_add_u32 s3, s3, s53"); a(f"s_add_u32 s3, s3, {L_CS}")
    a("v_lshl_add_u32 v28, v31, 3, s3"); a("ds_write_b64 v28, v[34:35]")
    a("s_mul_i32 s3, s60, 160"); a(f"s_add_u32 s3, s3, {L_CS+1280}"); a("v_lshl_add_u32 v28, v31, 2, s3"); a("v_mov_b32 v33, 0")
    a("ds_write_b32 v28, v33")
    wo_round(0 if wot else 1)
    a("s_waitcnt lgkmcnt(0)"); a.stamp(2); a("s_barrier")
    a("s_setprio 0")
    tload = f"buffer_load_dwordx2 v[254:255], off, {WS}, s70 sc1"
    a(f"s_mov_b32 s70, {WS_TOP}")
    a("s_cmp_lt_u32 s57, 4"); a("s_cbranch_scc0 L_lq")
    for m in (2, 3): a(f"ds_read_b128 {vr(STAT+4*m,4)}, v206 offset:{256*m}")
    wo_round(1 if wot else 2)
    qsetup()
    a("s_barrier")
    for m in (2, 3):
        T = 136 + 6*(m-2)
        a(f"ds_read_b128 {vr(T,4)}, v{E0} offset:{2048*m}"); a(f"ds_read_b64 {vr(T+4,2)}, v{E2} offset:{2048*m}")
    a("s_waitcnt lgkmcnt(2)")
    for x in phi_mm(Pb[0], 136): a(x)
    a("s_waitcnt lgkmcnt(0)")
    ktile(2, Pb[0], phi_mm(Pb[1], 142) + (wo_list(2) if wot else []) + wo_list(3))
    a("s_add_u32 s65, s68, 655360")
    a(f"s_lshr_b32 s3, s{sJ}, 3"); a(f"s_lshl2_add_u32 s3, s{sX}, s3"); a("s_mul_i32 s66, s3, 81920"); a("s_add_u32 s66, s66, s68")
    a(f"s_cmp_lt_u32 s{sWV}, 6"); a(f"s_cselect_b32 s66, s66, {OOB:#x}")
    st = [f"buffer_load_dwordx4 {vr(WST+4*i,4)}, v{WOV[i]}, s[{rWO}:{rWO+3}], s65 offen offset:{1024*(i%4)}" for i in range(5)]
    st += [f"buffer_load_dwordx4 {vr(WST+20+4*i,4)}, v{WOV[i]}, s[{rX}:{rX+3}], s66 offen offset:{1024*(i%4)}" for i in range(5)]
    ktile(3, Pb[1], [tload] + st + [fload])
    a("s_waitcnt vmcnt(11)")
    def topcheck():
        a.recheck([tload], [254, 255], OT, sleep=8)
        a(f"v_readfirstlane_b32 s{sK1}, v254"); a(f"v_readfirstlane_b32 s{sK2}, v255")
    topcheck()
    a.stamp(3)
    a("s_waitcnt lgkmcnt(0)"); a("s_barrier")
    a("s_waitcnt vmcnt(0)")
    a.recheck([fload], [253], 41)
    for l in qloads: a(l)
    a("s_mov_b32 s63, 1")
    a("s_branch L_phi")
    a.label("L_lq")
    a(f"s_and_b32 s3, s{sX}, 1"); a("s_lshl1_add_u32 s3, s3, s57"); a("s_lshl2_add_u32 s3, s54, s3"); a("s_lshl_b32 s3, s3, 7"); a(f"s_add_u32 s3, s3, {WS_FQ - 512}")
    a("s_cmp_eq_u32 s60, 0"); a(f"s_cselect_b32 s3, s3, {OOB:#x}")
    a.stamp(3)
    a("s_barrier")
    a("s_mov_b64 exec, 1"); a(f"buffer_store_dword v0, off, {WS}, s3 sc1"); a("s_mov_b64 exec, -1")
    if wot: wo_round(1)
    wo_round(2)
    a("s_branch L_ophase")

    a.label("L_mfma")
    a("s_setprio 0")
    srds()
    a(f"s_and_b32 s60, s{sWV}, 1"); a(f"s_lshr_b32 s61, s{sWV}, 1")
    lanefields()
    a(f"v_mul_u32_u24 v7, {WREG}, v3"); a("v_mul_u32_u24 v12, 320, v4"); a("s_movk_i32 s3, 16384"); a("v_add3_u32 v7, v7, v12, s3")
    a("s_mul_i32 s66, s60, 80"); a("s_sub_u32 s67, 240, s66")
    a("v_lshl_add_u32 v12, v5, 3, v7"); a("v_add_u32 v9, s66, v12"); a("v_add_u32 v10, s67, v12")
    a("v_mov_b32 v12, s66"); a("v_mov_b32 v13, s67"); a("v_cmp_lt_u32 vcc, 1, v5"); a("v_and_b32 v14, 1, v5"); a("v_mul_u32_u24 v14, 72, v14")
    a("v_cndmask_b32 v15, v12, v13, vcc"); a("v_add3_u32 v11, v7, v15, v14")
    a("v_and_b32 v7, 2, v0"); a("v_bfe_u32 v14, v0, 2, 1"); a("v_or_b32 v7, v7, v14"); a("v_bfe_u32 v14, v0, 3, 1"); a("v_lshl_add_u32 v7, v14, 2, v7")
    a("v_lshlrev_b32 v14, 1, v3"); a("v_xor_b32 v7, v7, v14"); a("v_lshlrev_b32 v7, 4, v7"); a("v_lshl_add_u32 v7, v6, 7, v7")
    a("s_lshl_b32 s3, s61, 13"); a("v_add_u32 v8, s3, v7")
    a(f"v_add_u32 v{XA[0]}, {RING}, v8"); a(f"v_add_u32 v{MK}, {RING}, v9"); a(f"v_add_u32 v{MV}, {RING}, v10"); a(f"v_add_u32 v{EX}, {RING}, v11")
    a(f"v_xor_b32 v{XA[1]}, 16, v{XA[0]}")
    a("v_min_u32 v7, 2, v3"); a("v_mul_u32_u24 v7, 640, v7"); a(f"v_add_u32 v7, {L_CS}, v7")
    a("v_lshl_add_u32 v14, v6, 2, v7"); a("v_lshl_add_u32 v173, v12, 1, v14"); a("v_lshl_add_u32 v174, v13, 1, v14")
    a("v_cmp_lt_u32 vcc, 1, v4"); a("v_and_b32 v14, 1, v4"); a("v_mul_u32_u24 v14, 144, v14")
    a("v_cndmask_b32 v15, v12, v13, vcc"); a("v_lshl_add_u32 v15, v15, 1, v14"); a("v_lshl_add_u32 v14, v5, 2, v7"); a("v_add_u32 v175, v14, v15")
    a("s_lshl_b32 s3, s61, 10"); a(f"s_add_u32 s3, s3, {L_STAT}"); a("v_lshl_add_u32 v206, v6, 4, s3")
    for r in range(0, 80, 2): a(f"v_mov_b64 {vr(ACC+r,2)}, 0")
    for r in range(0, 36, 2): a(f"v_mov_b64 {vr(SET[1]+r,2)}, 0")
    for t in range(5): a(f"v_mov_b32 v{AUG+2*t+1}, 0")
    kepi_addr("s61", "s60")
    a("s_sub_u32 s59, 32768, s58")
    a("v_add_u32 v14, s59, v7"); a("v_lshlrev_b32 v15, 4, v12"); a(f"v_xor_b32 v{E3}, 64, v14"); a(f"v_xor_b32 v{E3}, v{E3}, v15"); a(f"v_lshl_add_u32 v{E3}, v13, 3, v{E3}")
    a("v_xor_b32 v14, 112, v14"); a("v_lshl_add_u32 v14, v13, 14, v14"); a("v_xor_b32 v12, 1, v12"); a(f"v_lshl_add_u32 v{E4}, v12, 3, v14")
    a("v_lshrrev_b32 v7, 5, v0"); a("v_lshl_add_u32 v12, v7, 3, v4"); a("v_lshlrev_b32 v12, 7, v12")
    a("v_and_b32 v13, 1, v4"); a("v_lshrrev_b32 v14, 1, v4"); a("v_lshl_or_b32 v13, v14, 2, v13"); a("v_lshl_or_b32 v12, v13, 4, v12")
    a(f"s_lshl_b32 s3, s{sWV}, 14"); a(f"s_add_u32 s3, s3, {TRI}"); a("v_add_u32 v12, s3, v12")
    a("v_and_b32 v13, 1, v5"); a("v_lshrrev_b32 v14, 1, v5"); a("v_and_b32 v15, 1, v3")
    a(f"v_lshl_or_b32 v{KA0}, v13, 1, v15"); a(f"v_lshlrev_b32 v{KA0}, 4, v{KA0}"); a(f"v_xor_b32 v{KA0}, v{KA0}, v12"); a(f"v_lshl_add_u32 v{KA0}, v14, 3, v{KA0}")
    a(f"v_xor_b32 v{KA1}, 96, v12"); a(f"v_lshl_add_u32 v{KA1}, v13, 3, v{KA1}")
    a("s_cmp_eq_u32 s60, 0"); a("s_mov_b32 s3, 0xfffeba98"); a("s_cselect_b32 s3, 0xfffba98e, s3")
    a("v_lshl_add_u32 v13, v15, 2, v5"); a("v_lshlrev_b32 v13, 2, v13"); a("v_bfe_u32 v13, s3, v13, 4"); a("v_lshlrev_b32 v13, 3, v13")
    a(f"v_xor_b32 v{KB}, v13, v12")
    for r in (KB, KA0, KA1): a(f"v_xor_b32 v{r+1}, 32, v{r}")
    a("v_and_b32 v13, 31, v0"); a("v_mul_u32_u24 v14, 21, v7"); a("v_add_u32 v14, v14, v13"); a("v_cmp_lt_u32 vcc, 20, v13")
    a(f"v_mov_b32 v15, {OOB:#x}"); a(f"v_lshlrev_b32 v{KP}, 4, v14"); a(f"v_lshlrev_b32 v{KP+1}, 3, v14")
    a(f"v_cndmask_b32 v{KP}, v{KP}, v15, vcc"); a(f"v_cndmask_b32 v{KP+1}, v{KP+1}, v15, vcc")
    a(f"s_and_b32 s3, s{sX}, 1"); a("s_lshl2_add_u32 s3, s3, s57"); a(f"s_lshl2_add_u32 s3, s3, s{sWV}"); a("s_lshl4_add_u32 s3, s3, s54")
    a("s_mul_i32 s62, s3, 1792"); a(f"s_add_u32 s62, s62, {WS_KV}")
    phi_addr("s65")
    a("s_mov_b32 s68, 0"); a(f"s_mov_b32 s69, {RING}")
    a("s_waitcnt vmcnt(0)")
    a(f"s_cmp_eq_u32 s{sJR}, 16"); a("s_cbranch_scc0 L_nb")
    a(f"s_lshl2_add_u32 s3, s{sX}, s{sWV}"); a("s_lshl_b32 s3, s3, 3"); a("v_mov_b32 v96, 1")
    a("s_mov_b64 exec, 1"); a(f"buffer_store_dword v96, off, s[{rDBG}:{rDBG+3}], s3 sc1"); a("s_mov_b64 exec, -1")
    a.label("L_nb")
    phi_build()
    def reads(s, st):
        X = [f"ds_read_b128 {vr(st+4*m,4)}, v{XA[s]} offset:{2048*m}" for m in range(4)]
        Wr = []
        for t in range(5):
            for j in range(2):
                reg = [MK, MK, MV, MV, EX][t]; off = s*2560 + j*1280 + [8, 40, 8, 40, 0][t]
                Wr.append(f"ds_read_b64_tr_b16 {vr(st+16+4*t+2*j,2)}, v{reg} offset:{off}")
        return [X[0]] + Wr[0:2] + X[1:] + Wr[2:]
    def mf(i, st):
        t, m = divmod(i, 4)
        return f"v_mfma_f32_16x16x32_bf16 {vr(ACC+20*m+4*t,4)}, {vr(st+16+4*t,4)}, {vr(st+4*m,4)}, {vr(ACC+20*m+4*t,4)}"
    need = lambda i: (3 + i if i < 4 else 6 + 2*(i//4))
    R0 = reads(0, SET[0]); R1 = reads(1, SET[1])
    seq = [(i, 1) for i in range(20 - defer, 20)] + [(i, 0) for i in range(20)] + [(i, 1) for i in range(20 - defer)]
    fill = [[] for _ in seq]
    k = 0; g = 0
    while k < 14: fill[g] += R0[k:k+2]; k += 2; g += 1
    g = max(g, defer); k = 0
    while k < 14: fill[g].append(R1[k]); k += 1; g += 1
    fill[g] += [f"s_add_u32 s69, s69, {SLOT}", f"s_cmp_eq_u32 s69, {RING_END}", f"s_cselect_b32 s69, {RING}, s69"]
    for q, h in enumerate([f"v_add_u32 v{XA[0]}, s69, v8", f"v_add_u32 v{MK}, s69, v9", f"v_add_u32 v{MV}, s69, v10", f"v_add_u32 v{EX}, s69, v11", f"v_xor_b32 v{XA[1]}, 16, v{XA[0]}"]):
        fill[g+1+q].append(h)
    fill[g+6] += ["s_add_u32 s68, s68, 1", "s_cmp_lt_u32 s68, 10"]
    a.stampw(1)
    a.label("L_mloop")
    a("s_barrier")
    issued = 0; done = 0
    for idx, (i, st) in enumerate(seq):
        if idx >= defer:
            n = need(i) + (14 if st == 1 else 0)
            if idx == len(seq) - 1: n = 28
            if n > done: a(f"s_waitcnt lgkmcnt({min(15, issued - n)})"); done = n
        a(mf(i, SET[st]))
        for f in fill[idx]:
            if f.startswith("ds_"): issued += 1
            a(f)
    a("s_cbranch_scc1 L_mloop")
    a("s_barrier")
    RA = [f"ds_read_b128 {vr(STAT+4*m,4)}, v206 offset:{256*m}" for m in range(4)]
    RA += [f"ds_read_b32 v{AUG+2*t}, v{[173,173,174,174,175][t]} offset:{[16,80,16,80,0][t]}" for t in range(5)]
    k = 0
    for i in range(20 - defer, 20):
        a(mf(i, SET[1]))
        for r in RA[k:k+2]: a(r)
        k += 2
    for r in RA[k:]: a(r)
    a("s_waitcnt lgkmcnt(0)")
    aug = lambda m: [f"v_mfma_f32_16x16x16_bf16 {vr(ACC+20*m+4*t,4)}, {vr(AUG+2*t,2)}, {vr(STAT+4*m,2)}, {vr(ACC+20*m+4*t,4)}" for t in range(5)]
    for x in aug(2) + aug(3): a(x)
    a.stampw(2)
    if cut: a("s_branch L_fin")
    a("s_cmp_lt_u32 s57, 4"); a("s_cbranch_scc0 L_qepi")

    KT = [136, 142, 148, 166]; VT = [8, 12]
    def kcv(m): return [f"v_cvt_pk_bf16_f32 v{KT[m]+q}, v{ACC+20*m+4*t+2*h}, v{ACC+20*m+4*t+2*h+1}" for q, (t, h) in enumerate([(0,0),(0,1),(1,0),(1,1),(4,0),(4,1)])]
    def vwork(m):
        A = ACC + 20*m; T = VT[m & 1]; X = KT[m] + 4
        return [f"v_cvt_pk_bf16_f32 v{T+q}, v{A+8+2*q}, v{A+9+2*q}" for q in range(4)] + [
                f"v_cndmask_b32 v{X}, v{X}, v{STAT+4*m+1}, vcc", f"v_cndmask_b32 v{X+1}, v{X+1}, v{AUG+1}, vcc",
                f"ds_write_b64 v{E3}, {vr(T,2)} offset:{2048*m}", f"ds_write_b64 v{E3}, {vr(T+2,2)} offset:{16384+2048*m}", f"ds_write_b64 v{E4}, {vr(X,2)} offset:{2048*m}"]
    def weave(main, fillers, n):
        k = 0
        for x in main:
            a(x)
            for y in fillers[k:k+n]: a(y)
            k += n
        for y in fillers[k:]: a(y)
    a("v_cmp_gt_u32 vcc, 32, v0")
    hand = lambda m: [f"ds_write_b128 v{E0}, {vr(KT[m],4)} offset:{2048*m}", f"ds_write_b64 v{E2}, {vr(KT[m]+4,2)} offset:{2048*m}"]
    weave(aug(0) + aug(1), kcv(2) + hand(2) + kcv(3) + hand(3), 2)
    for x in kcv(0): a(x)
    a("s_waitcnt lgkmcnt(0)"); a("s_barrier")
    weave(phi_mm(Pb[0], KT[0]), kcv(1) + vwork(2) + vwork(3), 2)
    ktile(0, Pb[0], phi_mm(Pb[1], KT[1]) + vwork(0))
    for x in vwork(1): a(x)
    qsetup()
    ktile(1, Pb[1], [""]*3 + [fload])
    a("s_waitcnt lgkmcnt(0)"); a("s_barrier")
    a.stampw(3)
    D0, D1, FR = 96, 112, 128
    def kvreads(ks):
        f = FR + 12*(ks % 3)
        return [f"ds_read_b64_tr_b16 {vr(f+4*o+2*j,2)}, v{[KB,KA0,KA1][o]+j} offset:{2048*ks+512*j}" for o in range(3) for j in range(2)]
    for x in kvreads(0) + kvreads(1): a(x)
    a("s_waitcnt vmcnt(0)")
    for l in qloads: a(l)
    for ks in range(8):
        f = FR + 12*(ks % 3)
        a(f"s_waitcnt lgkmcnt({6 if ks < 7 else 0})")
        a(f"v_mfma_f32_32x32x16_bf16 {vr(D0,16)}, {vr(f+4,4)}, {vr(f,4)}, {vr(D0,16) if ks else 0}")
        if ks < 6:
            for x in kvreads(ks+2)[:3]: a(x)
        a(f"v_mfma_f32_32x32x16_bf16 {vr(D1,16)}, {vr(f+8,4)}, {vr(f,4)}, {vr(D1,16) if ks else 0}")
        if ks < 6:
            for x in kvreads(ks+2)[3:]: a(x)
    for q in range(4): a(f"v_cvt_pk_bf16_f32 v{FR+q}, v{D0+2*q}, v{D0+2*q+1}")
    a(f"buffer_store_dwordx4 {vr(FR,4)}, v{KP}, {WS}, s62 offen sc1")
    for q in range(4, 8): a(f"v_cvt_pk_bf16_f32 v{FR+q}, v{D0+2*q}, v{D0+2*q+1}")
    a(f"buffer_store_dwordx4 {vr(FR+4,4)}, v{KP}, {WS}, s62 offen offset:672 sc1")
    for q in range(8, 10): a(f"v_cvt_pk_bf16_f32 v{FR+q}, v{D0+2*q}, v{D0+2*q+1}")
    a(f"buffer_store_dwordx2 {vr(FR+8,2)}, v{KP+1}, {WS}, s62 offen offset:1344 sc1")
    a(f"s_and_b32 s3, s{sX}, 1"); a("s_lshl2_add_u32 s3, s3, s57"); a("s_lshl_b32 s3, s3, 9"); a(f"s_add_u32 s3, s3, {WS_KH}")
    a(f"s_cmp_eq_u32 s{sWV}, 3"); a(f"s_cselect_b32 s3, s3, {OOB:#x}")
    a.cnt_add(4, "s3", 12)
    a(f"v_cmp_eq_u32 vcc, s{sSENT}, v253"); a("s_cbranch_vccnz L_qlate")
    a.label("L_qret")
    a("s_mov_b32 s63, 0")

    a.label("L_phi")
    a.stampw(4)
    a("v_lshrrev_b32 v10, 5, v0"); a("v_bfe_u32 v11, v0, 2, 2"); a("v_bfe_u32 v12, v0, 4, 1"); a("v_bfe_u32 v13, v0, 1, 1"); a("v_lshl_add_u32 v12, v12, 1, v13")
    a("s_bitcmp0_b32 s54, 0"); a(f"s_cselect_b32 s60, 160, 0"); a(f"s_cselect_b32 s61, 0, 640")
    a(f"s_add_u32 s60, s60, {L_PHIO}"); a(f"s_add_u32 s61, s61, {L_PHIO}")
    a("v_mul_u32_u24 v13, 40, v11"); a("v_add_u32 v14, s61, v13"); a("v_mul_u32_u24 v15, 320, v10"); a("v_add3_u32 v13, v13, v15, s60")
    a("v_lshl_add_u32 v15, v12, 3, v13"); a("v_lshl_add_u32 v12, v12, 3, v14")
    a(f"ds_read_b64_tr_b16 {vr(OA,2)}, v15"); a(f"ds_read_b64_tr_b16 {vr(OA+2,2)}, v15 offset:160")
    a(f"ds_read_b64_tr_b16 {vr(OA+4,2)}, v13 offset:32"); a(f"ds_read_b64_tr_b16 {vr(OA+6,2)}, v13 offset:192")
    a(f"ds_read_b64_tr_b16 {vr(OA+8,2)}, v12"); a(f"ds_read_b64_tr_b16 {vr(OA+10,2)}, v14 offset:32")
    a("v_bfe_i32 v12, v0, 2, 1"); a("v_and_b32 v12, 0x80008000, v12"); a("v_add_u32 v13, -1, v10")
    a(f"s_lshl_b32 s3, s{sWV}, 6"); a("v_add_u32 v14, s3, v0"); a("v_cmp_lt_u32 vcc, 419, v14"); a("v_lshlrev_b32 v14, 2, v14"); a(f"v_mov_b32 v15, {OOB:#x}")
    a("v_cndmask_b32 v15, v14, v15, vcc")
    a("s_mul_i32 s60, s54, 28672"); a(f"s_add_u32 s60, s60, {WS_KV}")
    a("v_and_b32 v11, 15, v0")
    a("s_waitcnt lgkmcnt(0)")
    for q in range(8): a(f"v_xor_b32 v{OA+q}, v12, v{OA+q}")
    for q in range(8, 12): a(f"v_bitop3_b32 v{OA+q}, v{OA+q}, v12, v13 bitop3:0x28")
    a("s_waitcnt vmcnt(4)"); a("s_cmp_eq_u32 s63, 0"); a("s_cbranch_scc1 L_phi2"); a("s_waitcnt vmcnt(0)")
    a.label("L_phi2")
    a.stampw(5)
    a(f"v_mfma_f32_32x32x16_bf16 {vr(P0,16)}, {vr(OA,4)}, {vr(QF,4)}, 0")
    a(f"v_mfma_f32_32x32x16_bf16 {vr(P1,16)}, {vr(OA+4,4)}, {vr(QF,4)}, 0")
    a(f"v_mfma_f32_32x32x8_bf16 {vr(P0,16)}, {vr(OA+8,2)}, {vr(QF+4,2)}, {vr(P0,16)}")
    a(f"v_mfma_f32_32x32x8_bf16 {vr(P1,16)}, {vr(OA+10,2)}, {vr(QF+4,2)}, {vr(P1,16)}")
    a(f"v_mov_b32 v12, {LOG2E:#x}")
    for x in softmax_ops(list(range(P0, P0+20)), PHQ, 12, OT): a(x)
    a("s_cmp_lt_u32 s63, 2"); a("s_cbranch_scc0 L_phix")
    a.label("L_kvwait")
    def woaddr():
        a(f"s_lshr_b32 s58, s{sWV}, 2"); a("v_lshrrev_b32 v3, 4, v0"); a("v_bfe_u32 v4, v0, 2, 2"); a("v_and_b32 v5, 3, v0")
        a("s_mul_i32 s3, s58, 51200"); a("v_mul_u32_u24 v12, 160, v4"); a("v_lshl_add_u32 v12, v5, 3, v12"); a("v_add_u32 v12, s3, v12")
        a("v_mul_u32_u24 v13, 3200, v10"); a("v_and_b32 v6, 1, v3"); a("v_mul_u32_u24 v6, 640, v6"); a("v_add3_u32 v6, v6, v13, v12")
        a("v_mul_u32_u24 v13, 3200, v3"); a("v_add_u32 v2, v13, v12")
    def woreads(st, dst):
        R = []
        for t in range(5):
            for j in range(2):
                if st < 8: R.append(f"ds_read_b64_tr_b16 {vr(dst+4*t+2*j,2)}, v6 offset:{6400*st+1280*j+32*t}")
                else: R.append(f"ds_read_b64_tr_b16 {vr(dst+4*t+2*j,2)}, v2 offset:{2560+25600*(st-8)+12800*j+32*t}")
        return R
    woaddr()
    a(f"v_add_u32 v14, {L_KVR}, v14")
    a("v_min_u32 v12, 20, v8"); a("v_mul_u32_u24 v13, 21, v10"); a("v_add_u32 v12, v12, v13")
    a(f"s_mov_b32 s3, {L_KVR}"); a("v_lshl_add_u32 v21, v12, 3, s3"); a("v_lshl_add_u32 v20, v12, 4, s3")
    a("v_bfe_u32 v12, v0, 4, 1"); a("v_mul_u32_u24 v12, 20480, v12")
    a("v_lshl_add_u32 v13, v11, 3, v12"); a("v_lshl_add_u32 v12, v11, 4, v12"); a("v_lshl_add_u32 v12, v10, 8, v12")
    a("v_cmp_gt_u32 vcc, 32, v0"); a(f"v_mov_b32 v16, {OOB:#x}")
    a("s_mul_i32 s65, s55, 40960"); a(f"s_add_u32 s65, s65, {WS_O}"); a("s_lshl_b32 s3, s54, 7"); a("s_add_u32 s66, s65, s3"); a("s_add_u32 s66, s66, 16384")
    a("v_cndmask_b32 v13, v16, v13, vcc")
    a("s_lshl2_add_u32 s65, s3, s65")
    a("s_mov_b32 s62, 0x00003f80"); a("s_mov_b32 s64, 0x3f800000")
    a(f"s_cmp_eq_u32 s{sWV}, 7"); a("s_cbranch_scc1 L_kw7")
    a("s_mov_b32 s53, 0")
    a("s_barrier")
    a.stampw(12)
    a.label("L_kfull")
    a("s_mov_b32 s61, s60")
    for p in range(16):
        a(f"buffer_load_dword v{KL+p}, v15, {WS}, s61 offen offset:{1792*(p&1)} sc1")
        if p & 1 and p < 15: a("s_add_u32 s61, s61, 3584")
    a("s_cmp_eq_u32 s63, 1"); a("s_cbranch_scc1 L_stage")
    a.label("L_stageret")
    a("v_mov_b64 v[16:17], 0"); a("v_mov_b64 v[18:19], 0"); a(f"v_mov_b32 v{OT}, 0")
    for p in range(0, 16, 2):
        if p % 4 == 0: a(f"s_waitcnt vmcnt({12-p})")
        for q in range(2): a(f"v_dot2c_f32_bf16 v{16+2*q}, s62, v{KL+p+q}"); a(f"v_dot2c_f32_bf16 v{17+2*q}, s64, v{KL+p+q}")
        a(f"v_max3_u32 v{OT}, v{OT}, v{KL+p}, v{KL+p+1}")
    a(f"v_cmp_eq_u32 vcc, s{sSENT}, v{OT}"); a("s_cbranch_vccnz L_kagain")
    a("v_pk_add_f32 v[16:17], v[16:17], v[18:19]"); a("v_cvt_pk_bf16_f32 v16, v16, v17")
    a("ds_write_b32 v14, v16")
    a.label("L_kred")
    a.stampw(6)
    a("s_cmp_lt_u32 s57, 4")
    a("s_waitcnt lgkmcnt(0)"); a("s_barrier")
    a(f"ds_read_b128 {vr(OA,4)}, v20"); a(f"ds_read_b128 {vr(OA+4,4)}, v20 offset:672"); a(f"ds_read_b64 {vr(OA+8,2)}, v21 offset:1344")
    def omfma(P, PHI): return [f"v_mfma_f32_32x32x16_bf16 {vr(P,16)}, {vr(OA,4)}, {vr(PHI,4)}, 0",
                               f"v_mfma_f32_32x32x16_bf16 {vr(P,16)}, {vr(OA+4,4)}, {vr(PHI+4,4)}, {vr(P,16)}",
                               f"v_mfma_f32_32x32x8_bf16 {vr(P,16)}, {vr(OA+8,2)}, {vr(PHI+8,2)}, {vr(P,16)}"]
    def ofin(P, T, s0, s1):
        a(f"v_add_f32 v16, 0x358637bd, v{P+12}"); a("v_rcp_f32 v16, v16")
        for q in range(0, 8, 2): a(f"v_pk_mul_f32 {vr(P+q,2)}, {vr(P+q,2)}, v[16:17] op_sel_hi:[1,0]")
        for q in range(4): a(f"v_cvt_pk_bf16_f32 v{T+q}, v{P+2*q}, v{P+2*q+1}")
        a(f"buffer_store_dwordx4 {vr(T,4)}, v12, {WS}, s{s0} offen sc1")
        for q in range(8, 12, 2): a(f"v_pk_mul_f32 {vr(P+q,2)}, {vr(P+q,2)}, v[16:17] op_sel_hi:[1,0]")
        for q in range(4, 6): a(f"v_cvt_pk_bf16_f32 v{T+q}, v{P+2*q}, v{P+2*q+1}")
        a(f"buffer_store_dwordx2 {vr(T+4,2)}, v13, {WS}, s{s1} offen sc1")
    a("s_cbranch_scc0 L_o2")
    for q, x in enumerate(omfma(P0, PHQ)): a(f"s_waitcnt lgkmcnt({2-q})"); a(x)
    a.label("L_o1")
    ofin(P0, 18, 65, 66)
    a(f"s_cmp_eq_u32 s{sWV}, 7"); a("s_cbranch_scc1 L_ohint")
    a.label("L_ohret")
    a.stampw(7)

    a.label("L_final")
    a(f"s_lshr_b32 s3, s{sJ}, 3"); a(f"s_lshl2_add_u32 s56, s{sX}, s3")
    a(f"s_and_b32 s57, s{sWV}, 3"); a("s_lshl2_add_u32 s59, s56, s57")
    a(f"s_and_b32 s67, s{sJ}, 7")
    yloads = [f"buffer_load_dwordx4 {vr(FA+4*t,4)}, v14, {WS}, s64 offen offset:{64*t} sc1" for t in range(5)]
    allwo = sum((woreads(st, WF + 20*st) for st in range(9)), [])
    RT = WF + 160
    a("s_mul_i32 s3, s57, 2560"); a("v_mul_u32_u24 v12, 160, v11"); a("v_lshl_add_u32 v12, v3, 3, v12"); a("v_add_u32 v12, s3, v12")
    a("s_cmp_eq_u32 s58, 0"); a("s_cbranch_scc0 L_c2")
    a("s_lshl_b32 s3, s59, 6"); a(f"s_add_u32 s3, s3, {WS_SM}"); a("v_lshlrev_b32 v13, 2, v11")
    a(f"buffer_load_dword v14, v13, {WS}, s3 offen sc1")
    a(f"v_add_u32 v13, {L_RES}, v12")
    for t in range(5): a(f"ds_read_b64 {vr(RT+2*t,2)}, v13 offset:{32*t}")
    a("s_branch L_c3")
    a.label("L_c2")
    a(f"s_and_b32 s60, s{sK1}, 0x7ff"); a(f"s_and_b32 s61, s{sK2}, 0x7ff"); a("s_lshl_b32 s3, s59, 4"); a("s_sub_u32 s3, 2047, s3")
    a("v_sub_u32 v13, s3, v11"); a(f"v_mov_b32 v14, {OOB:#x}"); a("v_lshlrev_b32 v15, 4, v3")
    a("v_cmp_eq_u32 vcc, s60, v13"); a("v_cndmask_b32 v14, v14, v15, vcc"); a("s_mov_b64 s[70:71], vcc")
    a("v_add_u32 v15, 2560, v15"); a("v_cmp_eq_u32 vcc, s61, v13"); a("v_cndmask_b32 v14, v14, v15, vcc")
    a("s_mul_i32 s64, s67, 320"); a(f"s_add_u32 s64, s64, {WS_Y}")
    for r in range(0, 20, 2): a(f"v_mov_b64 {vr(FA+r,2)}, 0")
    a("s_or_b64 s[70:71], s[70:71], vcc"); a("s_cbranch_scc0 L_c3")
    for l in yloads: a(l)
    a.label("L_c3")
    a("s_mul_i32 s60, s59, 20480"); a(f"s_add_u32 s60, s60, {WS_O}"); a("s_lshl_b32 s3, s58, 11"); a("s_add_u32 s62, s60, s3"); a("s_add_u32 s62, s62, 16384")
    a("s_lshl2_add_u32 s60, s3, s60"); a("s_add_u32 s61, s60, 4096")
    a("v_lshlrev_b32 v9, 3, v0")
    oloads = [f"buffer_load_dwordx4 {vr(OF+4*st,4)}, v7, {WS}, s{60+st//4} offen offset:{1024*(st%4)} sc1" for st in range(8)]
    oloads += [f"buffer_load_dwordx2 {vr(OF+32+2*q,2)}, v9, {WS}, s62 offen offset:{512*q} sc1" for q in range(4)]
    for x in allwo[:80]: a(x)
    a("s_waitcnt vmcnt(0) lgkmcnt(14)")
    a("s_cmp_eq_u32 s58, 0"); a("s_cbranch_scc0 L_c4")
    a("v_and_b32 v4, 0xffff0000, v14"); a("v_rcp_f32 v4, v4"); a("v_lshlrev_b32 v5, 16, v14")
    for q in range(10):
        a(f"v_lshlrev_b32 v{FA+2*q}, 16, v{RT+q}"); a(f"v_and_b32 v{FA+2*q+1}, 0xffff0000, v{RT+q}")
    for q in range(10): a(f"v_pk_add_f32 {vr(RT+2*q,2)}, {vr(FA+2*q,2)}, v[4:5] op_sel:[0,1] op_sel_hi:[1,1] neg_lo:[0,1] neg_hi:[0,1]")
    for q in range(10): a(f"v_pk_fma_f32 {vr(FA+2*q,2)}, {vr(RT+2*q,2)}, v[4:5], {vr(FA+2*q,2)} op_sel_hi:[1,0,1]")
    a("s_branch L_c5")
    a.label("L_c4")
    a("s_cmp_eq_u64 s[70:71], 0"); a("s_cbranch_scc1 L_c5")
    a.recheck(yloads, range(FA, FA+20), 13)
    a.label("L_c5")
    for x in allwo[80:]: a(x)
    a.stampw(8)
    a(f"s_cmp_eq_u32 s{sWV}, 7"); a("s_cbranch_scc0 L_c5b")
    a(f"s_lshr_b32 s3, s{sJ}, 3"); a(f"s_lshl3_add_u32 s3, s{sX}, s3"); a("s_lshl_b32 s53, s3, 7"); a(f"s_add_u32 s53, s53, {WS_OH}"); a("v_lshlrev_b32 v13, 9, v0")
    a.cnt_poll(2, 13, "s53", f"{SENT + 16:#x}", 15)
    a.label("L_c5b")
    a("s_mov_b32 s53, 0"); a("s_mov_b32 s63, 0")
    a("s_barrier")
    a.stampw(13)
    for l in oloads: a(l)
    a("s_waitcnt lgkmcnt(0)")
    last = woreads(9, WF)
    for g_, (steps, cnt) in enumerate((((0, 1, 2, 3), 8), ((4, 5, 6, 7), 4), ((8, 9), 0))):
        if g_: a(f"s_mov_b32 s63, {g_}")
        a(f"s_waitcnt vmcnt({cnt})")
        a.label(f"L_og{g_}")
        a.maxtree(13, range(OF+4*steps[0], OF+4*steps[-1]+4)); a(f"v_cmp_eq_u32 vcc, s{sSENT}, v13"); a("s_cbranch_vccnz L_oretry")
        if g_ == 0: a.stampw(9)
        for st in steps:
            if st == 8: a("s_waitcnt lgkmcnt(0)")
            for t in range(5):
                a(f"v_mfma_f32_16x16x32_bf16 {vr(FA+4*t,4)}, {vr(WF+20*(st%9)+4*t,4)}, {vr(OF+4*st,4)}, {vr(FA+4*t,4)}")
                if st in (1, 2): a(last[5*(st-1)+t])
    a("s_mul_i32 s3, s57, 5120"); a(f"s_add_u32 s3, s3, {L_XCH}"); a("v_add_u32 v13, s3, v7")
    a("s_cmp_eq_u32 s58, 0"); a("s_cbranch_scc1 L_c6")
    for t in range(5): a(f"ds_write_b128 v13, {vr(FA+4*t,4)} offset:{1024*t}")
    a("s_waitcnt lgkmcnt(0)"); a("s_barrier")
    a("s_branch L_fin")
    a.label("L_c6")
    a(f"v_add_u32 v12, {L_OUTS}, v12")
    a("s_mul_i32 s3, s57, 2560"); a(f"s_add_u32 s3, s3, {L_OUTS}"); a("v_add_u32 v14, s3, v7")
    a("v_mul_u32_u24 v15, 6554, v0"); a("s_movk_i32 s3, 1120")
    for u in range(3):
        if u: a(f"v_add_u32 v15, {64*6554}, v15")
        a("v_lshrrev_b32 v8, 16, v15"); a(f"v_mad_u32_u24 v{4+u}, v8, s3, v7")
    a("v_cmp_gt_u32 vcc, 32, v0"); a(f"v_mov_b32 v8, {OOB:#x}")
    a("s_mul_i32 s60, s59, 20480"); a("s_mul_i32 s3, s67, 160"); a("s_add_u32 s60, s60, s3")
    a("v_cndmask_b32 v6, v8, v6, vcc")
    a("s_barrier")
    for t in range(5): a(f"ds_read_b128 {vr(OF+4*t,4)}, v13 offset:{1024*t}")
    for t in range(5):
        a("s_waitcnt lgkmcnt(4)")
        a(f"v_pk_add_f32 {vr(FA+4*t,2)}, {vr(FA+4*t,2)}, {vr(OF+4*t,2)}"); a(f"v_pk_add_f32 {vr(FA+4*t+2,2)}, {vr(FA+4*t+2,2)}, {vr(OF+4*t+2,2)}")
        a(f"v_cvt_pk_bf16_f32 v{FA+4*t}, v{FA+4*t}, v{FA+4*t+1}"); a(f"v_cvt_pk_bf16_f32 v{FA+4*t+1}, v{FA+4*t+2}, v{FA+4*t+3}")
        a(f"ds_write_b64 v12, {vr(FA+4*t,2)} offset:{32*t}")
    a("s_waitcnt lgkmcnt(0)")
    for u in range(3): a(f"ds_read_b128 {vr(OF+4*u,4)}, v14 offset:{1024*u}")
    for u in range(3):
        a(f"s_waitcnt lgkmcnt({2-u})")
        a(f"buffer_store_dwordx4 {vr(OF+4*u,4)}, v{4+u}, s[{rOUT}:{rOUT+3}], s60 offen offset:{1024*u} {['', 'sc1', 'nt', 'sc0 sc1'][outfl]}")
    a.label("L_fin")
    if diag:
        if not cut: a.stampw(10)
        a("s_waitcnt vmcnt(0)")
        a.stampw(11)
        a(f"s_lshl3_add_u32 s3, s2, s{sWV}"); a("s_lshl_b32 s3, s3, 6"); a(f"s_add_u32 s3, s3, {WS_DIAG}")
        a("s_mov_b64 exec, 1")
        for i in range(14):
            a(f"v_mov_b32 v8, s{72+2*i}"); a(f"buffer_store_dword v8, off, {WS}, s3 offset:{4*i}")
    a("s_endpgm")

    a.label("L_oretry")
    a("s_add_u32 s53, s53, 1"); a(f"s_cmp_gt_u32 s53, {SPIN}"); a(f"s_cselect_b32 s{sSENT}, s53, s{sSENT}")
    for l in oloads: a(l)
    a("s_waitcnt vmcnt(0) lgkmcnt(0)")
    a("s_cmp_eq_u32 s63, 0"); a("s_cbranch_scc1 L_og0"); a("s_cmp_eq_u32 s63, 1"); a("s_cbranch_scc1 L_og1"); a("s_branch L_og2")
    a.label("L_ohint")
    a("s_lshr_b32 s3, s55, 3"); a("s_and_b32 s53, s54, 1"); a("s_lshl1_add_u32 s3, s3, s53"); a("s_lshl_b32 s3, s3, 9"); a(f"s_add_u32 s3, s3, {WS_OH}")
    a("v_lshrrev_b32 v12, 2, v0"); a("v_lshlrev_b32 v12, 9, v12"); a("v_lshl_add_u32 v12, v0, 7, v12"); a("v_mov_b32 v13, 1")
    a("s_cmp_lt_u32 s57, 4"); a("s_cselect_b64 exec, 15, 0xff")
    a(f"buffer_atomic_add v13, v12, {WS}, s3 offen sc1")
    a("s_mov_b64 exec, -1"); a("s_branch L_ohret")
    a.label("L_kagain")
    a("s_add_u32 s53, s53, 1"); a(f"s_cmp_gt_u32 s53, {SPIN}"); a("s_cbranch_scc0 L_kfull"); a("s_branch L_kred")
    a.label("L_kw7")
    a("s_lshr_b32 s3, s54, 2"); a(f"s_lshr_b32 s53, s{sX}, 1"); a("s_lshl2_add_u32 s3, s3, s53"); a("s_lshl_b32 s3, s3, 7"); a(f"s_add_u32 s3, s3, {WS_KH}")
    a(f"s_lshl_b32 s53, s{sX}, 7"); a(f"s_add_u32 s53, s53, {WS_FH - 1024}"); a("v_lshl_add_u32 v16, v0, 10, s53"); a("v_writelane_b32 v16, s3, 0")
    a(f"v_mov_b32 v17, {SENT + 32:#x}"); a(f"s_add_u32 s3, s{sSENT}, 16"); a("v_writelane_b32 v17, s3, 0")
    a.cnt_poll(1 if nofh else 3, 16, "0", "v17", 18)
    a("s_barrier")
    a("s_cmp_eq_u32 s63, 1"); a("s_cbranch_scc0 L_kred")
    a.label("L_stage")
    a("s_mov_b32 s63, 0")
    a(f"s_add_u32 s3, s69, 81920"); a("v_add_u32 v16, s3, v7")
    for i in range(5): a(f"ds_write_b128 v16, {vr(WST+4*i,4)} offset:{1024*i}")
    a(f"s_cmp_eq_u32 s{sWV}, 7"); a("s_cbranch_scc1 L_kred")
    a(f"s_cmp_lt_u32 s{sWV}, 6"); a("s_cbranch_scc0 L_stageret")
    for i in range(5): a(f"ds_write_b128 v16, {vr(WST+20+4*i,4)} offset:{L_RES-81920+1024*i}")
    a("s_branch L_stageret")
    a.label("L_qlate")
    a.poll([fload], [253], OT, 0)
    for l in qloads: a(l)
    a("s_waitcnt vmcnt(0)"); a("s_branch L_qret")

    a.label("L_qepi")
    for x in aug(0) + aug(1): a(x)
    a(f"s_and_b32 s3, s{sX}, 1"); a("s_lshl1_add_u32 s3, s3, s57"); a("s_sub_u32 s3, s3, 4"); a("s_mul_i32 s58, s3, 655360")
    a("s_lshl1_add_u32 s3, s54, s61"); a("s_mul_i32 s3, s3, 2560"); a("s_add_u32 s58, s58, s3"); a(f"s_add_u32 s58, s58, {WS_Q}")
    a("s_mul_i32 s3, s60, 163840"); a("s_sub_u32 s53, 491520, s3")
    a("v_mov_b32 v12, s3"); a("v_mov_b32 v13, s53"); a("v_cmp_gt_u32 vcc, 32, v0")
    a("s_add_u32 s59, s58, s53"); a("s_add_u32 s53, s58, s3")
    a("v_and_b32 v7, 1, v3"); a("v_mul_u32_u24 v7, 81920, v7"); a("v_cndmask_b32 v12, v13, v12, vcc")
    a("v_lshrrev_b32 v14, 5, v0"); a("v_lshl_add_u32 v14, v14, 9, v7"); a("v_lshl_add_u32 v8, v6, 4, v14")
    a("v_add_u32 v12, v12, v7"); a("v_lshl_add_u32 v9, v6, 3, v12")
    for m in (2, 3, 0, 1):
        A = ACC + 20*m; T = 96 + 12*m
        for r in range(0, 20, 2): a(f"v_pk_mul_f32 {vr(A+r,2)}, {vr(A+r,2)}, {vr(STAT+4*m+2,2)} op_sel_hi:[1,0]")
        for q in range(10): a(f"v_cvt_pk_bf16_f32 v{T+q}, v{A+2*q}, v{A+2*q+1}")
        for q in (0, 1, 4, 5): a(f"v_permlane16_swap_b32 v{T+q}, v{T+q+2}")
        a(f"buffer_store_dwordx4 {vr(T,4)}, v8, {WS}, s53 offen offset:{(m>>1)*1280+(m&1)*256} sc1")
        a(f"buffer_store_dwordx4 {vr(T+4,4)}, v8, {WS}, s59 offen offset:{(m>>1)*1280+(m&1)*256} sc1")
        a(f"buffer_store_dwordx2 {vr(T+8,2)}, v9, {WS}, s58 offen offset:{1024+(m>>1)*1280+(m&1)*128} sc1")
    a.stampw(3)
    a("s_waitcnt vmcnt(0)"); a("s_barrier")
    a.label("L_ophase")
    qsetup()
    a(f"s_cmp_eq_u32 s{sWV}, 0"); a("s_cbranch_scc0 L_op1")
    a("v_lshlrev_b32 v12, 9, v0")
    a.cnt_poll(4, 12, "s53", f"s{sSENT}", 13, cmp="eq")
    a.label("L_op1")
    a("s_barrier")
    for l in qloads: a(l)
    a("s_add_u32 s3, s59, 10240")
    a(f"buffer_load_dwordx4 {vr(QF2,4)}, v7, {WS}, s3 offen sc1"); a(f"buffer_load_dwordx2 {vr(QF2+4,2)}, v9, {WS}, s3 offen offset:1024 sc1")
    a("s_mov_b32 s63, 2")
    a("s_branch L_phi")
    a.label("L_phix")
    a("s_cmp_eq_u32 s63, 2"); a("s_cbranch_scc1 L_phiq1")
    a(tload); a("s_waitcnt vmcnt(0)")
    topcheck()
    a("s_branch L_kvwait")
    a.label("L_phiq1")
    a("s_mov_b32 s63, 0")
    a(f"s_cmp_lt_u32 s{sWV}, 4"); a("s_cbranch_scc1 L_phiq2")
    a("s_mov_b32 s63, 3")
    wo_round(3); wo_last()
    a.label("L_phiq2")
    for q in range(0, 10, 2): a(f"v_mov_b64 {vr(PHQ2+q,2)}, {vr(PHQ+q,2)}")
    for q in range(0, 6, 2): a(f"v_mov_b64 {vr(QF+q,2)}, {vr(QF2+q,2)}")
    a("s_branch L_phi2")
    a.label("L_o2")
    m1 = omfma(P1, PHQ2); m0 = omfma(P0, PHQ)
    for q in range(3): a(f"s_waitcnt lgkmcnt({2-q})"); a(m1[q]); a(m0[q])
    ofin(P1, 24, 65, 66)
    a("s_add_u32 s65, s65, 327680"); a("s_add_u32 s66, s66, 327680")
    a("s_branch L_o1")

    a.label("L_helper")
    for r, off in ((rWR, 40), (rG, 48), (rU, 56), (rDN, 64)): a(f"s_load_dwordx2 s[{r}:{r+1}], s[0:1], {off}")
    a.srdw(rWR, D*2)
    XR, CR, WR, FF = 16, 36, 56, 76
    a(f"s_sub_u32 s54, s{sJR}, 24"); a(f"s_lshl3_add_u32 s55, s{sX}, s54")
    a(f"s_lshl3_add_u32 s56, s55, s{sWV}")
    a("v_lshrrev_b32 v3, 4, v0"); a("v_and_b32 v4, 15, v0"); a("v_lshlrev_b32 v4, 4, v4")
    a("s_lshl_b32 s3, s56, 2"); a("v_add_u32 v5, s3, v3"); a("s_movk_i32 s3, 1280"); a("v_mad_u32_u24 v6, v5, s3, v4")
    a(f"s_lshr_b32 s57, s{sX}, 1"); a(f"s_and_b32 s58, s{sX}, 1")
    a("s_lshl3_add_u32 s59, s57, s54"); a("s_lshr_b32 s60, s59, 1"); a("s_and_b32 s59, s59, 1")
    a("s_mul_i32 s3, s60, 52"); a("s_lshr_b32 s3, s3, 8"); a("s_add_u32 s3, s3, s58"); a("s_mul_i32 s3, s3, 640"); a("s_lshl_b32 s61, s60, 7"); a("s_add_u32 s61, s61, s3")
    a(f"s_lshr_b32 s3, s{sWV}, 2"); a("s_lshl1_add_u32 s3, s3, s59"); a(f"s_and_b32 s53, s{sWV}, 3"); a("s_lshl2_add_u32 s3, s3, s53"); a("s_mul_i32 s3, s3, 30720"); a("s_add_u32 s3, s3, s61")
    a("s_cmp_eq_u32 s60, 15"); a(f"s_cselect_b32 s3, {OOB:#x}, s3")
    a("v_lshrrev_b32 v7, 3, v0"); a("v_mul_u32_u24 v7, 3840, v7"); a("v_and_b32 v8, 7, v0"); a("v_lshl_add_u32 v7, v8, 4, v7"); a("v_add_u32 v7, s3, v7")
    a("s_waitcnt lgkmcnt(0)")
    if cut: a.stamp(3)
    hv = VM(a)
    def hload_pair(i):
        a(f"s_mov_b32 s62, {491520*i}")
        hv(f"buffer_load_dwordx4 {vr(XR+4*i,4)}, v6, s[{rX}:{rX+3}], 0 offen offset:{256*i}", "x")
        hv(f"buffer_load_dwordx4 {vr(CR+4*i,4)}, v7, s[{rW}:{rW+3}], s62 offen", "x")
    def htouch(i):
        a(f"s_mov_b32 s62, {491520*i}")
        a("s_mov_b64 exec, 0x3fffffff")
        hv(f"buffer_load_dword v116, v9, s[{rW}:{rW+3}], s62 offen", "t")
        a("s_mov_b64 exec, 0xff")
        hv(f"buffer_load_dword v116, v10, s[{rX}:{rX+3}], 0 offen offset:{256*i}", "t")
        a("s_mov_b64 exec, -1")
    order = [["L1", "L2", "T1", "L3", "T2", "L4", "T3", "L0", "T4"], ["L1", "T1", "L2", "T2", "L3", "L4", "L0", "T3", "T4"], ["L1", "L2", "L3", "T2", "L4", "L0", "T3", "T4"]][hord] if tch else ["L1", "L2", "L3", "L4", "L0"]
    for n, o in enumerate(order):
        if o[0] == "L": hload_pair(int(o[1]))
        else: htouch(int(o[1]))
        if n == 0 and tch:
            a("v_mul_u32_u24 v9, 13108, v0"); a("v_lshrrev_b32 v9, 16, v9"); a("v_mul_u32_u24 v9, 640, v9"); a("v_lshl_add_u32 v9, v0, 7, v9")
            a(f"s_lshl3_add_u32 s3, s54, s{sWV}"); a("s_mul_i32 s3, s3, 7680"); a("s_mul_i32 s53, s58, 640"); a("s_add_u32 s3, s3, s53"); a("v_add_u32 v9, s3, v9")
            a("s_xor_b32 s3, s56, 64"); a("s_mul_i32 s3, s3, 5120"); a("v_lshrrev_b32 v10, 1, v0"); a("v_mul_u32_u24 v10, 1280, v10"); a("v_and_b32 v11, 1, v0")
            a("v_lshl_add_u32 v10, v11, 7, v10"); a("v_add_u32 v10, s3, v10")
        if n < len(order) - 1: a("s_barrier")
    for i in range(5): hv(f"buffer_load_dwordx4 {vr(WR+4*i,4)}, v4, s[{rWR}:{rWR+3}], 0 offen offset:{256*i}", "wr")
    srds(); a.srdw(rG, D*F*2)
    a("v_lshlrev_b32 v2, 4, v0")
    for q in range(4): a(f"v_mov_b32 v{12+q}, s{sSENT}")
    a("s_mul_i32 s62, s56, 3072"); a(f"s_add_u32 s62, s62, {WS_CLR}")
    if noclr & 4: a(f"s_mov_b32 s62, {OOB:#x}")
    for i in range(3): hv(f"buffer_store_dwordx4 v[12:15], v2, {WS}, s62 offen offset:{1024*i} sc1", "clr")
    a("v_lshrrev_b32 v130, 3, v0"); a("v_mul_u32_u24 v130, 3072, v130"); a("v_lshl_add_u32 v130, v8, 4, v130")
    a(f"s_cmp_ge_u32 s{sWV}, 3"); a("s_cselect_b32 s64, 3, 0"); a(f"s_cselect_b64 s[{rG}:{rG+1}], s[{rU}:{rU+1}], s[{rG}:{rG+1}]")
    a(f"s_sub_u32 s65, s{sWV}, s64")
    a("s_mul_i32 s68, s54, 245760"); a(f"s_mul_i32 s3, s{sX}, 384"); a("s_add_u32 s68, s68, s3"); a("s_lshl_b32 s3, s65, 7"); a("s_add_u32 s68, s68, s3")
    a(f"s_mul_i32 s69, s{sWV}, 10240"); a("s_movk_i32 s70, 24576")
    a(f"s_cmp_lt_u32 s{sWV}, 6"); a("s_cbranch_scc1 L_hsw")
    a(f"s_mov_b64 s[{rG}:{rG+1}], s[{rDN}:{rDN+1}]"); a("v_mov_b32 v130, v2")
    a(f"s_sub_u32 s3, 7, s{sWV}"); a("s_mul_i32 s3, s3, 10240"); a("s_mul_i32 s68, s55, 30720"); a("s_add_u32 s68, s68, s3"); a(f"s_add_u32 s69, s3, {L_DI}"); a("s_movk_i32 s70, 1024")
    a.label("L_hsw")
    def ffn_dma(n):
        for _ in range(n):
            a("s_mov_b32 m0, s69"); a("s_add_u32 s69, s69, 1024")
            hv(f"buffer_load_dwordx4 v130, s[{rG}:{rG+3}], s68 offen lds", "f")
            a("s_add_u32 s68, s68, s70")
    a.readyaddr(117)
    hv.wait("x")
    a.stampw(1)
    hv(a.readyload(118, 117), "rdy")
    ffn_dma(f0)
    for q in range(20):
        a(f"v_lshlrev_b32 v{FF+2*q}, 16, v{XR+q}"); a(f"v_and_b32 v{FF+2*q+1}, 0xffff0000, v{XR+q}")
    a(f"v_pk_add_f32 v[120:121], {vr(FF,2)}, {vr(FF+2,2)}"); a(f"v_pk_add_f32 v[122:123], {vr(FF+4,2)}, {vr(FF+6,2)}")
    for q in range(8, 40, 4):
        a(f"v_pk_add_f32 v[120:121], v[120:121], {vr(FF+q,2)}"); a(f"v_pk_add_f32 v[122:123], v[122:123], {vr(FF+q+2,2)}")
    a("v_pk_add_f32 v[120:121], v[120:121], v[122:123]"); a("v_add_f32 v120, v120, v121")
    a.rowsum16(120)
    a("v_mul_f32 v120, 0x3acccccd, v120")
    for q in range(20): a(f"v_pk_add_f32 {vr(FF+2*q,2)}, {vr(FF+2*q,2)}, v[120:121] op_sel_hi:[1,0] neg_lo:[0,1] neg_hi:[0,1]")
    a(f"v_pk_mul_f32 v[122:123], {vr(FF,2)}, {vr(FF,2)}"); a(f"v_pk_mul_f32 v[124:125], {vr(FF+2,2)}, {vr(FF+2,2)}")
    for q in range(4, 40, 4):
        a(f"v_pk_fma_f32 v[122:123], {vr(FF+q,2)}, {vr(FF+q,2)}, v[122:123]"); a(f"v_pk_fma_f32 v[124:125], {vr(FF+q+2,2)}, {vr(FF+q+2,2)}, v[124:125]")
    a("v_pk_add_f32 v[122:123], v[122:123], v[124:125]"); a("v_add_f32 v122, v122, v123")
    a.rowsum16(122)
    a("v_mul_f32 v122, 0x3acccccd, v122")
    a("v_cvt_pk_bf16_f32 v122, v122, v122"); a("v_and_b32 v122, 0xffff0000, v122"); a("v_add_f32 v122, 0x3727c5ac, v122")
    a("v_cvt_pk_bf16_f32 v122, v122, v122"); a("v_and_b32 v122, 0xffff0000, v122"); a("v_sqrt_f32 v122, v122")
    a("v_cvt_pk_bf16_f32 v126, v120, v122")
    a("v_and_b32 v122, 0xffff0000, v126"); a("v_rcp_f32 v124, v122"); a("v_lshlrev_b32 v121, 16, v126")
    a("v_sub_f32 v121, v120, v121"); a("v_mul_f32 v125, v121, v124")
    a("v_mov_b32 v128, 0"); a("v_mov_b32 v129, 0")
    for q in range(20): a(f"v_pk_fma_f32 {vr(FF+2*q,2)}, {vr(FF+2*q,2)}, v[124:125], v[124:125] op_sel:[0,0,1] op_sel_hi:[1,0,1]")
    for q in range(20): a(f"v_cvt_pk_bf16_f32 v{XR+q}, v{FF+2*q}, v{FF+2*q+1}")
    hv.wait("wr")
    for q in range(20): a(f"v_dot2c_f32_bf16 v{128+(q&1)}, v{XR+q}, v{WR+q}")
    a("v_add_f32 v128, v128, v129")
    a.rowsum16(128)
    a("v_cvt_pk_bf16_f32 v128, v128, v128"); a("v_ashrrev_i32 v129, 31, v128"); a("v_or_b32 v129, 0x80000000, v129"); a("v_xor_b32 v128, v128, v129")
    a("v_and_b32 v128, 0xffff0000, v128"); a("v_sub_u32 v129, 2047, v5"); a("v_or_b32 v127, v128, v129")
    a(f"s_lshl_b32 s3, s{sWV}, 5"); a(f"s_add_u32 s3, s3, {L_HM}"); a("v_lshl_add_u32 v129, v3, 3, s3")
    a("ds_write_b64 v129, v[126:127]")
    a("s_mov_b32 s62, 0x00003f80"); a("s_mov_b32 s63, 0x3f800000")
    for r in range(0, 8, 2): a(f"v_mov_b64 {vr(FF+r,2)}, 0")
    for i in range(5):
        for q in range(4):
            a(f"v_dot2c_f32_bf16 v{FF+2*q}, s62, v{CR+4*i+q}"); a(f"v_dot2c_f32_bf16 v{FF+2*q+1}, s63, v{CR+4*i+q}")
    for q in range(4): a(f"v_permlane32_swap_b32 v{FF+q}, v{FF+q+4}")
    a(f"v_pk_add_f32 {vr(FF,2)}, {vr(FF,2)}, {vr(FF+4,2)}"); a(f"v_pk_add_f32 {vr(FF+2,2)}, {vr(FF+2,2)}, {vr(FF+6,2)}")
    for q in range(2): a(f"v_permlane16_swap_b32 v{FF+q}, v{FF+q+2}")
    a(f"v_pk_add_f32 {vr(FF,2)}, {vr(FF,2)}, {vr(FF+2,2)}")
    for q in range(2): a(f"v_add_f32_dpp v{FF+q}, v{FF+q}, v{FF+q} row_ror:8 row_mask:0xf bank_mask:0xf")
    a(f"s_lshl_b32 s3, s{sWV}, 8"); a(f"s_add_u32 s3, s3, {L_HM+256}"); a("v_lshl_add_u32 v129, v8, 5, s3"); a("v_lshl_add_u32 v129, v3, 3, v129")
    a(f"ds_write_b64 v129, {vr(FF,2)}")
    hv.wait("clr", "rdy", lgkm=True)
    a.readycheck(118, 117)
    a("s_barrier")
    a(f"s_cmp_eq_u32 s{sWV}, 0"); a("s_cbranch_scc0 L_h3")
    a("v_and_b32 v129, 31, v0"); a(f"v_lshlrev_b32 v128, 3, v129"); a(f"v_add_u32 v128, {L_HM}, v128"); a("ds_read_b64 v[126:127], v128")
    a("v_lshlrev_b32 v119, 2, v0"); a(f"v_add_u32 v128, {L_HM+256}, v119")
    for q in range(8): a(f"ds_read_b32 v{FF+q}, v128 offset:{256*q}")
    a("s_lshl_b32 s62, s55, 7"); a(f"s_add_u32 s62, s62, {WS_SM}"); a("v_lshlrev_b32 v129, 2, v129"); a("v_mov_b32 v125, 0")
    a("s_lshl_b32 s63, s61, 1"); a("s_mul_i32 s3, s59, 7680"); a("s_add_u32 s63, s63, s3"); a(f"s_add_u32 s63, s63, {WS_CS}")
    a("s_cmp_eq_u32 s60, 15"); a(f"s_cselect_b32 s63, {OOB:#x}, s63")
    a("s_waitcnt lgkmcnt(0)")
    a(f"buffer_store_dword v126, v129, {WS}, s62 offen sc1")
    a(f"v_pk_add_f32 {vr(FF,2)}, {vr(FF,2)}, {vr(FF+2,2)}"); a(f"v_pk_add_f32 {vr(FF+4,2)}, {vr(FF+4,2)}, {vr(FF+6,2)}")
    a(f"v_pk_add_f32 {vr(FF,2)}, {vr(FF,2)}, {vr(FF+4,2)}"); a(f"v_add_f32 v{FF}, v{FF}, v{FF+1}")
    a(f"v_and_b32 v{FF+1}, 0xffff0000, v{FF}"); a(f"v_sub_f32 v{FF}, v{FF}, v{FF+1}"); a(f"v_cvt_pk_bf16_f32 v{FF}, v{FF+1}, v{FF}")
    a(f"buffer_store_dword v{FF}, v119, {WS}, s63 offen sc1")
    a.top2(127, 125, 124, 62, 63)
    a("v_mov_b32 v122, s62"); a("v_mov_b32 v123, s63"); a("s_lshl_b32 s62, s55, 7"); a(f"s_add_u32 s62, s62, {WS_C1}")
    a("s_mov_b64 exec, 1")
    a(f"buffer_store_dwordx2 v[122:123], off, {WS}, s62 sc1")
    a("s_mov_b64 exec, -1")
    a("s_and_b32 s3, s55, 3"); a("s_lshl_b32 s3, s3, 10")
    a.cnt_add(8, "s3", 124)
    a.label("L_h3")
    a("s_barrier")
    a.stampw(2)
    ffn_dma(10 - f0)
    a(f"s_cmp_eq_u32 s{sWV}, 6"); a("s_cbranch_scc0 L_h4")
    a("s_mov_b32 s53, 0")
    a.label("L_h4a"); ffn_dma(1); a("s_add_u32 s53, s53, 1"); a("s_cmp_lt_u32 s53, 10"); a("s_cbranch_scc1 L_h4a")
    a.label("L_h4")
    a("s_mul_i32 s3, s56, 1600"); a("v_min_u32 v9, 12, v0"); a("v_lshlrev_b32 v9, 7, v9")
    a(f"buffer_load_dword v116, v9, s[{rWO}:{rWO+3}], s3 offen")
    if cut: a("s_branch L_fin")
    a(f"s_cmp_eq_u32 s{sWV}, 7"); a("s_cbranch_scc0 L_h5")
    a(f"s_lshl_b32 s53, s{sX}, 7"); a("v_lshlrev_b32 v124, 10, v0")
    a.cnt_poll(4, 124, "s53", f"{SENT + 16:#x}", 125)
    a("v_lshlrev_b32 v124, 7, v0"); a(f"v_add_u32 v124, {WS_C1}, v124")
    a.poll([f"buffer_load_dwordx2 v[122:123], v124, {WS}, 0 offen sc1"], [122, 123], 125, 0)
    a.top2(122, 123, 124, sK1, sK2)
    a(f"v_mov_b32 v122, s{sK1}"); a(f"v_mov_b32 v123, s{sK2}"); a(f"v_mov_b32 v9, {L_XN+512}"); a("ds_write_b64 v9, v[122:123]")
    a("s_cmp_eq_u32 s55, 0"); a(f"s_mov_b32 s3, {WS_TOP}"); a(f"s_cselect_b32 s3, s3, {OOB:#x}")
    a("s_mov_b64 exec, 1"); a(f"buffer_store_dwordx2 v[122:123], off, {WS}, s3 sc1"); a("s_mov_b64 exec, 0xfffff")
    a("v_cmp_lt_u32 vcc, 9, v0"); a("v_cndmask_b32 v9, v122, v123, vcc"); a("v_and_b32 v9, 0x7ff, v9"); a("v_sub_u32 v9, 2047, v9")
    a("v_lshlrev_b32 v10, 2, v9"); a(f"v_add_u32 v10, {WS_SM}, v10"); a("v_mul_u32_u24 v9, 1280, v9"); a("v_add_u32 v9, v9, v2")
    a("v_subrev_u32 v11, 160, v9"); a("v_cndmask_b32 v9, v9, v11, vcc"); a("s_mul_i32 s53, s54, 160")
    a(f"buffer_load_dwordx4 {vr(XR,4)}, v9, s[{rX}:{rX+3}], s53 offen")
    a.poll([f"buffer_load_dword v126, v10, {WS}, 0 offen sc1"], [126], 125, 0)
    a("v_and_b32 v122, 0xffff0000, v126"); a("v_rcp_f32 v124, v122"); a("v_lshlrev_b32 v120, 16, v126")
    for q in range(4):
        a(f"v_lshlrev_b32 v{FF+2*q}, 16, v{XR+q}"); a(f"v_and_b32 v{FF+2*q+1}, 0xffff0000, v{XR+q}")
    for q in range(4): a(f"v_pk_add_f32 {vr(FF+2*q,2)}, {vr(FF+2*q,2)}, v[120:121] op_sel_hi:[1,0] neg_lo:[0,1] neg_hi:[0,1]")
    for q in range(4): a(f"v_pk_mul_f32 {vr(FF+2*q,2)}, {vr(FF+2*q,2)}, v[124:125] op_sel_hi:[1,0]")
    for q in range(4): a(f"v_cvt_pk_bf16_f32 v{XR+q}, v{FF+2*q}, v{FF+2*q+1}")
    a(f"v_add_u32 v9, {L_XN}, v2"); a(f"ds_write_b128 v9, {vr(XR,4)}")
    a("s_mov_b64 exec, -1")
    a.label("L_h5")
    a("v_lshrrev_b32 v5, 5, v0"); a("v_bfe_u32 v4, v0, 2, 2"); a("v_lshl_add_u32 v6, v5, 3, v4"); a("v_and_b32 v11, 1, v0")
    a("v_bfe_u32 v9, v0, 4, 1"); a("v_and_b32 v131, 3, v0"); a("v_lshl_add_u32 v131, v9, 2, v131"); a("v_lshlrev_b32 v131, 3, v131")
    a("s_waitcnt vmcnt(0) lgkmcnt(0)"); a("s_barrier")
    a.stampw(3)
    GB = 132; DG = 176
    a(f"v_mov_b32 v9, {L_XN+512}"); a("ds_read_b64 v[122:123], v9")
    a("v_cmp_gt_u32 vcc, 32, v0")
    a(f"s_cmp_lt_u32 s{sWV}, 6"); a("s_cbranch_scc0 L_h6")
    a("v_mul_u32_u24 v9, 160, v11"); a("v_lshl_add_u32 v9, v5, 4, v9"); a(f"v_add_u32 v9, {L_XN}, v9")
    for s_ in range(5): a(f"ds_read_b128 {vr(XR+4*s_,4)}, v9 offset:{32*s_}")
    a(f"s_mul_i32 s3, s{sWV}, 10240"); a("v_lshl_add_u32 v9, v6, 7, v131"); a("v_add_u32 v9, s3, v9")
    for s_ in range(5):
        for nt in range(2):
            for j in range(2): a(f"ds_read_b64_tr_b16 {vr(GB+8*s_+4*nt+2*j,2)}, v9 offset:{2048*s_+512*j+64*nt}")
    a("v_and_b32 v9, 31, v0"); a("v_lshlrev_b32 v9, 2, v9"); a("s_movk_i32 s3, 768"); a("v_mad_u32_u24 v9, v5, s3, v9")
    a("s_mul_i32 s62, s55, 3072"); a("s_lshl_b32 s3, s64, 9"); a("s_add_u32 s62, s62, s3"); a("s_lshl_b32 s3, s65, 8"); a("s_add_u32 s62, s62, s3"); a(f"s_add_u32 s62, s62, {WS_GP}")
    a("s_waitcnt lgkmcnt(0)")
    for s_ in range(5):
        for nt in range(2): a(f"v_mfma_f32_32x32x16_bf16 {vr(DG+16*nt,16)}, {vr(XR+4*s_,4)}, {vr(GB+8*s_+4*nt,4)}, {vr(DG+16*nt,16) if s_ else 0}")
    for nt in range(2):
        a(f"v_cndmask_b32 v{120+nt}, v{DG+16*nt+1}, v{DG+16*nt}, vcc")
        a(f"buffer_store_dword v{120+nt}, v9, {WS}, s62 offen offset:{128*nt} sc1")
    a.label("L_h6")
    a("s_waitcnt lgkmcnt(0)")
    a(f"v_readfirstlane_b32 s{sK1}, v122"); a(f"v_readfirstlane_b32 s{sK2}, v123")
    a("s_barrier")
    a.stampw(4)
    a(f"s_lshl_b32 s53, s{sX}, 7"); a(f"s_add_u32 s53, s53, {WS_GH}"); a(f"s_cmp_eq_u32 s{sWV}, 0"); a(f"s_cselect_b32 s3, s53, {OOB:#x}")
    a.cnt_add(1, "s3", 9)
    a("s_mul_i32 s62, s56, 5120"); a(f"s_add_u32 s62, s62, {WS_O}"); a("s_add_u32 s63, s62, 4096")
    for i in range(5): a(f"buffer_store_dwordx4 v[12:15], v2, {WS}, s{62 if i < 4 else 63} offen offset:{1024*(i%4)} sc1")
    a("s_movk_i32 s3, 1280"); a("v_mad_u32_u24 v9, v6, s3, v131"); a("v_lshl_add_u32 v10, v5, 2, v4"); a("v_mad_u32_u24 v10, v10, s3, v131")
    a(f"s_lshl_b32 s3, s{sWV}, 6"); a(f"s_add_u32 s3, s3, {L_DI}"); a("v_add_u32 v9, s3, v9"); a("v_add_u32 v10, s3, v10")
    for u in range(3):
        for j in range(2): a(f"ds_read_b64_tr_b16 {vr(GB+8*u+2*j,2)}, v9 offset:{512*u+5120*j}")
        a(f"ds_read_b64_tr_b16 {vr(GB+8*u+4,2)}, v10 offset:{512*u+20480}")
    a("v_lshlrev_b32 v14, 6, v11"); a(f"v_add_u32 v14, {L_HB}, v14"); a("v_lshl_add_u32 v15, v5, 3, v14"); a("v_lshl_add_u32 v14, v5, 4, v14")
    a("v_and_b32 v26, 31, v0"); a("v_lshlrev_b32 v27, 2, v26"); a("s_movk_i32 s3, 2560"); a("v_mad_u32_u24 v27, v5, s3, v27")
    a("v_mov_b32 v28, v5"); a("v_mov_b32 v7, v2")
    a(f"s_cmp_lt_u32 s{sWV}, 4"); a("s_cbranch_scc1 L_h8")
    a(f"s_sub_u32 s60, s{sWV}, 4")
    wo_addr()
    wo_round(0)
    a("s_waitcnt vmcnt(5)")
    a("s_branch L_h9")
    a.label("L_h8")
    a("s_waitcnt vmcnt(0)")
    a(f"s_cmp_eq_u32 s{sWV}, 0"); a("s_cbranch_scc0 L_h9")
    a("v_cmp_lt_u32 vcc, 11, v26"); a("v_lshlrev_b32 v9, 3, v26"); a("v_add_u32 v10, 672, v9"); a("v_cndmask_b32 v9, v9, v10, vcc")
    a("v_lshlrev_b32 v29, 2, v26"); a("v_add_u32 v10, 16, v29"); a("v_cndmask_b32 v29, v29, v10, vcc")
    a("s_movk_i32 s3, 1536"); a("v_mad_u32_u24 v9, v28, s3, v9"); a("v_cmp_lt_u32 vcc, 23, v26"); a(f"v_mov_b32 v10, {OOB:#x}"); a("v_cndmask_b32 v9, v9, v10, vcc")
    a(f"s_mul_i32 s62, s{sX}, 24576"); a("s_mul_i32 s3, s54, 96"); a("s_add_u32 s62, s62, s3"); a(f"s_add_u32 s62, s62, {WS_GP}")
    gl = ["s_mov_b32 s63, s62"]
    for p in range(8):
        gl.append(f"buffer_load_dwordx2 {vr(FF+2*p,2)}, v9, {WS}, s63 offen offset:{3072*(p&1)} sc1")
        if p & 1 and p < 7: gl.append("s_add_u32 s63, s63, 6144")
    a.cnt_poll(1, 0, "s53", f"{SENT + 8:#x}", 10)
    a.poll(gl, range(FF, FF+16), 10, 0)
    for q in range(4): a(f"v_pk_add_f32 {vr(FF+2*q,2)}, {vr(FF+2*q,2)}, {vr(FF+2*q+8,2)}")
    for q in range(2): a(f"v_pk_add_f32 {vr(FF+2*q,2)}, {vr(FF+2*q,2)}, {vr(FF+2*q+4,2)}")
    a(f"v_pk_add_f32 {vr(FF,2)}, {vr(FF,2)}, {vr(FF+2,2)}")
    a(f"v_permlane32_swap_b32 v{FF}, v{FF+1}")
    a(f"v_cvt_pk_bf16_f32 v120, v{FF}, v{FF+1}"); a("v_lshlrev_b32 v121, 16, v120"); a("v_and_b32 v120, 0xffff0000, v120")
    a(f"v_mul_f32 v122, {LOG2E|0x80000000:#x}, v121"); a("v_exp_f32 v122, v122"); a("v_add_f32 v122, 1.0, v122"); a("v_rcp_f32 v122, v122")
    a("v_mul_f32 v121, v121, v122"); a("v_cvt_pk_bf16_f32 v121, v121, v121"); a("v_and_b32 v121, 0xffff0000, v121")
    a("v_mul_f32 v121, v121, v120"); a("v_cvt_pk_bf16_f32 v121, v121, v121")
    a("v_lshl_add_u32 v9, v28, 1, v29"); a(f"v_add_u32 v9, {L_HB}, v9"); a("ds_write_b16 v9, v121")
    a.label("L_h9")
    a("s_waitcnt lgkmcnt(0)"); a("s_barrier")
    a.stampw(5)
    a(f"s_cmp_eq_u32 s{sWV}, 1"); a("s_cbranch_scc0 L_h8a")
    a("s_and_b32 s3, s55, 1"); a("s_lshl_b32 s3, s3, 10"); a(f"s_add_u32 s3, s3, {WS_FH}")
    a.cnt_add(8, "s3", 9)
    a.label("L_h8a")
    a(f"ds_read_b128 {vr(XR,4)}, v14"); a(f"ds_read_b64 {vr(XR+4,2)}, v15 offset:32")
    a("s_mul_i32 s62, s55, 5120"); a(f"s_lshl_b32 s3, s{sWV}, 7"); a("s_add_u32 s62, s62, s3"); a(f"s_add_u32 s62, s62, {WS_YP}")
    a(f"s_cmp_lt_u32 s{sWV}, 4"); a(f"s_cselect_b32 s63, s62, {OOB:#x}")
    a("v_cmp_gt_u32 vcc, 32, v0")
    a("s_waitcnt lgkmcnt(0)")
    for u in range(3): a(f"v_mfma_f32_32x32x16_bf16 {vr(DG+16*u,16)}, {vr(XR,4)}, {vr(GB+8*u,4)}, 0")
    for u in range(3): a(f"v_mfma_f32_32x32x8_bf16 {vr(DG+16*u,16)}, {vr(XR+4,2)}, {vr(GB+8*u+4,2)}, {vr(DG+16*u,16)}")
    for u in range(3):
        a(f"v_cndmask_b32 v{120+u}, v{DG+16*u+1}, v{DG+16*u}, vcc")
        a(f"buffer_store_dword v{120+u}, v27, {WS}, s{63 if u == 2 else 62} offen offset:{1024*u} sc1")
    a.stampw(6)
    a("s_and_b32 s3, s55, 3"); a("s_lshl_b32 s3, s3, 8"); a(f"s_add_u32 s3, s3, {WS_YH}"); a(f"s_cmp_eq_u32 s{sWV}, 7"); a(f"s_cselect_b32 s3, s3, {OOB:#x}")
    a.cnt_add(2, "s3", 9)
    a(f"s_cmp_lt_u32 s{sWV}, 4"); a("s_cbranch_scc1 L_h10")
    wo_round(1); wo_round(2); wo_round(3); wo_last()
    a.label("L_h10")
    a(f"s_cmp_eq_u32 s{sWV}, 0"); a("s_cbranch_scc0 L_h11")
    a(f"s_lshl_b32 s53, s{sX}, 7"); a(f"s_add_u32 s53, s53, {WS_FH}"); a("v_lshlrev_b32 v9, 10, v0")
    a.cnt_poll(2, 9, "s53", f"{SENT + 32:#x}", 10)
    a("s_cmp_lt_u32 s54, 6"); a("s_cbranch_scc1 L_h12")
    a("s_lshl_b32 s53, s54, 7"); a(f"s_add_u32 s53, s53, {WS_YH - 768}"); a("v_lshlrev_b32 v9, 8, v0")
    a.cnt_poll(4, 9, "s53", f"{SENT + 16:#x}", 10)
    a.label("L_h11")
    a("s_cmp_lt_u32 s54, 6"); a("s_cbranch_scc1 L_h12")
    a("s_barrier")
    a("s_cmp_eq_u32 s54, 6"); a(f"s_cselect_b32 s66, s{sK1}, s{sK2}")
    a("v_mul_u32_u24 v9, 3277, v0"); a("v_lshrrev_b32 v9, 16, v9"); a("s_movk_i32 s3, 4800"); a("v_mad_u32_u24 v9, v9, s3, v7")
    a("v_cmp_lt_u32 vcc, 59, v0"); a(f"v_mov_b32 v8, {OOB:#x}"); a("s_sub_u32 s63, s54, 6"); a("v_cndmask_b32 v9, v9, v8, vcc")
    a("v_cmp_lt_u32 vcc, 39, v0"); a("s_mul_i32 s63, s63, 2560"); a(f"s_mul_i32 s3, s{sX}, 320"); a("v_cndmask_b32 v10, v9, v8, vcc"); a("s_add_u32 s63, s63, s3")
    a(f"s_mul_i32 s62, s{sWV}, 40960"); a("s_add_u32 s62, s62, s63"); a(f"s_add_u32 s62, s62, {WS_YP}"); a("s_add_u32 s64, s62, 15360"); a("s_add_u32 s65, s62, 30720")
    a.poll([f"buffer_load_dwordx4 v[16:19], v9, {WS}, s62 offen sc1", f"buffer_load_dwordx4 v[20:23], v9, {WS}, s64 offen sc1", f"buffer_load_dwordx4 v[24:27], v10, {WS}, s65 offen sc1"], range(16, 28), 28, 1)
    a("v_pk_add_f32 v[16:17], v[16:17], v[20:21]"); a("v_pk_add_f32 v[18:19], v[18:19], v[22:23]")
    a("v_pk_add_f32 v[16:17], v[16:17], v[24:25]"); a("v_pk_add_f32 v[18:19], v[18:19], v[26:27]")
    a(f"s_lshl_b32 s3, s{sWV}, 10"); a(f"s_add_u32 s3, s3, {L_YR}"); a("v_add_u32 v8, s3, v7"); a("ds_write_b128 v8, v[16:19]")
    a("s_waitcnt lgkmcnt(0)"); a("s_barrier")
    a(f"s_cmp_lt_u32 s{sWV}, 2"); a("s_cbranch_scc0 L_h12")
    a(f"s_lshl_b32 s3, s{sWV}, 6"); a("v_add_u32 v8, s3, v0"); a("v_cmp_lt_u32 vcc, 79, v8"); a("v_min_u32 v8, 79, v8"); a("v_lshlrev_b32 v8, 2, v8"); a(f"v_add_u32 v10, {L_YR}, v8")
    for q in range(24): a(f"ds_read_b32 v{16+q}, v10 offset:{1024*(q//3)+320*(q%3)}")
    a(f"v_mov_b32 v9, {OOB:#x}"); a("v_cndmask_b32 v9, v8, v9, vcc")
    a("s_and_b32 s66, s66, 0xffff0000"); a("s_cmp_lt_i32 s66, 0"); a("s_mov_b32 s3, 0xffff0000"); a("s_cselect_b32 s3, 0x80000000, s3"); a("s_xor_b32 s66, s66, s3")
    a(f"v_mov_b32 v11, {LOG2E|0x80000000:#x}"); a("v_mul_f32 v11, s66, v11"); a("v_exp_f32 v11, v11"); a("v_add_f32 v11, 1.0, v11"); a("v_rcp_f32 v11, v11")
    a("v_cvt_pk_bf16_f32 v11, v11, v11"); a("v_and_b32 v11, 0xffff0000, v11")
    a("s_waitcnt lgkmcnt(0)")
    for q in range(6): a(f"v_pk_add_f32 {vr(16+2*q,2)}, {vr(16+2*q,2)}, {vr(28+2*q,2)}")
    for q in range(3): a(f"v_pk_add_f32 {vr(16+2*q,2)}, {vr(16+2*q,2)}, {vr(22+2*q,2)}")
    a("v_pk_add_f32 v[16:17], v[16:17], v[18:19]"); a("v_pk_add_f32 v[16:17], v[16:17], v[20:21]"); a("v_add_f32 v16, v16, v17")
    a("v_cvt_pk_bf16_f32 v16, v16, v16"); a("v_and_b32 v16, 0xffff0000, v16"); a("v_mul_f32 v16, v16, v11")
    a(f"s_add_u32 s63, s63, {WS_Y}")
    a(f"buffer_store_dword v16, v9, {WS}, s63 offen sc1")
    a("s_branch L_h13")
    a.label("L_h12")
    a("s_waitcnt vmcnt(0)")
    a.label("L_h13")
    a("v_lshrrev_b32 v10, 5, v0"); a("v_and_b32 v11, 15, v0")
    woaddr()
    a("s_barrier")
    a.stampw(7)
    a("s_branch L_final")
    a.label("L_end")
    body, nn = hazard.fix(a.text() + "    s_endpgm\n")
    return body, nn


HEADER = open(os.path.join(os.path.dirname(os.path.abspath(__file__)), "header.txt")).read()

def full(extra=0, **kw):
    body, nn = gen(**kw)
    t = HEADER + f"; @launch grid=(256,1,1) block=(512,1,1) lds={LDS_BYTES}\n"
    if extra:
        l0 = f"; @launch kernel={NAME} grid=(256,1,1) block=(512,1,1) lds={LDS_BYTES}\n"
        l1 = "; @launch kernel=nop_kernel grid=(256,1,1) block=(256,1,1) lds=0\n"
        t = HEADER + (l0 + l1*extra if extra > 0 else l1*(-extra) + l0)
        body += ".p2align 8\n.globl nop_kernel\n.type nop_kernel,@function\nnop_kernel:\n    s_endpgm\n"
    t += f'.amdgcn_target "amdgcn-amd-amdhsa--gfx950"\n.text\n.globl {NAME}\n.p2align 12\n.p2align 8\n.type {NAME},@function\n{NAME}:\n'
    t += body
    t += f""".section .rodata,"a"
.p2align 6
.amdhsa_kernel {NAME}
  .amdhsa_next_free_vgpr 256
  .amdhsa_next_free_sgpr 102
  .amdhsa_accum_offset 256
  .amdhsa_group_segment_fixed_size 0
  .amdhsa_kernarg_size 96
  .amdhsa_user_sgpr_count 2
  .amdhsa_user_sgpr_kernarg_segment_ptr 1
  .amdhsa_system_sgpr_workgroup_id_x 1
.end_amdhsa_kernel
"""
    if extra:
        t += """.p2align 6
.amdhsa_kernel nop_kernel
  .amdhsa_next_free_vgpr 8
  .amdhsa_next_free_sgpr 16
  .amdhsa_accum_offset 8
  .amdhsa_group_segment_fixed_size 0
  .amdhsa_kernarg_size 96
  .amdhsa_user_sgpr_count 2
  .amdhsa_user_sgpr_kernarg_segment_ptr 1
  .amdhsa_system_sgpr_workgroup_id_x 1
.end_amdhsa_kernel
"""
    return t

if __name__ == "__main__":
    out = sys.argv[1] if len(sys.argv) > 1 else "parallel_sum__linear_kernel_hedgehog__moe_arch_mod__prompt.s"
    kw = {}
    for x in sys.argv[2:]:
        k, v = x.split("="); kw[k] = int(v)
    open(out, "w").write(full(**kw))
```

```python
import sys, os
sys.path.insert(0, os.path.dirname(os.path.abspath(__file__)))
from asmlib import Asm, vr, sr
import hazard

NAME = "parallel_sum__linear_kernel_hedgehog__moe_arch_mod__prompt_kernel"
S, D, F = 2048, 640, 1536
SENT = 0xFF81FF81
OOB = 0x7FF00000
WS_SM = 0x2000
WS_CS = 0x4000
WS_C1 = 0x8000
WS_FQ = 0xB000
WS_AH = 0x0000
WS_FH = 0x1000
WS_KH = 0xD000
WS_OH = 0xE000
WS_XID = 0xA000
WS_TOP = 0xA800
WS_Q = 0x10000
WS_CLR = WS_Q + 2621440
WS_GP = WS_CLR
WS_YP = WS_GP + 196608
WS_KV = WS_YP + 40960
assert WS_KV + 917504 <= WS_CLR + 512*3072
WS_O = WS_CLR + 512*3072
WS_END = WS_O + 2621440
WS_DIAG = 0x1000000
WS_BYTES = 1 << 28
WREG = 5152
SLOT = 16384 + 4*WREG
RING = 40960
RING_END = RING + 3*SLOT
TRI = 86016
MISC = RING_END
L_PHIO = MISC
L_STAT = L_PHIO + 1024
L_CS = L_STAT + 2048
L_KVR = L_CS + 1920
L_HM = L_KVR + 2048
L_OA = L_HM
L_RES = 102400
L_XCH = L_RES + 10240
L_OUTS = L_XCH + 20480
L_DI = 112640
L_XN = L_STAT
L_HB = L_CS
LDS_BYTES = 163840
sWV, sX, sJ, sJR = 4, 5, 6, 7
rX, rW, rWS, rWO, rOUT, rDBG, rPHI, rWR, rG, rU, rDN = 8, 12, 16, 20, 24, 28, 32, 36, 40, 44, 48
sSENT = 52
LOG2E = 0x3FB8AA3B
SPIN = 200000


class K(Asm):
    def __init__(self, diag):
        super().__init__()
        self.diag = diag
    def srdw(self, r, n):
        self(f"s_mov_b32 s{r+2}, {n}"); self(f"s_mov_b32 s{r+3}, 0x20000")
    def capture(self, fn):
        keep = self.L; self.L = []; fn(); lines = [x.strip() for x in self.L]; self.L = keep
        rd = lambda x: x.startswith(("s_cselect", "s_cbranch_scc", "s_addc"))
        wr = lambda x: x.startswith("s_") and not x.startswith(("s_mov", "s_mul", "s_cselect", "s_cbranch", "s_waitcnt", "s_getreg", "s_branch", "s_sleep", "s_nop"))
        units = [[]]; pend = set(); masked = False
        for i, x in enumerate(lines):
            units[-1].append(x)
            if x.endswith(":"): pend.discard(x[:-1])
            if x.endswith(":") and any(y.endswith(" " + x[:-1]) for y in lines[i:]): pend.add("loop" + x)
            if x.startswith(("s_cbranch", "s_branch")):
                t = x.split()[1]
                if t + ":" in lines[i:]: pend.add(t)
                elif not any(y.endswith(" " + t) for y in lines[i+1:]): pend.discard("loop" + t + ":")
            if x.startswith("s_mov_b64 exec"): masked = not x.endswith("-1")
            live = next((rd(y) for y in lines[i+1:] if rd(y) or wr(y)), False)
            if not live and not pend and not masked: units.append([])
        return ["\n".join(u) for u in units if u]
    mute = ()
    def stamp(self, i, force=False):
        if i in self.mute and not force: return
        if self.diag == 3: self(f"s_memtime s[{72+2*i}:{73+2*i}]")
        elif self.diag == 1 or (self.diag and i in (0, 11)): self(f"s_memrealtime s[{72+2*i}:{73+2*i}]")
    def stampw(self, i):
        if i in self.mute: return
        if self.diag == 3: self(f"s_memtime s[{72+2*i}:{73+2*i}]"); self("s_waitcnt lgkmcnt(0)")
        elif self.diag == 1 or (self.diag and i in (0, 11)): self(f"s_memrealtime s[{72+2*i}:{73+2*i}]"); self("s_waitcnt lgkmcnt(0)")
    def maxtree(self, dst, regs):
        regs = list(regs)
        if len(regs) == 1: self(f"v_mov_b32 v{dst}, v{regs[0]}"); return
        if len(regs) == 2: self(f"v_max_u32 v{dst}, v{regs[0]}, v{regs[1]}"); return
        self(f"v_max3_u32 v{dst}, v{regs[0]}, v{regs[1]}, v{regs[2]}"); regs = regs[3:]
        while len(regs) >= 2:
            self(f"v_max3_u32 v{dst}, v{dst}, v{regs[0]}, v{regs[1]}"); regs = regs[2:]
        if regs: self(f"v_max_u32 v{dst}, v{dst}, v{regs[0]}")
    def poll(self, loads, regs, tmp, code, pre_issued=False, sleep=0):
        top = self.newlab("L_poll"); chk = self.newlab("L_chk"); out = self.newlab("L_pdone")
        self("s_mov_b32 s3, 0")
        if pre_issued: self(f"s_branch {chk}")
        self.label(top)
        self("s_add_u32 s3, s3, 1"); self(f"s_cmp_gt_u32 s3, {SPIN}"); self(f"s_cbranch_scc1 {out}")
        if sleep: self(f"s_sleep {sleep}")
        for l in loads: self(l)
        self.label(chk)
        self("s_waitcnt vmcnt(0)")
        self.maxtree(tmp, regs)
        self(f"v_cmp_eq_u32 vcc, s{sSENT}, v{tmp}")
        self(f"s_cbranch_vccnz {top}")
        self.label(out)
    def cnt_add(self, n, soff, t, stride=7):
        self(f"v_lshlrev_b32 v{t}, {stride}, v0"); self(f"v_mov_b32 v{t+1}, 1")
        self(f"s_mov_b64 exec, {(1 << n) - 1:#x}")
        self(f"buffer_atomic_add v{t+1}, v{t}, s[{rWS}:{rWS+3}], {soff} offen sc1")
        self("s_mov_b64 exec, -1")
    def cnt_poll(self, n, va, soff, ve, t, cmp="ne"):
        top = self.newlab("L_cp"); out = self.newlab("L_cdone")
        self(f"s_mov_b64 exec, {(1 << n) - 1:#x}"); self("s_mov_b32 s3, 0")
        self.label(top)
        self(f"v_mov_b32 v{t}, 0")
        self("s_add_u32 s3, s3, 1"); self(f"s_cmp_gt_u32 s3, {SPIN}"); self(f"s_cbranch_scc1 {out}")
        self(f"buffer_atomic_or v{t}, v{va}, s[{rWS}:{rWS+3}], {soff} offen sc0 sc1")
        self("s_waitcnt vmcnt(0)")
        self(f"v_cmp_{cmp}_u32 vcc, {ve}, v{t}"); self(f"s_cbranch_vccnz {top}")
        self.label(out)
        self("s_mov_b64 exec, -1")
    def cnt_watch(self, n, va, soff, ve, t, work, pipelined):
        mask = f"{(1 << n) - 1:#x}"
        sample = lambda r: [f"v_mov_b32 v{r}, 0", f"buffer_atomic_or v{r}, v{va}, s[{rWS}:{rWS+3}], {soff} offen sc0 sc1"]
        if not pipelined:
            for x in sum(work, []): self(x)
            self.cnt_poll(n, va, soff, ve, t); return
        top = self.newlab("L_cw"); out = self.newlab("L_cwdone")
        for k in range(3):
            if work[k] is None: continue
            for x in work[k]: self(x)
            self(f"s_mov_b64 exec, {mask}")
            for x in sample(t + k): self(x)
            if k < 2: self("s_mov_b64 exec, -1")
        self("s_mov_b32 s3, 0")
        self.label(top)
        for k in range(3):
            self("s_waitcnt vmcnt(2)"); self(f"v_cmp_ne_u32 vcc, {ve}, v{t+k}"); self(f"s_cbranch_vccz {out}")
            for x in sample(t + k): self(x)
        self("s_add_u32 s3, s3, 1"); self(f"s_cmp_gt_u32 s3, {SPIN}"); self(f"s_cbranch_scc0 {top}")
        self.label(out)
        self("s_mov_b64 exec, -1")
    def readyload(self, v, va): return f"buffer_load_dword v{v}, v{va}, s[{rDBG}:{rDBG+3}], 0 offen sc1"
    def readyaddr(self, va): self(f"v_and_b32 v{va}, 31, v0"); self(f"v_lshlrev_b32 v{va}, 3, v{va}")
    def readycheck(self, v, va):
        top = self.newlab("L_rp"); out = self.newlab("L_rdone")
        self("s_mov_b32 s3, 0")
        self.label(top)
        self(f"v_cmp_eq_u32 vcc, 0, v{v}"); self(f"s_cbranch_vccz {out}")
        self("s_add_u32 s3, s3, 1"); self(f"s_cmp_gt_u32 s3, {SPIN}"); self(f"s_cbranch_scc1 {out}")
        self("s_sleep 8")
        self(self.readyload(v, va)); self("s_waitcnt vmcnt(0)")
        self(f"s_branch {top}")
        self.label(out)
    def recheck(self, loads, regs, tmp, sleep=0):
        ok = self.newlab("L_ok")
        self.maxtree(tmp, regs); self(f"v_cmp_eq_u32 vcc, s{sSENT}, v{tmp}"); self(f"s_cbranch_vccz {ok}")
        self.poll(loads, regs, tmp, 0, sleep=sleep)
        self.label(ok)
    def wavemax_u32(self, v, t, sdst):
        self(f"v_max_u32_dpp v{t}, v{v}, v{v} row_ror:8 row_mask:0xf bank_mask:0xf")
        for k in (4, 2, 1): self(f"v_max_u32_dpp v{t}, v{t}, v{t} row_ror:{k} row_mask:0xf bank_mask:0xf")
        self(f"v_readlane_b32 s{sdst}, v{t}, 0"); self(f"v_readlane_b32 s3, v{t}, 16")
        self(f"s_max_u32 s{sdst}, s{sdst}, s3")
        self(f"v_readlane_b32 s3, v{t}, 32"); self(f"s_max_u32 s{sdst}, s{sdst}, s3")
        self(f"v_readlane_b32 s3, v{t}, 48"); self(f"s_max_u32 s{sdst}, s{sdst}, s3")
    def top2(self, k1, k2, t, s1, s2):
        self.wavemax_u32(k1, t, s1)
        self(f"v_cmp_eq_u32 vcc, s{s1}, v{k1}")
        self(f"v_cndmask_b32 v{k1}, v{k1}, v{k2}, vcc")
        self.wavemax_u32(k1, t, s2)
    def rowsum16(self, v):
        for k in (8, 4, 2, 1): self(f"v_add_f32_dpp v{v}, v{v}, v{v} row_ror:{k} row_mask:0xf bank_mask:0xf")


def softmax_plain(P, O, t0, scale=None, npair=None):
    L = []
    a, b = t0, t0 + 1
    L.append(f"v_max3_f32 v{a}, v{P[0]}, v{P[1]}, v{P[2]}"); L.append(f"v_max3_f32 v{b}, v{P[3]}, v{P[4]}, v{P[5]}")
    for i in range(6, 18, 4):
        L.append(f"v_max3_f32 v{a}, v{a}, v{P[i]}, v{P[i+1]}"); L.append(f"v_max3_f32 v{b}, v{b}, v{P[i+2]}, v{P[i+3]}")
    L.append(f"v_max3_f32 v{a}, v{a}, v{P[18]}, v{P[19]}"); L.append(f"v_max_f32 v{a}, v{a}, v{b}")
    if scale is None:
        for i in range(20): L.append(f"v_sub_f32 v{P[i]}, v{P[i]}, v{a}")
    else:
        L.append(f"v_mul_f32 v{a}, v{scale}, v{a}")
        for i in range(20): L.append(f"v_fma_f32 v{P[i]}, v{P[i]}, v{scale}, -v{a}")
    for i in range(20): L.append(f"v_exp_f32 v{P[i]}, v{P[i]}")
    L.append(f"v_add_f32 v{a}, v{P[0]}, v{P[1]}"); L.append(f"v_add_f32 v{b}, v{P[2]}, v{P[3]}")
    for i in range(4, 20, 2): L.append(f"v_add_f32 v{a}, v{a}, v{P[i]}"); L.append(f"v_add_f32 v{b}, v{b}, v{P[i+1]}")
    L.append(f"v_add_f32 v{a}, v{a}, v{b}"); L.append(f"v_rcp_f32 v{a}, v{a}")
    if npair is not None: L.append(f"v_mul_f32 v{a}, v{a}, v{npair}")
    for i in range(20): L.append(f"v_mul_f32 v{P[i]}, v{P[i]}, v{a}")
    for i in range(0, 20, 2): L.append(f"v_cvt_pk_bf16_f32 v{O+i//2}, v{P[i]}, v{P[i+1]}")
    return L


def softmax_ops(P, O, cpair, t0, npair=None):
    L = []
    a, b = t0, t0 + 1
    L.append(f"v_max3_f32 v{a}, v{P[0]}, v{P[1]}, v{P[2]}"); L.append(f"v_max3_f32 v{b}, v{P[3]}, v{P[4]}, v{P[5]}")
    for i in range(6, 18, 4):
        L.append(f"v_max3_f32 v{a}, v{a}, v{P[i]}, v{P[i+1]}"); L.append(f"v_max3_f32 v{b}, v{b}, v{P[i+2]}, v{P[i+3]}")
    L.append(f"v_max3_f32 v{a}, v{a}, v{P[18]}, v{P[19]}"); L.append(f"v_max_f32 v{a}, v{a}, v{b}")
    L.append(f"v_mul_f32 v{cpair+1}, v{cpair}, v{a}")
    for i in range(0, 20, 2):
        L.append(f"v_pk_fma_f32 {vr(P[i],2)}, {vr(P[i],2)}, {vr(cpair,2)}, {vr(cpair,2)} op_sel:[0,0,1] op_sel_hi:[1,0,1] neg_lo:[0,0,1] neg_hi:[0,0,1]")
    for i in range(20): L.append(f"v_exp_f32 v{P[i]}, v{P[i]}")
    L.append(f"v_pk_add_f32 {vr(t0,2)}, {vr(P[0],2)}, {vr(P[2],2)}"); L.append(f"v_pk_add_f32 {vr(t0+2,2)}, {vr(P[4],2)}, {vr(P[6],2)}")
    for i in range(8, 20, 4):
        L.append(f"v_pk_add_f32 {vr(t0,2)}, {vr(t0,2)}, {vr(P[i],2)}"); L.append(f"v_pk_add_f32 {vr(t0+2,2)}, {vr(t0+2,2)}, {vr(P[i+2],2)}")
    L.append(f"v_pk_add_f32 {vr(t0,2)}, {vr(t0,2)}, {vr(t0+2,2)}")
    L.append(f"v_add_f32 v{a}, v{a}, v{b}"); L.append(f"v_rcp_f32 v{a}, v{a}")
    if npair is not None: L.append(f"v_mul_f32 v{a}, v{a}, v{npair}")
    for i in range(0, 20, 2): L.append(f"v_pk_mul_f32 {vr(P[i],2)}, {vr(P[i],2)}, {vr(t0,2)} op_sel_hi:[1,0]")
    for i in range(0, 20, 2): L.append(f"v_cvt_pk_bf16_f32 v{O+i//2}, v{P[i]}, v{P[i+1]}")
    return L


class VM:
    def __init__(self, a): self.a = a; self.ops = []
    def __call__(self, text, tag): self.a(text); self.ops.append(tag)
    def count(self, *tags, opt=False):
        last = max(i for i, t in enumerate(self.ops) if t in tags)
        return sum(1 for t in self.ops[last+1:] if opt or t != "opt")
    def wait(self, *tags, lgkm=False): self.a(f"s_waitcnt vmcnt({self.count(*tags)})" + (" lgkmcnt(0)" if lgkm else ""))


def gen(diag=False, touch=10, defer=8, rot=1, cpf=1, cut=0, noclr=0, outfl=0, f0=4, tch=0, hord=0, nowo=0, khe=5, ohe=1, loc=1, osam=30, f1=0, qw=0, thr=16, qt=1, qd=0, kd=0, kno=0, kpk=1, lpr=0, fl=1, kvp=1, rev=1, wv=1, wrt=1, n0=6, n1=4, pp=1, hk0=60, hk1=82):
    a = K(diag); a.mute = (4, 5, 12, 6, 7, 8) if kd else (6, 7, 8, 13) if qd else ()
    WS = f"s[{rWS}:{rWS+3}]"
    sK1, sK2 = 100, 101
    ACC = 16; SET = [96, 132]; XA = [168, 169]; MK, MV, EX = 170, 171, 172
    PA = 176; PX = 196; STAT = 208; AUG = 224
    E0, E1, E2, E3, E4 = 240, 241, 242, 243, 244
    KB, KA0, KA1, KP = 245, 247, 249, 251
    Pb = [96, 116]; PH = 156; CP = 234; TT = 236
    QF = 16; QF2 = 22; OA = 28; P0 = 40; P1 = 56; PHQ = 72; PHQ2 = 82; OT = 92; KL = 40
    FA = 16; OF = 36; WF = 76; WST = (176, 96)
    def lanefields():
        a("v_lshrrev_b32 v3, 4, v0"); a("v_bfe_u32 v4, v0, 2, 2"); a("v_and_b32 v5, 3, v0"); a("v_and_b32 v6, 15, v0")
    def kepi_addr(th, ch):
        a("v_and_b32 v7, 1, v0"); a("v_bfe_u32 v12, v0, 1, 1"); a("v_lshl_or_b32 v7, v12, 2, v7"); a("v_bfe_u32 v12, v0, 2, 1"); a("v_lshl_or_b32 v7, v12, 1, v7")
        a("v_lshlrev_b32 v7, 4, v7")
        a(f"s_lshl_b32 s3, {th}, 13"); a(f"s_add_u32 s3, s3, {TRI}"); a("v_lshl_add_u32 v7, v6, 7, v7"); a("v_add_u32 v7, s3, v7")
        a(f"s_lshl_b32 s58, {ch}, 15")
        a("v_lshrrev_b32 v12, 1, v3"); a("v_and_b32 v13, 1, v3")
        a("v_lshl_add_u32 v14, v12, 14, v7"); a("v_add_u32 v14, s58, v14")
        a("v_lshlrev_b32 v15, 5, v13"); a(f"v_xor_b32 v{E0}, v14, v15"); a(f"v_xor_b32 v{E1}, 16, v{E0}")
        a(f"v_xor_b32 v{E2}, 96, v14"); a(f"v_lshl_add_u32 v{E2}, v13, 3, v{E2}")
    def phi_addr(base):
        a("v_lshrrev_b32 v7, 1, v5")
        a("v_mul_u32_u24 v12, 640, v7"); a("v_lshl_add_u32 v13, v3, 2, v4"); a("v_mul_u32_u24 v13, 40, v13"); a(f"v_add3_u32 v12, v12, v13, {base}")
        a("v_mul_u32_u24 v13, 1440, v7"); a("v_mul_u32_u24 v14, 40, v4"); a(f"v_add3_u32 v13, v13, v14, {base}")
        a("v_bfe_u32 v7, v0, 3, 1"); a("v_add_u32 v14, -1, v7"); a("v_not_b32 v15, v14")
        a("v_cmp_eq_u32 vcc, v7, v3"); a("v_bfe_i32 v2, v0, 2, 1"); a("v_and_b32 v2, 0x80008000, v2"); a("v_cndmask_b32 v7, 0, -1, vcc")
    def phi_build():
        for T in range(5):
            a(f"ds_read_b64_tr_b16 {vr(PA+4*T,2)}, v12 offset:{160+8*T}"); a(f"ds_read_b64_tr_b16 {vr(PX+2*T,2)}, v13 offset:{8*T}")
        a("s_waitcnt lgkmcnt(0)")
        for T in range(5):
            for q in range(2):
                a(f"v_bitop3_b32 v{PA+4*T+2+q}, v{PA+4*T+q}, v2, v15 bitop3:0x28")
                a(f"v_bitop3_b32 v{PA+4*T+q}, v{PA+4*T+q}, v2, v14 bitop3:0x28")
                a(f"v_bitop3_b32 v{PX+2*T+q}, v{PX+2*T+q}, v2, v7 bitop3:0x28")
    def phi_mm(P, T):
        mm = [f"v_mfma_f32_16x16x32_bf16 {vr(P+4*u,4)}, {vr(PA+4*u,4)}, {vr(T,4)}, 0" for u in range(5)]
        return mm + [f"v_mfma_f32_16x16x16_bf16 {vr(P+4*u,4)}, {vr(PX+2*u,2)}, {vr(T+4,2)}, {vr(P+4*u,4)}" for u in range(5)]
    def ktile(m, P, packed, ins, k):
        if kno & 1: ins = [x for x in ins if "buffer" not in x]
        if kd: a.stamp((12, 6)[k], True)
        if packed: sm = [f"v_mov_b32 v{CP}, v{STAT+4*m+3}"] + softmax_ops(list(range(P, P+20)), PH, CP, TT, npair=STAT+4*m+2)
        else: sm = softmax_plain(list(range(P, P+20)), PH, TT, scale=STAT+4*m+3, npair=STAT+4*m+2)
        slots = [i for i, x in enumerate(sm) if x.startswith(("v_exp", "v_fma", "v_max3"))]
        at = {}
        for q, x in enumerate(ins): at.setdefault(slots[q*len(slots)//len(ins)], []).append(x)
        wr = {f"v{PH+3},": f"ds_write_b128 v{E0}, {vr(PH,4)} offset:{2048*m}", f"v{PH+7},": f"ds_write_b128 v{E1}, {vr(PH+4,4)} offset:{2048*m}", f"v{PH+9},": f"ds_write_b64 v{E2}, {vr(PH+8,2)} offset:{2048*m}"}
        for idx, x in enumerate(sm):
            a(x)
            for y in at.get(idx, []): a(y)
            if x.startswith("v_cvt_pk") and x.split()[1] in wr: a(wr[x.split()[1]])
    sHD, sT32, sQA, sFQ, sKVA, sO0, sO1, sHINT, sKHP, sF0, sF1, sF2, sOUT, sAUX, sOHP, sT16 = range(36, 52)
    def ohead(dst):
        a(f"s_lshr_b32 s{dst}, s{sJR}, 1"); a(f"s_sub_u32 s3, s{sJR}, 8"); a("s_cmp_lt_u32 s57, 4"); a(f"s_cselect_b32 s{dst}, s{dst}, s3")
        a(f"s_and_b32 s3, s{sX}, 1"); a(f"s_lshl4_add_u32 s{dst}, s3, s{dst}")
    def o_sgprs():
        ohead(sHD)
        a(f"s_and_b32 s3, s{sJR}, 1"); a("s_cmp_lt_u32 s57, 4"); a("s_cselect_b32 s3, s3, 0")
        a(f"s_and_b32 s{sT32}, s{sX}, 6"); a(f"s_add_u32 s{sT32}, s{sT32}, s3"); a(f"s_lshl3_add_u32 s{sT32}, s{sT32}, s{sWV}")
        a(f"s_lshl_b32 s3, s{sHD}, 6"); a(f"s_add_u32 s3, s3, s{sT32}"); a(f"s_mul_i32 s{sQA}, s3, 1280"); a(f"s_add_u32 s{sQA}, s{sQA}, {WS_Q}")
        a(f"s_and_b32 s{sFQ}, s{sT32}, 60"); a(f"s_lshr_b32 s3, s{sHD}, 3"); a(f"s_add_u32 s{sFQ}, s{sFQ}, s3"); a(f"s_lshl_b32 s{sFQ}, s{sFQ}, 7"); a(f"s_add_u32 s{sFQ}, s{sFQ}, {WS_FQ}")
        a(f"s_mul_i32 s{sKVA}, s{sHD}, 28672"); a(f"s_add_u32 s{sKVA}, s{sKVA}, {WS_KV}")
        a(f"s_mul_i32 s{sO0}, s{sT32}, 40960"); a(f"s_add_u32 s{sO0}, s{sO0}, {WS_O}"); a(f"s_lshl_b32 s3, s{sHD}, 7"); a(f"s_add_u32 s{sO1}, s{sO0}, s3"); a(f"s_add_u32 s{sO1}, s{sO1}, 16384")
        a(f"s_lshl2_add_u32 s{sO0}, s3, s{sO0}")
        a(f"s_and_b32 s3, s{sHD}, 28"); a(f"s_lshr_b32 s{sKHP}, s{sX}, 1"); a(f"s_add_u32 s3, s3, s{sKHP}"); a("s_lshl_b32 s3, s3, 7"); a(f"s_add_u32 s{sKHP}, s3, {WS_KH}")
    def o_vgprs(T):
        a(f"v_and_b32 v{T}, 31, v0"); a(f"v_lshlrev_b32 v1, 3, v{T}"); a(f"v_lshrrev_b32 v{T+1}, 5, v0"); a(f"v_mov_b32 v{T+2}, {OOB:#x}")
        a(f"s_lshl_b32 s3, s{sWV}, 6"); a("v_add_u32 v14, s3, v0"); a("v_cmp_lt_u32 vcc, 419, v14"); a("v_lshlrev_b32 v14, 2, v14")
        a(f"v_min_u32 v{T}, 20, v{T}"); a(f"v_cndmask_b32 v15, v14, v{T+2}, vcc"); a(f"v_add_u32 v14, {L_KVR}, v14")
        a(f"v_mul_u32_u24 v{T+3}, 21, v{T+1}"); a(f"v_add_u32 v{T}, v{T}, v{T+3}"); a(f"s_mov_b32 s3, {L_KVR}")
        a(f"v_lshl_add_u32 v254, v{T}, 3, s3"); a(f"v_lshl_add_u32 v207, v{T}, 4, s3"); a("v_mov_b32 v253, 0")
        a("v_bfe_u32 v12, v0, 4, 1"); a("v_mul_u32_u24 v12, 20480, v12"); a(f"v_and_b32 v{T}, 15, v0"); a("v_cmp_gt_u32 vcc, 32, v0")
        a(f"v_lshl_add_u32 v13, v{T}, 3, v12"); a(f"v_lshl_add_u32 v12, v{T}, 4, v12"); a(f"v_lshl_add_u32 v12, v{T+1}, 8, v12"); a(f"v_cndmask_b32 v13, v{T+2}, v13, vcc")
    def f_setup(T, kh):
        a(f"s_lshr_b32 s3, s{sJ}, 3"); a(f"s_lshl3_add_u32 s{sOHP}, s{sX}, s3"); a(f"s_lshl_b32 s{sOHP}, s{sOHP}, 7"); a(f"s_add_u32 s{sOHP}, s{sOHP}, {WS_OH}")
        a(f"s_lshl2_add_u32 s3, s{sX}, s3"); a(f"s_and_b32 s53, s{sWV}, 3"); a(f"s_lshl2_add_u32 s{sT16}, s3, s53")
        a(f"s_mul_i32 s{sOUT}, s{sT16}, 20480"); a(f"s_add_u32 s{sF0}, s{sOUT}, {WS_O + 8192*kh}"); a(f"s_add_u32 s{sF1}, s{sF0}, 4096"); a(f"s_add_u32 s{sF2}, s{sOUT}, {WS_O + 16384 + 2048*kh}")
        a(f"s_and_b32 s3, s{sJ}, 7"); a("s_mul_i32 s3, s3, 160"); a(f"s_add_u32 s{sOUT}, s{sOUT}, s3")
        if not kh: a(f"s_lshl_b32 s{sAUX}, s{sT16}, 6"); a(f"s_add_u32 s{sAUX}, s{sAUX}, {WS_SM}")
        a("v_lshlrev_b32 v7, 4, v0"); a(f"v_lshrrev_b32 v{T}, 4, v0"); a(f"v_bfe_u32 v{T+1}, v0, 2, 2"); a(f"v_and_b32 v{T+2}, 3, v0")
        a(f"v_mul_u32_u24 v{T+1}, 160, v{T+1}"); a(f"v_lshl_add_u32 v{T+1}, v{T+2}, 3, v{T+1}")
        if kh: a(f"v_add_u32 v{T+1}, 51200, v{T+1}")
        a(f"v_lshrrev_b32 v{T+2}, 5, v0"); a(f"v_mul_u32_u24 v{T+2}, 3200, v{T+2}"); a(f"v_and_b32 v6, 1, v{T}"); a("v_mul_u32_u24 v6, 640, v6"); a(f"v_add3_u32 v6, v6, v{T+2}, v{T+1}")
        a(f"v_mul_u32_u24 v2, 3200, v{T}"); a(f"v_add_u32 v2, v2, v{T+1}")
        a("s_mul_i32 s3, s53, 2560"); a(f"s_add_u32 s3, s3, {L_OUTS if kh else L_RES}")
        a(f"v_and_b32 v{T+1}, 15, v0"); a(f"v_mul_u32_u24 v3, 160, v{T+1}"); a(f"v_lshl_add_u32 v3, v{T}, 3, v3"); a("v_add_u32 v3, s3, v3")
        if kh: a("v_add_u32 v11, s3, v7")
        else: a(f"v_lshlrev_b32 v4, 2, v{T+1}")
        a("s_mul_i32 s3, s53, 5120"); a(f"s_add_u32 s3, s3, {L_XCH}"); a("v_add_u32 v5, s3, v7")
        if kh:
            a(f"v_mul_u32_u24 v{T}, 6554, v0"); a("s_movk_i32 s3, 1120"); a("v_cmp_gt_u32 vcc, 32, v0")
            for u in range(3):
                if u: a(f"v_add_u32 v{T}, {64*6554}, v{T}")
                a(f"v_lshrrev_b32 v{T+1}, 16, v{T}"); a(f"v_mad_u32_u24 v{8+u}, v{T+1}, s3, v7")
            a(f"v_mov_b32 v{T}, {OOB:#x}"); a(f"v_cndmask_b32 v10, v{T}, v10, vcc")
    qloads = [f"buffer_load_dwordx4 {vr(QF,4)}, v7, {WS}, s{sQA} offen sc1", f"buffer_load_dwordx2 {vr(QF+4,2)}, v1, {WS}, s{sQA} offen offset:1024 sc1"]
    fload = f"s_mov_b64 exec, 1\nbuffer_load_dword v253, off, {WS}, s{sFQ} sc1\ns_mov_b64 exec, -1"
    tload = f"s_mov_b32 s70, {WS_TOP}\nv_mov_b64 v[230:231], 0\ns_mov_b64 exec, 1\nbuffer_load_dwordx2 v[230:231], off, {WS}, s70 sc1\ns_mov_b64 exec, -1"
    oareads = [f"v_add_u32 v{OT}, {L_OA}, v7"] + [f"ds_read_b128 {vr(OA+4*i,4)}, v{OT} offset:{1024*i}" for i in range(3)]
    a("s_cmp_ge_u32 s2, 256"); a("s_cbranch_scc1 L_end")
    for r, off in ((rX, 0), (rW, 8), (rWS, 88), (rPHI, 16), (rWO, 24), (rOUT, 72), (rDBG, 80)):
        a(f"s_load_dwordx2 s[{r}:{r+1}], s[0:1], {off}")
    a.stamp(0)
    a("v_lshrrev_b32 v1, 6, v0"); a("v_and_b32 v0, 63, v0")
    a(f"s_lshr_b32 s{sJ}, s2, 3"); a(f"v_readfirstlane_b32 s{sWV}, v1")
    a(f"s_and_b32 s{sX}, s2, 7"); a(f"s_add_u32 s{sJR}, s{sJ}, 24"); a(f"s_and_b32 s{sJR}, s{sJR}, 31")
    if cpf:
        a(f"s_cmp_eq_u32 s{sWV}, 0"); a("s_cbranch_scc0 L_nopf")
        a("s_getpc_b64 s[96:97]"); a.label("L_pc")
        a("s_mov_b32 s98, L_end-L_pc"); a("s_mov_b32 s99, 0x20000")
        a(f"s_and_b32 s3, s{sJ}, 3"); a("s_lshl_b32 s3, s3, 13"); a("v_lshlrev_b32 v1, 7, v0")
        a("buffer_load_dword v255, v1, s[96:99], s3 offen")
        a.label("L_nopf")
    def srds():
        a.srdw(rWS, WS_BYTES); a.srdw(rPHI, 32*800); a.srdw(rWO, 0 if nowo else D*D*2); a.srdw(rOUT, S*D*2); a.srdw(rDBG, 256)
        a(f"s_mov_b32 s{sSENT}, {SENT:#x}")
    a.srdw(rX, S*D*2); a.srdw(rW, D*3*D*2)
    a(f"s_cmp_ge_u32 s{sJR}, 24"); a("s_cbranch_scc1 L_helper")
    a(f"s_lshr_b32 s54, s{sX}, 1"); a(f"s_and_b32 s3, s{sJR}, 3"); a("s_lshl2_add_u32 s54, s54, s3"); a(f"s_lshr_b32 s57, s{sJR}, 2")
    a(f"s_cmp_lt_u32 s{sWV}, 4"); a("s_cbranch_scc0 L_loader")
    a("s_setprio 3")
    a.srdw(rPHI, 32*800)
    ohead(59)
    a("s_lshl2_add_u32 s3, s3, s57"); a(f"s_and_b32 s60, s{sWV}, 1"); a("s_lshl1_add_u32 s3, s3, s60"); a("s_mul_i32 s58, s3, 1600")
    a(f"s_lshl_b32 s65, s{sWV}, 11"); a("s_mov_b32 m0, s65"); a("v_lshlrev_b32 v2, 4, v0"); a("v_lshlrev_b32 v3, 2, v0")
    a("s_mul_i32 s59, s59, 800"); a(f"s_lshl_b32 s3, s{sWV}, 8"); a("s_add_u32 s59, s59, s3")
    a("s_waitcnt lgkmcnt(0)")
    a(f"buffer_load_dwordx4 v2, s[{rPHI}:{rPHI+3}], s58 offen lds")
    a(f"buffer_load_dwordx4 v2, s[{rPHI}:{rPHI+3}], s58 offen offset:1024 lds")
    a(f"s_add_u32 m0, s3, {L_PHIO}")
    a(f"s_cmp_eq_u32 s{sJR}, 16")
    a(f"buffer_load_dword v3, s[{rPHI}:{rPHI+3}], s59 offen lds")
    a("s_cbranch_scc0 L_mfma")
    a.srdw(rWS, WS_BYTES)
    for q in range(4): a(f"v_mov_b32 v{12+q}, {SENT:#x}")
    a(f"s_lshl_b32 s3, s{sX}, 13"); a("s_add_u32 s3, s3, s65")
    for i in range(2): a(f"buffer_store_dwordx4 v[12:15], v2, {WS}, s3 offen offset:{1024*i} sc1")
    a("s_branch L_mfma")

    a.label("L_loader")
    a("s_setprio 2")
    a(f"s_and_b32 s3, s{sX}, 1"); a("s_mul_i32 s55, s3, 640")
    a("s_mul_i32 s58, s57, 160"); a("s_sub_u32 s59, s58, 1280")
    a("s_cmp_lt_u32 s57, 4")
    a("s_cselect_b32 s56, 1120, 0"); a("s_cselect_b32 s59, 1280, s59")
    a("s_add_u32 s55, s55, s58"); a("s_add_u32 s55, s55, s59")
    a(f"s_sub_u32 s60, s{sWV}, 4")
    XV = [16, 17, 18, 19]; WV = [20, 21, 22, 23, 24]; WOV = [224, 225, 226, 227, 228]
    a("v_lshrrev_b32 v8, 3, v0"); a("v_and_b32 v9, 7, v0")
    a("v_bfe_u32 v10, v0, 4, 1"); a("v_lshrrev_b32 v11, 5, v0"); a("v_lshl_add_u32 v10, v10, 1, v11")
    a("s_lshl2_add_u32 s3, s54, s60"); a("s_mul_i32 s3, s3, 40960")
    a("v_mul_u32_u24 v8, 1280, v8"); a("v_xor_b32 v9, v9, v10"); a("v_add_u32 v8, s3, v8")
    a(f"v_lshl_add_u32 v{XV[0]}, v9, 4, v8"); a(f"v_xor_b32 v11, 64, v{XV[0]}")
    a(f"v_add_u32 v{XV[1]}, {10240-1024}, v11"); a(f"v_add_u32 v{XV[2]}, {20480-2048}, v{XV[0]}"); a(f"v_add_u32 v{XV[3]}, {30720-3072}, v11")
    a("s_mul_i32 s3, s60, 61440"); a("s_add_u32 s3, s3, s55")
    a("s_lshl_b32 s61, s60, 12")
    a(f"s_mul_i32 s62, s60, {WREG}"); a("s_add_u32 s62, s62, 16384")
    a("s_movk_i32 s63, 3520")
    a("v_lshl_add_u32 v12, v0, 4, s3"); a("v_mul_u32_u24 v13, 6554, v0")
    for i in range(5):
        if i: a(f"v_add_u32 v13, {64*6554}, v13")
        a("v_lshrrev_b32 v10, 17, v13"); a("v_bfe_u32 v9, v13, 16, 1")
        a("v_mad_u32_u24 v8, v10, s63, v12"); a(f"v_mad_u32_u24 v{WV[i]}, v9, s56, v8")
    a(f"v_add_u32 v{WV[4]}, 4096, v{WV[4]}")
    if rot: a(f"s_xor_b32 s71, s{sJR}, s57"); a("s_bfe_u32 s63, s71, 0x10001"); a("s_and_b32 s71, s71, 1")
    else: a("s_mov_b32 s71, 0")
    a("s_waitcnt lgkmcnt(0)")
    if cut: a.stamp(10)
    vm = VM(a)
    def issue(c, extra=()):
        extra = list(extra); per = -(-len(extra) // 9)
        def more():
            for y in extra[:per]: a(y)
            del extra[:per]
        slot = RING + (c % 3)*SLOT
        xs = [f"buffer_load_dwordx4 v{XV[i]}, s[{rX}:{rX+3}], s65 offen offset:{1024*i} lds" for i in range(4)]
        ws = [f"buffer_load_dwordx4 v{WV[i]}, s[{rW}:{rW+3}], s66 offen offset:{1024*(i%4)} lds" for i in range(5)]
        a(f"s_xor_b32 s66, s71, {c}")
        a(f"s_add_u32 m0, s61, {slot}")
        a("s_lshl_b32 s65, s66, 7"); a("s_mul_i32 s66, s66, 245760")
        two = rev and (rev == 2 or c % 2 == 0)
        if two: a("s_cmp_eq_u32 s63, 0"); a(f"s_cbranch_scc0 L_rv{c}")
        assert not (two and extra)
        for x in xs: more(); vm(x, c)
        a(f"s_add_u32 m0, s62, {slot}")
        for x in ws[:4]: more(); vm(x, c)
        a("s_add_u32 m0, m0, 4096")
        more(); vm(ws[4], c)
        if two:
            a(f"s_branch L_re{c}"); a.label(f"L_rv{c}")
            a(f"s_add_u32 m0, s62, {slot + 4096}"); a(ws[4])
            a(f"s_add_u32 m0, s62, {slot}")
            for x in ws[3::-1]: a(x)
            a(f"s_add_u32 m0, s61, {slot}")
            for x in xs[::-1]: a(x)
            a.label(f"L_re{c}")
    def bar(c, *extra, lgkm=False):
        if vm.count(c, *extra, opt=True) != vm.count(c, *extra):
            lb = a.newlab("L_bw")
            a("s_cmp_lt_u32 s57, 4"); a(f"s_waitcnt vmcnt({vm.count(c, *extra, opt=True)})"); a(f"s_cbranch_scc0 {lb}"); vm.wait(c, *extra); a.label(lb)
        else: vm.wait(c, *extra, lgkm=lgkm)
        a("s_barrier")
        if cut and c < 8: a.stamp(c + 2)
    def wo_addr():
        a("v_mul_u32_u24 v98, 6554, v0"); a("v_lshlrev_b32 v97, 4, v0"); a("s_movk_i32 s3, 1120")
        for i in range(5):
            if i: a(f"v_add_u32 v98, {64*6554}, v98")
            a("v_lshrrev_b32 v96, 16, v98"); a(f"v_mad_u32_u24 v{WOV[i]}, v96, s3, v97")
        a(f"v_add_u32 v{WOV[4]}, 4096, v{WOV[4]}")
        a(f"s_and_b32 s67, s{sJ}, 7"); a("s_mul_i32 s67, s67, 160")
        a("s_mul_i32 s68, s60, 40960"); a("s_add_u32 s68, s68, s67")
        a("s_mul_i32 s69, s60, 5120")
        a(f"s_lshr_b32 s3, s{sJ}, 3"); a(f"s_lshl2_add_u32 s3, s{sX}, s3"); a("s_mul_i32 s67, s3, 81920"); a("s_add_u32 s67, s67, s68")
        a(f"s_bfe_u32 s3, s{sJ}, 0x10003" if wrt else "s_mov_b32 s3, 0")
        a("s_mul_i32 s98, s3, 163840"); a("s_add_u32 s96, s68, s98"); a("s_sub_u32 s98, s68, s98")
        a("s_mul_i32 s99, s3, 20480"); a("s_add_u32 s97, s69, s99"); a("s_sub_u32 s99, s69, s99")
    def unit_list(srd, soff, m0):
        L = [f"buffer_load_dwordx4 v{WOV[i]}, s[{srd}:{srd+3}], {soff} offen offset:{1024*i} lds" for i in range(4)]
        L[0] = f"s_add_u32 m0, s69, {m0}\ns_nop 0\n" + L[0]
        return L + [f"s_add_u32 m0, m0, 4096\ns_nop 0\nbuffer_load_dwordx4 v{WOV[4]}, s[{srd}:{srd+3}], {soff} offen lds"]
    def wo_list(r):
        L = unit_list(rWO, "s65", 20480*r)
        L[0] = L[0].replace("s_nop 0", f"s_add_u32 s65, s{68 if r == 4 else 96 + 2*(r&1)}, {163840*r}")
        if r < 4: L[0] = L[0].replace("m0, s69", f"m0, s{97 + 2*(r&1)}")
        return L
    def wo_round(r):
        for x in wo_list(r): vm(x, "wo")
    def wo_last():
        wo_round(4)
        lb = a.newlab("L_res")
        a(f"s_cmp_lt_u32 s{sWV}, 6"); a(f"s_cbranch_scc0 {lb}")
        for x in unit_list(rX, "s67", L_RES): a(x)
        a.label(lb)
    def set1():
        srds()
        lanefields()
        a("s_lshr_b32 s64, s60, 1"); a("s_and_b32 s53, s60, 1")
        kepi_addr("s64", "s53")
        a("s_lshl_b32 s3, s64, 10"); a(f"s_add_u32 s3, s3, {L_STAT}"); a("v_lshl_add_u32 v206, v6, 4, s3")
        a("s_lshl_b32 s64, s60, 11")
        phi_addr("s64")
    def set_o():
        o_sgprs(); o_vgprs(96); a.readyaddr(43)
        a(f"s_lshr_b32 s3, s{sT32}, 3"); a(f"s_and_b32 s53, s{sHD}, 1"); a("s_lshl1_add_u32 s3, s3, s53"); a("s_lshl_b32 s3, s3, 9"); a(f"s_add_u32 s{sHINT}, s3, {WS_OH}")
    def set_oa():
        a("v_lshrrev_b32 v96, 5, v0"); a("v_bfe_u32 v97, v0, 2, 2"); a("v_bfe_u32 v98, v0, 4, 1"); a("v_bfe_u32 v99, v0, 1, 1"); a("v_lshl_add_u32 v98, v98, 1, v99")
        a(f"s_bitcmp0_b32 s{sHD}, 0"); a("s_cselect_b32 s3, 160, 0"); a("s_cselect_b32 s53, 0, 640")
        a(f"s_add_u32 s3, s3, {L_PHIO}"); a(f"s_add_u32 s53, s53, {L_PHIO}")
        a("v_mul_u32_u24 v99, 40, v97"); a("v_add_u32 v100, s53, v99"); a("v_mul_u32_u24 v101, 320, v96"); a("v_add3_u32 v99, v99, v101, s3")
        a("v_lshl_add_u32 v101, v98, 3, v99"); a("v_lshl_add_u32 v98, v98, 3, v100")
        a(f"ds_read_b64_tr_b16 {vr(OA,2)}, v101"); a(f"ds_read_b64_tr_b16 {vr(OA+2,2)}, v101 offset:160")
        a(f"ds_read_b64_tr_b16 {vr(OA+4,2)}, v99 offset:32"); a(f"ds_read_b64_tr_b16 {vr(OA+6,2)}, v99 offset:192")
        a(f"ds_read_b64_tr_b16 {vr(OA+8,2)}, v98"); a(f"ds_read_b64_tr_b16 {vr(OA+10,2)}, v100 offset:32")
        a("v_bfe_i32 v102, v0, 2, 1"); a("v_and_b32 v102, 0x80008000, v102"); a("v_add_u32 v103, -1, v96"); a(f"v_add_u32 v104, {L_OA}, v7")
        a("s_waitcnt lgkmcnt(0)")
        for q in range(8): a(f"v_xor_b32 v{OA+q}, v102, v{OA+q}")
        for q in range(8, 12): a(f"v_bitop3_b32 v{OA+q}, v{OA+q}, v102, v103 bitop3:0x28")
        a("s_cmp_eq_u32 s60, 0"); a("s_cbranch_scc0 L_oa")
        for i in range(3): a(f"ds_write_b128 v104, {vr(OA+4*i,4)} offset:{1024*i}")
        a.label("L_oa")
    def set_st():
        wo_addr()
        a("v_and_b32 v56, 31, v0"); a("s_lshl2_add_u32 s3, s54, s60"); a("s_lshl_b32 s3, s3, 7"); a(f"s_add_u32 s3, s3, {WS_SM}")
        a("v_lshl_add_u32 v57, v56, 2, s3")
        a("s_lshr_b32 s58, s60, 1"); a("s_and_b32 s59, s60, 1")
        a("s_add_u32 s3, s56, 160"); a("s_mul_i32 s3, s3, s58"); a("s_add_u32 s3, s3, s55"); a("s_lshl_b32 s3, s3, 1")
        a("s_mul_i32 s53, s59, 7680"); a("s_add_u32 s3, s3, s53"); a(f"s_add_u32 s3, s3, {WS_CS}")
        a("v_min_u32 v59, 39, v0"); a("v_lshl_add_u32 v58, v59, 3, s3")
        a("s_lshl_b32 s3, s60, 9"); a(f"s_add_u32 s3, s3, {L_STAT}"); a("v_lshl_add_u32 v56, v56, 4, s3")
        a("s_mul_i32 s3, s59, 640"); a("s_mul_i32 s53, s58, 320"); a("s_add_u32 s3, s3, s53"); a(f"s_add_u32 s3, s3, {L_CS}"); a("v_lshl_add_u32 v68, v59, 3, s3")
        a("s_mul_i32 s3, s60, 160"); a(f"s_add_u32 s3, s3, {L_CS+1280}"); a("v_lshl_add_u32 v69, v59, 2, s3"); a("v_mov_b32 v61, 0")
        a("ds_write_b32 v69, v61")
    def set_xid():
        a.readycheck(42, 43)
        a("s_getreg_b32 s64, hwreg(HW_REG_XCC_ID)"); a(f"s_mul_i32 s70, s{sX}, 192"); a(f"s_add_u32 s70, s70, {WS_XID}")
        a("s_cmp_eq_u32 s60, 0"); a("s_cbranch_scc0 L_xid")
        a("v_mov_b32 v44, s64"); a(f"s_lshl3_add_u32 s3, s{sJR}, s70")
        a("s_mov_b64 exec, 1"); a(f"buffer_store_dword v44, off, {WS}, s3 sc1"); a("s_mov_b64 exec, -1")
        a.label("L_xid")
        a("v_min_u32 v45, 23, v0"); a("v_lshlrev_b32 v45, 3, v45")
    plan = {1: [set1], 3: [phi_build, set_o], 5: [lambda: f_setup(96, 1), set_oa], 7: [set_xid, set_st]}
    for c in range(10):
        extra = sum((a.capture(f) for f in plan.get(c, [])), [])
        if wv: issue(c, extra)
        else:
            issue(c)
            for y in extra: a(y)
        if c == 4: vm(a.readyload(42, 43), "rdy")
        if 0 < c < 9: bar(c - 1)
    statloads = [f"buffer_load_dword v60, v57, {WS}, 0 offen sc1", f"buffer_load_dwordx2 v[62:63], v58, {WS}, 0 offen sc1"]
    bar(8)
    a("s_cmp_lt_u32 s57, 4"); a("s_cbranch_scc1 L_nx")
    a(f"buffer_load_dword v44, v45, {WS}, s70 offen sc1")
    a.label("L_nx")
    for l in statloads: vm(l, "st")
    a("s_cmp_lt_u32 s57, 4"); a("s_cbranch_scc1 L_r0")
    if qt:
        a(f"s_and_b32 s3, s{sX}, 1"); a("s_lshl1_add_u32 s3, s3, s57"); a("s_sub_u32 s3, s3, 4"); a("s_lshl2_add_u32 s3, s3, s60"); a("s_mul_i32 s58, s3, 163840")
        a("s_mul_i32 s3, s54, 5120"); a("s_add_u32 s58, s58, s3"); a(f"s_add_u32 s58, s58, {WS_Q}"); a("s_add_u32 s59, s58, 81920")
        a("v_lshlrev_b32 v47, 7, v0"); a("s_mov_b32 exec_hi, 0xff")
        for r in (58, 59): a(f"buffer_load_dword v48, v47, {WS}, s{r} offen")
        a("s_mov_b32 exec_hi, -1")
        a(fload); a("v_mov_b32 v47, 0")
    if qw <= 0: a(f"s_waitcnt vmcnt({3 if qt else 0})"); a("s_branch L_r0d")
    a.label("L_r0")
    wo_round(0)
    a.label("L_r0d")
    bar(9, "st")
    a.stamp(1)
    if cut: a("s_barrier"); a("s_branch L_fin")
    a.recheck(statloads, [60, 62, 63], 41)
    a("ds_write_b64 v68, v[62:63]")
    a("v_and_b32 v66, 0xffff0000, v60"); a("v_rcp_f32 v66, v66")
    a("v_and_b32 v64, 0xffff, v60"); a("v_lshl_or_b32 v64, v64, 16, v64"); a("v_xor_b32 v64, 0x80008000, v64")
    a("v_lshrrev_b32 v65, 16, v60"); a(f"v_mul_f32 v67, {LOG2E:#x}, v66")
    a("ds_write_b128 v56, v[64:67]")
    a("s_cmp_lt_u32 s57, 4"); a("s_cbranch_scc0 L_lq")
    wo_round(1)
    a("s_waitcnt lgkmcnt(0)"); a.stamp(2); a("s_barrier")
    a(f"s_setprio {lpr}")
    for m in (2, 3): a(f"ds_read_b128 {vr(STAT+4*m,4)}, v206 offset:{256*m}")
    a(f"s_lshl_b32 s58, s{sX}, 7"); a("v_lshlrev_b32 v45, 10, v0"); a(f"v_mov_b32 v44, {SENT + 16:#x}")
    a(f"s_cmp_eq_u32 s{sWV}, 7"); a("s_cbranch_scc0 L_ah")
    a("s_mov_b64 exec, 15"); a("v_mov_b32 v44, 0"); a(f"buffer_atomic_or v44, v45, {WS}, s58 offen sc0 sc1"); a("s_mov_b64 exec, -1")
    a.label("L_ah")
    if not kno & 2: wo_round(2)
    if kd: a.stamp(8, True)
    a("s_barrier")
    if kd: a.stamp(4, True); a("s_waitcnt lgkmcnt(0)")
    for m in (2, 3):
        T = 136 + 6*(m-2)
        a(f"ds_read_b128 {vr(T,4)}, v{E0} offset:{2048*m}"); a(f"ds_read_b64 {vr(T+4,2)}, v{E2} offset:{2048*m}")
    a("s_waitcnt lgkmcnt(2)")
    for x in phi_mm(Pb[0], 136): a(x)
    a("s_waitcnt lgkmcnt(0)")
    mm3 = phi_mm(Pb[1], 142)
    for x in mm3[:3]: a(x)
    if fl == 0:
        ktile(2, Pb[0], False, mm3[3:] + [fload] + wo_list(3), 0)
        ktile(3, Pb[1], kpk, ["", "s_waitcnt vmcnt(5)\n" + qloads[0], qloads[1], ""], 1)
    else:
        ktile(2, Pb[0], False, mm3[3:] + wo_list(3), 0)
        ktile(3, Pb[1], kpk, [fload], 1)
        a("s_waitcnt vmcnt(0)")
        for l in qloads: a(l)
    def topcheck():
        a.recheck([tload], [230, 231], OT, sleep=8)
        a(f"v_readfirstlane_b32 s{sK1}, v230"); a(f"v_readfirstlane_b32 s{sK2}, v231")
    if kd: a.stamp(7, True)
    a(f"v_cmp_ne_u32 vcc, {SENT + 16:#x}, v44"); a("s_cbranch_vccz L_ah2")
    a.cnt_poll(4, 45, "s58", f"{SENT + 16:#x}", 44)
    a.label("L_ah2")
    a.stamp(3)
    a("s_mov_b32 s63, 1")
    if lpr: a("s_setprio 0")
    a("s_waitcnt lgkmcnt(0)"); a("s_barrier")
    a("s_waitcnt vmcnt(0)")
    a("s_branch L_qchk")
    a.label("L_lq")
    a("v_cmp_ne_u32 vcc, s64, v44"); a(f"v_mov_b32 v46, {L_KVR}"); a("s_or_b32 s64, vcc_lo, vcc_hi")
    if not loc: a("s_mov_b32 s64, 1")
    a("v_mov_b32 v44, s64")
    a("s_cmp_eq_u32 s60, 0"); a("s_cbranch_scc0 L_lq1")
    a("ds_write_b32 v46, v44")
    a.label("L_lq1")
    if qw == 2: wo_round(1)
    if qw == -1: wo_round(0)
    a(f"s_and_b32 s3, s{sX}, 1"); a("s_lshl1_add_u32 s3, s3, s57"); a("s_lshl2_add_u32 s3, s54, s3"); a("s_lshl_b32 s3, s3, 7"); a(f"s_add_u32 s3, s3, {WS_FQ - 512}")
    a("s_waitcnt lgkmcnt(0)"); a.stamp(2); a("s_barrier")
    a("s_setprio 0")
    a("s_cmp_eq_u32 s60, 0")
    a("s_barrier")
    a("s_cbranch_scc0 L_ophase")
    a("s_mov_b64 exec, 1"); a("s_cmp_eq_u32 s64, 0"); a("s_cbranch_scc1 L_lq2")
    a(f"buffer_store_dword v0, off, {WS}, s3 sc1"); a("s_mov_b64 exec, -1"); a("s_branch L_ophase")
    a.label("L_lq2")
    a(f"buffer_store_dword v0, off, {WS}, s3"); a("s_mov_b64 exec, -1"); a("s_branch L_ophase")

    a.label("L_mfma")
    a("s_setprio 0")
    srds()
    a(f"s_and_b32 s60, s{sWV}, 1"); a(f"s_lshr_b32 s61, s{sWV}, 1")
    lanefields()
    a(f"v_mul_u32_u24 v7, {WREG}, v3"); a("v_mul_u32_u24 v12, 320, v4"); a("s_movk_i32 s3, 16384"); a("v_add3_u32 v7, v7, v12, s3")
    a("s_mul_i32 s66, s60, 80"); a("s_sub_u32 s67, 240, s66")
    a("v_lshl_add_u32 v12, v5, 3, v7"); a("v_add_u32 v9, s66, v12"); a("v_add_u32 v10, s67, v12")
    a("v_mov_b32 v12, s66"); a("v_mov_b32 v13, s67"); a("v_cmp_lt_u32 vcc, 1, v5"); a("v_and_b32 v14, 1, v5"); a("v_mul_u32_u24 v14, 72, v14")
    a("v_cndmask_b32 v15, v12, v13, vcc"); a("v_add3_u32 v11, v7, v15, v14")
    a("v_and_b32 v7, 2, v0"); a("v_bfe_u32 v14, v0, 2, 1"); a("v_or_b32 v7, v7, v14"); a("v_bfe_u32 v14, v0, 3, 1"); a("v_lshl_add_u32 v7, v14, 2, v7")
    a("v_lshlrev_b32 v14, 1, v3"); a("v_xor_b32 v7, v7, v14"); a("v_lshlrev_b32 v7, 4, v7"); a("v_lshl_add_u32 v7, v6, 7, v7")
    a("s_lshl_b32 s3, s61, 13"); a("v_add_u32 v8, s3, v7")
    a(f"v_add_u32 v{XA[0]}, {RING}, v8"); a(f"v_add_u32 v{MK}, {RING}, v9"); a(f"v_add_u32 v{MV}, {RING}, v10"); a(f"v_add_u32 v{EX}, {RING}, v11")
    a(f"v_xor_b32 v{XA[1]}, 16, v{XA[0]}")
    a("v_min_u32 v7, 2, v3"); a("v_mul_u32_u24 v7, 640, v7"); a(f"v_add_u32 v7, {L_CS}, v7")
    a("v_lshl_add_u32 v14, v6, 2, v7"); a("v_lshl_add_u32 v173, v12, 1, v14"); a("v_lshl_add_u32 v174, v13, 1, v14")
    a("v_cmp_lt_u32 vcc, 1, v4"); a("v_and_b32 v14, 1, v4"); a("v_mul_u32_u24 v14, 144, v14")
    a("v_cndmask_b32 v15, v12, v13, vcc"); a("v_lshl_add_u32 v15, v15, 1, v14"); a("v_lshl_add_u32 v14, v5, 2, v7"); a("v_add_u32 v175, v14, v15")
    a("s_lshl_b32 s3, s61, 10"); a(f"s_add_u32 s3, s3, {L_STAT}"); a("v_lshl_add_u32 v206, v6, 4, s3")
    for r in range(0, 80, 2): a(f"v_mov_b64 {vr(ACC+r,2)}, 0")
    for r in range(0, 36, 2): a(f"v_mov_b64 {vr(SET[1]+r,2)}, 0")
    for t in range(5): a(f"v_mov_b32 v{AUG+2*t+1}, 0")
    kepi_addr("s61", "s60")
    a("s_sub_u32 s59, 32768, s58")
    a("v_add_u32 v14, s59, v7"); a("v_lshlrev_b32 v15, 4, v12"); a(f"v_xor_b32 v{E3}, 64, v14"); a(f"v_xor_b32 v{E3}, v{E3}, v15"); a(f"v_lshl_add_u32 v{E3}, v13, 3, v{E3}")
    a("v_xor_b32 v14, 112, v14"); a("v_lshl_add_u32 v14, v13, 14, v14"); a("v_xor_b32 v12, 1, v12"); a(f"v_lshl_add_u32 v{E4}, v12, 3, v14")
    a("v_lshrrev_b32 v7, 5, v0"); a("v_lshl_add_u32 v12, v7, 3, v4"); a("v_lshlrev_b32 v12, 7, v12")
    a("v_and_b32 v13, 1, v4"); a("v_lshrrev_b32 v14, 1, v4"); a("v_lshl_or_b32 v13, v14, 2, v13"); a("v_lshl_or_b32 v12, v13, 4, v12")
    a(f"s_lshl_b32 s3, s{sWV}, 14"); a(f"s_add_u32 s3, s3, {TRI}"); a("v_add_u32 v12, s3, v12")
    a("v_and_b32 v13, 1, v5"); a("v_lshrrev_b32 v14, 1, v5"); a("v_and_b32 v15, 1, v3")
    a(f"v_lshl_or_b32 v{KA0}, v13, 1, v15"); a(f"v_lshlrev_b32 v{KA0}, 4, v{KA0}"); a(f"v_xor_b32 v{KA0}, v{KA0}, v12"); a(f"v_lshl_add_u32 v{KA0}, v14, 3, v{KA0}")
    a(f"v_xor_b32 v{KA1}, 96, v12"); a(f"v_lshl_add_u32 v{KA1}, v13, 3, v{KA1}")
    a("s_cmp_eq_u32 s60, 0"); a("s_mov_b32 s3, 0xfffeba98"); a("s_cselect_b32 s3, 0xfffba98e, s3")
    a("v_lshl_add_u32 v13, v15, 2, v5"); a("v_lshlrev_b32 v13, 2, v13"); a("v_bfe_u32 v13, s3, v13, 4"); a("v_lshlrev_b32 v13, 3, v13")
    a(f"v_xor_b32 v{KB}, v13, v12")
    for r in (KB, KA0, KA1): a(f"v_xor_b32 v{r+1}, 32, v{r}")
    a("v_and_b32 v13, 31, v0"); a("v_mul_u32_u24 v14, 21, v7"); a("v_add_u32 v14, v14, v13"); a("v_cmp_lt_u32 vcc, 20, v13")
    a(f"v_mov_b32 v15, {OOB:#x}"); a(f"v_lshlrev_b32 v{KP}, 4, v14"); a(f"v_lshlrev_b32 v{KP+1}, 3, v14")
    a(f"v_cndmask_b32 v{KP}, v{KP}, v15, vcc"); a(f"v_cndmask_b32 v{KP+1}, v{KP+1}, v15, vcc")
    a(f"s_and_b32 s3, s{sX}, 1"); a("s_lshl2_add_u32 s3, s3, s57"); a(f"s_lshl2_add_u32 s3, s3, s{sWV}"); a("s_lshl4_add_u32 s3, s3, s54")
    a("s_mul_i32 s62, s3, 1792"); a(f"s_add_u32 s62, s62, {WS_KV}")
    a("s_cmp_lt_u32 s57, 4"); a("s_cbranch_scc0 L_qaddr")
    a.label("L_qaret")
    o_sgprs()
    a(f"s_and_b32 s3, s{sX}, 1"); a("s_lshl2_add_u32 s3, s3, s57"); a("s_lshl_b32 s3, s3, 9"); a(f"s_add_u32 s3, s3, {WS_KH}")
    a(f"s_cmp_eq_u32 s{sWV}, 3"); a(f"s_cselect_b32 s{sHINT}, s3, {OOB:#x}")
    phi_addr("s65")
    a("s_mov_b32 s68, 0"); a(f"s_mov_b32 s69, {RING}")
    a("s_waitcnt vmcnt(0)")
    a(f"s_cmp_eq_u32 s{sJR}, 16"); a("s_cbranch_scc0 L_nb")
    a(f"s_lshl2_add_u32 s3, s{sX}, s{sWV}"); a("s_lshl_b32 s3, s3, 3"); a("v_mov_b32 v96, 1")
    a("s_mov_b64 exec, 1"); a(f"buffer_store_dword v96, off, s[{rDBG}:{rDBG+3}], s3 sc1"); a("s_mov_b64 exec, -1")
    a.label("L_nb")
    phi_build()
    o_vgprs(96); f_setup(96, 0)
    def reads(s, st):
        X = [f"ds_read_b128 {vr(st+4*m,4)}, v{XA[s]} offset:{2048*m}" for m in range(4)]
        Wr = []
        for t in range(5):
            for j in range(2):
                reg = [MK, MK, MV, MV, EX][t]; off = s*2560 + j*1280 + [8, 40, 8, 40, 0][t]
                Wr.append(f"ds_read_b64_tr_b16 {vr(st+16+4*t+2*j,2)}, v{reg} offset:{off}")
        return [X[0]] + Wr[0:2] + X[1:] + Wr[2:]
    def mf(i, st):
        t, m = divmod(i, 4)
        return f"v_mfma_f32_16x16x32_bf16 {vr(ACC+20*m+4*t,4)}, {vr(st+16+4*t,4)}, {vr(st+4*m,4)}, {vr(ACC+20*m+4*t,4)}"
    need = lambda i: (3 + i if i < 4 else 6 + 2*(i//4))
    R0 = reads(0, SET[0]); R1 = reads(1, SET[1])
    seq = [(i, 1) for i in range(20 - defer, 20)] + [(i, 0) for i in range(20)] + [(i, 1) for i in range(20 - defer)]
    fill = [[] for _ in seq]
    k = 0; g = 0
    while k < 14: fill[g] += R0[k:k+2]; k += 2; g += 1
    g = max(g, defer); k = 0
    while k < 14: fill[g].append(R1[k]); k += 1; g += 1
    fill[g] += [f"s_add_u32 s69, s69, {SLOT}", f"s_cmp_eq_u32 s69, {RING_END}", f"s_cselect_b32 s69, {RING}, s69"]
    for q, h in enumerate([f"v_add_u32 v{XA[0]}, s69, v8", f"v_add_u32 v{MK}, s69, v9", f"v_add_u32 v{MV}, s69, v10", f"v_add_u32 v{EX}, s69, v11", f"v_xor_b32 v{XA[1]}, 16, v{XA[0]}"]):
        fill[g+1+q].append(h)
    fill[g+6] += ["s_add_u32 s68, s68, 1", "s_cmp_lt_u32 s68, 10"]
    a.stampw(1)
    a.label("L_mloop")
    a("s_barrier")
    issued = 0; done = 0
    for idx, (i, st) in enumerate(seq):
        if idx >= defer:
            n = need(i) + (14 if st == 1 else 0)
            if idx == len(seq) - 1: n = 28
            if n > done: a(f"s_waitcnt lgkmcnt({min(15, issued - n)})"); done = n
        a(mf(i, SET[st]))
        for f in fill[idx]:
            if f.startswith("ds_"): issued += 1
            a(f)
    a("s_cbranch_scc1 L_mloop")
    a("s_barrier")
    RA = [f"ds_read_b128 {vr(STAT+4*m,4)}, v206 offset:{256*m}" for m in range(4)]
    RA += [f"ds_read_b32 v{AUG+2*t}, v{[173,173,174,174,175][t]} offset:{[16,80,16,80,0][t]}" for t in range(5)]
    k = 0
    for i in range(20 - defer, 20):
        a(mf(i, SET[1]))
        for r in RA[k:k+2]: a(r)
        k += 2
    for r in RA[k:]: a(r)
    a("s_waitcnt lgkmcnt(0)")
    aug = lambda m: [f"v_mfma_f32_16x16x16_bf16 {vr(ACC+20*m+4*t,4)}, {vr(AUG+2*t,2)}, {vr(STAT+4*m,2)}, {vr(ACC+20*m+4*t,4)}" for t in range(5)]
    a.stampw(2)
    for x in aug(2): a(x)
    if cut: a("s_branch L_fin")
    a("s_cmp_lt_u32 s57, 4"); a("s_cbranch_scc0 L_qepi")

    KT = [136, 142, 148, 166]; VT = [8, 172]
    def kcv(m): return [f"v_cvt_pk_bf16_f32 v{KT[m]+q}, v{ACC+20*m+4*t+2*h}, v{ACC+20*m+4*t+2*h+1}" for q, (t, h) in enumerate([(0,0),(0,1),(1,0),(1,1),(4,0),(4,1)])]
    def vwork(m):
        A = ACC + 20*m; T = VT[m & 1]; X = KT[m] + 4
        return [f"v_cvt_pk_bf16_f32 v{T+q}, v{A+8+2*q}, v{A+9+2*q}" for q in range(4)] + [
                f"v_cndmask_b32 v{X}, v{X}, v{STAT+4*m+1}, vcc", f"v_cndmask_b32 v{X+1}, v{X+1}, v{AUG+1}, vcc",
                f"ds_write_b64 v{E3}, {vr(T,2)} offset:{2048*m}", f"ds_write_b64 v{E3}, {vr(T+2,2)} offset:{16384+2048*m}", f"ds_write_b64 v{E4}, {vr(X,2)} offset:{2048*m}"]
    def weave(main, fillers, n):
        k = 0
        for x in main:
            a(x)
            for y in fillers[k:k+n]: a(y)
            k += n
        for y in fillers[k:]: a(y)
    a("v_cmp_gt_u32 vcc, 32, v0")
    hand = lambda m: [f"ds_write_b128 v{E0}, {vr(KT[m],4)} offset:{2048*m}", f"ds_write_b64 v{E2}, {vr(KT[m]+4,2)} offset:{2048*m}"]
    weave(aug(3), ["", ""] + kcv(2), 2)
    for x in hand(2): a(x)
    weave(aug(0), kcv(3) + hand(3), 2)
    weave(aug(1), ["", ""] + kcv(0), 2)
    if kd: a.stamp(8, True)
    a("s_waitcnt lgkmcnt(0)"); a("s_barrier")
    if kd: a.stamp(4, True)
    weave(phi_mm(Pb[0], KT[0]), kcv(1) + vwork(2) + vwork(3), 2)
    for x in vwork(0): a(x)
    ktile(0, Pb[0], False, phi_mm(Pb[1], KT[1]) + vwork(1), 0)
    ktile(1, Pb[1], kpk, oareads, 1)
    a(fload)
    if kd: a.stamp(7, True)
    if kvp: a("s_setprio 1")
    a("s_waitcnt lgkmcnt(0)"); a("s_barrier")
    a.stampw(3)
    D0, D1, FR = 96, 112, 128
    def kvreads(ks):
        f = FR + 12*(ks % 3)
        return [f"ds_read_b64_tr_b16 {vr(f+4*o+2*j,2)}, v{[KB,KA0,KA1][o]+j} offset:{2048*ks+512*j}" for o in range(3) for j in range(2)]
    for x in kvreads(0) + kvreads(1): a(x)
    a("v_lshlrev_b32 v8, 7, v0"); a("v_mov_b32 v9, 1")
    a("s_waitcnt vmcnt(0)")
    for l in qloads: a(l)
    khint = f"s_mov_b64 exec, 15\nbuffer_atomic_add v9, v8, {WS}, s{sHINT} offen sc1\ns_mov_b64 exec, -1"
    for ks in range(8):
        f = FR + 12*(ks % 3)
        if ks == khe: a(khint)
        a(f"s_waitcnt lgkmcnt({6 if ks < 7 else 0})")
        a(f"v_mfma_f32_32x32x16_bf16 {vr(D0,16)}, {vr(f+4,4)}, {vr(f,4)}, {vr(D0,16) if ks else 0}")
        if ks < 6:
            for x in kvreads(ks+2)[:3]: a(x)
        a(f"v_mfma_f32_32x32x16_bf16 {vr(D1,16)}, {vr(f+8,4)}, {vr(f,4)}, {vr(D1,16) if ks else 0}")
        if ks < 6:
            for x in kvreads(ks+2)[3:]: a(x)
    if khe == 8: a(khint)
    for q in range(4): a(f"v_cvt_pk_bf16_f32 v{FR+q}, v{D0+2*q}, v{D0+2*q+1}")
    a(f"buffer_store_dwordx4 {vr(FR,4)}, v{KP}, {WS}, s62 offen sc1")
    for q in range(4, 8): a(f"v_cvt_pk_bf16_f32 v{FR+q}, v{D0+2*q}, v{D0+2*q+1}")
    a(f"buffer_store_dwordx4 {vr(FR+4,4)}, v{KP}, {WS}, s62 offen offset:672 sc1")
    for q in range(8, 10): a(f"v_cvt_pk_bf16_f32 v{FR+q}, v{D0+2*q}, v{D0+2*q+1}")
    a(f"buffer_store_dwordx2 {vr(FR+8,2)}, v{KP+1}, {WS}, s62 offen offset:1344 sc1")
    if khe == 9: a(khint)
    a("s_mov_b32 s63, 0")
    if kvp: a("s_setprio 0")
    a(tload)
    a("s_waitcnt vmcnt(5)")
    a.label("L_qchk")
    a(f"v_cmp_eq_u32 vcc, s{sSENT}, v253"); a("s_cbranch_vccnz L_qlate")

    a.label("L_phi")
    a.stampw(4)
    a(f"v_mfma_f32_32x32x16_bf16 {vr(P0,16)}, {vr(OA,4)}, {vr(QF,4)}, 0")
    a(f"v_mfma_f32_32x32x8_bf16 {vr(P0,16)}, {vr(OA+8,2)}, {vr(QF+4,2)}, {vr(P0,16)}")
    a(f"v_mfma_f32_32x32x16_bf16 {vr(P1,16)}, {vr(OA+4,4)}, {vr(QF,4)}, 0")
    a(f"v_mfma_f32_32x32x8_bf16 {vr(P1,16)}, {vr(OA+10,2)}, {vr(QF+4,2)}, {vr(P1,16)}")
    a("s_mov_b32 s62, 0x00003f80"); a("s_mov_b32 s64, 0x3f800000"); a("s_mov_b32 s53, 0")
    for q in range(5): a(f"s_add_u32 s{[54,55,56,58,59][q]}, s{sKVA}, {5376*(q+1)}")
    a("s_and_b32 s3, s63, 1"); a(f"s_lshl3_add_u32 s3, s3, s{sWV}"); a("s_cmp_eq_u32 s3, 15")
    for n, x in enumerate(softmax_plain(list(range(P0, P0+20)), PHQ, OT)):
        if pp and n in (hk0, hk1): a(f"s_cbranch_scc1 L_hk{n}"); a.label(f"L_hr{n}")
        a(x)
    a.stampw(5)
    a("s_cmp_eq_u32 s63, 0"); a("s_cbranch_scc0 L_phix")
    a.label("L_kvwait")
    def woreads(st, dst):
        R = []
        for t in range(5):
            for j in range(2):
                if st < 8: R.append(f"ds_read_b64_tr_b16 {vr(dst+4*t+2*j,2)}, v6 offset:{6400*st+1280*j+32*t}")
                else: R.append(f"ds_read_b64_tr_b16 {vr(dst+4*t+2*j,2)}, v2 offset:{2560+25600*(st-8)+12800*j+32*t}")
        return R
    a("s_barrier")
    a.stampw(12)
    a.label("L_kfull")
    for p in range(16): a(f"buffer_load_dword v{KL+p}, v15, {WS}, s{[sKVA,54,55,56,58,59][p//3]} offen offset:{1792*(p%3)} sc1")
    a("v_mov_b64 v[16:17], 0"); a("v_mov_b64 v[18:19], 0"); a(f"v_mov_b32 v{OT}, 0")
    for p in range(0, 16, 2):
        if p % 4 == 0: a(f"s_waitcnt vmcnt({12-p})")
        for q in range(2): a(f"v_dot2c_f32_bf16 v{16+2*q}, s62, v{KL+p+q}"); a(f"v_dot2c_f32_bf16 v{17+2*q}, s64, v{KL+p+q}")
        a(f"v_max3_u32 v{OT}, v{OT}, v{KL+p}, v{KL+p+1}")
    a(f"v_cmp_eq_u32 vcc, s{sSENT}, v{OT}"); a("s_cbranch_vccnz L_kagain")
    a("v_pk_add_f32 v[16:17], v[16:17], v[18:19]"); a("v_cvt_pk_bf16_f32 v16, v16, v17")
    a("ds_write_b32 v14, v16")
    a.label("L_kred")
    a.stampw(6)
    a("s_waitcnt lgkmcnt(0)"); a("s_barrier")
    a(f"ds_read_b128 {vr(OA,4)}, v207"); a(f"ds_read_b128 {vr(OA+4,4)}, v207 offset:672"); a(f"ds_read_b64 {vr(OA+8,2)}, v254 offset:1344")
    def ohint():
        lb = a.newlab("L_oh")
        a(f"s_cmp_eq_u32 s{sWV}, 7"); a(f"s_cbranch_scc0 {lb}")
        a("s_mov_b64 exec, s[54:55]"); a(f"buffer_atomic_add v15, v14, {WS}, s{sHINT} offen sc1"); a("s_mov_b64 exec, -1")
        a.label(lb)
    def omfma(P, PHI): return [f"v_mfma_f32_32x32x16_bf16 {vr(P,16)}, {vr(OA,4)}, {vr(PHI,4)}, 0",
                               f"v_mfma_f32_32x32x16_bf16 {vr(P,16)}, {vr(OA+4,4)}, {vr(PHI+4,4)}, {vr(P,16)}",
                               f"v_mfma_f32_32x32x8_bf16 {vr(P,16)}, {vr(OA+8,2)}, {vr(PHI+8,2)}, {vr(P,16)}"]
    def ofin(P, T):
        a(f"v_add_f32 v16, 0x358637bd, v{P+12}"); a("v_rcp_f32 v16, v16")
        for q in range(8): a(f"v_mul_f32 v{P+q}, v{P+q}, v16")
        for q in range(4): a(f"v_cvt_pk_bf16_f32 v{T+q}, v{P+2*q}, v{P+2*q+1}")
        a(f"buffer_store_dwordx4 {vr(T,4)}, v12, {WS}, s{sO0} offen sc1")
        for q in range(8, 12): a(f"v_mul_f32 v{P+q}, v{P+q}, v16")
        for q in range(4, 6): a(f"v_cvt_pk_bf16_f32 v{T+q}, v{P+2*q}, v{P+2*q+1}")
        a(f"buffer_store_dwordx2 {vr(T+4,2)}, v13, {WS}, s{sO1} offen sc1")
    a("s_cmp_lt_u32 s57, 4"); a("s_cbranch_scc0 L_o2")
    for q, x in enumerate(omfma(P0, PHQ)): a(f"s_waitcnt lgkmcnt({2-q})"); a(x)
    a.label("L_o1")
    if ohe == 1: ohint()
    ofin(P0, 18)
    if ohe == 0: ohint()
    a.stampw(7)

    a.label("L_final")
    yloads = [f"buffer_load_dwordx4 {vr(OF+4*t,4)}, v15, {WS}, s60 offen offset:{512*t} sc1" for t in range(5)]
    RT = WF + 160
    wo_a = sum((woreads(st, WF + 20*st) for st in (0, 1, 2, 3, 8)), [])
    wo_b = sum((woreads(st, WF + 20*st) for st in (4, 5, 6, 7)), [])
    oloads = [f"buffer_load_dwordx4 {vr(OF+4*st,4)}, v7, {WS}, s{sF0+st//4} offen offset:{1024*(st%4)} sc1" for st in range(8)]
    oloads += [f"buffer_load_dwordx2 {vr(OF+32+2*q,2)}, v1, {WS}, s{sF2} offen offset:{512*q} sc1" for q in range(4)]
    a("v_lshlrev_b32 v1, 3, v0"); a("s_mov_b32 s63, 0")
    a(f"s_cmp_lt_u32 s{sWV}, 4"); a("s_cbranch_scc0 L_c2")
    topcheck()
    a.label("L_c1")
    a(f"buffer_load_dword v14, v4, {WS}, s{sAUX} offen sc1")
    a(f"s_not_b32 s3, s{sK1}"); a("s_bfe_u32 s3, s3, 0x70004"); a(f"s_cmp_eq_u32 s3, s{sT16}"); a("s_cselect_b32 s61, 1, 0")
    a(f"s_not_b32 s3, s{sK2}"); a("s_bfe_u32 s3, s3, 0x70004"); a(f"s_cmp_eq_u32 s3, s{sT16}"); a("s_cselect_b32 s3, 2, 0")
    a("s_or_b32 s61, s61, s3"); a("s_cbranch_scc1 L_y0")
    a.label("L_y1")
    for x in wo_a[:40] + wo_b: a(x)
    a("s_cmp_eq_u32 s61, 0")
    a("s_waitcnt vmcnt(0)")
    a("v_and_b32 v8, 0xffff0000, v14"); a("v_rcp_f32 v8, v8"); a("v_lshlrev_b32 v9, 16, v14")
    a("v_mul_f32 v9, v9, v8"); a("v_add_f32 v8, 1.0, v8")
    a("s_cbranch_scc0 L_y2")
    a.label("L_y3")
    a.stampw(8)
    a("s_barrier")
    a.stampw(13)
    for l in oloads[:n0]: a(l)
    for t in range(5): a(f"ds_read_b64 {vr(RT+10+2*t,2)}, v3 offset:{32*t}")
    a("s_cmp_eq_u32 s61, 0")
    a("s_waitcnt lgkmcnt(0)")
    for q in range(10):
        a(f"v_lshlrev_b32 v{RT+2*q}, 16, v{RT+10+q}"); a(f"v_and_b32 v{RT+2*q+1}, 0xffff0000, v{RT+10+q}")
    resfma = lambda d: [f"v_pk_fma_f32 {vr(d+2*q,2)}, {vr(RT+2*q,2)}, v[8:9], v[8:9] op_sel:[0,0,1] op_sel_hi:[1,0,1] neg_lo:[0,0,1] neg_hi:[0,0,1]" for q in range(10)]
    a("s_cbranch_scc0 L_y4")
    for x in resfma(FA): a(x)
    a.label("L_y5")
    for x in wo_a[40:]: a(x)
    last = woreads(9, WF)
    groups = ((0, 1), (2, 3), (4, 5), (6, 7), (8, 9)); ends = (2, 4, 6, 8, 12)
    def project(kh, n):
        todo = oloads[n:]
        def vtree(g_):
            r = OF + 8*g_
            return [f"s_waitcnt vmcnt({12 - len(todo) - ends[g_]})\nv_max3_u32 v13, v{r}, v{r+1}, v{r+2}", f"v_max3_u32 v12, v{r+3}, v{r+4}, v{r+5}", f"v_max3_u32 v13, v13, v{r+6}, v{r+7}",
                    "v_max_u32 v13, v13, v12", f"v_cmp_eq_u32 vcc, s{sSENT}, v13"]
        a("s_waitcnt lgkmcnt(10)")
        for x in vtree(0): a(x)
        for g_, steps in enumerate(groups):
            a("s_cbranch_vccnz L_oretry")
            a.label(f"L_og{5*kh+g_}")
            if g_ == 0: a.stampw(9)
            if g_ in (1, 4): a("s_waitcnt lgkmcnt(0)")
            if g_ == 4 and kh:
                a("s_barrier")
                for t in range(5): a(f"ds_read_b128 {vr(OF+4*t,4)}, v5 offset:{1024*t}")
            want = min(12, max(ends[min(g_+1, 4)], n + 2*(g_+1) + (2 if n + 2*(g_+1) > 8 else 0)))
            now = todo[:max(0, want - (12 - len(todo)))]; del todo[:len(now)]
            nxt_ = vtree(g_+1) if g_ < 4 else []
            for k, st in enumerate(steps):
                for t in range(5):
                    a(f"v_mfma_f32_16x16x32_bf16 {vr(FA+4*t,4)}, {vr(WF+20*(st%9)+4*t,4)}, {vr(OF+4*st,4)}, {vr(FA+4*t,4)}")
                    if k == 0 and t < len(now): a(now[t])
                    if st in (2, 4): a(last[5*(st//2-1)+t])
                    if k == 0 and t == 4 and g_ < 4: a(f"s_mov_b32 s63, {5*kh+g_+1}")
                    if k == 1 and nxt_: a(nxt_[t])
        assert not todo
    project(0, n0)
    for t in range(5): a(f"ds_write_b128 v5, {vr(FA+4*t,4)} offset:{1024*t}")
    a("s_waitcnt lgkmcnt(0)"); a("s_barrier")
    a("s_branch L_fin")
    a.label("L_c2")
    wo_last()
    a.label("L_c2h")
    for r in range(0, 20, 2): a(f"v_mov_b64 {vr(FA+r,2)}, 0")
    a("s_mov_b32 s63, 5")
    a(f"s_cmp_eq_u32 s{sWV}, 7"); a("s_cbranch_scc1 L_c7")
    for x in wo_a: a(x)
    a("s_waitcnt vmcnt(0)")
    a.label("L_c4")
    a.stampw(8)
    a("s_barrier")
    a.stampw(13)
    for l in oloads[:n1]: a(l)
    for x in wo_b: a(x)
    project(1, n1)
    a("s_waitcnt lgkmcnt(0)")
    for t in range(5):
        for q in range(4): a(f"v_add_f32 v{FA+4*t+q}, v{FA+4*t+q}, v{OF+4*t+q}")
        a(f"v_cvt_pk_bf16_f32 v{FA+4*t}, v{FA+4*t}, v{FA+4*t+1}"); a(f"v_cvt_pk_bf16_f32 v{FA+4*t+1}, v{FA+4*t+2}, v{FA+4*t+3}")
        a(f"ds_write_b64 v3, {vr(FA+4*t,2)} offset:{32*t}")
    a("s_waitcnt lgkmcnt(0)")
    for u in range(3): a(f"ds_read_b128 {vr(OF+4*u,4)}, v11 offset:{1024*u}")
    for u in range(3):
        a(f"s_waitcnt lgkmcnt({2-u})")
        a(f"buffer_store_dwordx4 {vr(OF+4*u,4)}, v{8+u}, s[{rOUT}:{rOUT+3}], s{sOUT} offen offset:{1024*u} {['', 'sc1', 'nt', 'sc0 sc1'][outfl]}")
    a.label("L_fin")
    if diag:
        if not cut: a.stampw(10)
        a("s_waitcnt vmcnt(0)")
        a.stampw(11)
        a(f"s_lshl3_add_u32 s3, s2, s{sWV}"); a("s_lshl_b32 s3, s3, 6"); a(f"s_add_u32 s3, s3, {WS_DIAG}")
        a("s_mov_b64 exec, 1")
        for i in range(14):
            a(f"v_mov_b32 v8, s{72+2*i}"); a(f"buffer_store_dword v8, off, {WS}, s3 offset:{4*i}")
    a("s_endpgm")

    a.label("L_oretry")
    a.poll(oloads, range(OF, OF+40), 13, 0)
    a(f"s_cmp_gt_u32 s3, {SPIN}"); a(f"s_cselect_b32 s{sSENT}, 1, s{sSENT}")
    for g_ in range(9): a(f"s_cmp_eq_u32 s63, {g_}"); a(f"s_cbranch_scc1 L_og{g_}")
    a("s_branch L_og9")
    a.label("L_y0")
    a("s_cmp_eq_u32 s61, 2"); a("s_cselect_b32 s60, 20480, 0"); a(f"s_cselect_b32 s{sK1}, s{sK2}, s{sK1}")
    a(f"s_and_b32 s3, s{sJ}, 7"); a("s_mul_i32 s3, s3, 2560"); a("s_add_u32 s60, s60, s3"); a(f"s_add_u32 s60, s60, {WS_YP}")
    a("v_and_b32 v15, 7, v0"); a("v_lshlrev_b32 v15, 4, v15"); a("v_and_b32 v13, 48, v0"); a("v_lshl_add_u32 v15, v13, 3, v15")
    for l in yloads: a(l)
    for r in range(0, 20, 2): a(f"v_mov_b64 {vr(FA+r,2)}, 0")
    a("s_branch L_y1")
    a.label("L_y2")
    a.recheck(yloads, range(OF, OF+20), 13)
    a(f"s_and_b32 s53, s{sK1}, 0xffff0000"); a("s_cmp_lt_i32 s53, 0"); a("s_mov_b32 s3, 0xffff0000"); a("s_cselect_b32 s3, 0x80000000, s3"); a("s_xor_b32 s53, s53, s3")
    a(f"v_mov_b32 v12, {LOG2E|0x80000000:#x}"); a("v_mul_f32 v12, s53, v12"); a("v_exp_f32 v12, v12"); a("v_add_f32 v12, 1.0, v12"); a("v_rcp_f32 v12, v12")
    a(f"s_andn2_b32 s3, 15, s{sK1}"); a("v_and_b32 v13, 15, v0"); a("v_cmp_eq_u32 vcc, s3, v13")
    a("v_cvt_pk_bf16_f32 v12, v12, v12"); a("v_and_b32 v12, 0xffff0000, v12")
    for ctl in ("quad_perm:[1,0,3,2]", "quad_perm:[2,3,0,1]", "row_half_mirror"):
        for q in range(20): a(f"v_add_f32_dpp v{OF+q}, v{OF+q}, v{OF+q} {ctl} row_mask:0xf bank_mask:0xf")
    a("s_mov_b64 exec, vcc")
    for q in range(0, 20, 2): a(f"v_pk_mul_f32 {vr(FA+q,2)}, {vr(OF+q,2)}, v[12:13] op_sel_hi:[1,0]")
    a("s_mov_b64 exec, -1")
    a("s_cmp_eq_u32 s61, 3"); a("s_cbranch_scc0 L_y3")
    a("s_mov_b32 s61, 2"); a(f"s_mov_b32 s{sK1}, s{sK2}"); a("s_add_u32 s60, s60, 20480"); a(f"v_mov_b32 v{OF}, s{sSENT}"); a("s_branch L_y2")
    a.label("L_y4")
    for x in resfma(RT): a(x)
    for q in range(0, 20, 2): a(f"v_pk_add_f32 {vr(FA+q,2)}, {vr(FA+q,2)}, {vr(RT+q,2)}")
    a("s_branch L_y5")
    a.label("L_c7")
    a("v_lshlrev_b32 v4, 9, v0")
    a.cnt_watch(2, 4, f"s{sOHP}", f"{SENT + 16:#x}", 12, [wo_a[:osam], wo_a[osam:(osam+50)//2], wo_a[(osam+50)//2:]], pp)
    a("s_branch L_c4")
    a.label("L_kagain")
    a("s_add_u32 s53, s53, 1"); a(f"s_cmp_gt_u32 s53, {SPIN}"); a("s_cbranch_scc0 L_kfull"); a("s_branch L_kred")
    a.label("L_qlate")
    a.poll([fload], [253], OT, 0)
    for l in qloads: a(l)
    a("s_waitcnt vmcnt(0)"); a("s_branch L_phi")

    a.label("L_qaddr")
    a(f"s_and_b32 s3, s{sX}, 1"); a("s_lshl1_add_u32 s3, s3, s57"); a("s_sub_u32 s3, s3, 4"); a("s_mul_i32 s58, s3, 655360")
    a("s_lshl1_add_u32 s3, s54, s61"); a("s_mul_i32 s3, s3, 2560"); a("s_add_u32 s58, s58, s3"); a(f"s_add_u32 s58, s58, {WS_Q}")
    a("s_mul_i32 s3, s60, 163840"); a("s_sub_u32 s62, 491520, s3")
    a("v_mov_b32 v12, s3"); a("v_mov_b32 v13, s62"); a("v_cmp_gt_u32 vcc, 32, v0")
    a("s_add_u32 s59, s58, s62"); a("s_add_u32 s62, s58, s3")
    a("v_and_b32 v7, 1, v3"); a("v_mul_u32_u24 v7, 81920, v7"); a("v_cndmask_b32 v12, v13, v12, vcc")
    a("v_lshrrev_b32 v14, 5, v0"); a("v_lshl_add_u32 v14, v14, 9, v7"); a(f"v_lshl_add_u32 v{E0}, v6, 4, v14")
    a("v_add_u32 v12, v12, v7"); a(f"v_lshl_add_u32 v{E1}, v6, 3, v12"); a(f"v_mov_b32 v{E2}, {L_KVR}")
    a("s_branch L_qaret")
    a.label("L_qepi")
    a(f"ds_read_b32 v{E3}, v{E2}")
    for x in aug(3) + aug(0) + aug(1): a(x)
    a("s_waitcnt lgkmcnt(0)"); a(f"v_readfirstlane_b32 s3, v{E3}"); a("s_cmp_eq_u32 s3, 0")
    for m in (2, 3, 0, 1):
        A = ACC + 20*m; T = 96 + 12*m
        for r in range(0, 20, 2): a(f"v_pk_mul_f32 {vr(A+r,2)}, {vr(A+r,2)}, {vr(STAT+4*m+2,2)} op_sel:[0,1] op_sel_hi:[1,1]")
        for q in range(10): a(f"v_cvt_pk_bf16_f32 v{T+q}, v{A+2*q}, v{A+2*q+1}")
        for q in (0, 1, 4, 5): a(f"v_permlane16_swap_b32 v{T+q}, v{T+q+2}")
        a(f"s_cbranch_scc1 L_qs{m}")
        for fl in ("sc1", ""):
            a(f"buffer_store_dwordx4 {vr(T,4)}, v{E0}, {WS}, s62 offen offset:{(m>>1)*1280+(m&1)*256} {fl}")
            a(f"buffer_store_dwordx4 {vr(T+4,4)}, v{E0}, {WS}, s59 offen offset:{(m>>1)*1280+(m&1)*256} {fl}")
            a(f"buffer_store_dwordx2 {vr(T+8,2)}, v{E1}, {WS}, s58 offen offset:{1024+(m>>1)*1280+(m&1)*128} {fl}")
            if fl: a(f"s_branch L_qe{m}"); a.label(f"L_qs{m}")
        a.label(f"L_qe{m}")
    a.stampw(3)
    for x in oareads: a(x)
    a("s_waitcnt vmcnt(0) lgkmcnt(0)"); a("s_barrier")
    a.label("L_ophase")
    if qd: a.stamp(6, True)
    a("v_lshlrev_b32 v252, 10, v0"); a("s_mov_b64 exec, 3")
    a.poll([f"buffer_load_dword v253, v252, {WS}, s{sFQ} offen sc1"], [253], OT, 0)
    a("s_mov_b64 exec, -1")
    if qd: a.stamp(7, True)
    for l in qloads: a(l)
    a(f"s_add_u32 s3, s{sQA}, 10240")
    a(f"buffer_load_dwordx4 {vr(QF2,4)}, v7, {WS}, s3 offen sc1"); a(f"buffer_load_dwordx2 {vr(QF2+4,2)}, v1, {WS}, s3 offen offset:1024 sc1")
    a("s_mov_b32 s63, 2")
    a(f"s_cmp_lt_u32 s{sWV}, 4"); a("s_waitcnt vmcnt(0)")
    if qd: a.stamp(8, True)
    a("s_cbranch_scc1 L_phi")
    wo_round(abs(qw)); wo_round(abs(qw) + 1)
    a("s_branch L_phi")
    a.label("L_phix")
    a("s_cmp_eq_u32 s63, 2"); a("s_cbranch_scc1 L_phiq")
    a(f"s_cmp_eq_u32 s{sWV}, 7"); a("s_cbranch_scc0 L_kvwait")
    a.cnt_watch(1, 0, f"s{sKHP}", f"{SENT + 16:#x}", 18, [None, None, []] if pp else [[], [], []], pp)
    a("s_barrier")
    a(f"s_lshl_b32 s53, s{sX}, 7"); a(f"s_add_u32 s53, s53, {WS_FH}"); a("v_lshlrev_b32 v16, 10, v0")
    a("v_lshrrev_b32 v14, 2, v0"); a("v_lshlrev_b32 v14, 9, v14"); a("v_lshl_add_u32 v14, v0, 7, v14"); a("v_mov_b32 v15, 1")
    a("s_cmp_lt_u32 s57, 4"); a("s_cselect_b64 s[54:55], 15, 0xff")
    a.cnt_poll(2, 16, "s53", f"{SENT + 32:#x}", 21)
    a("s_branch L_kred")
    for k, n in enumerate((hk0, hk1)):
        if pp:
            a.label(f"L_hk{n}")
            a("s_mov_b64 exec, 1"); a(f"v_mov_b32 v{18+k}, 0"); a(f"buffer_atomic_or v{18+k}, v0, {WS}, s{sKHP} offen sc0 sc1"); a("s_mov_b64 exec, -1"); a(f"s_branch L_hr{n}")
    a.label("L_phiq")
    if qd: a.stamp(13, True)
    a("s_mov_b32 s63, 0")
    a(tload)
    a(f"s_cmp_lt_u32 s{sWV}, 4"); a("s_cbranch_scc1 L_phiq2")
    a("s_mov_b32 s63, 3")
    for r in range(abs(qw) + 2, 4): wo_round(r)
    a.label("L_phiq2")
    for q in range(0, 10, 2): a(f"v_mov_b64 {vr(PHQ2+q,2)}, {vr(PHQ+q,2)}")
    for q in range(0, 6, 2): a(f"v_mov_b64 {vr(QF+q,2)}, {vr(QF2+q,2)}")
    a("s_branch L_phi")
    a.label("L_o2")
    m1 = omfma(P1, PHQ2); m0 = omfma(P0, PHQ)
    for q in range(3): a(f"s_waitcnt lgkmcnt({2-q})"); a(m1[q])
    for x in m0: a(x)
    ofin(P1, 24)
    a(f"s_add_u32 s{sO0}, s{sO0}, 327680"); a(f"s_add_u32 s{sO1}, s{sO1}, 327680")
    a("s_branch L_o1")

    a.label("L_helper")
    for r, off in ((rWR, 40), (rG, 48), (rU, 56), (rDN, 64)): a(f"s_load_dwordx2 s[{r}:{r+1}], s[0:1], {off}")
    a.srdw(rWR, D*2)
    XR, CR, WR, FF = 16, 36, 56, 76
    a(f"s_sub_u32 s54, s{sJR}, 24"); a(f"s_lshl3_add_u32 s55, s{sX}, s54")
    a(f"s_lshl3_add_u32 s56, s55, s{sWV}")
    a("v_lshrrev_b32 v3, 4, v0"); a("v_and_b32 v4, 15, v0"); a("v_lshlrev_b32 v4, 4, v4")
    a("s_lshl_b32 s3, s56, 2"); a("v_add_u32 v5, s3, v3"); a("s_movk_i32 s3, 1280"); a("v_mad_u32_u24 v6, v5, s3, v4")
    a(f"s_lshr_b32 s57, s{sX}, 1"); a(f"s_and_b32 s58, s{sX}, 1")
    a("s_lshl3_add_u32 s59, s57, s54"); a("s_lshr_b32 s60, s59, 1"); a("s_and_b32 s59, s59, 1")
    a("s_mul_i32 s3, s60, 52"); a("s_lshr_b32 s3, s3, 8"); a("s_add_u32 s3, s3, s58"); a("s_mul_i32 s3, s3, 640"); a("s_lshl_b32 s61, s60, 7"); a("s_add_u32 s61, s61, s3")
    a(f"s_lshr_b32 s3, s{sWV}, 2"); a("s_lshl1_add_u32 s3, s3, s59"); a(f"s_and_b32 s53, s{sWV}, 3"); a("s_lshl2_add_u32 s3, s3, s53"); a("s_mul_i32 s3, s3, 30720"); a("s_add_u32 s3, s3, s61")
    a("s_cmp_eq_u32 s60, 15"); a(f"s_cselect_b32 s3, {OOB:#x}, s3")
    a("v_lshrrev_b32 v7, 3, v0"); a("v_mul_u32_u24 v7, 3840, v7"); a("v_and_b32 v8, 7, v0"); a("v_lshl_add_u32 v7, v8, 4, v7"); a("v_add_u32 v7, s3, v7")
    a("s_waitcnt lgkmcnt(0)")
    if cut: a.stamp(3)
    hv = VM(a)
    def hload_pair(i):
        a(f"s_mov_b32 s62, {491520*i}")
        hv(f"buffer_load_dwordx4 {vr(XR+4*i,4)}, v6, s[{rX}:{rX+3}], 0 offen offset:{256*i}", "x")
        hv(f"buffer_load_dwordx4 {vr(CR+4*i,4)}, v7, s[{rW}:{rW+3}], s62 offen", "x")
    def htouch(i):
        a(f"s_mov_b32 s62, {491520*i}")
        a("s_mov_b64 exec, 0x3fffffff")
        hv(f"buffer_load_dword v116, v9, s[{rW}:{rW+3}], s62 offen", "t")
        a("s_mov_b64 exec, 0xff")
        hv(f"buffer_load_dword v116, v10, s[{rX}:{rX+3}], 0 offen offset:{256*i}", "t")
        a("s_mov_b64 exec, -1")
    order = [["L1", "L2", "T1", "L3", "T2", "L4", "T3", "L0", "T4"], ["L1", "T1", "L2", "T2", "L3", "L4", "L0", "T3", "T4"], ["L1", "L2", "L3", "T2", "L4", "L0", "T3", "T4"]][hord] if tch else ["L1", "L2", "L3", "L4", "L0"]
    for n, o in enumerate(order):
        if o[0] == "L": hload_pair(int(o[1]))
        else: htouch(int(o[1]))
        if n == 0 and tch:
            a("v_mul_u32_u24 v9, 13108, v0"); a("v_lshrrev_b32 v9, 16, v9"); a("v_mul_u32_u24 v9, 640, v9"); a("v_lshl_add_u32 v9, v0, 7, v9")
            a(f"s_lshl3_add_u32 s3, s54, s{sWV}"); a("s_mul_i32 s3, s3, 7680"); a("s_mul_i32 s53, s58, 640"); a("s_add_u32 s3, s3, s53"); a("v_add_u32 v9, s3, v9")
            a("s_xor_b32 s3, s56, 64"); a("s_mul_i32 s3, s3, 5120"); a("v_lshrrev_b32 v10, 1, v0"); a("v_mul_u32_u24 v10, 1280, v10"); a("v_and_b32 v11, 1, v0")
            a("v_lshl_add_u32 v10, v11, 7, v10"); a("v_add_u32 v10, s3, v10")
        if n < len(order) - 1: a("s_barrier")
    for i in range(5): hv(f"buffer_load_dwordx4 {vr(WR+4*i,4)}, v4, s[{rWR}:{rWR+3}], 0 offen offset:{256*i}", "wr")
    srds(); a.srdw(rG, D*F*2)
    a("v_lshlrev_b32 v2, 4, v0")
    for q in range(4): a(f"v_mov_b32 v{12+q}, s{sSENT}")
    a("s_mul_i32 s62, s56, 3072"); a(f"s_add_u32 s62, s62, {WS_CLR}")
    if noclr & 4: a(f"s_mov_b32 s62, {OOB:#x}")
    for i in range(3): hv(f"buffer_store_dwordx4 v[12:15], v2, {WS}, s62 offen offset:{1024*i} sc1", "clr")
    a("v_lshrrev_b32 v130, 3, v0"); a("v_mul_u32_u24 v130, 3072, v130"); a("v_lshl_add_u32 v130, v8, 4, v130")
    a(f"s_cmp_ge_u32 s{sWV}, 3"); a("s_cselect_b32 s64, 3, 0"); a(f"s_cselect_b64 s[{rG}:{rG+1}], s[{rU}:{rU+1}], s[{rG}:{rG+1}]")
    a(f"s_sub_u32 s65, s{sWV}, s64")
    a("s_mul_i32 s68, s54, 245760"); a(f"s_mul_i32 s3, s{sX}, 384"); a("s_add_u32 s68, s68, s3"); a("s_lshl_b32 s3, s65, 7"); a("s_add_u32 s68, s68, s3")
    a(f"s_mul_i32 s69, s{sWV}, 10240"); a("s_movk_i32 s70, 24576"); a("s_movk_i32 s71, 1024"); a("s_mov_b32 s67, -1")
    a(f"s_cmp_lt_u32 s{sWV}, 6"); a("s_cbranch_scc1 L_hsw")
    a(f"s_mov_b64 s[{rG}:{rG+1}], s[{rDN}:{rDN+1}]")
    a("v_mul_u32_u24 v130, 6554, v0"); a("v_lshrrev_b32 v130, 16, v130"); a("v_mul_u32_u24 v130, 1120, v130"); a("v_add_u32 v130, v130, v2")
    a(f"s_sub_u32 s3, 7, s{sWV}"); a(f"s_mul_i32 s69, s3, {960*(f0+f1)}"); a(f"s_add_u32 s69, s69, {L_DI}"); a(f"s_mul_i32 s3, s3, {7680*(f0+f1)}")
    a(f"s_mul_i32 s68, s{sX}, 245760"); a("s_add_u32 s68, s68, s3"); a("s_mul_i32 s3, s54, 160"); a("s_add_u32 s68, s68, s3")
    a("s_movk_i32 s70, 7680"); a("s_movk_i32 s71, 960"); a("s_mov_b32 s67, 0x0fffffff")
    a.label("L_hsw")
    def ffn_dma(n):
        if n == 0: return
        a("s_mov_b32 exec_hi, s67")
        for _ in range(n):
            a("s_mov_b32 m0, s69"); a("s_add_u32 s69, s69, s71")
            hv(f"buffer_load_dwordx4 v130, s[{rG}:{rG+3}], s68 offen lds", "f")
            a("s_add_u32 s68, s68, s70")
        a("s_mov_b32 exec_hi, -1")
    def oclear():
        a("s_mul_i32 s66, s56, 5120"); a(f"s_add_u32 s66, s66, {WS_O}"); a("s_add_u32 s63, s66, 4096")
        for i in range(5): hv(f"buffer_store_dwordx4 v[12:15], v2, {WS}, s{66 if i < 4 else 63} offen offset:{1024*(i%4)} sc1", "oc")
    a.readyaddr(117)
    hv.wait("x")
    a.stampw(1)
    hv(a.readyload(118, 117), "rdy")
    ffn_dma(f0)
    for q in range(20):
        a(f"v_lshlrev_b32 v{FF+2*q}, 16, v{XR+q}"); a(f"v_and_b32 v{FF+2*q+1}, 0xffff0000, v{XR+q}")
    a(f"v_pk_add_f32 v[120:121], {vr(FF,2)}, {vr(FF+2,2)}"); a(f"v_pk_add_f32 v[122:123], {vr(FF+4,2)}, {vr(FF+6,2)}")
    for q in range(8, 40, 4):
        a(f"v_pk_add_f32 v[120:121], v[120:121], {vr(FF+q,2)}"); a(f"v_pk_add_f32 v[122:123], v[122:123], {vr(FF+q+2,2)}")
    a("v_pk_add_f32 v[120:121], v[120:121], v[122:123]"); a("v_add_f32 v120, v120, v121")
    a.rowsum16(120)
    a("v_mul_f32 v120, 0x3acccccd, v120")
    ffn_dma(f1)
    for q in range(20): a(f"v_pk_add_f32 {vr(FF+2*q,2)}, {vr(FF+2*q,2)}, v[120:121] op_sel_hi:[1,0] neg_lo:[0,1] neg_hi:[0,1]")
    a(f"v_pk_mul_f32 v[122:123], {vr(FF,2)}, {vr(FF,2)}"); a(f"v_pk_mul_f32 v[124:125], {vr(FF+2,2)}, {vr(FF+2,2)}")
    for q in range(4, 40, 4):
        a(f"v_pk_fma_f32 v[122:123], {vr(FF+q,2)}, {vr(FF+q,2)}, v[122:123]"); a(f"v_pk_fma_f32 v[124:125], {vr(FF+q+2,2)}, {vr(FF+q+2,2)}, v[124:125]")
    a("v_pk_add_f32 v[122:123], v[122:123], v[124:125]"); a("v_add_f32 v122, v122, v123")
    a.rowsum16(122)
    a("v_mul_f32 v122, 0x3acccccd, v122")
    a("v_cvt_pk_bf16_f32 v122, v122, v122"); a("v_and_b32 v122, 0xffff0000, v122"); a("v_add_f32 v122, 0x3727c5ac, v122")
    a("v_cvt_pk_bf16_f32 v122, v122, v122"); a("v_and_b32 v122, 0xffff0000, v122"); a("v_sqrt_f32 v122, v122")
    a("v_cvt_pk_bf16_f32 v126, v120, v122")
    a("v_and_b32 v122, 0xffff0000, v126"); a("v_rcp_f32 v124, v122"); a("v_lshlrev_b32 v121, 16, v126")
    a("v_sub_f32 v121, v120, v121"); a("v_mul_f32 v125, v121, v124")
    a("v_mov_b32 v128, 0"); a("v_mov_b32 v129, 0")
    for q in range(20): a(f"v_pk_fma_f32 {vr(FF+2*q,2)}, {vr(FF+2*q,2)}, v[124:125], v[124:125] op_sel:[0,0,1] op_sel_hi:[1,0,1]")
    for q in range(20): a(f"v_cvt_pk_bf16_f32 v{XR+q}, v{FF+2*q}, v{FF+2*q+1}")
    hv.wait("wr")
    for q in range(20): a(f"v_dot2c_f32_bf16 v{128+(q&1)}, v{XR+q}, v{WR+q}")
    a("v_add_f32 v128, v128, v129")
    a.rowsum16(128)
    a("v_cvt_pk_bf16_f32 v128, v128, v128"); a("v_ashrrev_i32 v129, 31, v128"); a("v_or_b32 v129, 0x80000000, v129"); a("v_xor_b32 v128, v128, v129")
    a("v_and_b32 v128, 0xffff0000, v128"); a("v_sub_u32 v129, 2047, v5"); a("v_or_b32 v127, v128, v129")
    a(f"s_lshl_b32 s3, s{sWV}, 5"); a(f"s_add_u32 s3, s3, {L_HM}"); a("v_lshl_add_u32 v129, v3, 3, s3")
    a("ds_write_b64 v129, v[126:127]")
    a("s_mov_b32 s62, 0x00003f80"); a("s_mov_b32 s63, 0x3f800000")
    for r in range(0, 8, 2): a(f"v_mov_b64 {vr(FF+r,2)}, 0")
    for i in range(5):
        for q in range(4):
            a(f"v_dot2c_f32_bf16 v{FF+2*q}, s62, v{CR+4*i+q}"); a(f"v_dot2c_f32_bf16 v{FF+2*q+1}, s63, v{CR+4*i+q}")
    for q in range(4): a(f"v_permlane32_swap_b32 v{FF+q}, v{FF+q+4}")
    a(f"v_pk_add_f32 {vr(FF,2)}, {vr(FF,2)}, {vr(FF+4,2)}"); a(f"v_pk_add_f32 {vr(FF+2,2)}, {vr(FF+2,2)}, {vr(FF+6,2)}")
    for q in range(2): a(f"v_permlane16_swap_b32 v{FF+q}, v{FF+q+2}")
    a(f"v_pk_add_f32 {vr(FF,2)}, {vr(FF,2)}, {vr(FF+2,2)}")
    for q in range(2): a(f"v_add_f32_dpp v{FF+q}, v{FF+q}, v{FF+q} row_ror:8 row_mask:0xf bank_mask:0xf")
    a(f"s_lshl_b32 s3, s{sWV}, 8"); a(f"s_add_u32 s3, s3, {L_HM+256}"); a("v_lshl_add_u32 v129, v8, 5, s3"); a("v_lshl_add_u32 v129, v3, 3, v129")
    a(f"ds_write_b64 v129, {vr(FF,2)}")
    a(f"v_mov_b32 v39, {L_XN+512}"); a("v_mov_b64 v[120:121], 0"); a("ds_write_b64 v39, v[120:121] offset:16"); a("ds_write_b32 v39, v120 offset:24")
    hv.wait("clr", "rdy", lgkm=True)
    a.readycheck(118, 117)
    a("s_barrier")
    a(f"s_cmp_eq_u32 s{sWV}, 0"); a("s_cbranch_scc0 L_h3")
    a("v_and_b32 v129, 31, v0"); a(f"v_lshlrev_b32 v128, 3, v129"); a(f"v_add_u32 v128, {L_HM}, v128"); a("ds_read_b64 v[126:127], v128")
    a("v_lshlrev_b32 v119, 2, v0"); a(f"v_add_u32 v128, {L_HM+256}, v119")
    for q in range(8): a(f"ds_read_b32 v{FF+q}, v128 offset:{256*q}")
    a("s_lshl_b32 s62, s55, 7"); a(f"s_add_u32 s62, s62, {WS_SM}"); a("v_lshlrev_b32 v129, 2, v129"); a("v_mov_b32 v125, 0")
    a("s_lshl_b32 s63, s61, 1"); a("s_mul_i32 s3, s59, 7680"); a("s_add_u32 s63, s63, s3"); a(f"s_add_u32 s63, s63, {WS_CS}")
    a("s_cmp_eq_u32 s60, 15"); a(f"s_cselect_b32 s63, {OOB:#x}, s63")
    a("s_waitcnt lgkmcnt(0)")
    a(f"buffer_store_dword v126, v129, {WS}, s62 offen sc1")
    a(f"v_pk_add_f32 {vr(FF,2)}, {vr(FF,2)}, {vr(FF+2,2)}"); a(f"v_pk_add_f32 {vr(FF+4,2)}, {vr(FF+4,2)}, {vr(FF+6,2)}")
    a(f"v_pk_add_f32 {vr(FF,2)}, {vr(FF,2)}, {vr(FF+4,2)}"); a(f"v_add_f32 v{FF}, v{FF}, v{FF+1}")
    a(f"v_and_b32 v{FF+1}, 0xffff0000, v{FF}"); a(f"v_sub_f32 v{FF}, v{FF}, v{FF+1}"); a(f"v_cvt_pk_bf16_f32 v{FF}, v{FF+1}, v{FF}")
    a(f"buffer_store_dword v{FF}, v119, {WS}, s63 offen sc1")
    a.top2(127, 125, 124, 62, 63)
    a("v_mov_b32 v122, s62"); a("v_mov_b32 v123, s63"); a("s_lshl_b32 s62, s55, 7"); a(f"s_add_u32 s62, s62, {WS_C1}")
    a("s_getreg_b32 s3, hwreg(HW_REG_XCC_ID)"); a("v_mov_b32 v124, s3")
    a("s_mov_b64 exec, 1")
    a(f"buffer_store_dwordx3 v[122:124], off, {WS}, s62 sc1")
    a("s_mov_b64 exec, -1")
    a("s_and_b32 s3, s55, 3"); a("s_lshl_b32 s3, s3, 10")
    a.cnt_add(8, "s3", 126)
    a.label("L_h3")
    a("s_barrier")
    a.stampw(2)
    a(f"s_cmp_eq_u32 s{sWV}, 7"); a("s_cbranch_scc1 L_hroute")
    ffn_dma(10 - f0 - f1)
    a(f"s_cmp_eq_u32 s{sWV}, 6"); a("s_cbranch_scc0 L_h4")
    a("s_mov_b32 s53, 0")
    a.label("L_h4a"); ffn_dma(1); a("s_add_u32 s53, s53, 1"); a(f"s_cmp_lt_u32 s53, {22 - f0 - f1}"); a("s_cbranch_scc1 L_h4a")
    a.label("L_h4")
    a("s_mul_i32 s3, s56, 1600"); a("v_min_u32 v9, 12, v0"); a("v_lshlrev_b32 v9, 7, v9")
    a(f"buffer_load_dword v116, v9, s[{rWO}:{rWO+3}], s3 offen")
    oclear()
    a("s_or_b32 s3, s56, 7"); a("s_mul_i32 s3, s3, 5120"); a(f"s_lshl_b32 s53, s{sWV}, 10"); a("s_add_u32 s3, s3, s53"); a(f"s_add_u32 s3, s3, {WS_O}")
    a(f"s_cmp_lt_u32 s{sWV}, 5"); a(f"s_cselect_b32 s3, s3, {OOB:#x}")
    a(f"buffer_store_dwordx4 v[12:15], v2, {WS}, s3 offen sc1")
    if cut: a("s_branch L_fin")
    a("v_lshrrev_b32 v5, 5, v0"); a("v_bfe_u32 v4, v0, 2, 2"); a("v_lshl_add_u32 v6, v5, 3, v4"); a("v_and_b32 v11, 1, v0")
    a("v_bfe_u32 v9, v0, 4, 1"); a("v_and_b32 v131, 3, v0"); a("v_lshl_add_u32 v131, v9, 2, v131"); a("v_lshlrev_b32 v131, 3, v131")
    GB = 132; DG = 176
    a("v_and_b32 v26, 31, v0"); a("v_lshlrev_b32 v36, 2, v26"); a("s_movk_i32 s3, 768"); a("v_mad_u32_u24 v36, v5, s3, v36")
    a("s_mul_i32 s62, s55, 3072"); a("s_lshl_b32 s3, s64, 9"); a("s_add_u32 s62, s62, s3"); a("s_lshl_b32 s3, s65, 8"); a("s_add_u32 s62, s62, s3"); a(f"s_add_u32 s62, s62, {WS_GP}")
    a("s_mov_b32 s60, 0")
    wo_addr()
    a("v_mul_u32_u24 v10, 160, v11"); a("v_lshl_add_u32 v10, v5, 4, v10"); a(f"v_add_u32 v10, {L_XN}, v10")
    a("v_cmp_gt_u32 vcc, 32, v0")
    a(f"s_cmp_lt_u32 s{sWV}, 6"); a("s_cbranch_scc0 L_h5a")
    a(f"s_mul_i32 s3, s{sWV}, 10240"); a("v_lshl_add_u32 v9, v6, 7, v131"); a("v_add_u32 v9, s3, v9")
    a("s_waitcnt vmcnt(7)")
    for s_ in range(5):
        for nt in range(2):
            for j in range(2): a(f"ds_read_b64_tr_b16 {vr(GB+8*s_+4*nt+2*j,2)}, v9 offset:{2048*s_+512*j+64*nt}")
    a.label("L_h5a")
    def ldspoll(off, n):
        top = a.newlab("L_lp"); out = a.newlab("L_lo")
        a("s_mov_b32 s53, 0")
        a.label(top)
        a(f"ds_read_b32 v9, v39 offset:{off}"); a("s_add_u32 s53, s53, 1"); a(f"s_cmp_gt_u32 s53, {64*SPIN}"); a(f"s_cbranch_scc1 {out}")
        a("s_waitcnt lgkmcnt(0)"); a("v_readfirstlane_b32 s3, v9"); a(f"s_cmp_lt_u32 s3, {n}"); a(f"s_cbranch_scc1 {top}")
        a.label(out)
    a("s_waitcnt vmcnt(0) lgkmcnt(0)")
    a("v_mov_b32 v9, 1"); a("s_mov_b64 exec, 1"); a("ds_add_u32 v39, v9 offset:24"); a("s_mov_b64 exec, -1")
    ldspoll(24, 7)
    a.stampw(12)
    a(f"s_cmp_eq_u32 s{sWV}, 6"); a("s_cbranch_scc1 L_hbulk")
    a(f"s_cmp_eq_u32 s{sWV}, 5"); a("s_cbranch_scc0 L_h5b")
    a("s_and_b32 s3, s55, 1"); a("s_lshl_b32 s3, s3, 10"); a(f"s_add_u32 s3, s3, {WS_FH}")
    a.cnt_add(8, "s3", 120)
    a.label("L_h5b")
    a("v_and_b32 v9, 15, v0"); a("v_lshlrev_b32 v37, 3, v9"); a("v_mul_u32_u24 v38, 768, v3"); a("v_add_u32 v37, v37, v38")
    a("v_bfe_u32 v38, v0, 4, 1"); a("v_mul_u32_u24 v38, 384, v38"); a("v_lshl_add_u32 v38, v9, 2, v38"); a("v_lshl_add_u32 v38, v5, 1, v38")
    a(f"s_lshl_b32 s3, s{sWV}, 6"); a(f"s_add_u32 s3, s3, {L_HB}"); a("v_add_u32 v38, s3, v38")
    a(f"s_mul_i32 s66, s{sX}, 24576"); a(f"s_lshl_b32 s3, s{sWV}, 7"); a("s_add_u32 s66, s66, s3"); a(f"s_add_u32 s66, s66, {WS_GP}")
    gl = ["s_mov_b32 s63, s66"]
    for p in range(8):
        gl.append(f"buffer_load_dwordx2 {vr(FF+2*p,2)}, v37, {WS}, s63 offen offset:{3072*(p&1)} sc1")
        if p & 1 and p < 7: gl.append("s_add_u32 s63, s63, 6144")
    for x in gl: a(x)
    ldspoll(16, 1)
    a.stampw(3)
    a("ds_read_b96 v[122:124], v39")
    for s_ in range(5): a(f"ds_read_b128 {vr(XR+4*s_,4)}, v10 offset:{32*s_}")
    for s_ in range(5):
        a(f"s_waitcnt lgkmcnt({4-s_})")
        for nt in range(2): a(f"v_mfma_f32_32x32x16_bf16 {vr(DG+16*nt,16)}, {vr(XR+4*s_,4)}, {vr(GB+8*s_+4*nt,4)}, {vr(DG+16*nt,16) if s_ else 0}")
    a("v_readfirstlane_b32 s53, v124")
    for nt in range(2): a(f"v_cndmask_b32 v{120+nt}, v{DG+16*nt+1}, v{DG+16*nt}, vcc")
    a("s_cmp_eq_u32 s53, 0"); a("s_cbranch_scc1 L_h7")
    for nt in range(2): a(f"buffer_store_dword v{120+nt}, v36, {WS}, s62 offen offset:{128*nt} sc1")
    a("s_branch L_h8")
    a.label("L_h7")
    for nt in range(2): a(f"buffer_store_dword v{120+nt}, v36, {WS}, s62 offen offset:{128*nt}")
    a.label("L_h8")
    a.stampw(4)
    a("s_waitcnt vmcnt(0)")
    a.poll(gl, range(FF, FF+16), 10, 0)
    for q in range(4): a(f"v_pk_add_f32 {vr(FF+2*q,2)}, {vr(FF+2*q,2)}, {vr(FF+2*q+8,2)}")
    for q in range(2): a(f"v_pk_add_f32 {vr(FF+2*q,2)}, {vr(FF+2*q,2)}, {vr(FF+2*q+4,2)}")
    a(f"v_pk_add_f32 {vr(FF,2)}, {vr(FF,2)}, {vr(FF+2,2)}")
    a(f"v_permlane32_swap_b32 v{FF}, v{FF+1}")
    a(f"v_cvt_pk_bf16_f32 v120, v{FF}, v{FF+1}"); a("v_lshlrev_b32 v121, 16, v120"); a("v_and_b32 v120, 0xffff0000, v120")
    a(f"v_mul_f32 v119, {LOG2E|0x80000000:#x}, v121"); a("v_exp_f32 v119, v119"); a("v_add_f32 v119, 1.0, v119"); a("v_rcp_f32 v119, v119")
    a("v_mul_f32 v121, v121, v119"); a("v_cvt_pk_bf16_f32 v121, v121, v121"); a("v_and_b32 v121, 0xffff0000, v121")
    a("v_mul_f32 v121, v121, v120"); a("v_cvt_pk_bf16_f32 v121, v121, v121")
    a("ds_write_b16 v38, v121")
    a("v_mov_b32 v9, 1"); a("s_mov_b64 exec, 1"); a("ds_add_u32 v39, v9 offset:20"); a("s_mov_b64 exec, -1")
    a(f"s_cmp_lt_u32 s{sWV}, 5"); a("s_cbranch_scc0 L_h13")
    a("v_lshl_add_u32 v8, v3, 3, v4"); a("v_mul_u32_u24 v8, 160, v8"); a("v_and_b32 v10, 3, v0"); a("v_lshl_add_u32 v8, v10, 3, v8")
    a(f"s_lshl_b32 s3, s{sWV}, 5"); a(f"s_add_u32 s3, s3, {L_DI}"); a("v_add_u32 v8, s3, v8")
    for s_ in range(6):
        for j in range(2): a(f"ds_read_b64_tr_b16 {vr(GB+4*s_+2*j,2)}, v8 offset:{5120*s_+640*j}")
    a("v_mul_u32_u24 v10, 384, v11"); a("v_lshl_add_u32 v10, v3, 4, v10"); a(f"v_add_u32 v10, {L_HB}, v10")
    ldspoll(20, 6)
    a.stampw(5)
    for s_ in range(6):
        a(f"ds_read_b128 {vr(40+4*s_,4)}, v10 offset:{64*s_}")
    a("v_and_b32 v9, 3, v0"); a("v_lshlrev_b32 v9, 2, v9"); a("v_lshl_add_u32 v9, v4, 7, v9"); a("s_movk_i32 s3, 20480"); a("v_mad_u32_u24 v9, v3, s3, v9"); a("v_cmp_gt_u32 vcc, 16, v0")
    a(f"s_lshl_b32 s62, s{sX}, 4"); a("s_mul_i32 s3, s54, 2560"); a("s_add_u32 s62, s62, s3"); a(f"s_lshl_b32 s3, s{sWV}, 9"); a("s_add_u32 s62, s62, s3"); a(f"s_add_u32 s62, s62, {WS_YP}")
    a("s_waitcnt lgkmcnt(0)")
    for s_ in range(6): a(f"v_mfma_f32_16x16x32_bf16 {vr(DG,4)}, {vr(40+4*s_,4)}, {vr(GB+4*s_,4)}, {vr(DG,4) if s_ else 0}")
    a(f"v_cndmask_b32 v120, v{DG+1}, v{DG}, vcc")
    a("s_mov_b32 exec_hi, 0"); a(f"buffer_store_dword v120, v9, {WS}, s62 offen sc1"); a("s_mov_b32 exec_hi, -1")
    a.stampw(6)
    a("s_branch L_h13")
    a.label("L_hroute")
    a(f"s_lshl_b32 s53, s{sX}, 7"); a("v_lshlrev_b32 v124, 10, v0")
    a.cnt_poll(4, 124, "s53", f"{SENT + 16:#x}", 125)
    a("v_lshlrev_b32 v126, 7, v0"); a(f"v_add_u32 v126, {WS_C1}, v126")
    a.poll([f"buffer_load_dwordx3 v[122:124], v126, {WS}, 0 offen sc1"], [122, 123, 124], 125, 0)
    a("s_getreg_b32 s3, hwreg(HW_REG_XCC_ID)"); a("v_cmp_ne_u32 vcc, s3, v124"); a(f"s_lshl_b32 s3, s{sX}, 3"); a("s_lshr_b64 s[62:63], vcc, s3"); a("s_and_b32 s62, s62, 0xff")
    if not loc: a("s_mov_b32 s62, 1")
    a.top2(122, 123, 125, sK1, sK2)
    a(f"v_mov_b32 v122, s{sK1}"); a(f"v_mov_b32 v123, s{sK2}"); a("v_mov_b32 v124, s62"); a("ds_write_b96 v39, v[122:124]")
    a("s_cmp_eq_u32 s55, 0"); a(f"s_mov_b32 s3, {WS_TOP}"); a(f"s_cselect_b32 s3, s3, {OOB:#x}")
    a("s_mov_b64 exec, 1"); a(f"buffer_store_dwordx2 v[122:123], off, {WS}, s3 sc1"); a("s_mov_b64 exec, 0xfffff")
    a("v_cmp_lt_u32 vcc, 9, v0"); a("v_cndmask_b32 v9, v122, v123, vcc"); a("v_and_b32 v9, 0x7ff, v9"); a("v_sub_u32 v9, 2047, v9")
    a("v_lshlrev_b32 v10, 2, v9"); a(f"v_add_u32 v10, {WS_SM}, v10"); a("v_mul_u32_u24 v9, 1280, v9"); a("v_add_u32 v9, v9, v2")
    a("v_subrev_u32 v11, 160, v9"); a("v_cndmask_b32 v9, v9, v11, vcc"); a("s_mul_i32 s53, s54, 160")
    a(f"buffer_load_dwordx4 {vr(XR,4)}, v9, s[{rX}:{rX+3}], s53 offen")
    a.poll([f"buffer_load_dword v126, v10, {WS}, 0 offen sc1"], [126], 125, 0)
    a("v_and_b32 v122, 0xffff0000, v126"); a("v_rcp_f32 v124, v122"); a("v_lshlrev_b32 v120, 16, v126")
    for q in range(4):
        a(f"v_lshlrev_b32 v{FF+2*q}, 16, v{XR+q}"); a(f"v_and_b32 v{FF+2*q+1}, 0xffff0000, v{XR+q}")
    for q in range(4): a(f"v_pk_add_f32 {vr(FF+2*q,2)}, {vr(FF+2*q,2)}, v[120:121] op_sel_hi:[1,0] neg_lo:[0,1] neg_hi:[0,1]")
    for q in range(4): a(f"v_pk_mul_f32 {vr(FF+2*q,2)}, {vr(FF+2*q,2)}, v[124:125] op_sel_hi:[1,0]")
    for q in range(4): a(f"v_cvt_pk_bf16_f32 v{XR+q}, v{FF+2*q}, v{FF+2*q+1}")
    a(f"v_add_u32 v9, {L_XN}, v2"); a(f"ds_write_b128 v9, {vr(XR,4)}")
    a("s_mov_b64 exec, -1")
    a("v_mov_b32 v9, 1"); a("ds_write_b32 v39, v9 offset:16")
    if cut: a("s_branch L_fin")
    ldspoll(20, 6)
    a(f"s_lshl_b32 s53, s{sX}, 7"); a(f"s_add_u32 s53, s53, {WS_FH}"); a("v_lshlrev_b32 v9, 10, v0")
    a.cnt_poll(2, 9, "s53", f"{SENT + 32:#x}", 10)
    a("s_branch L_h13")
    a.label("L_hbulk")
    a(f"s_add_u32 s68, s68, {19*40960}"); a(f"s_mov_b32 s69, {19*5120}")
    a.label("L_hb1")
    for x in unit_list(rWO, "s68", 0): a(x)
    a(f"s_waitcnt vmcnt({thr})")
    a("s_sub_u32 s68, s68, 40960"); a("s_sub_u32 s69, s69, 5120"); a("s_cbranch_scc0 L_hb1")
    a("s_mov_b32 s69, 0")
    for x in unit_list(rX, "s67", L_RES): a(x)
    a("s_add_u32 s67, s67, 40960")
    for x in unit_list(rX, "s67", L_RES + 5120): a(x)
    a.label("L_h13")
    a(f"s_cmp_lt_u32 s{sWV}, 4"); a("s_cbranch_scc0 L_h14")
    f_setup(96, 0)
    a("s_branch L_h15")
    a.label("L_h14")
    f_setup(96, 1)
    a.label("L_h15")
    a("s_waitcnt vmcnt(0) lgkmcnt(0)"); a("s_barrier")
    a("ds_read_b64 v[122:123], v39"); a("s_waitcnt lgkmcnt(0)")
    a(f"v_readfirstlane_b32 s{sK1}, v122"); a(f"v_readfirstlane_b32 s{sK2}, v123")
    a.stampw(7)
    a("v_lshlrev_b32 v1, 3, v0"); a("s_mov_b32 s63, 0")
    a(f"s_cmp_lt_u32 s{sWV}, 4"); a("s_cbranch_scc1 L_c1"); a("s_branch L_c2h")
    a.label("L_end")
    body, nn = hazard.fix(a.text() + "    s_endpgm\n")
    return body, nn


HEADER = open(os.path.join(os.path.dirname(os.path.abspath(__file__)), "header.txt")).read()

def full(extra=0, **kw):
    body, nn = gen(**kw)
    t = HEADER + f"; @launch grid=(256,1,1) block=(512,1,1) lds={LDS_BYTES}\n"
    if extra:
        l0 = f"; @launch kernel={NAME} grid=(256,1,1) block=(512,1,1) lds={LDS_BYTES}\n"
        l1 = "; @launch kernel=nop_kernel grid=(256,1,1) block=(256,1,1) lds=0\n"
        t = HEADER + (l0 + l1*extra if extra > 0 else l1*(-extra) + l0)
        body += ".p2align 8\n.globl nop_kernel\n.type nop_kernel,@function\nnop_kernel:\n    s_endpgm\n"
    t += f'.amdgcn_target "amdgcn-amd-amdhsa--gfx950"\n.text\n.globl {NAME}\n.p2align 12\n.p2align 8\n.type {NAME},@function\n{NAME}:\n'
    t += body
    t += f""".section .rodata,"a"
.p2align 6
.amdhsa_kernel {NAME}
  .amdhsa_next_free_vgpr 256
  .amdhsa_next_free_sgpr 102
  .amdhsa_accum_offset 256
  .amdhsa_group_segment_fixed_size 0
  .amdhsa_kernarg_size 96
  .amdhsa_user_sgpr_count 2
  .amdhsa_user_sgpr_kernarg_segment_ptr 1
  .amdhsa_system_sgpr_workgroup_id_x 1
.end_amdhsa_kernel
"""
    if extra:
        t += """.p2align 6
.amdhsa_kernel nop_kernel
  .amdhsa_next_free_vgpr 8
  .amdhsa_next_free_sgpr 16
  .amdhsa_accum_offset 8
  .amdhsa_group_segment_fixed_size 0
  .amdhsa_kernarg_size 96
  .amdhsa_user_sgpr_count 2
  .amdhsa_user_sgpr_kernarg_segment_ptr 1
  .amdhsa_system_sgpr_workgroup_id_x 1
.end_amdhsa_kernel
"""
    return t

if __name__ == "__main__":
    out = sys.argv[1] if len(sys.argv) > 1 else "parallel_sum__linear_kernel_hedgehog__moe_arch_mod__prompt.s"
    kw = {}
    for x in sys.argv[2:]:
        k, v = x.split("="); kw[k] = int(v)
    open(out, "w").write(full(**kw))
```

```python
import sys, os
sys.path.insert(0, os.path.dirname(os.path.abspath(__file__)))
from asmlib import Asm, vr, sr
import hazard

NAME = "parallel_sum__linear_kernel_hedgehog__moe_arch_mod__prompt_kernel"
S, D, F = 2048, 640, 1536
SENT = 0xFF81FF81
OOB = 0x7FF00000
WS_SM = 0x2000
WS_CS = 0x4000
WS_C1 = 0x8000
WS_FQ = 0xB000
WS_AH = 0x0000
WS_FH = 0x1000
WS_KH = 0xD000
WS_OH = 0xE000
WS_XID = 0xA000
WS_TOP = 0xA800
WS_Q = 0x10000
WS_CLR = WS_Q + 2621440
WS_GP = WS_CLR
WS_YP = WS_GP + 196608
WS_KV = WS_YP + 40960
assert WS_KV + 917504 <= WS_CLR + 512*3072
WS_O = WS_CLR + 512*3072
WS_END = WS_O + 2621440
WS_DIAG = 0x1000000
WS_BYTES = 1 << 28
WREG = 5152
SLOT = 16384 + 4*WREG
RING = 40960
RING_END = RING + 3*SLOT
TRI = 86016
MISC = RING_END
L_PHIO = MISC
L_STAT = L_PHIO + 1024
L_CS = L_STAT + 2048
L_KVR = L_CS + 1920
L_HM = L_KVR + 2048
L_OA = L_HM
L_RES = 102400
L_XCH = L_RES + 10240
L_OUTS = L_XCH + 20480
L_DI = 112640
L_XN = L_STAT
L_HB = L_CS
LDS_BYTES = 163840
sWV, sX, sJ, sJR = 4, 5, 6, 7
rX, rW, rWS, rWO, rOUT, rDBG, rPHI, rWR, rG, rU, rDN = 8, 12, 16, 20, 24, 28, 32, 36, 40, 44, 48
sSENT = 52
LOG2E = 0x3FB8AA3B
SPIN = 200000


class K(Asm):
    def __init__(self, diag):
        super().__init__()
        self.diag = diag
    def srdw(self, r, n):
        self(f"s_mov_b32 s{r+2}, {n}"); self(f"s_mov_b32 s{r+3}, 0x20000")
    def capture(self, fn):
        keep = self.L; self.L = []; fn(); lines = [x.strip() for x in self.L]; self.L = keep
        rd = lambda x: x.startswith(("s_cselect", "s_cbranch_scc", "s_addc"))
        wr = lambda x: x.startswith("s_") and not x.startswith(("s_mov", "s_mul", "s_cselect", "s_cbranch", "s_waitcnt", "s_getreg", "s_branch", "s_sleep", "s_nop"))
        units = [[]]; pend = set(); masked = False
        for i, x in enumerate(lines):
            units[-1].append(x)
            if x.endswith(":"): pend.discard(x[:-1])
            if x.endswith(":") and any(y.endswith(" " + x[:-1]) for y in lines[i:]): pend.add("loop" + x)
            if x.startswith(("s_cbranch", "s_branch")):
                t = x.split()[1]
                if t + ":" in lines[i:]: pend.add(t)
                elif not any(y.endswith(" " + t) for y in lines[i+1:]): pend.discard("loop" + t + ":")
            if x.startswith("s_mov_b64 exec"): masked = not x.endswith("-1")
            live = next((rd(y) for y in lines[i+1:] if rd(y) or wr(y)), False)
            if not live and not pend and not masked: units.append([])
        return ["\n".join(u) for u in units if u]
    mute = ()
    def stamp(self, i, force=False):
        if i in self.mute and not force: return
        if self.diag == 4:
            if i in (0, self.probe): self(f"s_memrealtime s[{72+2*min(i,1)}:{73+2*min(i,1)}]")
            return
        if self.diag == 3: self(f"s_memtime s[{72+2*i}:{73+2*i}]")
        elif self.diag == 1 or (self.diag and i in (0, 11)): self(f"s_memrealtime s[{72+2*i}:{73+2*i}]")
    def stampw(self, i):
        if i in self.mute: return
        if self.diag == 4:
            if i == self.probe: self("s_memrealtime s[74:75]"); self("s_waitcnt lgkmcnt(0)")
            return
        if self.diag == 3: self(f"s_memtime s[{72+2*i}:{73+2*i}]"); self("s_waitcnt lgkmcnt(0)")
        elif self.diag == 1 or (self.diag and i in (0, 11)): self(f"s_memrealtime s[{72+2*i}:{73+2*i}]"); self("s_waitcnt lgkmcnt(0)")
    def maxtree(self, dst, regs):
        regs = list(regs)
        if len(regs) == 1: self(f"v_mov_b32 v{dst}, v{regs[0]}"); return
        if len(regs) == 2: self(f"v_max_u32 v{dst}, v{regs[0]}, v{regs[1]}"); return
        self(f"v_max3_u32 v{dst}, v{regs[0]}, v{regs[1]}, v{regs[2]}"); regs = regs[3:]
        while len(regs) >= 2:
            self(f"v_max3_u32 v{dst}, v{dst}, v{regs[0]}, v{regs[1]}"); regs = regs[2:]
        if regs: self(f"v_max_u32 v{dst}, v{dst}, v{regs[0]}")
    def poll(self, loads, regs, tmp, code, pre_issued=False, sleep=0):
        top = self.newlab("L_poll"); chk = self.newlab("L_chk"); out = self.newlab("L_pdone")
        self("s_mov_b32 s3, 0")
        if pre_issued: self(f"s_branch {chk}")
        self.label(top)
        self("s_add_u32 s3, s3, 1"); self(f"s_cmp_gt_u32 s3, {SPIN}"); self(f"s_cbranch_scc1 {out}")
        if sleep: self(f"s_sleep {sleep}")
        for l in loads: self(l)
        self.label(chk)
        self("s_waitcnt vmcnt(0)")
        self.maxtree(tmp, regs)
        self(f"v_cmp_eq_u32 vcc, s{sSENT}, v{tmp}")
        self(f"s_cbranch_vccnz {top}")
        self.label(out)
    def cnt_add(self, n, soff, t, stride=7):
        self(f"v_lshlrev_b32 v{t}, {stride}, v0"); self(f"v_mov_b32 v{t+1}, 1")
        self(f"s_mov_b64 exec, {(1 << n) - 1:#x}")
        self(f"buffer_atomic_add v{t+1}, v{t}, s[{rWS}:{rWS+3}], {soff} offen sc1")
        self("s_mov_b64 exec, -1")
    def cnt_poll(self, n, va, soff, ve, t, cmp="ne"):
        top = self.newlab("L_cp"); out = self.newlab("L_cdone")
        self(f"s_mov_b64 exec, {(1 << n) - 1:#x}"); self("s_mov_b32 s3, 0")
        self.label(top)
        self(f"v_mov_b32 v{t}, 0")
        self("s_add_u32 s3, s3, 1"); self(f"s_cmp_gt_u32 s3, {SPIN}"); self(f"s_cbranch_scc1 {out}")
        self(f"buffer_atomic_or v{t}, v{va}, s[{rWS}:{rWS+3}], {soff} offen sc0 sc1")
        self("s_waitcnt vmcnt(0)")
        self(f"v_cmp_{cmp}_u32 vcc, {ve}, v{t}"); self(f"s_cbranch_vccnz {top}")
        self.label(out)
        self("s_mov_b64 exec, -1")
    def cnt_watch(self, n, va, soff, ve, t, work, pipelined):
        mask = f"{(1 << n) - 1:#x}"
        sample = lambda r: [f"v_mov_b32 v{r}, 0", f"buffer_atomic_or v{r}, v{va}, s[{rWS}:{rWS+3}], {soff} offen sc0 sc1"]
        if not pipelined:
            for x in sum(work, []): self(x)
            self.cnt_poll(n, va, soff, ve, t); return
        top = self.newlab("L_cw"); out = self.newlab("L_cwdone")
        for k in range(3):
            if work[k] is None: continue
            for x in work[k]: self(x)
            self(f"s_mov_b64 exec, {mask}")
            for x in sample(t + k): self(x)
            if k < 2: self("s_mov_b64 exec, -1")
        self("s_mov_b32 s3, 0")
        self.label(top)
        for k in range(3):
            self("s_waitcnt vmcnt(2)"); self(f"v_cmp_ne_u32 vcc, {ve}, v{t+k}"); self(f"s_cbranch_vccz {out}")
            for x in sample(t + k): self(x)
        self("s_add_u32 s3, s3, 1"); self(f"s_cmp_gt_u32 s3, {SPIN}"); self(f"s_cbranch_scc0 {top}")
        self.label(out)
        self("s_mov_b64 exec, -1")
    def readyload(self, v, va): return f"buffer_load_dword v{v}, v{va}, s[{rDBG}:{rDBG+3}], 0 offen sc1"
    def readyaddr(self, va): self(f"v_and_b32 v{va}, 31, v0"); self(f"v_lshlrev_b32 v{va}, 3, v{va}")
    def readycheck(self, v, va):
        top = self.newlab("L_rp"); out = self.newlab("L_rdone")
        self("s_mov_b32 s3, 0")
        self.label(top)
        self(f"v_cmp_eq_u32 vcc, 0, v{v}"); self(f"s_cbranch_vccz {out}")
        self("s_add_u32 s3, s3, 1"); self(f"s_cmp_gt_u32 s3, {SPIN}"); self(f"s_cbranch_scc1 {out}")
        self("s_sleep 8")
        self(self.readyload(v, va)); self("s_waitcnt vmcnt(0)")
        self(f"s_branch {top}")
        self.label(out)
    def recheck(self, loads, regs, tmp, sleep=0):
        ok = self.newlab("L_ok")
        self.maxtree(tmp, regs); self(f"v_cmp_eq_u32 vcc, s{sSENT}, v{tmp}"); self(f"s_cbranch_vccz {ok}")
        self.poll(loads, regs, tmp, 0, sleep=sleep)
        self.label(ok)
    def wavemax_u32(self, v, t, sdst):
        self(f"v_max_u32_dpp v{t}, v{v}, v{v} row_ror:8 row_mask:0xf bank_mask:0xf")
        for k in (4, 2, 1): self(f"v_max_u32_dpp v{t}, v{t}, v{t} row_ror:{k} row_mask:0xf bank_mask:0xf")
        self(f"v_readlane_b32 s{sdst}, v{t}, 0"); self(f"v_readlane_b32 s3, v{t}, 16")
        self(f"s_max_u32 s{sdst}, s{sdst}, s3")
        self(f"v_readlane_b32 s3, v{t}, 32"); self(f"s_max_u32 s{sdst}, s{sdst}, s3")
        self(f"v_readlane_b32 s3, v{t}, 48"); self(f"s_max_u32 s{sdst}, s{sdst}, s3")
    def top2(self, k1, k2, t, s1, s2):
        self.wavemax_u32(k1, t, s1)
        self(f"v_cmp_eq_u32 vcc, s{s1}, v{k1}")
        self(f"v_cndmask_b32 v{k1}, v{k1}, v{k2}, vcc")
        self.wavemax_u32(k1, t, s2)
    def rowsum16(self, v):
        for k in (8, 4, 2, 1): self(f"v_add_f32_dpp v{v}, v{v}, v{v} row_ror:{k} row_mask:0xf bank_mask:0xf")


def softmax_plain(P, O, t0, scale=None, npair=None):
    L = []
    a, b = t0, t0 + 1
    L.append(f"v_max3_f32 v{a}, v{P[0]}, v{P[1]}, v{P[2]}"); L.append(f"v_max3_f32 v{b}, v{P[3]}, v{P[4]}, v{P[5]}")
    for i in range(6, 18, 4):
        L.append(f"v_max3_f32 v{a}, v{a}, v{P[i]}, v{P[i+1]}"); L.append(f"v_max3_f32 v{b}, v{b}, v{P[i+2]}, v{P[i+3]}")
    L.append(f"v_max3_f32 v{a}, v{a}, v{P[18]}, v{P[19]}"); L.append(f"v_max_f32 v{a}, v{a}, v{b}")
    if scale is None:
        for i in range(20): L.append(f"v_sub_f32 v{P[i]}, v{P[i]}, v{a}")
    else:
        L.append(f"v_mul_f32 v{a}, v{scale}, v{a}")
        for i in range(20): L.append(f"v_fma_f32 v{P[i]}, v{P[i]}, v{scale}, -v{a}")
    for i in range(20): L.append(f"v_exp_f32 v{P[i]}, v{P[i]}")
    L.append(f"v_add_f32 v{a}, v{P[0]}, v{P[1]}"); L.append(f"v_add_f32 v{b}, v{P[2]}, v{P[3]}")
    for i in range(4, 20, 2): L.append(f"v_add_f32 v{a}, v{a}, v{P[i]}"); L.append(f"v_add_f32 v{b}, v{b}, v{P[i+1]}")
    L.append(f"v_add_f32 v{a}, v{a}, v{b}"); L.append(f"v_rcp_f32 v{a}, v{a}")
    if npair is not None: L.append(f"v_mul_f32 v{a}, v{a}, v{npair}")
    for i in range(20): L.append(f"v_mul_f32 v{P[i]}, v{P[i]}, v{a}")
    for i in range(0, 20, 2): L.append(f"v_cvt_pk_bf16_f32 v{O+i//2}, v{P[i]}, v{P[i+1]}")
    return L


def softmax_ops(P, O, cpair, t0, npair=None):
    L = []
    a, b = t0, t0 + 1
    L.append(f"v_max3_f32 v{a}, v{P[0]}, v{P[1]}, v{P[2]}"); L.append(f"v_max3_f32 v{b}, v{P[3]}, v{P[4]}, v{P[5]}")
    for i in range(6, 18, 4):
        L.append(f"v_max3_f32 v{a}, v{a}, v{P[i]}, v{P[i+1]}"); L.append(f"v_max3_f32 v{b}, v{b}, v{P[i+2]}, v{P[i+3]}")
    L.append(f"v_max3_f32 v{a}, v{a}, v{P[18]}, v{P[19]}"); L.append(f"v_max_f32 v{a}, v{a}, v{b}")
    L.append(f"v_mul_f32 v{cpair+1}, v{cpair}, v{a}")
    for i in range(0, 20, 2):
        L.append(f"v_pk_fma_f32 {vr(P[i],2)}, {vr(P[i],2)}, {vr(cpair,2)}, {vr(cpair,2)} op_sel:[0,0,1] op_sel_hi:[1,0,1] neg_lo:[0,0,1] neg_hi:[0,0,1]")
    for i in range(20): L.append(f"v_exp_f32 v{P[i]}, v{P[i]}")
    L.append(f"v_pk_add_f32 {vr(t0,2)}, {vr(P[0],2)}, {vr(P[2],2)}"); L.append(f"v_pk_add_f32 {vr(t0+2,2)}, {vr(P[4],2)}, {vr(P[6],2)}")
    for i in range(8, 20, 4):
        L.append(f"v_pk_add_f32 {vr(t0,2)}, {vr(t0,2)}, {vr(P[i],2)}"); L.append(f"v_pk_add_f32 {vr(t0+2,2)}, {vr(t0+2,2)}, {vr(P[i+2],2)}")
    L.append(f"v_pk_add_f32 {vr(t0,2)}, {vr(t0,2)}, {vr(t0+2,2)}")
    L.append(f"v_add_f32 v{a}, v{a}, v{b}"); L.append(f"v_rcp_f32 v{a}, v{a}")
    if npair is not None: L.append(f"v_mul_f32 v{a}, v{a}, v{npair}")
    for i in range(0, 20, 2): L.append(f"v_pk_mul_f32 {vr(P[i],2)}, {vr(P[i],2)}, {vr(t0,2)} op_sel_hi:[1,0]")
    for i in range(0, 20, 2): L.append(f"v_cvt_pk_bf16_f32 v{O+i//2}, v{P[i]}, v{P[i+1]}")
    return L


class VM:
    def __init__(self, a): self.a = a; self.ops = []
    def __call__(self, text, tag): self.a(text); self.ops.append(tag)
    def count(self, *tags, opt=False):
        last = max(i for i, t in enumerate(self.ops) if t in tags)
        return sum(1 for t in self.ops[last+1:] if opt or t != "opt")
    def wait(self, *tags, lgkm=False): self.a(f"s_waitcnt vmcnt({self.count(*tags)})" + (" lgkmcnt(0)" if lgkm else ""))


def gen(diag=False, touch=10, defer=8, rot=1, cpf=1, cut=0, noclr=0, outfl=0, f0=4, tch=0, hord=0, nowo=0, khe=5, ohe=1, loc=1, osam=30, f1=0, qw=0, thr=16, qt=1, qd=0, kd=0, kno=0, kpk=1, lpr=0, fl=1, kvp=1, rev=1, wv=1, wrt=1, n0=6, n1=4, pp=1, hk0=60, hk1=82, probe=0, plo=0, phi=32, pw0=0, pw1=8):
    a = K(diag); a.probe = probe; a.mute = (4, 5, 12, 6, 7, 8) if kd else (6, 7, 8, 13) if qd else ()
    WS = f"s[{rWS}:{rWS+3}]"
    sK1, sK2 = 100, 101
    ACC = 16; SET = [96, 132]; XA = [168, 169]; MK, MV, EX = 170, 171, 172
    PA = 176; PX = 196; STAT = 208; AUG = 224
    E0, E1, E2, E3, E4 = 240, 241, 242, 243, 244
    KB, KA0, KA1, KP = 245, 247, 249, 251
    Pb = [96, 116]; PH = 156; CP = 234; TT = 236
    QF = 16; QF2 = 22; OA = 28; P0 = 40; P1 = 56; PHQ = 72; PHQ2 = 82; OT = 92; KL = 40
    FA = 16; OF = 36; WF = 76; WST = (176, 96)
    def lanefields():
        a("v_lshrrev_b32 v3, 4, v0"); a("v_bfe_u32 v4, v0, 2, 2"); a("v_and_b32 v5, 3, v0"); a("v_and_b32 v6, 15, v0")
    def kepi_addr(th, ch):
        a("v_and_b32 v7, 1, v0"); a("v_bfe_u32 v12, v0, 1, 1"); a("v_lshl_or_b32 v7, v12, 2, v7"); a("v_bfe_u32 v12, v0, 2, 1"); a("v_lshl_or_b32 v7, v12, 1, v7")
        a("v_lshlrev_b32 v7, 4, v7")
        a(f"s_lshl_b32 s3, {th}, 13"); a(f"s_add_u32 s3, s3, {TRI}"); a("v_lshl_add_u32 v7, v6, 7, v7"); a("v_add_u32 v7, s3, v7")
        a(f"s_lshl_b32 s58, {ch}, 15")
        a("v_lshrrev_b32 v12, 1, v3"); a("v_and_b32 v13, 1, v3")
        a("v_lshl_add_u32 v14, v12, 14, v7"); a("v_add_u32 v14, s58, v14")
        a("v_lshlrev_b32 v15, 5, v13"); a(f"v_xor_b32 v{E0}, v14, v15"); a(f"v_xor_b32 v{E1}, 16, v{E0}")
        a(f"v_xor_b32 v{E2}, 96, v14"); a(f"v_lshl_add_u32 v{E2}, v13, 3, v{E2}")
    def phi_addr(base):
        a("v_lshrrev_b32 v7, 1, v5")
        a("v_mul_u32_u24 v12, 640, v7"); a("v_lshl_add_u32 v13, v3, 2, v4"); a("v_mul_u32_u24 v13, 40, v13"); a(f"v_add3_u32 v12, v12, v13, {base}")
        a("v_mul_u32_u24 v13, 1440, v7"); a("v_mul_u32_u24 v14, 40, v4"); a(f"v_add3_u32 v13, v13, v14, {base}")
        a("v_bfe_u32 v7, v0, 3, 1"); a("v_add_u32 v14, -1, v7"); a("v_not_b32 v15, v14")
        a("v_cmp_eq_u32 vcc, v7, v3"); a("v_bfe_i32 v2, v0, 2, 1"); a("v_and_b32 v2, 0x80008000, v2"); a("v_cndmask_b32 v7, 0, -1, vcc")
    def phi_build():
        for T in range(5):
            a(f"ds_read_b64_tr_b16 {vr(PA+4*T,2)}, v12 offset:{160+8*T}"); a(f"ds_read_b64_tr_b16 {vr(PX+2*T,2)}, v13 offset:{8*T}")
        a("s_waitcnt lgkmcnt(0)")
        for T in range(5):
            for q in range(2):
                a(f"v_bitop3_b32 v{PA+4*T+2+q}, v{PA+4*T+q}, v2, v15 bitop3:0x28")
                a(f"v_bitop3_b32 v{PA+4*T+q}, v{PA+4*T+q}, v2, v14 bitop3:0x28")
                a(f"v_bitop3_b32 v{PX+2*T+q}, v{PX+2*T+q}, v2, v7 bitop3:0x28")
    def phi_mm(P, T):
        mm = [f"v_mfma_f32_16x16x32_bf16 {vr(P+4*u,4)}, {vr(PA+4*u,4)}, {vr(T,4)}, 0" for u in range(5)]
        return mm + [f"v_mfma_f32_16x16x16_bf16 {vr(P+4*u,4)}, {vr(PX+2*u,2)}, {vr(T+4,2)}, {vr(P+4*u,4)}" for u in range(5)]
    def ktile(m, P, packed, ins, k):
        if kno & 1: ins = [x for x in ins if "buffer" not in x]
        if kd: a.stamp((12, 6)[k], True)
        if packed: sm = [f"v_mov_b32 v{CP}, v{STAT+4*m+3}"] + softmax_ops(list(range(P, P+20)), PH, CP, TT, npair=STAT+4*m+2)
        else: sm = softmax_plain(list(range(P, P+20)), PH, TT, scale=STAT+4*m+3, npair=STAT+4*m+2)
        slots = [i for i, x in enumerate(sm) if x.startswith(("v_exp", "v_fma", "v_max3"))]
        at = {}
        for q, x in enumerate(ins): at.setdefault(slots[q*len(slots)//len(ins)], []).append(x)
        wr = {f"v{PH+3},": f"ds_write_b128 v{E0}, {vr(PH,4)} offset:{2048*m}", f"v{PH+7},": f"ds_write_b128 v{E1}, {vr(PH+4,4)} offset:{2048*m}", f"v{PH+9},": f"ds_write_b64 v{E2}, {vr(PH+8,2)} offset:{2048*m}"}
        for idx, x in enumerate(sm):
            a(x)
            for y in at.get(idx, []): a(y)
            if x.startswith("v_cvt_pk") and x.split()[1] in wr: a(wr[x.split()[1]])
    sHD, sT32, sQA, sFQ, sKVA, sO0, sO1, sHINT, sKHP, sF0, sF1, sF2, sOUT, sAUX, sOHP, sT16 = range(36, 52)
    def ohead(dst):
        a(f"s_lshr_b32 s{dst}, s{sJR}, 1"); a(f"s_sub_u32 s3, s{sJR}, 8"); a("s_cmp_lt_u32 s57, 4"); a(f"s_cselect_b32 s{dst}, s{dst}, s3")
        a(f"s_and_b32 s3, s{sX}, 1"); a(f"s_lshl4_add_u32 s{dst}, s3, s{dst}")
    def o_sgprs():
        ohead(sHD)
        a(f"s_and_b32 s3, s{sJR}, 1"); a("s_cmp_lt_u32 s57, 4"); a("s_cselect_b32 s3, s3, 0")
        a(f"s_and_b32 s{sT32}, s{sX}, 6"); a(f"s_add_u32 s{sT32}, s{sT32}, s3"); a(f"s_lshl3_add_u32 s{sT32}, s{sT32}, s{sWV}")
        a(f"s_lshl_b32 s3, s{sHD}, 6"); a(f"s_add_u32 s3, s3, s{sT32}"); a(f"s_mul_i32 s{sQA}, s3, 1280"); a(f"s_add_u32 s{sQA}, s{sQA}, {WS_Q}")
        a(f"s_and_b32 s{sFQ}, s{sT32}, 60"); a(f"s_lshr_b32 s3, s{sHD}, 3"); a(f"s_add_u32 s{sFQ}, s{sFQ}, s3"); a(f"s_lshl_b32 s{sFQ}, s{sFQ}, 7"); a(f"s_add_u32 s{sFQ}, s{sFQ}, {WS_FQ}")
        a(f"s_mul_i32 s{sKVA}, s{sHD}, 28672"); a(f"s_add_u32 s{sKVA}, s{sKVA}, {WS_KV}")
        a(f"s_mul_i32 s{sO0}, s{sT32}, 40960"); a(f"s_add_u32 s{sO0}, s{sO0}, {WS_O}"); a(f"s_lshl_b32 s3, s{sHD}, 7"); a(f"s_add_u32 s{sO1}, s{sO0}, s3"); a(f"s_add_u32 s{sO1}, s{sO1}, 16384")
        a(f"s_lshl2_add_u32 s{sO0}, s3, s{sO0}")
        a(f"s_and_b32 s3, s{sHD}, 28"); a(f"s_lshr_b32 s{sKHP}, s{sX}, 1"); a(f"s_add_u32 s3, s3, s{sKHP}"); a("s_lshl_b32 s3, s3, 7"); a(f"s_add_u32 s{sKHP}, s3, {WS_KH}")
    def o_vgprs(T):
        a(f"v_and_b32 v{T}, 31, v0"); a(f"v_lshlrev_b32 v1, 3, v{T}"); a(f"v_lshrrev_b32 v{T+1}, 5, v0"); a(f"v_mov_b32 v{T+2}, {OOB:#x}")
        a(f"s_lshl_b32 s3, s{sWV}, 6"); a("v_add_u32 v14, s3, v0"); a("v_cmp_lt_u32 vcc, 419, v14"); a("v_lshlrev_b32 v14, 2, v14")
        a(f"v_min_u32 v{T}, 20, v{T}"); a(f"v_cndmask_b32 v15, v14, v{T+2}, vcc"); a(f"v_add_u32 v14, {L_KVR}, v14")
        a(f"v_mul_u32_u24 v{T+3}, 21, v{T+1}"); a(f"v_add_u32 v{T}, v{T}, v{T+3}"); a(f"s_mov_b32 s3, {L_KVR}")
        a(f"v_lshl_add_u32 v254, v{T}, 3, s3"); a(f"v_lshl_add_u32 v207, v{T}, 4, s3"); a("v_mov_b32 v253, 0")
        a("v_bfe_u32 v12, v0, 4, 1"); a("v_mul_u32_u24 v12, 20480, v12"); a(f"v_and_b32 v{T}, 15, v0"); a("v_cmp_gt_u32 vcc, 32, v0")
        a(f"v_lshl_add_u32 v13, v{T}, 3, v12"); a(f"v_lshl_add_u32 v12, v{T}, 4, v12"); a(f"v_lshl_add_u32 v12, v{T+1}, 8, v12"); a(f"v_cndmask_b32 v13, v{T+2}, v13, vcc")
    def f_setup(T, kh):
        a(f"s_lshr_b32 s3, s{sJ}, 3"); a(f"s_lshl3_add_u32 s{sOHP}, s{sX}, s3"); a(f"s_lshl_b32 s{sOHP}, s{sOHP}, 7"); a(f"s_add_u32 s{sOHP}, s{sOHP}, {WS_OH}")
        a(f"s_lshl2_add_u32 s3, s{sX}, s3"); a(f"s_and_b32 s53, s{sWV}, 3"); a(f"s_lshl2_add_u32 s{sT16}, s3, s53")
        a(f"s_mul_i32 s{sOUT}, s{sT16}, 20480"); a(f"s_add_u32 s{sF0}, s{sOUT}, {WS_O + 8192*kh}"); a(f"s_add_u32 s{sF1}, s{sF0}, 4096"); a(f"s_add_u32 s{sF2}, s{sOUT}, {WS_O + 16384 + 2048*kh}")
        a(f"s_and_b32 s3, s{sJ}, 7"); a("s_mul_i32 s3, s3, 160"); a(f"s_add_u32 s{sOUT}, s{sOUT}, s3")
        if not kh: a(f"s_lshl_b32 s{sAUX}, s{sT16}, 6"); a(f"s_add_u32 s{sAUX}, s{sAUX}, {WS_SM}")
        a("v_lshlrev_b32 v7, 4, v0"); a(f"v_lshrrev_b32 v{T}, 4, v0"); a(f"v_bfe_u32 v{T+1}, v0, 2, 2"); a(f"v_and_b32 v{T+2}, 3, v0")
        a(f"v_mul_u32_u24 v{T+1}, 160, v{T+1}"); a(f"v_lshl_add_u32 v{T+1}, v{T+2}, 3, v{T+1}")
        if kh: a(f"v_add_u32 v{T+1}, 51200, v{T+1}")
        a(f"v_lshrrev_b32 v{T+2}, 5, v0"); a(f"v_mul_u32_u24 v{T+2}, 3200, v{T+2}"); a(f"v_and_b32 v6, 1, v{T}"); a("v_mul_u32_u24 v6, 640, v6"); a(f"v_add3_u32 v6, v6, v{T+2}, v{T+1}")
        a(f"v_mul_u32_u24 v2, 3200, v{T}"); a(f"v_add_u32 v2, v2, v{T+1}")
        a("s_mul_i32 s3, s53, 2560"); a(f"s_add_u32 s3, s3, {L_OUTS if kh else L_RES}")
        a(f"v_and_b32 v{T+1}, 15, v0"); a(f"v_mul_u32_u24 v3, 160, v{T+1}"); a(f"v_lshl_add_u32 v3, v{T}, 3, v3"); a("v_add_u32 v3, s3, v3")
        if kh: a("v_add_u32 v11, s3, v7")
        else: a(f"v_lshlrev_b32 v4, 2, v{T+1}")
        a("s_mul_i32 s3, s53, 5120"); a(f"s_add_u32 s3, s3, {L_XCH}"); a("v_add_u32 v5, s3, v7")
        if kh:
            a(f"v_mul_u32_u24 v{T}, 6554, v0"); a("s_movk_i32 s3, 1120"); a("v_cmp_gt_u32 vcc, 32, v0")
            for u in range(3):
                if u: a(f"v_add_u32 v{T}, {64*6554}, v{T}")
                a(f"v_lshrrev_b32 v{T+1}, 16, v{T}"); a(f"v_mad_u32_u24 v{8+u}, v{T+1}, s3, v7")
            a(f"v_mov_b32 v{T}, {OOB:#x}"); a(f"v_cndmask_b32 v10, v{T}, v10, vcc")
    qloads = [f"buffer_load_dwordx4 {vr(QF,4)}, v7, {WS}, s{sQA} offen sc1", f"buffer_load_dwordx2 {vr(QF+4,2)}, v1, {WS}, s{sQA} offen offset:1024 sc1"]
    fload = f"s_mov_b64 exec, 1\nbuffer_load_dword v253, off, {WS}, s{sFQ} sc1\ns_mov_b64 exec, -1"
    tload = f"s_mov_b32 s70, {WS_TOP}\nv_mov_b64 v[230:231], 0\ns_mov_b64 exec, 1\nbuffer_load_dwordx2 v[230:231], off, {WS}, s70 sc1\ns_mov_b64 exec, -1"
    oareads = [f"v_add_u32 v{OT}, {L_OA}, v7"] + [f"ds_read_b128 {vr(OA+4*i,4)}, v{OT} offset:{1024*i}" for i in range(3)]
    a("s_cmp_ge_u32 s2, 256"); a("s_cbranch_scc1 L_end")
    a.stamp(0)
    for r, off in ((rX, 0), (rW, 8), (rWS, 88), (rPHI, 16), (rWO, 24), (rOUT, 72), (rDBG, 80)):
        a(f"s_load_dwordx2 s[{r}:{r+1}], s[0:1], {off}")
    a("v_lshrrev_b32 v1, 6, v0"); a("v_and_b32 v0, 63, v0")
    a(f"s_lshr_b32 s{sJ}, s2, 3"); a(f"v_readfirstlane_b32 s{sWV}, v1")
    a(f"s_and_b32 s{sX}, s2, 7"); a(f"s_add_u32 s{sJR}, s{sJ}, 24"); a(f"s_and_b32 s{sJR}, s{sJR}, 31")
    if cpf:
        a(f"s_cmp_eq_u32 s{sWV}, 0"); a("s_cbranch_scc0 L_nopf")
        a("s_getpc_b64 s[96:97]"); a.label("L_pc")
        a("s_mov_b32 s98, L_end-L_pc"); a("s_mov_b32 s99, 0x20000")
        a(f"s_and_b32 s3, s{sJ}, 3"); a("s_lshl_b32 s3, s3, 13"); a("v_lshlrev_b32 v1, 7, v0")
        a("buffer_load_dword v255, v1, s[96:99], s3 offen")
        a.label("L_nopf")
    def srds():
        a.srdw(rWS, WS_BYTES); a.srdw(rPHI, 32*800); a.srdw(rWO, 0 if nowo else D*D*2); a.srdw(rOUT, S*D*2); a.srdw(rDBG, 256)
        a(f"s_mov_b32 s{sSENT}, {SENT:#x}")
    a.srdw(rX, S*D*2); a.srdw(rW, D*3*D*2)
    a(f"s_cmp_ge_u32 s{sJR}, 24"); a("s_cbranch_scc1 L_helper")
    a(f"s_lshr_b32 s54, s{sX}, 1"); a(f"s_and_b32 s3, s{sJR}, 3"); a("s_lshl2_add_u32 s54, s54, s3"); a(f"s_lshr_b32 s57, s{sJR}, 2")
    a(f"s_cmp_lt_u32 s{sWV}, 4"); a("s_cbranch_scc0 L_loader")
    a("s_setprio 3")
    a.srdw(rPHI, 32*800)
    ohead(59)
    a("s_lshl2_add_u32 s3, s3, s57"); a(f"s_and_b32 s60, s{sWV}, 1"); a("s_lshl1_add_u32 s3, s3, s60"); a("s_mul_i32 s58, s3, 1600")
    a(f"s_lshl_b32 s65, s{sWV}, 11"); a("s_mov_b32 m0, s65"); a("v_lshlrev_b32 v2, 4, v0"); a("v_lshlrev_b32 v3, 2, v0")
    a("s_mul_i32 s59, s59, 800"); a(f"s_lshl_b32 s3, s{sWV}, 8"); a("s_add_u32 s59, s59, s3")
    a("s_waitcnt lgkmcnt(0)")
    a(f"buffer_load_dwordx4 v2, s[{rPHI}:{rPHI+3}], s58 offen lds")
    a(f"buffer_load_dwordx4 v2, s[{rPHI}:{rPHI+3}], s58 offen offset:1024 lds")
    a(f"s_add_u32 m0, s3, {L_PHIO}")
    a(f"s_cmp_eq_u32 s{sJR}, 16")
    a(f"buffer_load_dword v3, s[{rPHI}:{rPHI+3}], s59 offen lds")
    a("s_cbranch_scc0 L_mfma")
    a.srdw(rWS, WS_BYTES)
    for q in range(4): a(f"v_mov_b32 v{12+q}, {SENT:#x}")
    a(f"s_lshl_b32 s3, s{sX}, 13"); a("s_add_u32 s3, s3, s65")
    for i in range(2): a(f"buffer_store_dwordx4 v[12:15], v2, {WS}, s3 offen offset:{1024*i} sc1")
    a("s_branch L_mfma")

    a.label("L_loader")
    a("s_setprio 2")
    a(f"s_and_b32 s3, s{sX}, 1"); a("s_mul_i32 s55, s3, 640")
    a("s_mul_i32 s58, s57, 160"); a("s_sub_u32 s59, s58, 1280")
    a("s_cmp_lt_u32 s57, 4")
    a("s_cselect_b32 s56, 1120, 0"); a("s_cselect_b32 s59, 1280, s59")
    a("s_add_u32 s55, s55, s58"); a("s_add_u32 s55, s55, s59")
    a(f"s_sub_u32 s60, s{sWV}, 4")
    XV = [16, 17, 18, 19]; WV = [20, 21, 22, 23, 24]; WOV = [224, 225, 226, 227, 228]
    a("v_lshrrev_b32 v8, 3, v0"); a("v_and_b32 v9, 7, v0")
    a("v_bfe_u32 v10, v0, 4, 1"); a("v_lshrrev_b32 v11, 5, v0"); a("v_lshl_add_u32 v10, v10, 1, v11")
    a("s_lshl2_add_u32 s3, s54, s60"); a("s_mul_i32 s3, s3, 40960")
    a("v_mul_u32_u24 v8, 1280, v8"); a("v_xor_b32 v9, v9, v10"); a("v_add_u32 v8, s3, v8")
    a(f"v_lshl_add_u32 v{XV[0]}, v9, 4, v8"); a(f"v_xor_b32 v11, 64, v{XV[0]}")
    a(f"v_add_u32 v{XV[1]}, {10240-1024}, v11"); a(f"v_add_u32 v{XV[2]}, {20480-2048}, v{XV[0]}"); a(f"v_add_u32 v{XV[3]}, {30720-3072}, v11")
    a("s_mul_i32 s3, s60, 61440"); a("s_add_u32 s3, s3, s55")
    a("s_lshl_b32 s61, s60, 12")
    a(f"s_mul_i32 s62, s60, {WREG}"); a("s_add_u32 s62, s62, 16384")
    a("s_movk_i32 s63, 3520")
    a("v_lshl_add_u32 v12, v0, 4, s3"); a("v_mul_u32_u24 v13, 6554, v0")
    for i in range(5):
        if i: a(f"v_add_u32 v13, {64*6554}, v13")
        a("v_lshrrev_b32 v10, 17, v13"); a("v_bfe_u32 v9, v13, 16, 1")
        a("v_mad_u32_u24 v8, v10, s63, v12"); a(f"v_mad_u32_u24 v{WV[i]}, v9, s56, v8")
    a(f"v_add_u32 v{WV[4]}, 4096, v{WV[4]}")
    if rot: a(f"s_xor_b32 s71, s{sJR}, s57"); a("s_bfe_u32 s63, s71, 0x10001"); a("s_and_b32 s71, s71, 1")
    else: a("s_mov_b32 s71, 0")
    a("s_waitcnt lgkmcnt(0)")
    if cut: a.stamp(10)
    vm = VM(a)
    def issue(c, extra=()):
        extra = list(extra); per = -(-len(extra) // 9)
        def more():
            for y in extra[:per]: a(y)
            del extra[:per]
        slot = RING + (c % 3)*SLOT
        xs = [f"buffer_load_dwordx4 v{XV[i]}, s[{rX}:{rX+3}], s65 offen offset:{1024*i} lds" for i in range(4)]
        ws = [f"buffer_load_dwordx4 v{WV[i]}, s[{rW}:{rW+3}], s66 offen offset:{1024*(i%4)} lds" for i in range(5)]
        a(f"s_xor_b32 s66, s71, {c}")
        a(f"s_add_u32 m0, s61, {slot}")
        a("s_lshl_b32 s65, s66, 7"); a("s_mul_i32 s66, s66, 245760")
        two = rev and (rev == 2 or c % 2 == 0)
        if two: a("s_cmp_eq_u32 s63, 0"); a(f"s_cbranch_scc0 L_rv{c}")
        assert not (two and extra)
        for x in xs: more(); vm(x, c)
        a(f"s_add_u32 m0, s62, {slot}")
        for x in ws[:4]: more(); vm(x, c)
        a("s_add_u32 m0, m0, 4096")
        more(); vm(ws[4], c)
        if two:
            a(f"s_branch L_re{c}"); a.label(f"L_rv{c}")
            a(f"s_add_u32 m0, s62, {slot + 4096}"); a(ws[4])
            a(f"s_add_u32 m0, s62, {slot}")
            for x in ws[3::-1]: a(x)
            a(f"s_add_u32 m0, s61, {slot}")
            for x in xs[::-1]: a(x)
            a.label(f"L_re{c}")
    def bar(c, *extra, lgkm=False):
        if vm.count(c, *extra, opt=True) != vm.count(c, *extra):
            lb = a.newlab("L_bw")
            a("s_cmp_lt_u32 s57, 4"); a(f"s_waitcnt vmcnt({vm.count(c, *extra, opt=True)})"); a(f"s_cbranch_scc0 {lb}"); vm.wait(c, *extra); a.label(lb)
        else: vm.wait(c, *extra, lgkm=lgkm)
        a("s_barrier")
        if cut and c < 8: a.stamp(c + 2)
    def wo_addr():
        a("v_mul_u32_u24 v98, 6554, v0"); a("v_lshlrev_b32 v97, 4, v0"); a("s_movk_i32 s3, 1120")
        for i in range(5):
            if i: a(f"v_add_u32 v98, {64*6554}, v98")
            a("v_lshrrev_b32 v96, 16, v98"); a(f"v_mad_u32_u24 v{WOV[i]}, v96, s3, v97")
        a(f"v_add_u32 v{WOV[4]}, 4096, v{WOV[4]}")
        a(f"s_and_b32 s67, s{sJ}, 7"); a("s_mul_i32 s67, s67, 160")
        a("s_mul_i32 s68, s60, 40960"); a("s_add_u32 s68, s68, s67")
        a("s_mul_i32 s69, s60, 5120")
        a(f"s_lshr_b32 s3, s{sJ}, 3"); a(f"s_lshl2_add_u32 s3, s{sX}, s3"); a("s_mul_i32 s67, s3, 81920"); a("s_add_u32 s67, s67, s68")
        a(f"s_bfe_u32 s3, s{sJ}, 0x10003" if wrt else "s_mov_b32 s3, 0")
        a("s_mul_i32 s98, s3, 163840"); a("s_add_u32 s96, s68, s98"); a("s_sub_u32 s98, s68, s98")
        a("s_mul_i32 s99, s3, 20480"); a("s_add_u32 s97, s69, s99"); a("s_sub_u32 s99, s69, s99")
    def unit_list(srd, soff, m0):
        L = [f"buffer_load_dwordx4 v{WOV[i]}, s[{srd}:{srd+3}], {soff} offen offset:{1024*i} lds" for i in range(4)]
        L[0] = f"s_add_u32 m0, s69, {m0}\ns_nop 0\n" + L[0]
        return L + [f"s_add_u32 m0, m0, 4096\ns_nop 0\nbuffer_load_dwordx4 v{WOV[4]}, s[{srd}:{srd+3}], {soff} offen lds"]
    def wo_list(r):
        L = unit_list(rWO, "s65", 20480*r)
        L[0] = L[0].replace("s_nop 0", f"s_add_u32 s65, s{68 if r == 4 else 96 + 2*(r&1)}, {163840*r}")
        if r < 4: L[0] = L[0].replace("m0, s69", f"m0, s{97 + 2*(r&1)}")
        return L
    def wo_round(r):
        for x in wo_list(r): vm(x, "wo")
    def wo_last():
        wo_round(4)
        lb = a.newlab("L_res")
        a(f"s_cmp_lt_u32 s{sWV}, 6"); a(f"s_cbranch_scc0 {lb}")
        for x in unit_list(rX, "s67", L_RES): a(x)
        a.label(lb)
    def set1():
        srds()
        lanefields()
        a("s_lshr_b32 s64, s60, 1"); a("s_and_b32 s53, s60, 1")
        kepi_addr("s64", "s53")
        a("s_lshl_b32 s3, s64, 10"); a(f"s_add_u32 s3, s3, {L_STAT}"); a("v_lshl_add_u32 v206, v6, 4, s3")
        a("s_lshl_b32 s64, s60, 11")
        phi_addr("s64")
    def set_o():
        o_sgprs(); o_vgprs(96); a.readyaddr(43)
        a(f"s_lshr_b32 s3, s{sT32}, 3"); a(f"s_and_b32 s53, s{sHD}, 1"); a("s_lshl1_add_u32 s3, s3, s53"); a("s_lshl_b32 s3, s3, 9"); a(f"s_add_u32 s{sHINT}, s3, {WS_OH}")
    def set_oa():
        a("v_lshrrev_b32 v96, 5, v0"); a("v_bfe_u32 v97, v0, 2, 2"); a("v_bfe_u32 v98, v0, 4, 1"); a("v_bfe_u32 v99, v0, 1, 1"); a("v_lshl_add_u32 v98, v98, 1, v99")
        a(f"s_bitcmp0_b32 s{sHD}, 0"); a("s_cselect_b32 s3, 160, 0"); a("s_cselect_b32 s53, 0, 640")
        a(f"s_add_u32 s3, s3, {L_PHIO}"); a(f"s_add_u32 s53, s53, {L_PHIO}")
        a("v_mul_u32_u24 v99, 40, v97"); a("v_add_u32 v100, s53, v99"); a("v_mul_u32_u24 v101, 320, v96"); a("v_add3_u32 v99, v99, v101, s3")
        a("v_lshl_add_u32 v101, v98, 3, v99"); a("v_lshl_add_u32 v98, v98, 3, v100")
        a(f"ds_read_b64_tr_b16 {vr(OA,2)}, v101"); a(f"ds_read_b64_tr_b16 {vr(OA+2,2)}, v101 offset:160")
        a(f"ds_read_b64_tr_b16 {vr(OA+4,2)}, v99 offset:32"); a(f"ds_read_b64_tr_b16 {vr(OA+6,2)}, v99 offset:192")
        a(f"ds_read_b64_tr_b16 {vr(OA+8,2)}, v98"); a(f"ds_read_b64_tr_b16 {vr(OA+10,2)}, v100 offset:32")
        a("v_bfe_i32 v102, v0, 2, 1"); a("v_and_b32 v102, 0x80008000, v102"); a("v_add_u32 v103, -1, v96"); a(f"v_add_u32 v104, {L_OA}, v7")
        a("s_waitcnt lgkmcnt(0)")
        for q in range(8): a(f"v_xor_b32 v{OA+q}, v102, v{OA+q}")
        for q in range(8, 12): a(f"v_bitop3_b32 v{OA+q}, v{OA+q}, v102, v103 bitop3:0x28")
        a("s_cmp_eq_u32 s60, 0"); a("s_cbranch_scc0 L_oa")
        for i in range(3): a(f"ds_write_b128 v104, {vr(OA+4*i,4)} offset:{1024*i}")
        a.label("L_oa")
    def set_st():
        wo_addr()
        a("v_and_b32 v56, 31, v0"); a("s_lshl2_add_u32 s3, s54, s60"); a("s_lshl_b32 s3, s3, 7"); a(f"s_add_u32 s3, s3, {WS_SM}")
        a("v_lshl_add_u32 v57, v56, 2, s3")
        a("s_lshr_b32 s58, s60, 1"); a("s_and_b32 s59, s60, 1")
        a("s_add_u32 s3, s56, 160"); a("s_mul_i32 s3, s3, s58"); a("s_add_u32 s3, s3, s55"); a("s_lshl_b32 s3, s3, 1")
        a("s_mul_i32 s53, s59, 7680"); a("s_add_u32 s3, s3, s53"); a(f"s_add_u32 s3, s3, {WS_CS}")
        a("v_min_u32 v59, 39, v0"); a("v_lshl_add_u32 v58, v59, 3, s3")
        a("s_lshl_b32 s3, s60, 9"); a(f"s_add_u32 s3, s3, {L_STAT}"); a("v_lshl_add_u32 v56, v56, 4, s3")
        a("s_mul_i32 s3, s59, 640"); a("s_mul_i32 s53, s58, 320"); a("s_add_u32 s3, s3, s53"); a(f"s_add_u32 s3, s3, {L_CS}"); a("v_lshl_add_u32 v68, v59, 3, s3")
        a("s_mul_i32 s3, s60, 160"); a(f"s_add_u32 s3, s3, {L_CS+1280}"); a("v_lshl_add_u32 v69, v59, 2, s3"); a("v_mov_b32 v61, 0")
        a("ds_write_b32 v69, v61")
    def set_xid():
        a.readycheck(42, 43)
        a("s_getreg_b32 s64, hwreg(HW_REG_XCC_ID)"); a(f"s_mul_i32 s70, s{sX}, 192"); a(f"s_add_u32 s70, s70, {WS_XID}")
        a("s_cmp_eq_u32 s60, 0"); a("s_cbranch_scc0 L_xid")
        a("v_mov_b32 v44, s64"); a(f"s_lshl3_add_u32 s3, s{sJR}, s70")
        a("s_mov_b64 exec, 1"); a(f"buffer_store_dword v44, off, {WS}, s3 sc1"); a("s_mov_b64 exec, -1")
        a.label("L_xid")
        a("v_min_u32 v45, 23, v0"); a("v_lshlrev_b32 v45, 3, v45")
    plan = {1: [set1], 3: [phi_build, set_o], 5: [lambda: f_setup(96, 1), set_oa], 7: [set_xid, set_st]}
    for c in range(10):
        extra = sum((a.capture(f) for f in plan.get(c, [])), [])
        if wv: issue(c, extra)
        else:
            issue(c)
            for y in extra: a(y)
        if c == 4: vm(a.readyload(42, 43), "rdy")
        if 0 < c < 9: bar(c - 1)
    statloads = [f"buffer_load_dword v60, v57, {WS}, 0 offen sc1", f"buffer_load_dwordx2 v[62:63], v58, {WS}, 0 offen sc1"]
    bar(8)
    a("s_cmp_lt_u32 s57, 4"); a("s_cbranch_scc1 L_nx")
    a(f"buffer_load_dword v44, v45, {WS}, s70 offen sc1")
    a.label("L_nx")
    for l in statloads: vm(l, "st")
    a("s_cmp_lt_u32 s57, 4"); a("s_cbranch_scc1 L_r0")
    if qt:
        a(f"s_and_b32 s3, s{sX}, 1"); a("s_lshl1_add_u32 s3, s3, s57"); a("s_sub_u32 s3, s3, 4"); a("s_lshl2_add_u32 s3, s3, s60"); a("s_mul_i32 s58, s3, 163840")
        a("s_mul_i32 s3, s54, 5120"); a("s_add_u32 s58, s58, s3"); a(f"s_add_u32 s58, s58, {WS_Q}"); a("s_add_u32 s59, s58, 81920")
        a("v_lshlrev_b32 v47, 7, v0"); a("s_mov_b32 exec_hi, 0xff")
        for r in (58, 59): a(f"buffer_load_dword v48, v47, {WS}, s{r} offen")
        a("s_mov_b32 exec_hi, -1")
        a(fload); a("v_mov_b32 v47, 0")
    if qw <= 0: a(f"s_waitcnt vmcnt({3 if qt else 0})"); a("s_branch L_r0d")
    a.label("L_r0")
    wo_round(0)
    a.label("L_r0d")
    bar(9, "st")
    a.stamp(1)
    if cut: a("s_barrier"); a("s_branch L_fin")
    a.recheck(statloads, [60, 62, 63], 41)
    a("ds_write_b64 v68, v[62:63]")
    a("v_and_b32 v66, 0xffff0000, v60"); a("v_rcp_f32 v66, v66")
    a("v_and_b32 v64, 0xffff, v60"); a("v_lshl_or_b32 v64, v64, 16, v64"); a("v_xor_b32 v64, 0x80008000, v64")
    a("v_lshrrev_b32 v65, 16, v60"); a(f"v_mul_f32 v67, {LOG2E:#x}, v66")
    a("ds_write_b128 v56, v[64:67]")
    a("s_cmp_lt_u32 s57, 4"); a("s_cbranch_scc0 L_lq")
    wo_round(1)
    a("s_waitcnt lgkmcnt(0)"); a.stamp(2); a("s_barrier")
    a(f"s_setprio {lpr}")
    for m in (2, 3): a(f"ds_read_b128 {vr(STAT+4*m,4)}, v206 offset:{256*m}")
    a(f"s_lshl_b32 s58, s{sX}, 7"); a("v_lshlrev_b32 v45, 10, v0"); a(f"v_mov_b32 v44, {SENT + 16:#x}")
    a(f"s_cmp_eq_u32 s{sWV}, 7"); a("s_cbranch_scc0 L_ah")
    a("s_mov_b64 exec, 15"); a("v_mov_b32 v44, 0"); a(f"buffer_atomic_or v44, v45, {WS}, s58 offen sc0 sc1"); a("s_mov_b64 exec, -1")
    a.label("L_ah")
    if not kno & 2: wo_round(2)
    if kd: a.stamp(8, True)
    a("s_barrier")
    if kd: a.stamp(4, True); a("s_waitcnt lgkmcnt(0)")
    for m in (2, 3):
        T = 136 + 6*(m-2)
        a(f"ds_read_b128 {vr(T,4)}, v{E0} offset:{2048*m}"); a(f"ds_read_b64 {vr(T+4,2)}, v{E2} offset:{2048*m}")
    a("s_waitcnt lgkmcnt(2)")
    for x in phi_mm(Pb[0], 136): a(x)
    a("s_waitcnt lgkmcnt(0)")
    mm3 = phi_mm(Pb[1], 142)
    for x in mm3[:3]: a(x)
    if fl == 0:
        ktile(2, Pb[0], False, mm3[3:] + [fload] + wo_list(3), 0)
        ktile(3, Pb[1], kpk, ["", "s_waitcnt vmcnt(5)\n" + qloads[0], qloads[1], ""], 1)
    else:
        ktile(2, Pb[0], False, mm3[3:] + wo_list(3), 0)
        ktile(3, Pb[1], kpk, [fload], 1)
        a("s_waitcnt vmcnt(0)")
        for l in qloads: a(l)
    def topcheck():
        a.recheck([tload], [230, 231], OT, sleep=8)
        a(f"v_readfirstlane_b32 s{sK1}, v230"); a(f"v_readfirstlane_b32 s{sK2}, v231")
    if kd: a.stamp(7, True)
    a(f"v_cmp_ne_u32 vcc, {SENT + 16:#x}, v44"); a("s_cbranch_vccz L_ah2")
    a.cnt_poll(4, 45, "s58", f"{SENT + 16:#x}", 44)
    a.label("L_ah2")
    a.stamp(3)
    a("s_mov_b32 s63, 1")
    if lpr: a("s_setprio 0")
    a("s_waitcnt lgkmcnt(0)"); a("s_barrier")
    a("s_waitcnt vmcnt(0)")
    a("s_branch L_qchk")
    a.label("L_lq")
    a("v_cmp_ne_u32 vcc, s64, v44"); a(f"v_mov_b32 v46, {L_KVR}"); a("s_or_b32 s64, vcc_lo, vcc_hi")
    if not loc: a("s_mov_b32 s64, 1")
    a("v_mov_b32 v44, s64")
    a("s_cmp_eq_u32 s60, 0"); a("s_cbranch_scc0 L_lq1")
    a("ds_write_b32 v46, v44")
    a.label("L_lq1")
    if qw == 2: wo_round(1)
    if qw == -1: wo_round(0)
    a(f"s_and_b32 s3, s{sX}, 1"); a("s_lshl1_add_u32 s3, s3, s57"); a("s_lshl2_add_u32 s3, s54, s3"); a("s_lshl_b32 s3, s3, 7"); a(f"s_add_u32 s3, s3, {WS_FQ - 512}")
    a("s_waitcnt lgkmcnt(0)"); a.stamp(2); a("s_barrier")
    a("s_setprio 0")
    a("s_cmp_eq_u32 s60, 0")
    a("s_barrier")
    a("s_cbranch_scc0 L_ophase")
    a("s_mov_b64 exec, 1"); a("s_cmp_eq_u32 s64, 0"); a("s_cbranch_scc1 L_lq2")
    a(f"buffer_store_dword v0, off, {WS}, s3 sc1"); a("s_mov_b64 exec, -1"); a("s_branch L_ophase")
    a.label("L_lq2")
    a(f"buffer_store_dword v0, off, {WS}, s3"); a("s_mov_b64 exec, -1"); a("s_branch L_ophase")

    a.label("L_mfma")
    a("s_setprio 0")
    srds()
    a(f"s_and_b32 s60, s{sWV}, 1"); a(f"s_lshr_b32 s61, s{sWV}, 1")
    lanefields()
    a(f"v_mul_u32_u24 v7, {WREG}, v3"); a("v_mul_u32_u24 v12, 320, v4"); a("s_movk_i32 s3, 16384"); a("v_add3_u32 v7, v7, v12, s3")
    a("s_mul_i32 s66, s60, 80"); a("s_sub_u32 s67, 240, s66")
    a("v_lshl_add_u32 v12, v5, 3, v7"); a("v_add_u32 v9, s66, v12"); a("v_add_u32 v10, s67, v12")
    a("v_mov_b32 v12, s66"); a("v_mov_b32 v13, s67"); a("v_cmp_lt_u32 vcc, 1, v5"); a("v_and_b32 v14, 1, v5"); a("v_mul_u32_u24 v14, 72, v14")
    a("v_cndmask_b32 v15, v12, v13, vcc"); a("v_add3_u32 v11, v7, v15, v14")
    a("v_and_b32 v7, 2, v0"); a("v_bfe_u32 v14, v0, 2, 1"); a("v_or_b32 v7, v7, v14"); a("v_bfe_u32 v14, v0, 3, 1"); a("v_lshl_add_u32 v7, v14, 2, v7")
    a("v_lshlrev_b32 v14, 1, v3"); a("v_xor_b32 v7, v7, v14"); a("v_lshlrev_b32 v7, 4, v7"); a("v_lshl_add_u32 v7, v6, 7, v7")
    a("s_lshl_b32 s3, s61, 13"); a("v_add_u32 v8, s3, v7")
    a(f"v_add_u32 v{XA[0]}, {RING}, v8"); a(f"v_add_u32 v{MK}, {RING}, v9"); a(f"v_add_u32 v{MV}, {RING}, v10"); a(f"v_add_u32 v{EX}, {RING}, v11")
    a(f"v_xor_b32 v{XA[1]}, 16, v{XA[0]}")
    a("v_min_u32 v7, 2, v3"); a("v_mul_u32_u24 v7, 640, v7"); a(f"v_add_u32 v7, {L_CS}, v7")
    a("v_lshl_add_u32 v14, v6, 2, v7"); a("v_lshl_add_u32 v173, v12, 1, v14"); a("v_lshl_add_u32 v174, v13, 1, v14")
    a("v_cmp_lt_u32 vcc, 1, v4"); a("v_and_b32 v14, 1, v4"); a("v_mul_u32_u24 v14, 144, v14")
    a("v_cndmask_b32 v15, v12, v13, vcc"); a("v_lshl_add_u32 v15, v15, 1, v14"); a("v_lshl_add_u32 v14, v5, 2, v7"); a("v_add_u32 v175, v14, v15")
    a("s_lshl_b32 s3, s61, 10"); a(f"s_add_u32 s3, s3, {L_STAT}"); a("v_lshl_add_u32 v206, v6, 4, s3")
    for r in range(0, 80, 2): a(f"v_mov_b64 {vr(ACC+r,2)}, 0")
    for r in range(0, 36, 2): a(f"v_mov_b64 {vr(SET[1]+r,2)}, 0")
    for t in range(5): a(f"v_mov_b32 v{AUG+2*t+1}, 0")
    kepi_addr("s61", "s60")
    a("s_sub_u32 s59, 32768, s58")
    a("v_add_u32 v14, s59, v7"); a("v_lshlrev_b32 v15, 4, v12"); a(f"v_xor_b32 v{E3}, 64, v14"); a(f"v_xor_b32 v{E3}, v{E3}, v15"); a(f"v_lshl_add_u32 v{E3}, v13, 3, v{E3}")
    a("v_xor_b32 v14, 112, v14"); a("v_lshl_add_u32 v14, v13, 14, v14"); a("v_xor_b32 v12, 1, v12"); a(f"v_lshl_add_u32 v{E4}, v12, 3, v14")
    a("v_lshrrev_b32 v7, 5, v0"); a("v_lshl_add_u32 v12, v7, 3, v4"); a("v_lshlrev_b32 v12, 7, v12")
    a("v_and_b32 v13, 1, v4"); a("v_lshrrev_b32 v14, 1, v4"); a("v_lshl_or_b32 v13, v14, 2, v13"); a("v_lshl_or_b32 v12, v13, 4, v12")
    a(f"s_lshl_b32 s3, s{sWV}, 14"); a(f"s_add_u32 s3, s3, {TRI}"); a("v_add_u32 v12, s3, v12")
    a("v_and_b32 v13, 1, v5"); a("v_lshrrev_b32 v14, 1, v5"); a("v_and_b32 v15, 1, v3")
    a(f"v_lshl_or_b32 v{KA0}, v13, 1, v15"); a(f"v_lshlrev_b32 v{KA0}, 4, v{KA0}"); a(f"v_xor_b32 v{KA0}, v{KA0}, v12"); a(f"v_lshl_add_u32 v{KA0}, v14, 3, v{KA0}")
    a(f"v_xor_b32 v{KA1}, 96, v12"); a(f"v_lshl_add_u32 v{KA1}, v13, 3, v{KA1}")
    a("s_cmp_eq_u32 s60, 0"); a("s_mov_b32 s3, 0xfffeba98"); a("s_cselect_b32 s3, 0xfffba98e, s3")
    a("v_lshl_add_u32 v13, v15, 2, v5"); a("v_lshlrev_b32 v13, 2, v13"); a("v_bfe_u32 v13, s3, v13, 4"); a("v_lshlrev_b32 v13, 3, v13")
    a(f"v_xor_b32 v{KB}, v13, v12")
    for r in (KB, KA0, KA1): a(f"v_xor_b32 v{r+1}, 32, v{r}")
    a("v_and_b32 v13, 31, v0"); a("v_mul_u32_u24 v14, 21, v7"); a("v_add_u32 v14, v14, v13"); a("v_cmp_lt_u32 vcc, 20, v13")
    a(f"v_mov_b32 v15, {OOB:#x}"); a(f"v_lshlrev_b32 v{KP}, 4, v14"); a(f"v_lshlrev_b32 v{KP+1}, 3, v14")
    a(f"v_cndmask_b32 v{KP}, v{KP}, v15, vcc"); a(f"v_cndmask_b32 v{KP+1}, v{KP+1}, v15, vcc")
    a(f"s_and_b32 s3, s{sX}, 1"); a("s_lshl2_add_u32 s3, s3, s57"); a(f"s_lshl2_add_u32 s3, s3, s{sWV}"); a("s_lshl4_add_u32 s3, s3, s54")
    a("s_mul_i32 s62, s3, 1792"); a(f"s_add_u32 s62, s62, {WS_KV}")
    a("s_cmp_lt_u32 s57, 4"); a("s_cbranch_scc0 L_qaddr")
    a.label("L_qaret")
    o_sgprs()
    a(f"s_and_b32 s3, s{sX}, 1"); a("s_lshl2_add_u32 s3, s3, s57"); a("s_lshl_b32 s3, s3, 9"); a(f"s_add_u32 s3, s3, {WS_KH}")
    a(f"s_cmp_eq_u32 s{sWV}, 3"); a(f"s_cselect_b32 s{sHINT}, s3, {OOB:#x}")
    phi_addr("s65")
    a("s_mov_b32 s68, 0"); a(f"s_mov_b32 s69, {RING}")
    a("s_waitcnt vmcnt(0)")
    a(f"s_cmp_eq_u32 s{sJR}, 16"); a("s_cbranch_scc0 L_nb")
    a(f"s_lshl2_add_u32 s3, s{sX}, s{sWV}"); a("s_lshl_b32 s3, s3, 3"); a("v_mov_b32 v96, 1")
    a("s_mov_b64 exec, 1"); a(f"buffer_store_dword v96, off, s[{rDBG}:{rDBG+3}], s3 sc1"); a("s_mov_b64 exec, -1")
    a.label("L_nb")
    phi_build()
    o_vgprs(96); f_setup(96, 0)
    def reads(s, st):
        X = [f"ds_read_b128 {vr(st+4*m,4)}, v{XA[s]} offset:{2048*m}" for m in range(4)]
        Wr = []
        for t in range(5):
            for j in range(2):
                reg = [MK, MK, MV, MV, EX][t]; off = s*2560 + j*1280 + [8, 40, 8, 40, 0][t]
                Wr.append(f"ds_read_b64_tr_b16 {vr(st+16+4*t+2*j,2)}, v{reg} offset:{off}")
        return [X[0]] + Wr[0:2] + X[1:] + Wr[2:]
    def mf(i, st):
        t, m = divmod(i, 4)
        return f"v_mfma_f32_16x16x32_bf16 {vr(ACC+20*m+4*t,4)}, {vr(st+16+4*t,4)}, {vr(st+4*m,4)}, {vr(ACC+20*m+4*t,4)}"
    need = lambda i: (3 + i if i < 4 else 6 + 2*(i//4))
    R0 = reads(0, SET[0]); R1 = reads(1, SET[1])
    seq = [(i, 1) for i in range(20 - defer, 20)] + [(i, 0) for i in range(20)] + [(i, 1) for i in range(20 - defer)]
    fill = [[] for _ in seq]
    k = 0; g = 0
    while k < 14: fill[g] += R0[k:k+2]; k += 2; g += 1
    g = max(g, defer); k = 0
    while k < 14: fill[g].append(R1[k]); k += 1; g += 1
    fill[g] += [f"s_add_u32 s69, s69, {SLOT}", f"s_cmp_eq_u32 s69, {RING_END}", f"s_cselect_b32 s69, {RING}, s69"]
    for q, h in enumerate([f"v_add_u32 v{XA[0]}, s69, v8", f"v_add_u32 v{MK}, s69, v9", f"v_add_u32 v{MV}, s69, v10", f"v_add_u32 v{EX}, s69, v11", f"v_xor_b32 v{XA[1]}, 16, v{XA[0]}"]):
        fill[g+1+q].append(h)
    fill[g+6] += ["s_add_u32 s68, s68, 1", "s_cmp_lt_u32 s68, 10"]
    a.stampw(1)
    a.label("L_mloop")
    a("s_barrier")
    issued = 0; done = 0
    for idx, (i, st) in enumerate(seq):
        if idx >= defer:
            n = need(i) + (14 if st == 1 else 0)
            if idx == len(seq) - 1: n = 28
            if n > done: a(f"s_waitcnt lgkmcnt({min(15, issued - n)})"); done = n
        a(mf(i, SET[st]))
        for f in fill[idx]:
            if f.startswith("ds_"): issued += 1
            a(f)
    a("s_cbranch_scc1 L_mloop")
    a("s_barrier")
    RA = [f"ds_read_b128 {vr(STAT+4*m,4)}, v206 offset:{256*m}" for m in range(4)]
    RA += [f"ds_read_b32 v{AUG+2*t}, v{[173,173,174,174,175][t]} offset:{[16,80,16,80,0][t]}" for t in range(5)]
    k = 0
    for i in range(20 - defer, 20):
        a(mf(i, SET[1]))
        for r in RA[k:k+2]: a(r)
        k += 2
    for r in RA[k:]: a(r)
    a("s_waitcnt lgkmcnt(0)")
    aug = lambda m: [f"v_mfma_f32_16x16x16_bf16 {vr(ACC+20*m+4*t,4)}, {vr(AUG+2*t,2)}, {vr(STAT+4*m,2)}, {vr(ACC+20*m+4*t,4)}" for t in range(5)]
    a.stampw(2)
    for x in aug(2): a(x)
    if cut: a("s_branch L_fin")
    a("s_cmp_lt_u32 s57, 4"); a("s_cbranch_scc0 L_qepi")

    KT = [136, 142, 148, 166]; VT = [8, 172]
    def kcv(m): return [f"v_cvt_pk_bf16_f32 v{KT[m]+q}, v{ACC+20*m+4*t+2*h}, v{ACC+20*m+4*t+2*h+1}" for q, (t, h) in enumerate([(0,0),(0,1),(1,0),(1,1),(4,0),(4,1)])]
    def vwork(m):
        A = ACC + 20*m; T = VT[m & 1]; X = KT[m] + 4
        return [f"v_cvt_pk_bf16_f32 v{T+q}, v{A+8+2*q}, v{A+9+2*q}" for q in range(4)] + [
                f"v_cndmask_b32 v{X}, v{X}, v{STAT+4*m+1}, vcc", f"v_cndmask_b32 v{X+1}, v{X+1}, v{AUG+1}, vcc",
                f"ds_write_b64 v{E3}, {vr(T,2)} offset:{2048*m}", f"ds_write_b64 v{E3}, {vr(T+2,2)} offset:{16384+2048*m}", f"ds_write_b64 v{E4}, {vr(X,2)} offset:{2048*m}"]
    def weave(main, fillers, n):
        k = 0
        for x in main:
            a(x)
            for y in fillers[k:k+n]: a(y)
            k += n
        for y in fillers[k:]: a(y)
    a("v_cmp_gt_u32 vcc, 32, v0")
    hand = lambda m: [f"ds_write_b128 v{E0}, {vr(KT[m],4)} offset:{2048*m}", f"ds_write_b64 v{E2}, {vr(KT[m]+4,2)} offset:{2048*m}"]
    weave(aug(3), ["", ""] + kcv(2), 2)
    for x in hand(2): a(x)
    weave(aug(0), kcv(3) + hand(3), 2)
    weave(aug(1), ["", ""] + kcv(0), 2)
    if kd: a.stamp(8, True)
    a("s_waitcnt lgkmcnt(0)"); a("s_barrier")
    if kd: a.stamp(4, True)
    weave(phi_mm(Pb[0], KT[0]), kcv(1) + vwork(2) + vwork(3), 2)
    for x in vwork(0): a(x)
    ktile(0, Pb[0], False, phi_mm(Pb[1], KT[1]) + vwork(1), 0)
    ktile(1, Pb[1], kpk, oareads, 1)
    a(fload)
    if kd: a.stamp(7, True)
    if kvp: a("s_setprio 1")
    a("s_waitcnt lgkmcnt(0)"); a("s_barrier")
    a.stampw(3)
    D0, D1, FR = 96, 112, 128
    def kvreads(ks):
        f = FR + 12*(ks % 3)
        return [f"ds_read_b64_tr_b16 {vr(f+4*o+2*j,2)}, v{[KB,KA0,KA1][o]+j} offset:{2048*ks+512*j}" for o in range(3) for j in range(2)]
    for x in kvreads(0) + kvreads(1): a(x)
    a("v_lshlrev_b32 v8, 7, v0"); a("v_mov_b32 v9, 1")
    a("s_waitcnt vmcnt(0)")
    for l in qloads: a(l)
    khint = f"s_mov_b64 exec, 15\nbuffer_atomic_add v9, v8, {WS}, s{sHINT} offen sc1\ns_mov_b64 exec, -1"
    for ks in range(8):
        f = FR + 12*(ks % 3)
        if ks == khe: a(khint)
        a(f"s_waitcnt lgkmcnt({6 if ks < 7 else 0})")
        a(f"v_mfma_f32_32x32x16_bf16 {vr(D0,16)}, {vr(f+4,4)}, {vr(f,4)}, {vr(D0,16) if ks else 0}")
        if ks < 6:
            for x in kvreads(ks+2)[:3]: a(x)
        a(f"v_mfma_f32_32x32x16_bf16 {vr(D1,16)}, {vr(f+8,4)}, {vr(f,4)}, {vr(D1,16) if ks else 0}")
        if ks < 6:
            for x in kvreads(ks+2)[3:]: a(x)
    if khe == 8: a(khint)
    for q in range(4): a(f"v_cvt_pk_bf16_f32 v{FR+q}, v{D0+2*q}, v{D0+2*q+1}")
    a(f"buffer_store_dwordx4 {vr(FR,4)}, v{KP}, {WS}, s62 offen sc1")
    for q in range(4, 8): a(f"v_cvt_pk_bf16_f32 v{FR+q}, v{D0+2*q}, v{D0+2*q+1}")
    a(f"buffer_store_dwordx4 {vr(FR+4,4)}, v{KP}, {WS}, s62 offen offset:672 sc1")
    for q in range(8, 10): a(f"v_cvt_pk_bf16_f32 v{FR+q}, v{D0+2*q}, v{D0+2*q+1}")
    a(f"buffer_store_dwordx2 {vr(FR+8,2)}, v{KP+1}, {WS}, s62 offen offset:1344 sc1")
    if khe == 9: a(khint)
    a("s_mov_b32 s63, 0")
    if kvp: a("s_setprio 0")
    a(tload)
    a("s_waitcnt vmcnt(5)")
    a.label("L_qchk")
    a(f"v_cmp_eq_u32 vcc, s{sSENT}, v253"); a("s_cbranch_vccnz L_qlate")

    a.label("L_phi")
    a.stampw(4)
    a(f"v_mfma_f32_32x32x16_bf16 {vr(P0,16)}, {vr(OA,4)}, {vr(QF,4)}, 0")
    a(f"v_mfma_f32_32x32x8_bf16 {vr(P0,16)}, {vr(OA+8,2)}, {vr(QF+4,2)}, {vr(P0,16)}")
    a(f"v_mfma_f32_32x32x16_bf16 {vr(P1,16)}, {vr(OA+4,4)}, {vr(QF,4)}, 0")
    a(f"v_mfma_f32_32x32x8_bf16 {vr(P1,16)}, {vr(OA+10,2)}, {vr(QF+4,2)}, {vr(P1,16)}")
    a("s_mov_b32 s62, 0x00003f80"); a("s_mov_b32 s64, 0x3f800000"); a("s_mov_b32 s53, 0")
    for q in range(5): a(f"s_add_u32 s{[54,55,56,58,59][q]}, s{sKVA}, {5376*(q+1)}")
    a("s_and_b32 s3, s63, 1"); a(f"s_lshl3_add_u32 s3, s3, s{sWV}"); a("s_cmp_eq_u32 s3, 15")
    for n, x in enumerate(softmax_plain(list(range(P0, P0+20)), PHQ, OT)):
        if pp and n in (hk0, hk1): a(f"s_cbranch_scc1 L_hk{n}"); a.label(f"L_hr{n}")
        a(x)
    a.stampw(5)
    a("s_cmp_eq_u32 s63, 0"); a("s_cbranch_scc0 L_phix")
    a.label("L_kvwait")
    def woreads(st, dst):
        R = []
        for t in range(5):
            for j in range(2):
                if st < 8: R.append(f"ds_read_b64_tr_b16 {vr(dst+4*t+2*j,2)}, v6 offset:{6400*st+1280*j+32*t}")
                else: R.append(f"ds_read_b64_tr_b16 {vr(dst+4*t+2*j,2)}, v2 offset:{2560+25600*(st-8)+12800*j+32*t}")
        return R
    a("s_barrier")
    a.stampw(12)
    a.label("L_kfull")
    for p in range(16): a(f"buffer_load_dword v{KL+p}, v15, {WS}, s{[sKVA,54,55,56,58,59][p//3]} offen offset:{1792*(p%3)} sc1")
    a("v_mov_b64 v[16:17], 0"); a("v_mov_b64 v[18:19], 0"); a(f"v_mov_b32 v{OT}, 0")
    for p in range(0, 16, 2):
        if p % 4 == 0: a(f"s_waitcnt vmcnt({12-p})")
        for q in range(2): a(f"v_dot2c_f32_bf16 v{16+2*q}, s62, v{KL+p+q}"); a(f"v_dot2c_f32_bf16 v{17+2*q}, s64, v{KL+p+q}")
        a(f"v_max3_u32 v{OT}, v{OT}, v{KL+p}, v{KL+p+1}")
    a(f"v_cmp_eq_u32 vcc, s{sSENT}, v{OT}"); a("s_cbranch_vccnz L_kagain")
    a("v_pk_add_f32 v[16:17], v[16:17], v[18:19]"); a("v_cvt_pk_bf16_f32 v16, v16, v17")
    a("ds_write_b32 v14, v16")
    a.label("L_kred")
    a.stampw(6)
    a("s_waitcnt lgkmcnt(0)"); a("s_barrier")
    a(f"ds_read_b128 {vr(OA,4)}, v207"); a(f"ds_read_b128 {vr(OA+4,4)}, v207 offset:672"); a(f"ds_read_b64 {vr(OA+8,2)}, v254 offset:1344")
    def ohint():
        lb = a.newlab("L_oh")
        a(f"s_cmp_eq_u32 s{sWV}, 7"); a(f"s_cbranch_scc0 {lb}")
        a("s_mov_b64 exec, s[54:55]"); a(f"buffer_atomic_add v15, v14, {WS}, s{sHINT} offen sc1"); a("s_mov_b64 exec, -1")
        a.label(lb)
    def omfma(P, PHI): return [f"v_mfma_f32_32x32x16_bf16 {vr(P,16)}, {vr(OA,4)}, {vr(PHI,4)}, 0",
                               f"v_mfma_f32_32x32x16_bf16 {vr(P,16)}, {vr(OA+4,4)}, {vr(PHI+4,4)}, {vr(P,16)}",
                               f"v_mfma_f32_32x32x8_bf16 {vr(P,16)}, {vr(OA+8,2)}, {vr(PHI+8,2)}, {vr(P,16)}"]
    def ofin(P, T):
        a(f"v_add_f32 v16, 0x358637bd, v{P+12}"); a("v_rcp_f32 v16, v16")
        for q in range(8): a(f"v_mul_f32 v{P+q}, v{P+q}, v16")
        for q in range(4): a(f"v_cvt_pk_bf16_f32 v{T+q}, v{P+2*q}, v{P+2*q+1}")
        a(f"buffer_store_dwordx4 {vr(T,4)}, v12, {WS}, s{sO0} offen sc1")
        for q in range(8, 12): a(f"v_mul_f32 v{P+q}, v{P+q}, v16")
        for q in range(4, 6): a(f"v_cvt_pk_bf16_f32 v{T+q}, v{P+2*q}, v{P+2*q+1}")
        a(f"buffer_store_dwordx2 {vr(T+4,2)}, v13, {WS}, s{sO1} offen sc1")
    a("s_cmp_lt_u32 s57, 4"); a("s_cbranch_scc0 L_o2")
    for q, x in enumerate(omfma(P0, PHQ)): a(f"s_waitcnt lgkmcnt({2-q})"); a(x)
    a.label("L_o1")
    if ohe == 1: ohint()
    ofin(P0, 18)
    if ohe == 0: ohint()
    a.stampw(7)

    a.label("L_final")
    yloads = [f"buffer_load_dwordx4 {vr(OF+4*t,4)}, v15, {WS}, s60 offen offset:{512*t} sc1" for t in range(5)]
    RT = WF + 160
    wo_a = sum((woreads(st, WF + 20*st) for st in (0, 1, 2, 3, 8)), [])
    wo_b = sum((woreads(st, WF + 20*st) for st in (4, 5, 6, 7)), [])
    oloads = [f"buffer_load_dwordx4 {vr(OF+4*st,4)}, v7, {WS}, s{sF0+st//4} offen offset:{1024*(st%4)} sc1" for st in range(8)]
    oloads += [f"buffer_load_dwordx2 {vr(OF+32+2*q,2)}, v1, {WS}, s{sF2} offen offset:{512*q} sc1" for q in range(4)]
    a("v_lshlrev_b32 v1, 3, v0"); a("s_mov_b32 s63, 0")
    a(f"s_cmp_lt_u32 s{sWV}, 4"); a("s_cbranch_scc0 L_c2")
    topcheck()
    a.label("L_c1")
    a(f"buffer_load_dword v14, v4, {WS}, s{sAUX} offen sc1")
    a(f"s_not_b32 s3, s{sK1}"); a("s_bfe_u32 s3, s3, 0x70004"); a(f"s_cmp_eq_u32 s3, s{sT16}"); a("s_cselect_b32 s61, 1, 0")
    a(f"s_not_b32 s3, s{sK2}"); a("s_bfe_u32 s3, s3, 0x70004"); a(f"s_cmp_eq_u32 s3, s{sT16}"); a("s_cselect_b32 s3, 2, 0")
    a("s_or_b32 s61, s61, s3"); a("s_cbranch_scc1 L_y0")
    a.label("L_y1")
    for x in wo_a[:40] + wo_b: a(x)
    a("s_cmp_eq_u32 s61, 0")
    a("s_waitcnt vmcnt(0)")
    a("v_and_b32 v8, 0xffff0000, v14"); a("v_rcp_f32 v8, v8"); a("v_lshlrev_b32 v9, 16, v14")
    a("v_mul_f32 v9, v9, v8"); a("v_add_f32 v8, 1.0, v8")
    a("s_cbranch_scc0 L_y2")
    a.label("L_y3")
    a.stampw(8)
    a("s_barrier")
    a.stampw(13)
    for l in oloads[:n0]: a(l)
    for t in range(5): a(f"ds_read_b64 {vr(RT+10+2*t,2)}, v3 offset:{32*t}")
    a("s_cmp_eq_u32 s61, 0")
    a("s_waitcnt lgkmcnt(0)")
    for q in range(10):
        a(f"v_lshlrev_b32 v{RT+2*q}, 16, v{RT+10+q}"); a(f"v_and_b32 v{RT+2*q+1}, 0xffff0000, v{RT+10+q}")
    resfma = lambda d: [f"v_pk_fma_f32 {vr(d+2*q,2)}, {vr(RT+2*q,2)}, v[8:9], v[8:9] op_sel:[0,0,1] op_sel_hi:[1,0,1] neg_lo:[0,0,1] neg_hi:[0,0,1]" for q in range(10)]
    a("s_cbranch_scc0 L_y4")
    for x in resfma(FA): a(x)
    a.label("L_y5")
    for x in wo_a[40:]: a(x)
    last = woreads(9, WF)
    groups = ((0, 1), (2, 3), (4, 5), (6, 7), (8, 9)); ends = (2, 4, 6, 8, 12)
    def project(kh, n):
        todo = oloads[n:]
        def vtree(g_):
            r = OF + 8*g_
            return [f"s_waitcnt vmcnt({12 - len(todo) - ends[g_]})\nv_max3_u32 v13, v{r}, v{r+1}, v{r+2}", f"v_max3_u32 v12, v{r+3}, v{r+4}, v{r+5}", f"v_max3_u32 v13, v13, v{r+6}, v{r+7}",
                    "v_max_u32 v13, v13, v12", f"v_cmp_eq_u32 vcc, s{sSENT}, v13"]
        a("s_waitcnt lgkmcnt(10)")
        for x in vtree(0): a(x)
        for g_, steps in enumerate(groups):
            a("s_cbranch_vccnz L_oretry")
            a.label(f"L_og{5*kh+g_}")
            if g_ == 0: a.stampw(9)
            if g_ in (1, 4): a("s_waitcnt lgkmcnt(0)")
            if g_ == 4 and kh:
                a("s_barrier")
                for t in range(5): a(f"ds_read_b128 {vr(OF+4*t,4)}, v5 offset:{1024*t}")
            want = min(12, max(ends[min(g_+1, 4)], n + 2*(g_+1) + (2 if n + 2*(g_+1) > 8 else 0)))
            now = todo[:max(0, want - (12 - len(todo)))]; del todo[:len(now)]
            nxt_ = vtree(g_+1) if g_ < 4 else []
            for k, st in enumerate(steps):
                for t in range(5):
                    a(f"v_mfma_f32_16x16x32_bf16 {vr(FA+4*t,4)}, {vr(WF+20*(st%9)+4*t,4)}, {vr(OF+4*st,4)}, {vr(FA+4*t,4)}")
                    if k == 0 and t < len(now): a(now[t])
                    if st in (2, 4): a(last[5*(st//2-1)+t])
                    if k == 0 and t == 4 and g_ < 4: a(f"s_mov_b32 s63, {5*kh+g_+1}")
                    if k == 1 and nxt_: a(nxt_[t])
        assert not todo
    project(0, n0)
    for t in range(5): a(f"ds_write_b128 v5, {vr(FA+4*t,4)} offset:{1024*t}")
    a("s_waitcnt lgkmcnt(0)"); a("s_barrier")
    a("s_branch L_fin")
    a.label("L_c2")
    wo_last()
    a.label("L_c2h")
    for r in range(0, 20, 2): a(f"v_mov_b64 {vr(FA+r,2)}, 0")
    a("s_mov_b32 s63, 5")
    a(f"s_cmp_eq_u32 s{sWV}, 7"); a("s_cbranch_scc1 L_c7")
    for x in wo_a: a(x)
    a("s_waitcnt vmcnt(0)")
    a.label("L_c4")
    a.stampw(8)
    a("s_barrier")
    a.stampw(13)
    for l in oloads[:n1]: a(l)
    for x in wo_b: a(x)
    project(1, n1)
    a("s_waitcnt lgkmcnt(0)")
    for t in range(5):
        for q in range(4): a(f"v_add_f32 v{FA+4*t+q}, v{FA+4*t+q}, v{OF+4*t+q}")
        a(f"v_cvt_pk_bf16_f32 v{FA+4*t}, v{FA+4*t}, v{FA+4*t+1}"); a(f"v_cvt_pk_bf16_f32 v{FA+4*t+1}, v{FA+4*t+2}, v{FA+4*t+3}")
        a(f"ds_write_b64 v3, {vr(FA+4*t,2)} offset:{32*t}")
    a("s_waitcnt lgkmcnt(0)")
    for u in range(3): a(f"ds_read_b128 {vr(OF+4*u,4)}, v11 offset:{1024*u}")
    for u in range(3):
        a(f"s_waitcnt lgkmcnt({2-u})")
        a(f"buffer_store_dwordx4 {vr(OF+4*u,4)}, v{8+u}, s[{rOUT}:{rOUT+3}], s{sOUT} offen offset:{1024*u} {['', 'sc1', 'nt', 'sc0 sc1'][outfl]}")
    a.label("L_fin")
    if diag == 4:
        a.stampw(10); a("s_waitcnt vmcnt(0)"); a.stampw(11); a("s_waitcnt lgkmcnt(0)")
        a(f"s_cmp_lt_u32 s{sJR}, {plo}"); a("s_cbranch_scc1 L_pe"); a(f"s_cmp_ge_u32 s{sJR}, {phi}"); a("s_cbranch_scc1 L_pe")
        a(f"s_cmp_lt_u32 s{sWV}, {pw0}"); a("s_cbranch_scc1 L_pe"); a(f"s_cmp_ge_u32 s{sWV}, {pw1}"); a("s_cbranch_scc1 L_pe")
        a("s_sub_u32 s74, s74, s72"); a("s_min_u32 s74, s74, 5000"); a("s_lshl_b32 s74, s74, 2"); a("s_add_u32 s74, s74, 4000")
        a.label("L_pr"); a("s_memrealtime s[76:77]"); a("s_waitcnt lgkmcnt(0)"); a("s_sub_u32 s76, s76, s72"); a("s_cmp_lt_u32 s76, s74"); a("s_cbranch_scc1 L_pr")
        a.label("L_pe")
    elif diag:
        if not cut: a.stampw(10)
        a("s_waitcnt vmcnt(0)")
        a.stampw(11)
        a(f"s_lshl3_add_u32 s3, s2, s{sWV}"); a("s_lshl_b32 s3, s3, 6"); a(f"s_add_u32 s3, s3, {WS_DIAG}")
        a("s_mov_b64 exec, 1")
        for i in range(14):
            a(f"v_mov_b32 v8, s{72+2*i}"); a(f"buffer_store_dword v8, off, {WS}, s3 offset:{4*i}")
    a("s_endpgm")

    a.label("L_oretry")
    a.poll(oloads, range(OF, OF+40), 13, 0)
    a(f"s_cmp_gt_u32 s3, {SPIN}"); a(f"s_cselect_b32 s{sSENT}, 1, s{sSENT}")
    for g_ in range(9): a(f"s_cmp_eq_u32 s63, {g_}"); a(f"s_cbranch_scc1 L_og{g_}")
    a("s_branch L_og9")
    a.label("L_y0")
    a("s_cmp_eq_u32 s61, 2"); a("s_cselect_b32 s60, 20480, 0"); a(f"s_cselect_b32 s{sK1}, s{sK2}, s{sK1}")
    a(f"s_and_b32 s3, s{sJ}, 7"); a("s_mul_i32 s3, s3, 2560"); a("s_add_u32 s60, s60, s3"); a(f"s_add_u32 s60, s60, {WS_YP}")
    a("v_and_b32 v15, 7, v0"); a("v_lshlrev_b32 v15, 4, v15"); a("v_and_b32 v13, 48, v0"); a("v_lshl_add_u32 v15, v13, 3, v15")
    for l in yloads: a(l)
    for r in range(0, 20, 2): a(f"v_mov_b64 {vr(FA+r,2)}, 0")
    a("s_branch L_y1")
    a.label("L_y2")
    a.recheck(yloads, range(OF, OF+20), 13)
    a(f"s_and_b32 s53, s{sK1}, 0xffff0000"); a("s_cmp_lt_i32 s53, 0"); a("s_mov_b32 s3, 0xffff0000"); a("s_cselect_b32 s3, 0x80000000, s3"); a("s_xor_b32 s53, s53, s3")
    a(f"v_mov_b32 v12, {LOG2E|0x80000000:#x}"); a("v_mul_f32 v12, s53, v12"); a("v_exp_f32 v12, v12"); a("v_add_f32 v12, 1.0, v12"); a("v_rcp_f32 v12, v12")
    a(f"s_andn2_b32 s3, 15, s{sK1}"); a("v_and_b32 v13, 15, v0"); a("v_cmp_eq_u32 vcc, s3, v13")
    a("v_cvt_pk_bf16_f32 v12, v12, v12"); a("v_and_b32 v12, 0xffff0000, v12")
    for ctl in ("quad_perm:[1,0,3,2]", "quad_perm:[2,3,0,1]", "row_half_mirror"):
        for q in range(20): a(f"v_add_f32_dpp v{OF+q}, v{OF+q}, v{OF+q} {ctl} row_mask:0xf bank_mask:0xf")
    a("s_mov_b64 exec, vcc")
    for q in range(0, 20, 2): a(f"v_pk_mul_f32 {vr(FA+q,2)}, {vr(OF+q,2)}, v[12:13] op_sel_hi:[1,0]")
    a("s_mov_b64 exec, -1")
    a("s_cmp_eq_u32 s61, 3"); a("s_cbranch_scc0 L_y3")
    a("s_mov_b32 s61, 2"); a(f"s_mov_b32 s{sK1}, s{sK2}"); a("s_add_u32 s60, s60, 20480"); a(f"v_mov_b32 v{OF}, s{sSENT}"); a("s_branch L_y2")
    a.label("L_y4")
    for x in resfma(RT): a(x)
    for q in range(0, 20, 2): a(f"v_pk_add_f32 {vr(FA+q,2)}, {vr(FA+q,2)}, {vr(RT+q,2)}")
    a("s_branch L_y5")
    a.label("L_c7")
    a("v_lshlrev_b32 v4, 9, v0")
    a.cnt_watch(2, 4, f"s{sOHP}", f"{SENT + 16:#x}", 12, [wo_a[:osam], wo_a[osam:(osam+50)//2], wo_a[(osam+50)//2:]], pp)
    a("s_branch L_c4")
    a.label("L_kagain")
    a("s_add_u32 s53, s53, 1"); a(f"s_cmp_gt_u32 s53, {SPIN}"); a("s_cbranch_scc0 L_kfull"); a("s_branch L_kred")
    a.label("L_qlate")
    a.poll([fload], [253], OT, 0)
    for l in qloads: a(l)
    a("s_waitcnt vmcnt(0)"); a("s_branch L_phi")

    a.label("L_qaddr")
    a(f"s_and_b32 s3, s{sX}, 1"); a("s_lshl1_add_u32 s3, s3, s57"); a("s_sub_u32 s3, s3, 4"); a("s_mul_i32 s58, s3, 655360")
    a("s_lshl1_add_u32 s3, s54, s61"); a("s_mul_i32 s3, s3, 2560"); a("s_add_u32 s58, s58, s3"); a(f"s_add_u32 s58, s58, {WS_Q}")
    a("s_mul_i32 s3, s60, 163840"); a("s_sub_u32 s62, 491520, s3")
    a("v_mov_b32 v12, s3"); a("v_mov_b32 v13, s62"); a("v_cmp_gt_u32 vcc, 32, v0")
    a("s_add_u32 s59, s58, s62"); a("s_add_u32 s62, s58, s3")
    a("v_and_b32 v7, 1, v3"); a("v_mul_u32_u24 v7, 81920, v7"); a("v_cndmask_b32 v12, v13, v12, vcc")
    a("v_lshrrev_b32 v14, 5, v0"); a("v_lshl_add_u32 v14, v14, 9, v7"); a(f"v_lshl_add_u32 v{E0}, v6, 4, v14")
    a("v_add_u32 v12, v12, v7"); a(f"v_lshl_add_u32 v{E1}, v6, 3, v12"); a(f"v_mov_b32 v{E2}, {L_KVR}")
    a("s_branch L_qaret")
    a.label("L_qepi")
    a(f"ds_read_b32 v{E3}, v{E2}")
    for x in aug(3) + aug(0) + aug(1): a(x)
    a("s_waitcnt lgkmcnt(0)"); a(f"v_readfirstlane_b32 s3, v{E3}"); a("s_cmp_eq_u32 s3, 0")
    for m in (2, 3, 0, 1):
        A = ACC + 20*m; T = 96 + 12*m
        for r in range(0, 20, 2): a(f"v_pk_mul_f32 {vr(A+r,2)}, {vr(A+r,2)}, {vr(STAT+4*m+2,2)} op_sel:[0,1] op_sel_hi:[1,1]")
        for q in range(10): a(f"v_cvt_pk_bf16_f32 v{T+q}, v{A+2*q}, v{A+2*q+1}")
        for q in (0, 1, 4, 5): a(f"v_permlane16_swap_b32 v{T+q}, v{T+q+2}")
        a(f"s_cbranch_scc1 L_qs{m}")
        for fl in ("sc1", ""):
            a(f"buffer_store_dwordx4 {vr(T,4)}, v{E0}, {WS}, s62 offen offset:{(m>>1)*1280+(m&1)*256} {fl}")
            a(f"buffer_store_dwordx4 {vr(T+4,4)}, v{E0}, {WS}, s59 offen offset:{(m>>1)*1280+(m&1)*256} {fl}")
            a(f"buffer_store_dwordx2 {vr(T+8,2)}, v{E1}, {WS}, s58 offen offset:{1024+(m>>1)*1280+(m&1)*128} {fl}")
            if fl: a(f"s_branch L_qe{m}"); a.label(f"L_qs{m}")
        a.label(f"L_qe{m}")
    a.stampw(3)
    for x in oareads: a(x)
    a("s_waitcnt vmcnt(0) lgkmcnt(0)"); a("s_barrier")
    a.label("L_ophase")
    if qd: a.stamp(6, True)
    a("v_lshlrev_b32 v252, 10, v0"); a("s_mov_b64 exec, 3")
    a.poll([f"buffer_load_dword v253, v252, {WS}, s{sFQ} offen sc1"], [253], OT, 0)
    a("s_mov_b64 exec, -1")
    if qd: a.stamp(7, True)
    for l in qloads: a(l)
    a(f"s_add_u32 s3, s{sQA}, 10240")
    a(f"buffer_load_dwordx4 {vr(QF2,4)}, v7, {WS}, s3 offen sc1"); a(f"buffer_load_dwordx2 {vr(QF2+4,2)}, v1, {WS}, s3 offen offset:1024 sc1")
    a("s_mov_b32 s63, 2")
    a(f"s_cmp_lt_u32 s{sWV}, 4"); a("s_waitcnt vmcnt(0)")
    if qd: a.stamp(8, True)
    a("s_cbranch_scc1 L_phi")
    wo_round(abs(qw)); wo_round(abs(qw) + 1)
    a("s_branch L_phi")
    a.label("L_phix")
    a("s_cmp_eq_u32 s63, 2"); a("s_cbranch_scc1 L_phiq")
    a(f"s_cmp_eq_u32 s{sWV}, 7"); a("s_cbranch_scc0 L_kvwait")
    a.cnt_watch(1, 0, f"s{sKHP}", f"{SENT + 16:#x}", 18, [None, None, []] if pp else [[], [], []], pp)
    a("s_barrier")
    a(f"s_lshl_b32 s53, s{sX}, 7"); a(f"s_add_u32 s53, s53, {WS_FH}"); a("v_lshlrev_b32 v16, 10, v0")
    a("v_lshrrev_b32 v14, 2, v0"); a("v_lshlrev_b32 v14, 9, v14"); a("v_lshl_add_u32 v14, v0, 7, v14"); a("v_mov_b32 v15, 1")
    a("s_cmp_lt_u32 s57, 4"); a("s_cselect_b64 s[54:55], 15, 0xff")
    a.cnt_poll(2, 16, "s53", f"{SENT + 32:#x}", 21)
    a("s_branch L_kred")
    for k, n in enumerate((hk0, hk1)):
        if pp:
            a.label(f"L_hk{n}")
            a("s_mov_b64 exec, 1"); a(f"v_mov_b32 v{18+k}, 0"); a(f"buffer_atomic_or v{18+k}, v0, {WS}, s{sKHP} offen sc0 sc1"); a("s_mov_b64 exec, -1"); a(f"s_branch L_hr{n}")
    a.label("L_phiq")
    if qd: a.stamp(13, True)
    a("s_mov_b32 s63, 0")
    a(tload)
    a(f"s_cmp_lt_u32 s{sWV}, 4"); a("s_cbranch_scc1 L_phiq2")
    a("s_mov_b32 s63, 3")
    for r in range(abs(qw) + 2, 4): wo_round(r)
    a.label("L_phiq2")
    for q in range(0, 10, 2): a(f"v_mov_b64 {vr(PHQ2+q,2)}, {vr(PHQ+q,2)}")
    for q in range(0, 6, 2): a(f"v_mov_b64 {vr(QF+q,2)}, {vr(QF2+q,2)}")
    a("s_branch L_phi")
    a.label("L_o2")
    m1 = omfma(P1, PHQ2); m0 = omfma(P0, PHQ)
    for q in range(3): a(f"s_waitcnt lgkmcnt({2-q})"); a(m1[q])
    for x in m0: a(x)
    ofin(P1, 24)
    a(f"s_add_u32 s{sO0}, s{sO0}, 327680"); a(f"s_add_u32 s{sO1}, s{sO1}, 327680")
    a("s_branch L_o1")

    a.label("L_helper")
    for r, off in ((rWR, 40), (rG, 48), (rU, 56), (rDN, 64)): a(f"s_load_dwordx2 s[{r}:{r+1}], s[0:1], {off}")
    a.srdw(rWR, D*2)
    XR, CR, WR, FF = 16, 36, 56, 76
    a(f"s_sub_u32 s54, s{sJR}, 24"); a(f"s_lshl3_add_u32 s55, s{sX}, s54")
    a(f"s_lshl3_add_u32 s56, s55, s{sWV}")
    a("v_lshrrev_b32 v3, 4, v0"); a("v_and_b32 v4, 15, v0"); a("v_lshlrev_b32 v4, 4, v4")
    a("s_lshl_b32 s3, s56, 2"); a("v_add_u32 v5, s3, v3"); a("s_movk_i32 s3, 1280"); a("v_mad_u32_u24 v6, v5, s3, v4")
    a(f"s_lshr_b32 s57, s{sX}, 1"); a(f"s_and_b32 s58, s{sX}, 1")
    a("s_lshl3_add_u32 s59, s57, s54"); a("s_lshr_b32 s60, s59, 1"); a("s_and_b32 s59, s59, 1")
    a("s_mul_i32 s3, s60, 52"); a("s_lshr_b32 s3, s3, 8"); a("s_add_u32 s3, s3, s58"); a("s_mul_i32 s3, s3, 640"); a("s_lshl_b32 s61, s60, 7"); a("s_add_u32 s61, s61, s3")
    a(f"s_lshr_b32 s3, s{sWV}, 2"); a("s_lshl1_add_u32 s3, s3, s59"); a(f"s_and_b32 s53, s{sWV}, 3"); a("s_lshl2_add_u32 s3, s3, s53"); a("s_mul_i32 s3, s3, 30720"); a("s_add_u32 s3, s3, s61")
    a("s_cmp_eq_u32 s60, 15"); a(f"s_cselect_b32 s3, {OOB:#x}, s3")
    a("v_lshrrev_b32 v7, 3, v0"); a("v_mul_u32_u24 v7, 3840, v7"); a("v_and_b32 v8, 7, v0"); a("v_lshl_add_u32 v7, v8, 4, v7"); a("v_add_u32 v7, s3, v7")
    a("s_waitcnt lgkmcnt(0)")
    if cut: a.stamp(3)
    hv = VM(a)
    def hload_pair(i):
        a(f"s_mov_b32 s62, {491520*i}")
        hv(f"buffer_load_dwordx4 {vr(XR+4*i,4)}, v6, s[{rX}:{rX+3}], 0 offen offset:{256*i}", "x")
        hv(f"buffer_load_dwordx4 {vr(CR+4*i,4)}, v7, s[{rW}:{rW+3}], s62 offen", "x")
    def htouch(i):
        a(f"s_mov_b32 s62, {491520*i}")
        a("s_mov_b64 exec, 0x3fffffff")
        hv(f"buffer_load_dword v116, v9, s[{rW}:{rW+3}], s62 offen", "t")
        a("s_mov_b64 exec, 0xff")
        hv(f"buffer_load_dword v116, v10, s[{rX}:{rX+3}], 0 offen offset:{256*i}", "t")
        a("s_mov_b64 exec, -1")
    order = [["L1", "L2", "T1", "L3", "T2", "L4", "T3", "L0", "T4"], ["L1", "T1", "L2", "T2", "L3", "L4", "L0", "T3", "T4"], ["L1", "L2", "L3", "T2", "L4", "L0", "T3", "T4"]][hord] if tch else ["L1", "L2", "L3", "L4", "L0"]
    for n, o in enumerate(order):
        if o[0] == "L": hload_pair(int(o[1]))
        else: htouch(int(o[1]))
        if n == 0 and tch:
            a("v_mul_u32_u24 v9, 13108, v0"); a("v_lshrrev_b32 v9, 16, v9"); a("v_mul_u32_u24 v9, 640, v9"); a("v_lshl_add_u32 v9, v0, 7, v9")
            a(f"s_lshl3_add_u32 s3, s54, s{sWV}"); a("s_mul_i32 s3, s3, 7680"); a("s_mul_i32 s53, s58, 640"); a("s_add_u32 s3, s3, s53"); a("v_add_u32 v9, s3, v9")
            a("s_xor_b32 s3, s56, 64"); a("s_mul_i32 s3, s3, 5120"); a("v_lshrrev_b32 v10, 1, v0"); a("v_mul_u32_u24 v10, 1280, v10"); a("v_and_b32 v11, 1, v0")
            a("v_lshl_add_u32 v10, v11, 7, v10"); a("v_add_u32 v10, s3, v10")
        if n < len(order) - 1: a("s_barrier")
    for i in range(5): hv(f"buffer_load_dwordx4 {vr(WR+4*i,4)}, v4, s[{rWR}:{rWR+3}], 0 offen offset:{256*i}", "wr")
    srds(); a.srdw(rG, D*F*2)
    a("v_lshlrev_b32 v2, 4, v0")
    for q in range(4): a(f"v_mov_b32 v{12+q}, s{sSENT}")
    a("s_mul_i32 s62, s56, 3072"); a(f"s_add_u32 s62, s62, {WS_CLR}")
    if noclr & 4: a(f"s_mov_b32 s62, {OOB:#x}")
    for i in range(3): hv(f"buffer_store_dwordx4 v[12:15], v2, {WS}, s62 offen offset:{1024*i} sc1", "clr")
    a("v_lshrrev_b32 v130, 3, v0"); a("v_mul_u32_u24 v130, 3072, v130"); a("v_lshl_add_u32 v130, v8, 4, v130")
    a(f"s_cmp_ge_u32 s{sWV}, 3"); a("s_cselect_b32 s64, 3, 0"); a(f"s_cselect_b64 s[{rG}:{rG+1}], s[{rU}:{rU+1}], s[{rG}:{rG+1}]")
    a(f"s_sub_u32 s65, s{sWV}, s64")
    a("s_mul_i32 s68, s54, 245760"); a(f"s_mul_i32 s3, s{sX}, 384"); a("s_add_u32 s68, s68, s3"); a("s_lshl_b32 s3, s65, 7"); a("s_add_u32 s68, s68, s3")
    a(f"s_mul_i32 s69, s{sWV}, 10240"); a("s_movk_i32 s70, 24576"); a("s_movk_i32 s71, 1024"); a("s_mov_b32 s67, -1")
    a(f"s_cmp_lt_u32 s{sWV}, 6"); a("s_cbranch_scc1 L_hsw")
    a(f"s_mov_b64 s[{rG}:{rG+1}], s[{rDN}:{rDN+1}]")
    a("v_mul_u32_u24 v130, 6554, v0"); a("v_lshrrev_b32 v130, 16, v130"); a("v_mul_u32_u24 v130, 1120, v130"); a("v_add_u32 v130, v130, v2")
    a(f"s_sub_u32 s3, 7, s{sWV}"); a(f"s_mul_i32 s69, s3, {960*(f0+f1)}"); a(f"s_add_u32 s69, s69, {L_DI}"); a(f"s_mul_i32 s3, s3, {7680*(f0+f1)}")
    a(f"s_mul_i32 s68, s{sX}, 245760"); a("s_add_u32 s68, s68, s3"); a("s_mul_i32 s3, s54, 160"); a("s_add_u32 s68, s68, s3")
    a("s_movk_i32 s70, 7680"); a("s_movk_i32 s71, 960"); a("s_mov_b32 s67, 0x0fffffff")
    a.label("L_hsw")
    def ffn_dma(n):
        if n == 0: return
        a("s_mov_b32 exec_hi, s67")
        for _ in range(n):
            a("s_mov_b32 m0, s69"); a("s_add_u32 s69, s69, s71")
            hv(f"buffer_load_dwordx4 v130, s[{rG}:{rG+3}], s68 offen lds", "f")
            a("s_add_u32 s68, s68, s70")
        a("s_mov_b32 exec_hi, -1")
    def oclear():
        a("s_mul_i32 s66, s56, 5120"); a(f"s_add_u32 s66, s66, {WS_O}"); a("s_add_u32 s63, s66, 4096")
        for i in range(5): hv(f"buffer_store_dwordx4 v[12:15], v2, {WS}, s{66 if i < 4 else 63} offen offset:{1024*(i%4)} sc1", "oc")
    a.readyaddr(117)
    hv.wait("x")
    a.stampw(1)
    hv(a.readyload(118, 117), "rdy")
    ffn_dma(f0)
    for q in range(20):
        a(f"v_lshlrev_b32 v{FF+2*q}, 16, v{XR+q}"); a(f"v_and_b32 v{FF+2*q+1}, 0xffff0000, v{XR+q}")
    a(f"v_pk_add_f32 v[120:121], {vr(FF,2)}, {vr(FF+2,2)}"); a(f"v_pk_add_f32 v[122:123], {vr(FF+4,2)}, {vr(FF+6,2)}")
    for q in range(8, 40, 4):
        a(f"v_pk_add_f32 v[120:121], v[120:121], {vr(FF+q,2)}"); a(f"v_pk_add_f32 v[122:123], v[122:123], {vr(FF+q+2,2)}")
    a("v_pk_add_f32 v[120:121], v[120:121], v[122:123]"); a("v_add_f32 v120, v120, v121")
    a.rowsum16(120)
    a("v_mul_f32 v120, 0x3acccccd, v120")
    ffn_dma(f1)
    for q in range(20): a(f"v_pk_add_f32 {vr(FF+2*q,2)}, {vr(FF+2*q,2)}, v[120:121] op_sel_hi:[1,0] neg_lo:[0,1] neg_hi:[0,1]")
    a(f"v_pk_mul_f32 v[122:123], {vr(FF,2)}, {vr(FF,2)}"); a(f"v_pk_mul_f32 v[124:125], {vr(FF+2,2)}, {vr(FF+2,2)}")
    for q in range(4, 40, 4):
        a(f"v_pk_fma_f32 v[122:123], {vr(FF+q,2)}, {vr(FF+q,2)}, v[122:123]"); a(f"v_pk_fma_f32 v[124:125], {vr(FF+q+2,2)}, {vr(FF+q+2,2)}, v[124:125]")
    a("v_pk_add_f32 v[122:123], v[122:123], v[124:125]"); a("v_add_f32 v122, v122, v123")
    a.rowsum16(122)
    a("v_mul_f32 v122, 0x3acccccd, v122")
    a("v_cvt_pk_bf16_f32 v122, v122, v122"); a("v_and_b32 v122, 0xffff0000, v122"); a("v_add_f32 v122, 0x3727c5ac, v122")
    a("v_cvt_pk_bf16_f32 v122, v122, v122"); a("v_and_b32 v122, 0xffff0000, v122"); a("v_sqrt_f32 v122, v122")
    a("v_cvt_pk_bf16_f32 v126, v120, v122")
    a("v_and_b32 v122, 0xffff0000, v126"); a("v_rcp_f32 v124, v122"); a("v_lshlrev_b32 v121, 16, v126")
    a("v_sub_f32 v121, v120, v121"); a("v_mul_f32 v125, v121, v124")
    a("v_mov_b32 v128, 0"); a("v_mov_b32 v129, 0")
    for q in range(20): a(f"v_pk_fma_f32 {vr(FF+2*q,2)}, {vr(FF+2*q,2)}, v[124:125], v[124:125] op_sel:[0,0,1] op_sel_hi:[1,0,1]")
    for q in range(20): a(f"v_cvt_pk_bf16_f32 v{XR+q}, v{FF+2*q}, v{FF+2*q+1}")
    hv.wait("wr")
    for q in range(20): a(f"v_dot2c_f32_bf16 v{128+(q&1)}, v{XR+q}, v{WR+q}")
    a("v_add_f32 v128, v128, v129")
    a.rowsum16(128)
    a("v_cvt_pk_bf16_f32 v128, v128, v128"); a("v_ashrrev_i32 v129, 31, v128"); a("v_or_b32 v129, 0x80000000, v129"); a("v_xor_b32 v128, v128, v129")
    a("v_and_b32 v128, 0xffff0000, v128"); a("v_sub_u32 v129, 2047, v5"); a("v_or_b32 v127, v128, v129")
    a(f"s_lshl_b32 s3, s{sWV}, 5"); a(f"s_add_u32 s3, s3, {L_HM}"); a("v_lshl_add_u32 v129, v3, 3, s3")
    a("ds_write_b64 v129, v[126:127]")
    a("s_mov_b32 s62, 0x00003f80"); a("s_mov_b32 s63, 0x3f800000")
    for r in range(0, 8, 2): a(f"v_mov_b64 {vr(FF+r,2)}, 0")
    for i in range(5):
        for q in range(4):
            a(f"v_dot2c_f32_bf16 v{FF+2*q}, s62, v{CR+4*i+q}"); a(f"v_dot2c_f32_bf16 v{FF+2*q+1}, s63, v{CR+4*i+q}")
    for q in range(4): a(f"v_permlane32_swap_b32 v{FF+q}, v{FF+q+4}")
    a(f"v_pk_add_f32 {vr(FF,2)}, {vr(FF,2)}, {vr(FF+4,2)}"); a(f"v_pk_add_f32 {vr(FF+2,2)}, {vr(FF+2,2)}, {vr(FF+6,2)}")
    for q in range(2): a(f"v_permlane16_swap_b32 v{FF+q}, v{FF+q+2}")
    a(f"v_pk_add_f32 {vr(FF,2)}, {vr(FF,2)}, {vr(FF+2,2)}")
    for q in range(2): a(f"v_add_f32_dpp v{FF+q}, v{FF+q}, v{FF+q} row_ror:8 row_mask:0xf bank_mask:0xf")
    a(f"s_lshl_b32 s3, s{sWV}, 8"); a(f"s_add_u32 s3, s3, {L_HM+256}"); a("v_lshl_add_u32 v129, v8, 5, s3"); a("v_lshl_add_u32 v129, v3, 3, v129")
    a(f"ds_write_b64 v129, {vr(FF,2)}")
    a(f"v_mov_b32 v39, {L_XN+512}"); a("v_mov_b64 v[120:121], 0"); a("ds_write_b64 v39, v[120:121] offset:16"); a("ds_write_b32 v39, v120 offset:24")
    hv.wait("clr", "rdy", lgkm=True)
    a.readycheck(118, 117)
    a("s_barrier")
    a(f"s_cmp_eq_u32 s{sWV}, 0"); a("s_cbranch_scc0 L_h3")
    a("v_and_b32 v129, 31, v0"); a(f"v_lshlrev_b32 v128, 3, v129"); a(f"v_add_u32 v128, {L_HM}, v128"); a("ds_read_b64 v[126:127], v128")
    a("v_lshlrev_b32 v119, 2, v0"); a(f"v_add_u32 v128, {L_HM+256}, v119")
    for q in range(8): a(f"ds_read_b32 v{FF+q}, v128 offset:{256*q}")
    a("s_lshl_b32 s62, s55, 7"); a(f"s_add_u32 s62, s62, {WS_SM}"); a("v_lshlrev_b32 v129, 2, v129"); a("v_mov_b32 v125, 0")
    a("s_lshl_b32 s63, s61, 1"); a("s_mul_i32 s3, s59, 7680"); a("s_add_u32 s63, s63, s3"); a(f"s_add_u32 s63, s63, {WS_CS}")
    a("s_cmp_eq_u32 s60, 15"); a(f"s_cselect_b32 s63, {OOB:#x}, s63")
    a("s_waitcnt lgkmcnt(0)")
    a(f"buffer_store_dword v126, v129, {WS}, s62 offen sc1")
    a(f"v_pk_add_f32 {vr(FF,2)}, {vr(FF,2)}, {vr(FF+2,2)}"); a(f"v_pk_add_f32 {vr(FF+4,2)}, {vr(FF+4,2)}, {vr(FF+6,2)}")
    a(f"v_pk_add_f32 {vr(FF,2)}, {vr(FF,2)}, {vr(FF+4,2)}"); a(f"v_add_f32 v{FF}, v{FF}, v{FF+1}")
    a(f"v_and_b32 v{FF+1}, 0xffff0000, v{FF}"); a(f"v_sub_f32 v{FF}, v{FF}, v{FF+1}"); a(f"v_cvt_pk_bf16_f32 v{FF}, v{FF+1}, v{FF}")
    a(f"buffer_store_dword v{FF}, v119, {WS}, s63 offen sc1")
    a.top2(127, 125, 124, 62, 63)
    a("v_mov_b32 v122, s62"); a("v_mov_b32 v123, s63"); a("s_lshl_b32 s62, s55, 7"); a(f"s_add_u32 s62, s62, {WS_C1}")
    a("s_getreg_b32 s3, hwreg(HW_REG_XCC_ID)"); a("v_mov_b32 v124, s3")
    a("s_mov_b64 exec, 1")
    a(f"buffer_store_dwordx3 v[122:124], off, {WS}, s62 sc1")
    a("s_mov_b64 exec, -1")
    a("s_and_b32 s3, s55, 3"); a("s_lshl_b32 s3, s3, 10")
    a.cnt_add(8, "s3", 126)
    a.label("L_h3")
    a("s_barrier")
    a.stampw(2)
    a(f"s_cmp_eq_u32 s{sWV}, 7"); a("s_cbranch_scc1 L_hroute")
    ffn_dma(10 - f0 - f1)
    a(f"s_cmp_eq_u32 s{sWV}, 6"); a("s_cbranch_scc0 L_h4")
    a("s_mov_b32 s53, 0")
    a.label("L_h4a"); ffn_dma(1); a("s_add_u32 s53, s53, 1"); a(f"s_cmp_lt_u32 s53, {22 - f0 - f1}"); a("s_cbranch_scc1 L_h4a")
    a.label("L_h4")
    a("s_mul_i32 s3, s56, 1600"); a("v_min_u32 v9, 12, v0"); a("v_lshlrev_b32 v9, 7, v9")
    a(f"buffer_load_dword v116, v9, s[{rWO}:{rWO+3}], s3 offen")
    oclear()
    a("s_or_b32 s3, s56, 7"); a("s_mul_i32 s3, s3, 5120"); a(f"s_lshl_b32 s53, s{sWV}, 10"); a("s_add_u32 s3, s3, s53"); a(f"s_add_u32 s3, s3, {WS_O}")
    a(f"s_cmp_lt_u32 s{sWV}, 5"); a(f"s_cselect_b32 s3, s3, {OOB:#x}")
    a(f"buffer_store_dwordx4 v[12:15], v2, {WS}, s3 offen sc1")
    if cut: a("s_branch L_fin")
    a("v_lshrrev_b32 v5, 5, v0"); a("v_bfe_u32 v4, v0, 2, 2"); a("v_lshl_add_u32 v6, v5, 3, v4"); a("v_and_b32 v11, 1, v0")
    a("v_bfe_u32 v9, v0, 4, 1"); a("v_and_b32 v131, 3, v0"); a("v_lshl_add_u32 v131, v9, 2, v131"); a("v_lshlrev_b32 v131, 3, v131")
    GB = 132; DG = 176
    a("v_and_b32 v26, 31, v0"); a("v_lshlrev_b32 v36, 2, v26"); a("s_movk_i32 s3, 768"); a("v_mad_u32_u24 v36, v5, s3, v36")
    a("s_mul_i32 s62, s55, 3072"); a("s_lshl_b32 s3, s64, 9"); a("s_add_u32 s62, s62, s3"); a("s_lshl_b32 s3, s65, 8"); a("s_add_u32 s62, s62, s3"); a(f"s_add_u32 s62, s62, {WS_GP}")
    a("s_mov_b32 s60, 0")
    wo_addr()
    a("v_mul_u32_u24 v10, 160, v11"); a("v_lshl_add_u32 v10, v5, 4, v10"); a(f"v_add_u32 v10, {L_XN}, v10")
    a("v_cmp_gt_u32 vcc, 32, v0")
    a(f"s_cmp_lt_u32 s{sWV}, 6"); a("s_cbranch_scc0 L_h5a")
    a(f"s_mul_i32 s3, s{sWV}, 10240"); a("v_lshl_add_u32 v9, v6, 7, v131"); a("v_add_u32 v9, s3, v9")
    a("s_waitcnt vmcnt(7)")
    for s_ in range(5):
        for nt in range(2):
            for j in range(2): a(f"ds_read_b64_tr_b16 {vr(GB+8*s_+4*nt+2*j,2)}, v9 offset:{2048*s_+512*j+64*nt}")
    a.label("L_h5a")
    def ldspoll(off, n):
        top = a.newlab("L_lp"); out = a.newlab("L_lo")
        a("s_mov_b32 s53, 0")
        a.label(top)
        a(f"ds_read_b32 v9, v39 offset:{off}"); a("s_add_u32 s53, s53, 1"); a(f"s_cmp_gt_u32 s53, {64*SPIN}"); a(f"s_cbranch_scc1 {out}")
        a("s_waitcnt lgkmcnt(0)"); a("v_readfirstlane_b32 s3, v9"); a(f"s_cmp_lt_u32 s3, {n}"); a(f"s_cbranch_scc1 {top}")
        a.label(out)
    a("s_waitcnt vmcnt(0) lgkmcnt(0)")
    a("v_mov_b32 v9, 1"); a("s_mov_b64 exec, 1"); a("ds_add_u32 v39, v9 offset:24"); a("s_mov_b64 exec, -1")
    ldspoll(24, 7)
    a.stampw(12)
    a(f"s_cmp_eq_u32 s{sWV}, 6"); a("s_cbranch_scc1 L_hbulk")
    a(f"s_cmp_eq_u32 s{sWV}, 5"); a("s_cbranch_scc0 L_h5b")
    a("s_and_b32 s3, s55, 1"); a("s_lshl_b32 s3, s3, 10"); a(f"s_add_u32 s3, s3, {WS_FH}")
    a.cnt_add(8, "s3", 120)
    a.label("L_h5b")
    a("v_and_b32 v9, 15, v0"); a("v_lshlrev_b32 v37, 3, v9"); a("v_mul_u32_u24 v38, 768, v3"); a("v_add_u32 v37, v37, v38")
    a("v_bfe_u32 v38, v0, 4, 1"); a("v_mul_u32_u24 v38, 384, v38"); a("v_lshl_add_u32 v38, v9, 2, v38"); a("v_lshl_add_u32 v38, v5, 1, v38")
    a(f"s_lshl_b32 s3, s{sWV}, 6"); a(f"s_add_u32 s3, s3, {L_HB}"); a("v_add_u32 v38, s3, v38")
    a(f"s_mul_i32 s66, s{sX}, 24576"); a(f"s_lshl_b32 s3, s{sWV}, 7"); a("s_add_u32 s66, s66, s3"); a(f"s_add_u32 s66, s66, {WS_GP}")
    gl = ["s_mov_b32 s63, s66"]
    for p in range(8):
        gl.append(f"buffer_load_dwordx2 {vr(FF+2*p,2)}, v37, {WS}, s63 offen offset:{3072*(p&1)} sc1")
        if p & 1 and p < 7: gl.append("s_add_u32 s63, s63, 6144")
    for x in gl: a(x)
    ldspoll(16, 1)
    a.stampw(3)
    a("ds_read_b96 v[122:124], v39")
    for s_ in range(5): a(f"ds_read_b128 {vr(XR+4*s_,4)}, v10 offset:{32*s_}")
    for s_ in range(5):
        a(f"s_waitcnt lgkmcnt({4-s_})")
        for nt in range(2): a(f"v_mfma_f32_32x32x16_bf16 {vr(DG+16*nt,16)}, {vr(XR+4*s_,4)}, {vr(GB+8*s_+4*nt,4)}, {vr(DG+16*nt,16) if s_ else 0}")
    a("v_readfirstlane_b32 s53, v124")
    for nt in range(2): a(f"v_cndmask_b32 v{120+nt}, v{DG+16*nt+1}, v{DG+16*nt}, vcc")
    a("s_cmp_eq_u32 s53, 0"); a("s_cbranch_scc1 L_h7")
    for nt in range(2): a(f"buffer_store_dword v{120+nt}, v36, {WS}, s62 offen offset:{128*nt} sc1")
    a("s_branch L_h8")
    a.label("L_h7")
    for nt in range(2): a(f"buffer_store_dword v{120+nt}, v36, {WS}, s62 offen offset:{128*nt}")
    a.label("L_h8")
    a.stampw(4)
    a("s_waitcnt vmcnt(0)")
    a.poll(gl, range(FF, FF+16), 10, 0)
    for q in range(4): a(f"v_pk_add_f32 {vr(FF+2*q,2)}, {vr(FF+2*q,2)}, {vr(FF+2*q+8,2)}")
    for q in range(2): a(f"v_pk_add_f32 {vr(FF+2*q,2)}, {vr(FF+2*q,2)}, {vr(FF+2*q+4,2)}")
    a(f"v_pk_add_f32 {vr(FF,2)}, {vr(FF,2)}, {vr(FF+2,2)}")
    a(f"v_permlane32_swap_b32 v{FF}, v{FF+1}")
    a(f"v_cvt_pk_bf16_f32 v120, v{FF}, v{FF+1}"); a("v_lshlrev_b32 v121, 16, v120"); a("v_and_b32 v120, 0xffff0000, v120")
    a(f"v_mul_f32 v119, {LOG2E|0x80000000:#x}, v121"); a("v_exp_f32 v119, v119"); a("v_add_f32 v119, 1.0, v119"); a("v_rcp_f32 v119, v119")
    a("v_mul_f32 v121, v121, v119"); a("v_cvt_pk_bf16_f32 v121, v121, v121"); a("v_and_b32 v121, 0xffff0000, v121")
    a("v_mul_f32 v121, v121, v120"); a("v_cvt_pk_bf16_f32 v121, v121, v121")
    a("ds_write_b16 v38, v121")
    a("v_mov_b32 v9, 1"); a("s_mov_b64 exec, 1"); a("ds_add_u32 v39, v9 offset:20"); a("s_mov_b64 exec, -1")
    a(f"s_cmp_lt_u32 s{sWV}, 5"); a("s_cbranch_scc0 L_h13")
    a("v_lshl_add_u32 v8, v3, 3, v4"); a("v_mul_u32_u24 v8, 160, v8"); a("v_and_b32 v10, 3, v0"); a("v_lshl_add_u32 v8, v10, 3, v8")
    a(f"s_lshl_b32 s3, s{sWV}, 5"); a(f"s_add_u32 s3, s3, {L_DI}"); a("v_add_u32 v8, s3, v8")
    for s_ in range(6):
        for j in range(2): a(f"ds_read_b64_tr_b16 {vr(GB+4*s_+2*j,2)}, v8 offset:{5120*s_+640*j}")
    a("v_mul_u32_u24 v10, 384, v11"); a("v_lshl_add_u32 v10, v3, 4, v10"); a(f"v_add_u32 v10, {L_HB}, v10")
    ldspoll(20, 6)
    a.stampw(5)
    for s_ in range(6):
        a(f"ds_read_b128 {vr(40+4*s_,4)}, v10 offset:{64*s_}")
    a("v_and_b32 v9, 3, v0"); a("v_lshlrev_b32 v9, 2, v9"); a("v_lshl_add_u32 v9, v4, 7, v9"); a("s_movk_i32 s3, 20480"); a("v_mad_u32_u24 v9, v3, s3, v9"); a("v_cmp_gt_u32 vcc, 16, v0")
    a(f"s_lshl_b32 s62, s{sX}, 4"); a("s_mul_i32 s3, s54, 2560"); a("s_add_u32 s62, s62, s3"); a(f"s_lshl_b32 s3, s{sWV}, 9"); a("s_add_u32 s62, s62, s3"); a(f"s_add_u32 s62, s62, {WS_YP}")
    a("s_waitcnt lgkmcnt(0)")
    for s_ in range(6): a(f"v_mfma_f32_16x16x32_bf16 {vr(DG,4)}, {vr(40+4*s_,4)}, {vr(GB+4*s_,4)}, {vr(DG,4) if s_ else 0}")
    a(f"v_cndmask_b32 v120, v{DG+1}, v{DG}, vcc")
    a("s_mov_b32 exec_hi, 0"); a(f"buffer_store_dword v120, v9, {WS}, s62 offen sc1"); a("s_mov_b32 exec_hi, -1")
    a.stampw(6)
    a("s_branch L_h13")
    a.label("L_hroute")
    a(f"s_lshl_b32 s53, s{sX}, 7"); a("v_lshlrev_b32 v124, 10, v0")
    a.cnt_poll(4, 124, "s53", f"{SENT + 16:#x}", 125)
    a("v_lshlrev_b32 v126, 7, v0"); a(f"v_add_u32 v126, {WS_C1}, v126")
    a.poll([f"buffer_load_dwordx3 v[122:124], v126, {WS}, 0 offen sc1"], [122, 123, 124], 125, 0)
    a("s_getreg_b32 s3, hwreg(HW_REG_XCC_ID)"); a("v_cmp_ne_u32 vcc, s3, v124"); a(f"s_lshl_b32 s3, s{sX}, 3"); a("s_lshr_b64 s[62:63], vcc, s3"); a("s_and_b32 s62, s62, 0xff")
    if not loc: a("s_mov_b32 s62, 1")
    a.top2(122, 123, 125, sK1, sK2)
    a(f"v_mov_b32 v122, s{sK1}"); a(f"v_mov_b32 v123, s{sK2}"); a("v_mov_b32 v124, s62"); a("ds_write_b96 v39, v[122:124]")
    a("s_cmp_eq_u32 s55, 0"); a(f"s_mov_b32 s3, {WS_TOP}"); a(f"s_cselect_b32 s3, s3, {OOB:#x}")
    a("s_mov_b64 exec, 1"); a(f"buffer_store_dwordx2 v[122:123], off, {WS}, s3 sc1"); a("s_mov_b64 exec, 0xfffff")
    a("v_cmp_lt_u32 vcc, 9, v0"); a("v_cndmask_b32 v9, v122, v123, vcc"); a("v_and_b32 v9, 0x7ff, v9"); a("v_sub_u32 v9, 2047, v9")
    a("v_lshlrev_b32 v10, 2, v9"); a(f"v_add_u32 v10, {WS_SM}, v10"); a("v_mul_u32_u24 v9, 1280, v9"); a("v_add_u32 v9, v9, v2")
    a("v_subrev_u32 v11, 160, v9"); a("v_cndmask_b32 v9, v9, v11, vcc"); a("s_mul_i32 s53, s54, 160")
    a(f"buffer_load_dwordx4 {vr(XR,4)}, v9, s[{rX}:{rX+3}], s53 offen")
    a.poll([f"buffer_load_dword v126, v10, {WS}, 0 offen sc1"], [126], 125, 0)
    a("v_and_b32 v122, 0xffff0000, v126"); a("v_rcp_f32 v124, v122"); a("v_lshlrev_b32 v120, 16, v126")
    for q in range(4):
        a(f"v_lshlrev_b32 v{FF+2*q}, 16, v{XR+q}"); a(f"v_and_b32 v{FF+2*q+1}, 0xffff0000, v{XR+q}")
    for q in range(4): a(f"v_pk_add_f32 {vr(FF+2*q,2)}, {vr(FF+2*q,2)}, v[120:121] op_sel_hi:[1,0] neg_lo:[0,1] neg_hi:[0,1]")
    for q in range(4): a(f"v_pk_mul_f32 {vr(FF+2*q,2)}, {vr(FF+2*q,2)}, v[124:125] op_sel_hi:[1,0]")
    for q in range(4): a(f"v_cvt_pk_bf16_f32 v{XR+q}, v{FF+2*q}, v{FF+2*q+1}")
    a(f"v_add_u32 v9, {L_XN}, v2"); a(f"ds_write_b128 v9, {vr(XR,4)}")
    a("s_mov_b64 exec, -1")
    a("v_mov_b32 v9, 1"); a("ds_write_b32 v39, v9 offset:16")
    if cut: a("s_branch L_fin")
    ldspoll(20, 6)
    a(f"s_lshl_b32 s53, s{sX}, 7"); a(f"s_add_u32 s53, s53, {WS_FH}"); a("v_lshlrev_b32 v9, 10, v0")
    a.cnt_poll(2, 9, "s53", f"{SENT + 32:#x}", 10)
    a("s_branch L_h13")
    a.label("L_hbulk")
    a(f"s_add_u32 s68, s68, {19*40960}"); a(f"s_mov_b32 s69, {19*5120}")
    a.label("L_hb1")
    for x in unit_list(rWO, "s68", 0): a(x)
    a(f"s_waitcnt vmcnt({thr})")
    a("s_sub_u32 s68, s68, 40960"); a("s_sub_u32 s69, s69, 5120"); a("s_cbranch_scc0 L_hb1")
    a("s_mov_b32 s69, 0")
    for x in unit_list(rX, "s67", L_RES): a(x)
    a("s_add_u32 s67, s67, 40960")
    for x in unit_list(rX, "s67", L_RES + 5120): a(x)
    a.label("L_h13")
    a(f"s_cmp_lt_u32 s{sWV}, 4"); a("s_cbranch_scc0 L_h14")
    f_setup(96, 0)
    a("s_branch L_h15")
    a.label("L_h14")
    f_setup(96, 1)
    a.label("L_h15")
    a("s_waitcnt vmcnt(0) lgkmcnt(0)"); a("s_barrier")
    a("ds_read_b64 v[122:123], v39"); a("s_waitcnt lgkmcnt(0)")
    a(f"v_readfirstlane_b32 s{sK1}, v122"); a(f"v_readfirstlane_b32 s{sK2}, v123")
    a.stampw(7)
    a("v_lshlrev_b32 v1, 3, v0"); a("s_mov_b32 s63, 0")
    a(f"s_cmp_lt_u32 s{sWV}, 4"); a("s_cbranch_scc1 L_c1"); a("s_branch L_c2h")
    a.label("L_end")
    body, nn = hazard.fix(a.text() + "    s_endpgm\n")
    return body, nn


HEADER = open(os.path.join(os.path.dirname(os.path.abspath(__file__)), "header.txt")).read()

def full(extra=0, **kw):
    body, nn = gen(**kw)
    t = HEADER + f"; @launch grid=(256,1,1) block=(512,1,1) lds={LDS_BYTES}\n"
    if extra:
        l0 = f"; @launch kernel={NAME} grid=(256,1,1) block=(512,1,1) lds={LDS_BYTES}\n"
        l1 = "; @launch kernel=nop_kernel grid=(256,1,1) block=(256,1,1) lds=0\n"
        t = HEADER + (l0 + l1*extra if extra > 0 else l1*(-extra) + l0)
        body += ".p2align 8\n.globl nop_kernel\n.type nop_kernel,@function\nnop_kernel:\n    s_endpgm\n"
    t += f'.amdgcn_target "amdgcn-amd-amdhsa--gfx950"\n.text\n.globl {NAME}\n.p2align 12\n.p2align 8\n.type {NAME},@function\n{NAME}:\n'
    t += body
    t += f""".section .rodata,"a"
.p2align 6
.amdhsa_kernel {NAME}
  .amdhsa_next_free_vgpr 256
  .amdhsa_next_free_sgpr 102
  .amdhsa_accum_offset 256
  .amdhsa_group_segment_fixed_size 0
  .amdhsa_kernarg_size 96
  .amdhsa_user_sgpr_count 2
  .amdhsa_user_sgpr_kernarg_segment_ptr 1
  .amdhsa_system_sgpr_workgroup_id_x 1
.end_amdhsa_kernel
"""
    if extra:
        t += """.p2align 6
.amdhsa_kernel nop_kernel
  .amdhsa_next_free_vgpr 8
  .amdhsa_next_free_sgpr 16
  .amdhsa_accum_offset 8
  .amdhsa_group_segment_fixed_size 0
  .amdhsa_kernarg_size 96
  .amdhsa_user_sgpr_count 2
  .amdhsa_user_sgpr_kernarg_segment_ptr 1
  .amdhsa_system_sgpr_workgroup_id_x 1
.end_amdhsa_kernel
"""
    return t

if __name__ == "__main__":
    out = sys.argv[1] if len(sys.argv) > 1 else "parallel_sum__linear_kernel_hedgehog__moe_arch_mod__prompt.s"
    kw = {}
    for x in sys.argv[2:]:
        k, v = x.split("="); kw[k] = int(v)
    open(out, "w").write(full(**kw))
```

```python
import sys, os
sys.path.insert(0, os.path.dirname(os.path.abspath(__file__)))
from asmlib import Asm, vr, sr
import hazard

NAME = "parallel_sum__linear_kernel_hedgehog__moe_arch_mod__prompt_kernel"
S, D, F = 2048, 640, 1536
SENT = 0xFF81FF81
OOB = 0x7FF00000
WS_SM = 0x2000
WS_CS = 0x4000
WS_C1 = 0x8000
WS_FQ = 0xB000
WS_AH = 0x0000
WS_FH = 0x1000
WS_KH = 0xD000
WS_OH = 0xE000
WS_XID = 0xA000
WS_TOP = 0xA800
WS_Q = 0x10000
WS_CLR = WS_Q + 2621440
WS_GP = WS_CLR
WS_YP = WS_GP + 196608
WS_KV = WS_YP + 40960
assert WS_KV + 917504 <= WS_CLR + 512*3072
WS_O = WS_CLR + 512*3072
WS_END = WS_O + 2621440
WS_DIAG = 0x1000000
WS_BYTES = 1 << 28
WREG = 5152
SLOT = 16384 + 4*WREG
RING = 40960
RING_END = RING + 3*SLOT
TRI = 86016
MISC = RING_END
L_PHIO = MISC
L_STAT = L_PHIO + 1024
L_CS = L_STAT + 2048
L_KVR = L_CS + 1920
L_HM = L_KVR + 2048
L_OA = L_HM
L_RES = 102400
L_XCH = L_RES + 10240
L_OUTS = L_XCH + 20480
L_DI = 112640
L_XN = L_STAT
L_HB = L_CS
LDS_BYTES = 163840
sWV, sX, sJ, sJR = 4, 5, 6, 7
rX, rW, rWS, rWO, rOUT, rDBG, rPHI, rWR, rG, rU, rDN = 8, 12, 16, 20, 24, 28, 32, 36, 40, 44, 48
sSENT = 52
LOG2E = 0x3FB8AA3B
SPIN = 200000


class K(Asm):
    def __init__(self, diag):
        super().__init__()
        self.diag = diag
    def srdw(self, r, n):
        self(f"s_mov_b32 s{r+2}, {n}"); self(f"s_mov_b32 s{r+3}, 0x20000")
    def capture(self, fn):
        keep = self.L; self.L = []; fn(); lines = [x.strip() for x in self.L]; self.L = keep
        rd = lambda x: x.startswith(("s_cselect", "s_cbranch_scc", "s_addc"))
        wr = lambda x: x.startswith("s_") and not x.startswith(("s_mov", "s_mul", "s_cselect", "s_cbranch", "s_waitcnt", "s_getreg", "s_branch", "s_sleep", "s_nop"))
        units = [[]]; pend = set(); masked = False
        for i, x in enumerate(lines):
            units[-1].append(x)
            if x.endswith(":"): pend.discard(x[:-1])
            if x.endswith(":") and any(y.endswith(" " + x[:-1]) for y in lines[i:]): pend.add("loop" + x)
            if x.startswith(("s_cbranch", "s_branch")):
                t = x.split()[1]
                if t + ":" in lines[i:]: pend.add(t)
                elif not any(y.endswith(" " + t) for y in lines[i+1:]): pend.discard("loop" + t + ":")
            if x.startswith("s_mov_b64 exec"): masked = not x.endswith("-1")
            live = next((rd(y) for y in lines[i+1:] if rd(y) or wr(y)), False)
            if not live and not pend and not masked: units.append([])
        return ["\n".join(u) for u in units if u]
    mute = ()
    def stamp(self, i, force=False):
        if i in self.mute and not force: return
        if self.diag == 4:
            if i in (0, self.probe): self(f"s_memrealtime s[{72+2*min(i,1)}:{73+2*min(i,1)}]")
            return
        if self.diag == 3: self(f"s_memtime s[{72+2*i}:{73+2*i}]")
        elif self.diag == 1 or (self.diag and i in (0, 11)): self(f"s_memrealtime s[{72+2*i}:{73+2*i}]")
    def stampw(self, i):
        if i in self.mute: return
        if self.diag == 4:
            if i == self.probe: self("s_memrealtime s[74:75]"); self("s_waitcnt lgkmcnt(0)")
            return
        if self.diag == 3: self(f"s_memtime s[{72+2*i}:{73+2*i}]"); self("s_waitcnt lgkmcnt(0)")
        elif self.diag == 1 or (self.diag and i in (0, 11)): self(f"s_memrealtime s[{72+2*i}:{73+2*i}]"); self("s_waitcnt lgkmcnt(0)")
    def maxtree(self, dst, regs):
        regs = list(regs)
        if len(regs) == 1: self(f"v_mov_b32 v{dst}, v{regs[0]}"); return
        if len(regs) == 2: self(f"v_max_u32 v{dst}, v{regs[0]}, v{regs[1]}"); return
        self(f"v_max3_u32 v{dst}, v{regs[0]}, v{regs[1]}, v{regs[2]}"); regs = regs[3:]
        while len(regs) >= 2:
            self(f"v_max3_u32 v{dst}, v{dst}, v{regs[0]}, v{regs[1]}"); regs = regs[2:]
        if regs: self(f"v_max_u32 v{dst}, v{dst}, v{regs[0]}")
    def poll(self, loads, regs, tmp, code, pre_issued=False, sleep=0):
        top = self.newlab("L_poll"); chk = self.newlab("L_chk"); out = self.newlab("L_pdone")
        self("s_mov_b32 s3, 0")
        if pre_issued: self(f"s_branch {chk}")
        self.label(top)
        self("s_add_u32 s3, s3, 1"); self(f"s_cmp_gt_u32 s3, {SPIN}"); self(f"s_cbranch_scc1 {out}")
        if sleep: self(f"s_sleep {sleep}")
        for l in loads: self(l)
        self.label(chk)
        self("s_waitcnt vmcnt(0)")
        self.maxtree(tmp, regs)
        self(f"v_cmp_eq_u32 vcc, s{sSENT}, v{tmp}")
        self(f"s_cbranch_vccnz {top}")
        self.label(out)
    def cnt_add(self, n, soff, t, stride=7):
        self(f"v_lshlrev_b32 v{t}, {stride}, v0"); self(f"v_mov_b32 v{t+1}, 1")
        self(f"s_mov_b64 exec, {(1 << n) - 1:#x}")
        self(f"buffer_atomic_add v{t+1}, v{t}, s[{rWS}:{rWS+3}], {soff} offen sc1")
        self("s_mov_b64 exec, -1")
    def cnt_poll(self, n, va, soff, ve, t, cmp="ne"):
        top = self.newlab("L_cp"); out = self.newlab("L_cdone")
        self(f"s_mov_b64 exec, {(1 << n) - 1:#x}"); self("s_mov_b32 s3, 0")
        self.label(top)
        self(f"v_mov_b32 v{t}, 0")
        self("s_add_u32 s3, s3, 1"); self(f"s_cmp_gt_u32 s3, {SPIN}"); self(f"s_cbranch_scc1 {out}")
        self(f"buffer_atomic_or v{t}, v{va}, s[{rWS}:{rWS+3}], {soff} offen sc0 sc1")
        self("s_waitcnt vmcnt(0)")
        self(f"v_cmp_{cmp}_u32 vcc, {ve}, v{t}"); self(f"s_cbranch_vccnz {top}")
        self.label(out)
        self("s_mov_b64 exec, -1")
    def cnt_watch(self, n, va, soff, ve, t, work, pipelined):
        mask = f"{(1 << n) - 1:#x}"
        sample = lambda r: [f"v_mov_b32 v{r}, 0", f"buffer_atomic_or v{r}, v{va}, s[{rWS}:{rWS+3}], {soff} offen sc0 sc1"]
        if not pipelined:
            for x in sum(work, []): self(x)
            self.cnt_poll(n, va, soff, ve, t); return
        top = self.newlab("L_cw"); out = self.newlab("L_cwdone")
        for k in range(3):
            if work[k] is None: continue
            for x in work[k]: self(x)
            self(f"s_mov_b64 exec, {mask}")
            for x in sample(t + k): self(x)
            if k < 2: self("s_mov_b64 exec, -1")
        self("s_mov_b32 s3, 0")
        self.label(top)
        for k in range(3):
            self("s_waitcnt vmcnt(2)"); self(f"v_cmp_ne_u32 vcc, {ve}, v{t+k}"); self(f"s_cbranch_vccz {out}")
            for x in sample(t + k): self(x)
        self("s_add_u32 s3, s3, 1"); self(f"s_cmp_gt_u32 s3, {SPIN}"); self(f"s_cbranch_scc0 {top}")
        self.label(out)
        self("s_mov_b64 exec, -1")
    def readyload(self, v, va): return f"buffer_load_dword v{v}, v{va}, s[{rDBG}:{rDBG+3}], 0 offen sc1"
    def readyaddr(self, va): self(f"v_and_b32 v{va}, 31, v0"); self(f"v_lshlrev_b32 v{va}, 3, v{va}")
    def readycheck(self, v, va):
        top = self.newlab("L_rp"); out = self.newlab("L_rdone")
        self("s_mov_b32 s3, 0")
        self.label(top)
        self(f"v_cmp_eq_u32 vcc, 0, v{v}"); self(f"s_cbranch_vccz {out}")
        self("s_add_u32 s3, s3, 1"); self(f"s_cmp_gt_u32 s3, {SPIN}"); self(f"s_cbranch_scc1 {out}")
        self("s_sleep 8")
        self(self.readyload(v, va)); self("s_waitcnt vmcnt(0)")
        self(f"s_branch {top}")
        self.label(out)
    def recheck(self, loads, regs, tmp, sleep=0):
        ok = self.newlab("L_ok")
        self.maxtree(tmp, regs); self(f"v_cmp_eq_u32 vcc, s{sSENT}, v{tmp}"); self(f"s_cbranch_vccz {ok}")
        self.poll(loads, regs, tmp, 0, sleep=sleep)
        self.label(ok)
    def wavemax_u32(self, v, t, sdst):
        self(f"v_max_u32_dpp v{t}, v{v}, v{v} row_ror:8 row_mask:0xf bank_mask:0xf")
        for k in (4, 2, 1): self(f"v_max_u32_dpp v{t}, v{t}, v{t} row_ror:{k} row_mask:0xf bank_mask:0xf")
        self(f"v_max_u32_dpp v{t}, v{t}, v{t} row_bcast:15 row_mask:0xa bank_mask:0xf")
        self(f"v_max_u32_dpp v{t}, v{t}, v{t} row_bcast:31 row_mask:0xc bank_mask:0xf")
        self(f"v_readlane_b32 s{sdst}, v{t}, 63")
    def top2(self, k1, k2, t, s1, s2):
        self.wavemax_u32(k1, t, s1)
        self(f"v_cmp_eq_u32 vcc, s{s1}, v{k1}")
        self(f"v_cndmask_b32 v{k1}, v{k1}, v{k2}, vcc")
        self.wavemax_u32(k1, t, s2)
    def rowsum16(self, v):
        for k in (8, 4, 2, 1): self(f"v_add_f32_dpp v{v}, v{v}, v{v} row_ror:{k} row_mask:0xf bank_mask:0xf")


def softmax_plain(P, O, t0, scale=None, npair=None):
    L = []
    a, b = t0, t0 + 1
    L.append(f"v_max3_f32 v{a}, v{P[0]}, v{P[1]}, v{P[2]}"); L.append(f"v_max3_f32 v{b}, v{P[3]}, v{P[4]}, v{P[5]}")
    for i in range(6, 18, 4):
        L.append(f"v_max3_f32 v{a}, v{a}, v{P[i]}, v{P[i+1]}"); L.append(f"v_max3_f32 v{b}, v{b}, v{P[i+2]}, v{P[i+3]}")
    L.append(f"v_max3_f32 v{a}, v{a}, v{P[18]}, v{P[19]}"); L.append(f"v_max_f32 v{a}, v{a}, v{b}")
    if scale is None:
        for i in range(20): L.append(f"v_sub_f32 v{P[i]}, v{P[i]}, v{a}")
    else:
        L.append(f"v_mul_f32 v{a}, v{scale}, v{a}")
        for i in range(20): L.append(f"v_fma_f32 v{P[i]}, v{P[i]}, v{scale}, -v{a}")
    for i in range(20): L.append(f"v_exp_f32 v{P[i]}, v{P[i]}")
    L.append(f"v_add_f32 v{a}, v{P[0]}, v{P[1]}"); L.append(f"v_add_f32 v{b}, v{P[2]}, v{P[3]}")
    for i in range(4, 20, 2): L.append(f"v_add_f32 v{a}, v{a}, v{P[i]}"); L.append(f"v_add_f32 v{b}, v{b}, v{P[i+1]}")
    L.append(f"v_add_f32 v{a}, v{a}, v{b}"); L.append(f"v_rcp_f32 v{a}, v{a}")
    if npair is not None: L.append(f"v_mul_f32 v{a}, v{a}, v{npair}")
    for i in range(20): L.append(f"v_mul_f32 v{P[i]}, v{P[i]}, v{a}")
    for i in range(0, 20, 2): L.append(f"v_cvt_pk_bf16_f32 v{O+i//2}, v{P[i]}, v{P[i+1]}")
    return L


def softmax_ops(P, O, cpair, t0, npair=None):
    L = []
    a, b = t0, t0 + 1
    L.append(f"v_max3_f32 v{a}, v{P[0]}, v{P[1]}, v{P[2]}"); L.append(f"v_max3_f32 v{b}, v{P[3]}, v{P[4]}, v{P[5]}")
    for i in range(6, 18, 4):
        L.append(f"v_max3_f32 v{a}, v{a}, v{P[i]}, v{P[i+1]}"); L.append(f"v_max3_f32 v{b}, v{b}, v{P[i+2]}, v{P[i+3]}")
    L.append(f"v_max3_f32 v{a}, v{a}, v{P[18]}, v{P[19]}"); L.append(f"v_max_f32 v{a}, v{a}, v{b}")
    L.append(f"v_mul_f32 v{cpair+1}, v{cpair}, v{a}")
    for i in range(0, 20, 2):
        L.append(f"v_pk_fma_f32 {vr(P[i],2)}, {vr(P[i],2)}, {vr(cpair,2)}, {vr(cpair,2)} op_sel:[0,0,1] op_sel_hi:[1,0,1] neg_lo:[0,0,1] neg_hi:[0,0,1]")
    for i in range(20): L.append(f"v_exp_f32 v{P[i]}, v{P[i]}")
    L.append(f"v_pk_add_f32 {vr(t0,2)}, {vr(P[0],2)}, {vr(P[2],2)}"); L.append(f"v_pk_add_f32 {vr(t0+2,2)}, {vr(P[4],2)}, {vr(P[6],2)}")
    for i in range(8, 20, 4):
        L.append(f"v_pk_add_f32 {vr(t0,2)}, {vr(t0,2)}, {vr(P[i],2)}"); L.append(f"v_pk_add_f32 {vr(t0+2,2)}, {vr(t0+2,2)}, {vr(P[i+2],2)}")
    L.append(f"v_pk_add_f32 {vr(t0,2)}, {vr(t0,2)}, {vr(t0+2,2)}")
    L.append(f"v_add_f32 v{a}, v{a}, v{b}"); L.append(f"v_rcp_f32 v{a}, v{a}")
    if npair is not None: L.append(f"v_mul_f32 v{a}, v{a}, v{npair}")
    for i in range(0, 20, 2): L.append(f"v_pk_mul_f32 {vr(P[i],2)}, {vr(P[i],2)}, {vr(t0,2)} op_sel_hi:[1,0]")
    for i in range(0, 20, 2): L.append(f"v_cvt_pk_bf16_f32 v{O+i//2}, v{P[i]}, v{P[i+1]}")
    return L


class VM:
    def __init__(self, a): self.a = a; self.ops = []
    def __call__(self, text, tag): self.a(text); self.ops.append(tag)
    def count(self, *tags, opt=False):
        last = max(i for i, t in enumerate(self.ops) if t in tags)
        return sum(1 for t in self.ops[last+1:] if opt or t != "opt")
    def wait(self, *tags, lgkm=False): self.a(f"s_waitcnt vmcnt({self.count(*tags)})" + (" lgkmcnt(0)" if lgkm else ""))


def gen(diag=False, touch=10, defer=8, rot=1, cpf=1, cut=0, noclr=0, outfl=0, f0=3, hord=1, fd=0, fnt=1, po=0, wt=0, p6=0, ot=0, ramp=2, nowo=0, khe=5, ohe=1, loc=1, osam=0, qw=0, thr=30, qt=1, qd=0, kd=0, kno=0, kpk=1, lpr=0, fl=1, kvp=1, rev=1, wv=1, wrt=1, n0=4, n1=4, pp=0, hk0=60, hk1=82, probe=0, plo=0, phi=32, pw0=0, pw1=8, ql=0):
    f1 = 0
    a = K(diag); a.probe = probe; a.mute = (4, 5, 12, 6, 7, 8) if kd else (6, 7, 8, 13) if qd else (1, 2, 3, 4, 5, 6, 9) if fd else ()
    WS = f"s[{rWS}:{rWS+3}]"
    sK1, sK2 = 100, 101
    ACC = 16; SET = [96, 132]; XA = [168, 169]; MK, MV, EX = 170, 171, 172
    PA = 176; PX = 196; STAT = 208; AUG = 224
    E0, E1, E2, E3, E4 = 240, 241, 242, 243, 244
    KB, KA0, KA1, KP = 245, 247, 249, 251
    Pb = [96, 116]; PH = 156; CP = 234; TT = 236
    QF = 16; QF2 = 22; OA = 28; P0 = 40; P1 = 56; PHQ = 72; PHQ2 = 82; OT = 92; KL = 40
    FA = 16; OF = 36; WF = 76; WST = (176, 96)
    def lanefields():
        a("v_lshrrev_b32 v3, 4, v0"); a("v_bfe_u32 v4, v0, 2, 2"); a("v_and_b32 v5, 3, v0"); a("v_and_b32 v6, 15, v0")
    def kepi_addr(th, ch):
        a("v_and_b32 v7, 1, v0"); a("v_bfe_u32 v12, v0, 1, 1"); a("v_lshl_or_b32 v7, v12, 2, v7"); a("v_bfe_u32 v12, v0, 2, 1"); a("v_lshl_or_b32 v7, v12, 1, v7")
        a("v_lshlrev_b32 v7, 4, v7")
        a(f"s_lshl_b32 s3, {th}, 13"); a(f"s_add_u32 s3, s3, {TRI}"); a("v_lshl_add_u32 v7, v6, 7, v7"); a("v_add_u32 v7, s3, v7")
        a(f"s_lshl_b32 s58, {ch}, 15")
        a("v_lshrrev_b32 v12, 1, v3"); a("v_and_b32 v13, 1, v3")
        a("v_lshl_add_u32 v14, v12, 14, v7"); a("v_add_u32 v14, s58, v14")
        a("v_lshlrev_b32 v15, 5, v13"); a(f"v_xor_b32 v{E0}, v14, v15"); a(f"v_xor_b32 v{E1}, 16, v{E0}")
        a(f"v_xor_b32 v{E2}, 96, v14"); a(f"v_lshl_add_u32 v{E2}, v13, 3, v{E2}")
    def phi_addr(base):
        a("v_lshrrev_b32 v7, 1, v5")
        a("v_mul_u32_u24 v12, 640, v7"); a("v_lshl_add_u32 v13, v3, 2, v4"); a("v_mul_u32_u24 v13, 40, v13"); a(f"v_add3_u32 v12, v12, v13, {base}")
        a("v_mul_u32_u24 v13, 1440, v7"); a("v_mul_u32_u24 v14, 40, v4"); a(f"v_add3_u32 v13, v13, v14, {base}")
        a("v_bfe_u32 v7, v0, 3, 1"); a("v_add_u32 v14, -1, v7"); a("v_not_b32 v15, v14")
        a("v_cmp_eq_u32 vcc, v7, v3"); a("v_bfe_i32 v2, v0, 2, 1"); a("v_and_b32 v2, 0x80008000, v2"); a("v_cndmask_b32 v7, 0, -1, vcc")
    def phi_build():
        for T in range(5):
            a(f"ds_read_b64_tr_b16 {vr(PA+4*T,2)}, v12 offset:{160+8*T}"); a(f"ds_read_b64_tr_b16 {vr(PX+2*T,2)}, v13 offset:{8*T}")
        a("s_waitcnt lgkmcnt(0)")
        for T in range(5):
            for q in range(2):
                a(f"v_bitop3_b32 v{PA+4*T+2+q}, v{PA+4*T+q}, v2, v15 bitop3:0x28")
                a(f"v_bitop3_b32 v{PA+4*T+q}, v{PA+4*T+q}, v2, v14 bitop3:0x28")
                a(f"v_bitop3_b32 v{PX+2*T+q}, v{PX+2*T+q}, v2, v7 bitop3:0x28")
    def phi_mm(P, T):
        mm = [f"v_mfma_f32_16x16x32_bf16 {vr(P+4*u,4)}, {vr(PA+4*u,4)}, {vr(T,4)}, 0" for u in range(5)]
        return mm + [f"v_mfma_f32_16x16x16_bf16 {vr(P+4*u,4)}, {vr(PX+2*u,2)}, {vr(T+4,2)}, {vr(P+4*u,4)}" for u in range(5)]
    def ktile(m, P, packed, ins, k):
        if kno & 1: ins = [x for x in ins if "buffer" not in x]
        if kd: a.stamp((12, 6)[k], True)
        if packed: sm = [f"v_mov_b32 v{CP}, v{STAT+4*m+3}"] + softmax_ops(list(range(P, P+20)), PH, CP, TT, npair=STAT+4*m+2)
        else: sm = softmax_plain(list(range(P, P+20)), PH, TT, scale=STAT+4*m+3, npair=STAT+4*m+2)
        slots = [i for i, x in enumerate(sm) if x.startswith(("v_exp", "v_fma", "v_max3"))]
        at = {}
        for q, x in enumerate(ins): at.setdefault(slots[q*len(slots)//len(ins)], []).append(x)
        wr = {f"v{PH+3},": f"ds_write_b128 v{E0}, {vr(PH,4)} offset:{2048*m}", f"v{PH+7},": f"ds_write_b128 v{E1}, {vr(PH+4,4)} offset:{2048*m}", f"v{PH+9},": f"ds_write_b64 v{E2}, {vr(PH+8,2)} offset:{2048*m}"}
        for idx, x in enumerate(sm):
            a(x)
            for y in at.get(idx, []): a(y)
            if x.startswith("v_cvt_pk") and x.split()[1] in wr: a(wr[x.split()[1]])
    sHD, sT32, sQA, sFQ, sKVA, sO0, sO1, sHINT, sKHP, sF0, sF1, sF2, sOUT, sAUX, sOHP, sT16 = range(36, 52)
    def ohead(dst):
        a(f"s_lshr_b32 s{dst}, s{sJR}, 1"); a(f"s_sub_u32 s3, s{sJR}, 8"); a("s_cmp_lt_u32 s57, 4"); a(f"s_cselect_b32 s{dst}, s{dst}, s3")
        a(f"s_and_b32 s3, s{sX}, 1"); a(f"s_lshl4_add_u32 s{dst}, s3, s{dst}")
    def o_sgprs():
        ohead(sHD)
        a(f"s_and_b32 s3, s{sJR}, 1"); a("s_cmp_lt_u32 s57, 4"); a("s_cselect_b32 s3, s3, 0")
        a(f"s_and_b32 s{sT32}, s{sX}, 6"); a(f"s_add_u32 s{sT32}, s{sT32}, s3"); a(f"s_lshl3_add_u32 s{sT32}, s{sT32}, s{sWV}")
        a(f"s_lshl_b32 s3, s{sHD}, 6"); a(f"s_add_u32 s3, s3, s{sT32}"); a(f"s_mul_i32 s{sQA}, s3, 1280"); a(f"s_add_u32 s{sQA}, s{sQA}, {WS_Q}")
        a(f"s_and_b32 s{sFQ}, s{sT32}, 60"); a(f"s_lshr_b32 s3, s{sHD}, 3"); a(f"s_add_u32 s{sFQ}, s{sFQ}, s3"); a(f"s_lshl_b32 s{sFQ}, s{sFQ}, 7"); a(f"s_add_u32 s{sFQ}, s{sFQ}, {WS_FQ}")
        a(f"s_mul_i32 s{sKVA}, s{sHD}, 28672"); a(f"s_add_u32 s{sKVA}, s{sKVA}, {WS_KV}")
        a(f"s_mul_i32 s{sO0}, s{sT32}, 40960"); a(f"s_add_u32 s{sO0}, s{sO0}, {WS_O}"); a(f"s_lshl_b32 s3, s{sHD}, 7"); a(f"s_add_u32 s{sO1}, s{sO0}, s3"); a(f"s_add_u32 s{sO1}, s{sO1}, 16384")
        a(f"s_lshl2_add_u32 s{sO0}, s3, s{sO0}")
        a(f"s_and_b32 s3, s{sHD}, 28"); a(f"s_lshr_b32 s{sKHP}, s{sX}, 1"); a(f"s_add_u32 s3, s3, s{sKHP}"); a("s_lshl_b32 s3, s3, 7"); a(f"s_add_u32 s{sKHP}, s3, {WS_KH}")
    def o_vgprs(T):
        a(f"v_and_b32 v{T}, 31, v0"); a(f"v_lshlrev_b32 v1, 3, v{T}"); a(f"s_lshl_b32 s3, s{sT32}, 7"); a(f"s_add_u32 s3, s3, {WS_SM}"); a(f"v_lshl_add_u32 v255, v{T}, 2, s3"); a(f"v_lshrrev_b32 v{T+1}, 5, v0"); a(f"v_mov_b32 v{T+2}, {OOB:#x}")
        a(f"s_lshl_b32 s3, s{sWV}, 6"); a("v_add_u32 v14, s3, v0"); a("v_cmp_lt_u32 vcc, 419, v14"); a("v_lshlrev_b32 v14, 2, v14")
        a(f"v_min_u32 v{T}, 20, v{T}"); a(f"v_cndmask_b32 v15, v14, v{T+2}, vcc"); a(f"v_add_u32 v14, {L_KVR}, v14")
        a(f"v_mul_u32_u24 v{T+3}, 21, v{T+1}"); a(f"v_add_u32 v{T}, v{T}, v{T+3}"); a(f"s_mov_b32 s3, {L_KVR}")
        a(f"v_lshl_add_u32 v254, v{T}, 3, s3"); a(f"v_lshl_add_u32 v207, v{T}, 4, s3"); a("v_mov_b32 v253, 0")
        a("v_bfe_u32 v12, v0, 4, 1"); a("v_mul_u32_u24 v12, 20480, v12"); a(f"v_and_b32 v{T}, 15, v0"); a("v_cmp_gt_u32 vcc, 32, v0")
        a(f"v_lshl_add_u32 v13, v{T}, 3, v12"); a(f"v_lshl_add_u32 v12, v{T}, 4, v12"); a(f"v_lshl_add_u32 v12, v{T+1}, 8, v12"); a(f"v_cndmask_b32 v13, v{T+2}, v13, vcc")
    def f_setup(T, kh):
        a(f"s_lshr_b32 s3, s{sJ}, 3"); a(f"s_lshl3_add_u32 s{sOHP}, s{sX}, s3"); a(f"s_lshl_b32 s{sOHP}, s{sOHP}, 7"); a(f"s_add_u32 s{sOHP}, s{sOHP}, {WS_OH}")
        a(f"s_lshl2_add_u32 s3, s{sX}, s3"); a(f"s_and_b32 s53, s{sWV}, 3"); a(f"s_lshl2_add_u32 s{sT16}, s3, s53")
        a(f"s_mul_i32 s{sOUT}, s{sT16}, 20480"); a(f"s_add_u32 s{sF0}, s{sOUT}, {WS_O + 8192*kh}"); a(f"s_add_u32 s{sF1}, s{sF0}, 4096"); a(f"s_add_u32 s{sF2}, s{sOUT}, {WS_O + 16384 + 2048*kh}")
        a(f"s_and_b32 s3, s{sJ}, 7"); a("s_mul_i32 s3, s3, 160"); a(f"s_add_u32 s{sOUT}, s{sOUT}, s3")
        if not kh: a(f"s_lshl_b32 s{sAUX}, s{sT16}, 6"); a(f"s_add_u32 s{sAUX}, s{sAUX}, {WS_SM}")
        a("v_lshlrev_b32 v7, 4, v0"); a(f"v_lshrrev_b32 v{T}, 4, v0"); a(f"v_bfe_u32 v{T+1}, v0, 2, 2"); a(f"v_and_b32 v{T+2}, 3, v0")
        a(f"v_mul_u32_u24 v{T+1}, 160, v{T+1}"); a(f"v_lshl_add_u32 v{T+1}, v{T+2}, 3, v{T+1}")
        if kh: a(f"v_add_u32 v{T+1}, 51200, v{T+1}")
        a(f"v_lshrrev_b32 v{T+2}, 5, v0"); a(f"v_mul_u32_u24 v{T+2}, 3200, v{T+2}"); a(f"v_and_b32 v6, 1, v{T}"); a("v_mul_u32_u24 v6, 640, v6"); a(f"v_add3_u32 v6, v6, v{T+2}, v{T+1}")
        a(f"v_mul_u32_u24 v2, 3200, v{T}"); a(f"v_add_u32 v2, v2, v{T+1}")
        a("s_mul_i32 s3, s53, 2560"); a(f"s_add_u32 s3, s3, {L_OUTS if kh else L_RES}")
        a(f"v_and_b32 v{T+1}, 15, v0"); a(f"v_mul_u32_u24 v3, 160, v{T+1}"); a(f"v_lshl_add_u32 v3, v{T}, 3, v3"); a("v_add_u32 v3, s3, v3")
        if kh: a("v_add_u32 v11, s3, v7")
        else: a(f"v_lshlrev_b32 v4, 2, v{T+1}")
        a("s_mul_i32 s3, s53, 5120"); a(f"s_add_u32 s3, s3, {L_XCH}"); a("v_add_u32 v5, s3, v7")
        if kh:
            a(f"v_mul_u32_u24 v{T}, 6554, v0"); a("s_movk_i32 s3, 1120"); a("v_cmp_gt_u32 vcc, 32, v0")
            for u in range(3):
                if u: a(f"v_add_u32 v{T}, {64*6554}, v{T}")
                a(f"v_lshrrev_b32 v{T+1}, 16, v{T}"); a(f"v_mad_u32_u24 v{8+u}, v{T+1}, s3, v7")
            a(f"v_mov_b32 v{T}, {OOB:#x}"); a(f"v_cndmask_b32 v10, v{T}, v10, vcc")
    qloads = [f"buffer_load_dwordx4 {vr(QF,4)}, v7, {WS}, s{sQA} offen sc1", f"buffer_load_dwordx2 {vr(QF+4,2)}, v1, {WS}, s{sQA} offen offset:1024 sc1",
              f"buffer_load_dword v{OT+2}, v255, {WS}, 0 offen sc1"]
    fload = f"s_mov_b64 exec, 1\nbuffer_load_dword v253, off, {WS}, s{sFQ} sc1\ns_mov_b64 exec, -1"
    tload = f"s_mov_b32 s70, {WS_TOP}\nv_mov_b64 v[230:231], 0\ns_mov_b64 exec, 1\nbuffer_load_dwordx2 v[230:231], off, {WS}, s70 sc1\ns_mov_b64 exec, -1"
    oareads = [f"v_add_u32 v{OT}, {L_OA}, v7"] + [f"ds_read_b128 {vr(OA+4*i,4)}, v{OT} offset:{1024*i}" for i in range(3)]
    a("s_cmp_ge_u32 s2, 256"); a("s_cbranch_scc1 L_end")
    a.stamp(0)
    for r, off in ((rX, 0), (rW, 8), (rWS, 88), (rPHI, 16), (rWO, 24), (rOUT, 72), (rDBG, 80)):
        a(f"s_load_dwordx2 s[{r}:{r+1}], s[0:1], {off}")
    a("v_lshrrev_b32 v1, 6, v0"); a("v_and_b32 v0, 63, v0")
    a(f"s_lshr_b32 s{sJ}, s2, 3"); a(f"v_readfirstlane_b32 s{sWV}, v1")
    a(f"s_and_b32 s{sX}, s2, 7"); a(f"s_add_u32 s{sJR}, s{sJ}, 24"); a(f"s_and_b32 s{sJR}, s{sJR}, 31")
    if cpf:
        a(f"s_cmp_eq_u32 s{sWV}, 0"); a("s_cbranch_scc0 L_nopf")
        a("s_getpc_b64 s[96:97]"); a.label("L_pc")
        a("s_mov_b32 s98, L_end-L_pc"); a("s_mov_b32 s99, 0x20000")
        a(f"s_and_b32 s3, s{sJ}, 3"); a("s_lshl_b32 s3, s3, 13"); a("v_lshlrev_b32 v1, 7, v0")
        a("buffer_load_dword v255, v1, s[96:99], s3 offen")
        a.label("L_nopf")
    def srds():
        a.srdw(rWS, WS_BYTES); a.srdw(rPHI, 32*800); a.srdw(rWO, 0 if nowo else D*D*2); a.srdw(rOUT, S*D*2); a.srdw(rDBG, 256)
        a(f"s_mov_b32 s{sSENT}, {SENT:#x}")
    a.srdw(rX, S*D*2); a.srdw(rW, D*3*D*2)
    a(f"s_cmp_ge_u32 s{sJR}, 24"); a("s_cbranch_scc1 L_helper")
    a(f"s_lshr_b32 s54, s{sX}, 1"); a(f"s_and_b32 s3, s{sJR}, 3"); a("s_lshl2_add_u32 s54, s54, s3"); a(f"s_lshr_b32 s57, s{sJR}, 2")
    a(f"s_cmp_lt_u32 s{sWV}, 4"); a("s_cbranch_scc0 L_loader")
    a("s_setprio 3")
    a.srdw(rPHI, 32*800)
    ohead(59)
    a("s_lshl2_add_u32 s3, s3, s57"); a(f"s_and_b32 s60, s{sWV}, 1"); a("s_lshl1_add_u32 s3, s3, s60"); a("s_mul_i32 s58, s3, 1600")
    a(f"s_lshl_b32 s65, s{sWV}, 11"); a("s_mov_b32 m0, s65"); a("v_lshlrev_b32 v2, 4, v0"); a("v_lshlrev_b32 v3, 2, v0")
    a("s_mul_i32 s59, s59, 800"); a(f"s_lshl_b32 s3, s{sWV}, 8"); a("s_add_u32 s59, s59, s3")
    a("s_waitcnt lgkmcnt(0)")
    a(f"buffer_load_dwordx4 v2, s[{rPHI}:{rPHI+3}], s58 offen lds")
    a(f"buffer_load_dwordx4 v2, s[{rPHI}:{rPHI+3}], s58 offen offset:1024 lds")
    a(f"s_add_u32 m0, s3, {L_PHIO}")
    a(f"s_cmp_eq_u32 s{sJR}, 16")
    a(f"buffer_load_dword v3, s[{rPHI}:{rPHI+3}], s59 offen lds")
    a("s_cbranch_scc0 L_mfma")
    a.srdw(rWS, WS_BYTES)
    for q in range(4): a(f"v_mov_b32 v{12+q}, {SENT:#x}")
    a(f"s_lshl_b32 s3, s{sX}, 13"); a("s_add_u32 s3, s3, s65")
    for i in range(2): a(f"buffer_store_dwordx4 v[12:15], v2, {WS}, s3 offen offset:{1024*i} sc1")
    a.srdw(rDBG, 256); a("s_lshr_b32 s3, s3, 8"); a("s_mov_b64 exec, 1"); a("s_waitcnt vmcnt(0)")
    a(f"buffer_store_dword v12, off, s[{rDBG}:{rDBG+3}], s3 sc1"); a("s_mov_b64 exec, -1")
    a("s_branch L_mfma")

    a.label("L_loader")
    a("s_setprio 2")
    a(f"s_and_b32 s3, s{sX}, 1"); a("s_mul_i32 s55, s3, 640")
    a("s_mul_i32 s58, s57, 160"); a("s_sub_u32 s59, s58, 1280")
    a("s_cmp_lt_u32 s57, 4")
    a("s_cselect_b32 s56, 1120, 0"); a("s_cselect_b32 s59, 1280, s59")
    a("s_add_u32 s55, s55, s58"); a("s_add_u32 s55, s55, s59")
    a(f"s_sub_u32 s60, s{sWV}, 4")
    XV = [16, 17, 18, 19]; WV = [20, 21, 22, 23, 24]; WOV = [224, 225, 226, 227, 228]
    a("v_lshrrev_b32 v8, 3, v0"); a("v_and_b32 v9, 7, v0")
    a("v_bfe_u32 v10, v0, 4, 1"); a("v_lshrrev_b32 v11, 5, v0"); a("v_lshl_add_u32 v10, v10, 1, v11")
    a("s_lshl2_add_u32 s3, s54, s60"); a("s_mul_i32 s3, s3, 40960")
    a("v_mul_u32_u24 v8, 1280, v8"); a("v_xor_b32 v9, v9, v10"); a("v_add_u32 v8, s3, v8")
    a(f"v_lshl_add_u32 v{XV[0]}, v9, 4, v8"); a(f"v_xor_b32 v11, 64, v{XV[0]}")
    a(f"v_add_u32 v{XV[1]}, {10240-1024}, v11"); a(f"v_add_u32 v{XV[2]}, {20480-2048}, v{XV[0]}"); a(f"v_add_u32 v{XV[3]}, {30720-3072}, v11")
    a("s_mul_i32 s3, s60, 61440"); a("s_add_u32 s3, s3, s55")
    a("s_lshl_b32 s61, s60, 12")
    a(f"s_mul_i32 s62, s60, {WREG}"); a("s_add_u32 s62, s62, 16384")
    a("s_movk_i32 s63, 3520")
    a("v_lshl_add_u32 v12, v0, 4, s3"); a("v_mul_u32_u24 v13, 6554, v0")
    for i in range(5):
        if i: a(f"v_add_u32 v13, {64*6554}, v13")
        a("v_lshrrev_b32 v10, 17, v13"); a("v_bfe_u32 v9, v13, 16, 1")
        a("v_mad_u32_u24 v8, v10, s63, v12"); a(f"v_mad_u32_u24 v{WV[i]}, v9, s56, v8")
    a(f"v_add_u32 v{WV[4]}, 4096, v{WV[4]}")
    if rot: a(f"s_xor_b32 s71, s{sJR}, s57"); a("s_bfe_u32 s63, s71, 0x10001"); a("s_and_b32 s71, s71, 1")
    else: a("s_mov_b32 s71, 0")
    a("s_waitcnt lgkmcnt(0)")
    if cut: a.stamp(10)
    vm = VM(a)
    def issue(c, extra=()):
        extra = list(extra); per = -(-len(extra) // 9)
        def more():
            for y in extra[:per]: a(y)
            del extra[:per]
        slot = RING + (c % 3)*SLOT
        xs = [f"buffer_load_dwordx4 v{XV[i]}, s[{rX}:{rX+3}], s65 offen offset:{1024*i} lds" for i in range(4)]
        ws = [f"buffer_load_dwordx4 v{WV[i]}, s[{rW}:{rW+3}], s66 offen offset:{1024*(i%4)} lds" for i in range(5)]
        a(f"s_xor_b32 s66, s71, {c}")
        a(f"s_add_u32 m0, s61, {slot}")
        a("s_lshl_b32 s65, s66, 7"); a("s_mul_i32 s66, s66, 245760")
        two = rev and (rev == 2 or c % 2 == 0)
        if two: a("s_cmp_eq_u32 s63, 0"); a(f"s_cbranch_scc0 L_rv{c}")
        assert not (two and extra)
        for x in xs: more(); vm(x, c)
        a(f"s_add_u32 m0, s62, {slot}")
        for x in ws[:4]: more(); vm(x, c)
        a("s_add_u32 m0, m0, 4096")
        more(); vm(ws[4], c)
        if two:
            a(f"s_branch L_re{c}"); a.label(f"L_rv{c}")
            a(f"s_add_u32 m0, s62, {slot + 4096}"); a(ws[4])
            a(f"s_add_u32 m0, s62, {slot}")
            for x in ws[3::-1]: a(x)
            a(f"s_add_u32 m0, s61, {slot}")
            for x in xs[::-1]: a(x)
            a.label(f"L_re{c}")
    def bar(c, *extra, lgkm=False):
        if vm.count(c, *extra, opt=True) != vm.count(c, *extra):
            lb = a.newlab("L_bw")
            a("s_cmp_lt_u32 s57, 4"); a(f"s_waitcnt vmcnt({vm.count(c, *extra, opt=True)})"); a(f"s_cbranch_scc0 {lb}"); vm.wait(c, *extra); a.label(lb)
        else: vm.wait(c, *extra, lgkm=lgkm)
        a("s_barrier")
        if cut and c < 8: a.stamp(c + 2)
    def wo_addr():
        a("v_mul_u32_u24 v98, 6554, v0"); a("v_lshlrev_b32 v97, 4, v0"); a("s_movk_i32 s3, 1120")
        for i in range(5):
            if i: a(f"v_add_u32 v98, {64*6554}, v98")
            a("v_lshrrev_b32 v96, 16, v98"); a(f"v_mad_u32_u24 v{WOV[i]}, v96, s3, v97")
        a(f"v_add_u32 v{WOV[4]}, 4096, v{WOV[4]}")
        a(f"s_and_b32 s67, s{sJ}, 7"); a("s_mul_i32 s67, s67, 160")
        a("s_mul_i32 s68, s60, 40960"); a("s_add_u32 s68, s68, s67")
        a("s_mul_i32 s69, s60, 5120")
        a(f"s_lshr_b32 s3, s{sJ}, 3"); a(f"s_lshl2_add_u32 s3, s{sX}, s3"); a("s_mul_i32 s67, s3, 81920"); a("s_add_u32 s67, s67, s68")
        a(f"s_bfe_u32 s3, s{sJ}, 0x10003" if wrt else "s_mov_b32 s3, 0")
        a("s_mul_i32 s98, s3, 163840"); a("s_add_u32 s96, s68, s98"); a("s_sub_u32 s98, s68, s98")
        a("s_mul_i32 s99, s3, 20480"); a("s_add_u32 s97, s69, s99"); a("s_sub_u32 s99, s69, s99")
    def unit_list(srd, soff, m0):
        L = [f"buffer_load_dwordx4 v{WOV[i]}, s[{srd}:{srd+3}], {soff} offen offset:{1024*i} lds" for i in range(4)]
        L[0] = f"s_add_u32 m0, s69, {m0}\ns_nop 0\n" + L[0]
        return L + [f"s_add_u32 m0, m0, 4096\ns_nop 0\nbuffer_load_dwordx4 v{WOV[4]}, s[{srd}:{srd+3}], {soff} offen lds"]
    def wo_list(r):
        L = unit_list(rWO, "s65", 20480*r)
        L[0] = L[0].replace("s_nop 0", f"s_add_u32 s65, s{68 if r == 4 else 96 + 2*(r&1)}, {163840*r}")
        if r < 4: L[0] = L[0].replace("m0, s69", f"m0, s{97 + 2*(r&1)}")
        return L
    def wo_round(r):
        for x in wo_list(r): vm(x, "wo")
    def wo_last():
        wo_round(4)
        lb = a.newlab("L_res")
        a(f"s_cmp_lt_u32 s{sWV}, 6"); a(f"s_cbranch_scc0 {lb}")
        for x in unit_list(rX, "s67", L_RES): a(x)
        a.label(lb)
    def set1():
        srds()
        lanefields()
        a("s_lshr_b32 s64, s60, 1"); a("s_and_b32 s53, s60, 1")
        kepi_addr("s64", "s53")
        a("s_lshl_b32 s3, s64, 10"); a(f"s_add_u32 s3, s3, {L_STAT}"); a("v_lshl_add_u32 v206, v6, 4, s3")
        a("s_lshl_b32 s64, s60, 11")
        phi_addr("s64")
    def set_o():
        o_sgprs(); o_vgprs(96); a.readyaddr(43)
        a(f"s_lshr_b32 s3, s{sT32}, 3"); a(f"s_and_b32 s53, s{sHD}, 1"); a("s_lshl1_add_u32 s3, s3, s53"); a("s_lshl_b32 s3, s3, 9"); a(f"s_add_u32 s{sHINT}, s3, {WS_OH}")
    def set_oa():
        a("v_lshrrev_b32 v96, 5, v0"); a("v_bfe_u32 v97, v0, 2, 2"); a("v_bfe_u32 v98, v0, 4, 1"); a("v_bfe_u32 v99, v0, 1, 1"); a("v_lshl_add_u32 v98, v98, 1, v99")
        a(f"s_bitcmp0_b32 s{sHD}, 0"); a("s_cselect_b32 s3, 160, 0"); a("s_cselect_b32 s53, 0, 640")
        a(f"s_add_u32 s3, s3, {L_PHIO}"); a(f"s_add_u32 s53, s53, {L_PHIO}")
        a("v_mul_u32_u24 v99, 40, v97"); a("v_add_u32 v100, s53, v99"); a("v_mul_u32_u24 v101, 320, v96"); a("v_add3_u32 v99, v99, v101, s3")
        a("v_lshl_add_u32 v101, v98, 3, v99"); a("v_lshl_add_u32 v98, v98, 3, v100")
        a(f"ds_read_b64_tr_b16 {vr(OA,2)}, v101"); a(f"ds_read_b64_tr_b16 {vr(OA+2,2)}, v101 offset:160")
        a(f"ds_read_b64_tr_b16 {vr(OA+4,2)}, v99 offset:32"); a(f"ds_read_b64_tr_b16 {vr(OA+6,2)}, v99 offset:192")
        a(f"ds_read_b64_tr_b16 {vr(OA+8,2)}, v98"); a(f"ds_read_b64_tr_b16 {vr(OA+10,2)}, v100 offset:32")
        a("v_bfe_i32 v102, v0, 2, 1"); a("v_and_b32 v102, 0x80008000, v102"); a("v_add_u32 v103, -1, v96"); a(f"v_add_u32 v104, {L_OA}, v7")
        a("s_waitcnt lgkmcnt(0)")
        for q in range(8): a(f"v_xor_b32 v{OA+q}, v102, v{OA+q}")
        for q in range(8, 12): a(f"v_bitop3_b32 v{OA+q}, v{OA+q}, v102, v103 bitop3:0x28")
        a("s_cmp_eq_u32 s60, 0"); a("s_cbranch_scc0 L_oa")
        for i in range(3): a(f"ds_write_b128 v104, {vr(OA+4*i,4)} offset:{1024*i}")
        a.label("L_oa")
    def set_st():
        wo_addr()
        a("v_and_b32 v56, 31, v0"); a("s_lshl2_add_u32 s3, s54, s60"); a("s_lshl_b32 s3, s3, 7"); a(f"s_add_u32 s3, s3, {WS_SM}")
        a("v_lshl_add_u32 v57, v56, 2, s3")
        a("s_lshr_b32 s58, s60, 1"); a("s_and_b32 s59, s60, 1")
        a("s_add_u32 s3, s56, 160"); a("s_mul_i32 s3, s3, s58"); a("s_add_u32 s3, s3, s55"); a("s_lshl_b32 s3, s3, 1")
        a("s_mul_i32 s53, s59, 7680"); a("s_add_u32 s3, s3, s53"); a(f"s_add_u32 s3, s3, {WS_CS}")
        a("v_min_u32 v59, 39, v0"); a("v_lshl_add_u32 v58, v59, 3, s3")
        a("s_lshl_b32 s3, s60, 9"); a(f"s_add_u32 s3, s3, {L_STAT}"); a("v_lshl_add_u32 v56, v56, 4, s3")
        a("s_mul_i32 s3, s59, 640"); a("s_mul_i32 s53, s58, 320"); a("s_add_u32 s3, s3, s53"); a(f"s_add_u32 s3, s3, {L_CS}"); a("v_lshl_add_u32 v68, v59, 3, s3")
        a("s_mul_i32 s3, s60, 160"); a(f"s_add_u32 s3, s3, {L_CS+1280}"); a("v_lshl_add_u32 v69, v59, 2, s3"); a("v_mov_b32 v61, 0")
        a("ds_write_b32 v69, v61")
    def set_xid():
        a.readycheck(42, 43)
        a("s_getreg_b32 s64, hwreg(HW_REG_XCC_ID)"); a(f"s_mul_i32 s70, s{sX}, 192"); a(f"s_add_u32 s70, s70, {WS_XID}")
        a("s_cmp_eq_u32 s60, 0"); a("s_cbranch_scc0 L_xid")
        a("v_mov_b32 v44, s64"); a(f"s_lshl3_add_u32 s3, s{sJR}, s70")
        a("s_mov_b64 exec, 1"); a(f"buffer_store_dword v44, off, {WS}, s3 sc1"); a("s_mov_b64 exec, -1")
        a.label("L_xid")
        a("v_min_u32 v45, 23, v0"); a("v_lshlrev_b32 v45, 3, v45")
    plan = {1: [set1], 3: [phi_build, set_o], 5: [lambda: f_setup(96, 1), set_oa], 7: [set_xid, set_st]}
    for c in range(10):
        extra = sum((a.capture(f) for f in plan.get(c, [])), [])
        if wv: issue(c, extra)
        else:
            issue(c)
            for y in extra: a(y)
        if c == 4: vm(a.readyload(42, 43), "rdy")
        if 0 < c < 9: bar(c - 1)
    statloads = [f"buffer_load_dword v60, v57, {WS}, 0 offen sc1", f"buffer_load_dwordx2 v[62:63], v58, {WS}, 0 offen sc1"]
    bar(8)
    a("s_cmp_lt_u32 s57, 4"); a("s_cbranch_scc1 L_nx")
    a(f"buffer_load_dword v44, v45, {WS}, s70 offen sc1")
    a.label("L_nx")
    for l in statloads: vm(l, "st")
    a("s_cmp_lt_u32 s57, 4"); a("s_cbranch_scc1 L_r0")
    if qt:
        a(f"s_and_b32 s3, s{sX}, 1"); a("s_lshl1_add_u32 s3, s3, s57"); a("s_sub_u32 s3, s3, 4"); a("s_lshl2_add_u32 s3, s3, s60"); a("s_mul_i32 s58, s3, 163840")
        a("s_mul_i32 s3, s54, 5120"); a("s_add_u32 s58, s58, s3"); a(f"s_add_u32 s58, s58, {WS_Q}"); a("s_add_u32 s59, s58, 81920")
        a("v_lshlrev_b32 v47, 7, v0"); a("s_mov_b32 exec_hi, 0xff")
        for r in (58, 59): a(f"buffer_load_dword v48, v47, {WS}, s{r} offen")
        a("s_mov_b32 exec_hi, -1")
        a(fload); a("v_mov_b32 v47, 0")
    if qw <= 0: a(f"s_waitcnt vmcnt({3 if qt else 0})"); a("s_branch L_r0d")
    a.label("L_r0")
    wo_round(0)
    a.label("L_r0d")
    bar(9, "st")
    a.stamp(1)
    if cut: a("s_barrier"); a("s_branch L_fin")
    a.recheck(statloads, [60, 62, 63], 41)
    a("ds_write_b64 v68, v[62:63]")
    a("v_and_b32 v66, 0xffff0000, v60"); a("v_rcp_f32 v66, v66")
    a("v_and_b32 v64, 0xffff, v60"); a("v_lshl_or_b32 v64, v64, 16, v64"); a("v_xor_b32 v64, 0x80008000, v64")
    a("v_lshrrev_b32 v65, 16, v60"); a(f"v_mul_f32 v67, {LOG2E:#x}, v66")
    a("ds_write_b128 v56, v[64:67]")
    a("s_cmp_lt_u32 s57, 4"); a("s_cbranch_scc0 L_lq")
    wo_round(1)
    a("s_waitcnt lgkmcnt(0)"); a.stamp(2); a("s_barrier")
    a(f"s_setprio {lpr}")
    for m in (2, 3): a(f"ds_read_b128 {vr(STAT+4*m,4)}, v206 offset:{256*m}")
    a(f"s_lshl_b32 s58, s{sX}, 7"); a("v_lshlrev_b32 v45, 10, v0"); a(f"v_mov_b32 v44, {SENT + 16:#x}")
    a(f"s_cmp_eq_u32 s{sWV}, 7"); a("s_cbranch_scc0 L_ah")
    a("s_mov_b64 exec, 15"); a("v_mov_b32 v44, 0"); a(f"buffer_atomic_or v44, v45, {WS}, s58 offen sc0 sc1"); a("s_mov_b64 exec, -1")
    a.label("L_ah")
    if not kno & 2: wo_round(2)
    if kd: a.stamp(8, True)
    a("s_barrier")
    if kd: a.stamp(4, True); a("s_waitcnt lgkmcnt(0)")
    for m in (2, 3):
        T = 136 + 6*(m-2)
        a(f"ds_read_b128 {vr(T,4)}, v{E0} offset:{2048*m}"); a(f"ds_read_b64 {vr(T+4,2)}, v{E2} offset:{2048*m}")
    a("s_waitcnt lgkmcnt(2)")
    for x in phi_mm(Pb[0], 136): a(x)
    a("s_waitcnt lgkmcnt(0)")
    mm3 = phi_mm(Pb[1], 142)
    for x in mm3[:3]: a(x)
    ktile(2, Pb[0], False, mm3[3:] + wo_list(3), 0)
    ktile(3, Pb[1], kpk, [fload], 1)
    a("s_waitcnt vmcnt(0)")
    for l in qloads: a(l)
    def topcheck():
        a.recheck([tload], [230, 231], OT, sleep=8)
        a(f"v_readfirstlane_b32 s{sK1}, v230"); a(f"v_readfirstlane_b32 s{sK2}, v231")
    if kd: a.stamp(7, True)
    a(f"v_cmp_ne_u32 vcc, {SENT + 16:#x}, v44"); a("s_cbranch_vccz L_ah2")
    a.cnt_poll(4, 45, "s58", f"{SENT + 16:#x}", 44)
    a.label("L_ah2")
    a.stamp(3)
    if lpr: a("s_setprio 0")
    a("s_waitcnt lgkmcnt(0)"); a("s_barrier")
    a("s_waitcnt vmcnt(0)")
    a("s_branch L_qchk")
    a.label("L_lq")
    a("v_cmp_ne_u32 vcc, s64, v44"); a(f"v_mov_b32 v46, {L_KVR}"); a("s_or_b32 s64, vcc_lo, vcc_hi")
    if not loc: a("s_mov_b32 s64, 1")
    a("v_mov_b32 v44, s64")
    a("s_cmp_eq_u32 s60, 0"); a("s_cbranch_scc0 L_lq1")
    a("ds_write_b32 v46, v44")
    a.label("L_lq1")
    a(f"s_and_b32 s3, s{sX}, 1"); a("s_lshl1_add_u32 s3, s3, s57"); a("s_lshl2_add_u32 s3, s54, s3"); a("s_lshl_b32 s3, s3, 7"); a(f"s_add_u32 s3, s3, {WS_FQ - 512}")
    a("s_waitcnt lgkmcnt(0)"); a.stamp(2); a("s_barrier")
    a("s_setprio 0")
    a("s_cmp_eq_u32 s60, 0")
    a("s_barrier")
    a("s_cbranch_scc0 L_ophase")
    a("s_mov_b64 exec, 1"); a("s_cmp_eq_u32 s64, 0"); a("s_cbranch_scc1 L_lq2")
    a(f"buffer_store_dword v0, off, {WS}, s3 sc1"); a("s_mov_b64 exec, -1"); a("s_branch L_ophase")
    a.label("L_lq2")
    a(f"buffer_store_dword v0, off, {WS}, s3"); a("s_mov_b64 exec, -1"); a("s_branch L_ophase")

    a.label("L_mfma")
    a("s_setprio 0")
    srds()
    a(f"s_and_b32 s60, s{sWV}, 1"); a(f"s_lshr_b32 s61, s{sWV}, 1")
    lanefields()
    a(f"v_mul_u32_u24 v7, {WREG}, v3"); a("v_mul_u32_u24 v12, 320, v4"); a("s_movk_i32 s3, 16384"); a("v_add3_u32 v7, v7, v12, s3")
    a("s_mul_i32 s66, s60, 80"); a("s_sub_u32 s67, 240, s66")
    a("v_lshl_add_u32 v12, v5, 3, v7"); a("v_add_u32 v9, s66, v12"); a("v_add_u32 v10, s67, v12")
    a("v_mov_b32 v12, s66"); a("v_mov_b32 v13, s67"); a("v_cmp_lt_u32 vcc, 1, v5"); a("v_and_b32 v14, 1, v5"); a("v_mul_u32_u24 v14, 72, v14")
    a("v_cndmask_b32 v15, v12, v13, vcc"); a("v_add3_u32 v11, v7, v15, v14")
    a("v_and_b32 v7, 2, v0"); a("v_bfe_u32 v14, v0, 2, 1"); a("v_or_b32 v7, v7, v14"); a("v_bfe_u32 v14, v0, 3, 1"); a("v_lshl_add_u32 v7, v14, 2, v7")
    a("v_lshlrev_b32 v14, 1, v3"); a("v_xor_b32 v7, v7, v14"); a("v_lshlrev_b32 v7, 4, v7"); a("v_lshl_add_u32 v7, v6, 7, v7")
    a("s_lshl_b32 s3, s61, 13"); a("v_add_u32 v8, s3, v7")
    a(f"v_add_u32 v{XA[0]}, {RING}, v8"); a(f"v_add_u32 v{MK}, {RING}, v9"); a(f"v_add_u32 v{MV}, {RING}, v10"); a(f"v_add_u32 v{EX}, {RING}, v11")
    a(f"v_xor_b32 v{XA[1]}, 16, v{XA[0]}")
    a("v_min_u32 v7, 2, v3"); a("v_mul_u32_u24 v7, 640, v7"); a(f"v_add_u32 v7, {L_CS}, v7")
    a("v_lshl_add_u32 v14, v6, 2, v7"); a("v_lshl_add_u32 v173, v12, 1, v14"); a("v_lshl_add_u32 v174, v13, 1, v14")
    a("v_cmp_lt_u32 vcc, 1, v4"); a("v_and_b32 v14, 1, v4"); a("v_mul_u32_u24 v14, 144, v14")
    a("v_cndmask_b32 v15, v12, v13, vcc"); a("v_lshl_add_u32 v15, v15, 1, v14"); a("v_lshl_add_u32 v14, v5, 2, v7"); a("v_add_u32 v175, v14, v15")
    a("s_lshl_b32 s3, s61, 10"); a(f"s_add_u32 s3, s3, {L_STAT}"); a("v_lshl_add_u32 v206, v6, 4, s3")
    for r in range(0, 80, 2): a(f"v_mov_b64 {vr(ACC+r,2)}, 0")
    for r in range(0, 36, 2): a(f"v_mov_b64 {vr(SET[1]+r,2)}, 0")
    for t in range(5): a(f"v_mov_b32 v{AUG+2*t+1}, 0")
    a("s_mov_b32 s68, 0"); a(f"s_mov_b32 s69, {RING}")
    o_sgprs()
    a("s_cmp_lt_u32 s57, 4"); a("s_cbranch_scc0 L_qaddr")
    kepi_addr("s61", "s60")
    a("s_sub_u32 s59, 32768, s58")
    a("v_add_u32 v14, s59, v7"); a("v_lshlrev_b32 v15, 4, v12"); a(f"v_xor_b32 v{E3}, 64, v14"); a(f"v_xor_b32 v{E3}, v{E3}, v15"); a(f"v_lshl_add_u32 v{E3}, v13, 3, v{E3}")
    a("v_xor_b32 v14, 112, v14"); a("v_lshl_add_u32 v14, v13, 14, v14"); a("v_xor_b32 v12, 1, v12"); a(f"v_lshl_add_u32 v{E4}, v12, 3, v14")
    a("v_lshrrev_b32 v7, 5, v0"); a("v_lshl_add_u32 v12, v7, 3, v4"); a("v_lshlrev_b32 v12, 7, v12")
    a("v_and_b32 v13, 1, v4"); a("v_lshrrev_b32 v14, 1, v4"); a("v_lshl_or_b32 v13, v14, 2, v13"); a("v_lshl_or_b32 v12, v13, 4, v12")
    a(f"s_lshl_b32 s3, s{sWV}, 14"); a(f"s_add_u32 s3, s3, {TRI}"); a("v_add_u32 v12, s3, v12")
    a("v_and_b32 v13, 1, v5"); a("v_lshrrev_b32 v14, 1, v5"); a("v_and_b32 v15, 1, v3")
    a(f"v_lshl_or_b32 v{KA0}, v13, 1, v15"); a(f"v_lshlrev_b32 v{KA0}, 4, v{KA0}"); a(f"v_xor_b32 v{KA0}, v{KA0}, v12"); a(f"v_lshl_add_u32 v{KA0}, v14, 3, v{KA0}")
    a(f"v_xor_b32 v{KA1}, 96, v12"); a(f"v_lshl_add_u32 v{KA1}, v13, 3, v{KA1}")
    a("s_cmp_eq_u32 s60, 0"); a("s_mov_b32 s3, 0xfffeba98"); a("s_cselect_b32 s3, 0xfffba98e, s3")
    a("v_lshl_add_u32 v13, v15, 2, v5"); a("v_lshlrev_b32 v13, 2, v13"); a("v_bfe_u32 v13, s3, v13, 4"); a("v_lshlrev_b32 v13, 3, v13")
    a(f"v_xor_b32 v{KB}, v13, v12")
    for r in (KB, KA0, KA1): a(f"v_xor_b32 v{r+1}, 32, v{r}")
    a("v_and_b32 v13, 31, v0"); a("v_mul_u32_u24 v14, 21, v7"); a("v_add_u32 v14, v14, v13"); a("v_cmp_lt_u32 vcc, 20, v13")
    a(f"v_mov_b32 v15, {OOB:#x}"); a(f"v_lshlrev_b32 v{KP}, 4, v14"); a(f"v_lshlrev_b32 v{KP+1}, 3, v14")
    a(f"v_cndmask_b32 v{KP}, v{KP}, v15, vcc"); a(f"v_cndmask_b32 v{KP+1}, v{KP+1}, v15, vcc")
    a(f"s_and_b32 s3, s{sX}, 1"); a("s_lshl2_add_u32 s3, s3, s57"); a(f"s_lshl2_add_u32 s3, s3, s{sWV}"); a("s_lshl4_add_u32 s3, s3, s54")
    a("s_mul_i32 s62, s3, 1792"); a(f"s_add_u32 s62, s62, {WS_KV}")
    a(f"s_and_b32 s3, s{sX}, 1"); a("s_lshl2_add_u32 s3, s3, s57"); a("s_lshl_b32 s3, s3, 9"); a(f"s_add_u32 s3, s3, {WS_KH}")
    a(f"s_cmp_eq_u32 s{sWV}, 3"); a(f"s_cselect_b32 s{sHINT}, s3, {OOB:#x}")
    phi_addr("s65")
    a("s_waitcnt vmcnt(0)")
    phi_build()
    a.label("L_qaret")
    o_vgprs(96); f_setup(96, 0)
    def reads(s, st):
        X = [f"ds_read_b128 {vr(st+4*m,4)}, v{XA[s]} offset:{2048*m}" for m in range(4)]
        Wr = []
        for t in range(5):
            for j in range(2):
                reg = [MK, MK, MV, MV, EX][t]; off = s*2560 + j*1280 + [8, 40, 8, 40, 0][t]
                Wr.append(f"ds_read_b64_tr_b16 {vr(st+16+4*t+2*j,2)}, v{reg} offset:{off}")
        return [X[0]] + Wr[0:2] + X[1:] + Wr[2:]
    def mf(i, st):
        t, m = divmod(i, 4)
        return f"v_mfma_f32_16x16x32_bf16 {vr(ACC+20*m+4*t,4)}, {vr(st+16+4*t,4)}, {vr(st+4*m,4)}, {vr(ACC+20*m+4*t,4)}"
    need = lambda i: (3 + i if i < 4 else 6 + 2*(i//4))
    R0 = reads(0, SET[0]); R1 = reads(1, SET[1])
    seq = [(i, 1) for i in range(20 - defer, 20)] + [(i, 0) for i in range(20)] + [(i, 1) for i in range(20 - defer)]
    fill = [[] for _ in seq]
    k = 0; g = 0
    while k < 14: fill[g] += R0[k:k+2]; k += 2; g += 1
    g = max(g, defer); k = 0
    while k < 14: fill[g].append(R1[k]); k += 1; g += 1
    fill[g] += [f"s_add_u32 s69, s69, {SLOT}", f"s_cmp_eq_u32 s69, {RING_END}", f"s_cselect_b32 s69, {RING}, s69"]
    for q, h in enumerate([f"v_add_u32 v{XA[0]}, s69, v8", f"v_add_u32 v{MK}, s69, v9", f"v_add_u32 v{MV}, s69, v10", f"v_add_u32 v{EX}, s69, v11", f"v_xor_b32 v{XA[1]}, 16, v{XA[0]}"]):
        fill[g+1+q].append(h)
    fill[g+6] += ["s_add_u32 s68, s68, 1", "s_cmp_lt_u32 s68, 10"]
    a.stampw(1)
    a.label("L_mloop")
    a("s_barrier")
    issued = 0; done = 0
    for idx, (i, st) in enumerate(seq):
        if idx >= defer:
            n = need(i) + (14 if st == 1 else 0)
            if idx == len(seq) - 1: n = 28
            if n > done: a(f"s_waitcnt lgkmcnt({min(15, issued - n)})"); done = n
        a(mf(i, SET[st]))
        for f in fill[idx]:
            if f.startswith("ds_"): issued += 1
            a(f)
    a("s_cbranch_scc1 L_mloop")
    a("s_barrier")
    RA = [f"ds_read_b128 {vr(STAT+4*m,4)}, v206 offset:{256*m}" for m in range(4)]
    RA += [f"ds_read_b32 v{AUG+2*t}, v{[173,173,174,174,175][t]} offset:{[16,80,16,80,0][t]}" for t in range(5)]
    k = 0
    for i in range(20 - defer, 20):
        a(mf(i, SET[1]))
        for r in RA[k:k+2]: a(r)
        k += 2
    for r in RA[k:]: a(r)
    a("s_waitcnt lgkmcnt(0)")
    aug = lambda m: [f"v_mfma_f32_16x16x16_bf16 {vr(ACC+20*m+4*t,4)}, {vr(AUG+2*t,2)}, {vr(STAT+4*m,2)}, {vr(ACC+20*m+4*t,4)}" for t in range(5)]
    a.stampw(2)
    for x in aug(2): a(x)
    if cut: a("s_branch L_fin")
    a("s_cmp_lt_u32 s57, 4"); a("s_cbranch_scc0 L_qepi")

    KT = [136, 142, 148, 166]; VT = [8, 172]
    def kcv(m): return [f"v_cvt_pk_bf16_f32 v{KT[m]+q}, v{ACC+20*m+4*t+2*h}, v{ACC+20*m+4*t+2*h+1}" for q, (t, h) in enumerate([(0,0),(0,1),(1,0),(1,1),(4,0),(4,1)])]
    def vwork(m):
        A = ACC + 20*m; T = VT[m & 1]; X = KT[m] + 4
        return [f"v_cvt_pk_bf16_f32 v{T+q}, v{A+8+2*q}, v{A+9+2*q}" for q in range(4)] + [
                f"v_cndmask_b32 v{X}, v{X}, v{STAT+4*m+1}, vcc", f"v_cndmask_b32 v{X+1}, v{X+1}, v{AUG+1}, vcc",
                f"ds_write_b64 v{E3}, {vr(T,2)} offset:{2048*m}", f"ds_write_b64 v{E3}, {vr(T+2,2)} offset:{16384+2048*m}", f"ds_write_b64 v{E4}, {vr(X,2)} offset:{2048*m}"]
    def weave(main, fillers, n):
        k = 0
        for x in main:
            a(x)
            for y in fillers[k:k+n]: a(y)
            k += n
        for y in fillers[k:]: a(y)
    a("v_cmp_gt_u32 vcc, 32, v0")
    hand = lambda m: [f"ds_write_b128 v{E0}, {vr(KT[m],4)} offset:{2048*m}", f"ds_write_b64 v{E2}, {vr(KT[m]+4,2)} offset:{2048*m}"]
    weave(aug(3), ["", ""] + kcv(2), 2)
    for x in hand(2): a(x)
    weave(aug(0), kcv(3) + hand(3), 2)
    weave(aug(1), ["", ""] + kcv(0), 2)
    if kd: a.stamp(8, True)
    a("s_waitcnt lgkmcnt(0)"); a("s_barrier")
    if kd: a.stamp(4, True)
    weave(phi_mm(Pb[0], KT[0]), kcv(1) + vwork(2) + vwork(3), 2)
    for x in vwork(0): a(x)
    ktile(0, Pb[0], False, phi_mm(Pb[1], KT[1]) + vwork(1), 0)
    ktile(1, Pb[1], kpk, oareads, 1)
    a(fload)
    if kd: a.stamp(7, True)
    if kvp: a("s_setprio 1")
    a("s_waitcnt lgkmcnt(0)"); a("s_barrier")
    a.stampw(3)
    D0, D1, FR = 96, 112, 128
    def kvreads(ks):
        f = FR + 12*(ks % 3)
        return [f"ds_read_b64_tr_b16 {vr(f+4*o+2*j,2)}, v{[KB,KA0,KA1][o]+j} offset:{2048*ks+512*j}" for o in range(3) for j in range(2)]
    for x in kvreads(0) + kvreads(1): a(x)
    a("v_lshlrev_b32 v8, 7, v0"); a("v_mov_b32 v9, 1")
    a("s_waitcnt vmcnt(0)")
    for l in qloads: a(l)
    khint = f"s_mov_b64 exec, 15\nbuffer_atomic_add v9, v8, {WS}, s{sHINT} offen sc1\ns_mov_b64 exec, -1"
    for ks in range(8):
        f = FR + 12*(ks % 3)
        if ks == khe: a(khint)
        a(f"s_waitcnt lgkmcnt({6 if ks < 7 else 0})")
        a(f"v_mfma_f32_32x32x16_bf16 {vr(D0,16)}, {vr(f+4,4)}, {vr(f,4)}, {vr(D0,16) if ks else 0}")
        if ks < 6:
            for x in kvreads(ks+2)[:3]: a(x)
        a(f"v_mfma_f32_32x32x16_bf16 {vr(D1,16)}, {vr(f+8,4)}, {vr(f,4)}, {vr(D1,16) if ks else 0}")
        if ks < 6:
            for x in kvreads(ks+2)[3:]: a(x)
    if khe == 8: a(khint)
    for q in range(4): a(f"v_cvt_pk_bf16_f32 v{FR+q}, v{D0+2*q}, v{D0+2*q+1}")
    a(f"buffer_store_dwordx4 {vr(FR,4)}, v{KP}, {WS}, s62 offen sc1")
    for q in range(4, 8): a(f"v_cvt_pk_bf16_f32 v{FR+q}, v{D0+2*q}, v{D0+2*q+1}")
    a(f"buffer_store_dwordx4 {vr(FR+4,4)}, v{KP}, {WS}, s62 offen offset:672 sc1")
    for q in range(8, 10): a(f"v_cvt_pk_bf16_f32 v{FR+q}, v{D0+2*q}, v{D0+2*q+1}")
    a(f"buffer_store_dwordx2 {vr(FR+8,2)}, v{KP+1}, {WS}, s62 offen offset:1344 sc1")
    if khe == 9: a(khint)
    if kvp: a("s_setprio 0")
    a(tload)
    a("s_waitcnt vmcnt(5)")
    a.label("L_qchk")
    a(f"v_cmp_eq_u32 vcc, s{sSENT}, v253"); a("s_cbranch_vccnz L_qlate")

    a.label("L_phi")
    a.stampw(4)
    a(f"v_mfma_f32_32x32x16_bf16 {vr(P0,16)}, {vr(OA,4)}, {vr(QF,4)}, 0")
    a(f"v_mfma_f32_32x32x8_bf16 {vr(P0,16)}, {vr(OA+8,2)}, {vr(QF+4,2)}, {vr(P0,16)}")
    a(f"v_mfma_f32_32x32x16_bf16 {vr(P1,16)}, {vr(OA+4,4)}, {vr(QF,4)}, 0")
    a(f"v_mfma_f32_32x32x8_bf16 {vr(P1,16)}, {vr(OA+10,2)}, {vr(QF+4,2)}, {vr(P1,16)}")
    def gather_sgprs():
        a("s_mov_b32 s62, 0x00003f80"); a("s_mov_b32 s64, 0x3f800000"); a("s_mov_b32 s53, 0")
        for q in range(5): a(f"s_add_u32 s{[54,55,56,58,59][q]}, s{sKVA}, {5376*(q+1)}")
    def qscale(r): a(f"v_and_b32 v{r}, 0xffff0000, v{r}"); a(f"v_rcp_f32 v{r}, v{r}"); a(f"v_mul_f32 v{r}, {LOG2E:#x}, v{r}")
    qscale(OT+2); gather_sgprs()
    a(f"s_cmp_eq_u32 s{sWV}, 7")
    for n, x in enumerate(softmax_plain(list(range(P0, P0+20)), PHQ, OT, scale=OT+2)):
        if pp and n in (hk0, hk1): a(f"s_cbranch_scc1 L_hk{n}"); a.label(f"L_hr{n}")
        a(x)
    a.stampw(5)
    a("s_cbranch_scc1 L_phix")
    a.label("L_kvwait")
    def woreads(st, dst):
        R = []
        for t in range(5):
            for j in range(2):
                if st < 8: R.append(f"ds_read_b64_tr_b16 {vr(dst+4*t+2*j,2)}, v6 offset:{6400*st+1280*j+32*t}")
                else: R.append(f"ds_read_b64_tr_b16 {vr(dst+4*t+2*j,2)}, v2 offset:{2560+25600*(st-8)+12800*j+32*t}")
        return R
    a("s_barrier")
    a.stampw(12)
    a.label("L_kfull")
    for p in range(16): a(f"buffer_load_dword v{KL+p}, v15, {WS}, s{[sKVA,54,55,56,58,59][p//3]} offen offset:{1792*(p%3)} sc1")
    a("v_mov_b64 v[16:17], 0"); a("v_mov_b64 v[18:19], 0"); a(f"v_mov_b32 v{OT}, 0")
    for p in range(0, 16, 2):
        if p % 4 == 0: a(f"s_waitcnt vmcnt({12-p})")
        for q in range(2): a(f"v_dot2c_f32_bf16 v{16+2*q}, s62, v{KL+p+q}"); a(f"v_dot2c_f32_bf16 v{17+2*q}, s64, v{KL+p+q}")
        a(f"v_max3_u32 v{OT}, v{OT}, v{KL+p}, v{KL+p+1}")
    a(f"v_cmp_eq_u32 vcc, s{sSENT}, v{OT}"); a("s_cbranch_vccnz L_kagain")
    a("v_pk_add_f32 v[16:17], v[16:17], v[18:19]"); a("v_cvt_pk_bf16_f32 v16, v16, v17")
    a("ds_write_b32 v14, v16")
    a.label("L_kred")
    a.stampw(6)
    a("s_waitcnt lgkmcnt(0)"); a("s_barrier")
    a(f"ds_read_b128 {vr(OA,4)}, v207"); a(f"ds_read_b128 {vr(OA+4,4)}, v207 offset:672"); a(f"ds_read_b64 {vr(OA+8,2)}, v254 offset:1344")
    def ohint():
        lb = a.newlab("L_oh")
        a(f"s_cmp_eq_u32 s{sWV}, 7"); a(f"s_cbranch_scc0 {lb}")
        a("s_mov_b64 exec, s[54:55]"); a(f"buffer_atomic_add v15, v14, {WS}, s{sHINT} offen sc1"); a("s_mov_b64 exec, -1")
        a.label(lb)
    def omfma(P, PHI): return [f"v_mfma_f32_32x32x16_bf16 {vr(P,16)}, {vr(OA,4)}, {vr(PHI,4)}, 0",
                               f"v_mfma_f32_32x32x16_bf16 {vr(P,16)}, {vr(OA+4,4)}, {vr(PHI+4,4)}, {vr(P,16)}",
                               f"v_mfma_f32_32x32x8_bf16 {vr(P,16)}, {vr(OA+8,2)}, {vr(PHI+8,2)}, {vr(P,16)}"]
    def ofin(P, T):
        a(f"v_add_f32 v16, 0x358637bd, v{P+12}"); a("v_rcp_f32 v16, v16")
        for q in range(8): a(f"v_mul_f32 v{P+q}, v{P+q}, v16")
        for q in range(4): a(f"v_cvt_pk_bf16_f32 v{T+q}, v{P+2*q}, v{P+2*q+1}")
        a(f"buffer_store_dwordx4 {vr(T,4)}, v12, {WS}, s{sO0} offen sc1")
        for q in range(8, 12): a(f"v_mul_f32 v{P+q}, v{P+q}, v16")
        for q in range(4, 6): a(f"v_cvt_pk_bf16_f32 v{T+q}, v{P+2*q}, v{P+2*q+1}")
        a(f"buffer_store_dwordx2 {vr(T+4,2)}, v13, {WS}, s{sO1} offen sc1")
    a("s_cmp_lt_u32 s57, 4"); a("s_cbranch_scc0 L_o2")
    for q, x in enumerate(omfma(P0, PHQ)): a(f"s_waitcnt lgkmcnt({2-q})"); a(x)
    a.label("L_o1")
    if ohe == 1: ohint()
    ofin(P0, 18)
    if ohe == 0: ohint()
    a.stampw(7)

    a.label("L_final")
    yloads = [f"buffer_load_dwordx4 {vr(OF+4*t,4)}, v15, {WS}, s60 offen offset:{512*t} sc1" for t in range(5)]
    RT = WF + 160
    wo_a = sum((woreads(st, WF + 20*st) for st in (0, 1, 2, 3, 8)), [])
    wo_b = sum((woreads(st, WF + 20*st) for st in (4, 5, 6, 7)), [])
    oloads = [f"buffer_load_dwordx4 {vr(OF+4*st,4)}, v7, {WS}, s{sF0+st//4} offen offset:{1024*(st%4)} sc1" for st in range(8)]
    oloads += [f"buffer_load_dwordx2 {vr(OF+32+2*q,2)}, v1, {WS}, s{sF2} offen offset:{512*q} sc1" for q in range(4)]
    def otouch_addr():
        if not ot: return
        a(f"s_and_b32 s3, s{sJ}, 7"); a("v_lshl_add_u32 v14, v0, 3, s3"); a("v_lshlrev_b32 v14, 7, v14")
        a(f"s_sub_u32 s3, s{sF2}, s{sF1}"); a("s_sub_u32 s3, s3, 4096"); a("v_cmp_lt_u32 vcc, 3, v0"); a("v_add_u32 v15, s3, v14"); a("v_cndmask_b32 v14, v14, v15, vcc")
    def otouch():
        if ot: a("s_mov_b64 exec, 63"); a(f"buffer_load_dword v15, v14, {WS}, s{sF1} offen sc1"); a("s_mov_b64 exec, -1")
    a("v_lshlrev_b32 v1, 3, v0"); a("s_mov_b32 s63, 0")
    a(f"s_cmp_lt_u32 s{sWV}, 4"); a("s_cbranch_scc0 L_c2")
    topcheck()
    a.label("L_c1")
    a(f"buffer_load_dword v14, v4, {WS}, s{sAUX} offen sc1")
    a(f"s_not_b32 s3, s{sK1}"); a("s_bfe_u32 s3, s3, 0x70004"); a(f"s_cmp_eq_u32 s3, s{sT16}"); a("s_cselect_b32 s61, 1, 0")
    a(f"s_not_b32 s3, s{sK2}"); a("s_bfe_u32 s3, s3, 0x70004"); a(f"s_cmp_eq_u32 s3, s{sT16}"); a("s_cselect_b32 s3, 2, 0")
    a("s_or_b32 s61, s61, s3"); a("s_cbranch_scc1 L_y0")
    a.label("L_y1")
    for x in wo_a[:40] + wo_b: a(x)
    a("s_cmp_eq_u32 s61, 0")
    a("s_waitcnt vmcnt(0)")
    a("v_and_b32 v8, 0xffff0000, v14"); a("v_rcp_f32 v8, v8"); a("v_lshlrev_b32 v9, 16, v14")
    a("v_mul_f32 v9, v9, v8"); a("v_add_f32 v8, 1.0, v8")
    a("s_cbranch_scc0 L_y2")
    a.label("L_y3")
    otouch_addr()
    a.stampw(8)
    a("s_barrier")
    a.stampw(13)
    otouch()
    for l in oloads[:n0]: a(l)
    for t in range(5): a(f"ds_read_b64 {vr(RT+10+2*t,2)}, v3 offset:{32*t}")
    a("s_cmp_eq_u32 s61, 0")
    a("s_waitcnt lgkmcnt(0)")
    for q in range(10):
        a(f"v_lshlrev_b32 v{RT+2*q}, 16, v{RT+10+q}"); a(f"v_and_b32 v{RT+2*q+1}, 0xffff0000, v{RT+10+q}")
    resfma = lambda d: [f"v_pk_fma_f32 {vr(d+2*q,2)}, {vr(RT+2*q,2)}, v[8:9], v[8:9] op_sel:[0,0,1] op_sel_hi:[1,0,1] neg_lo:[0,0,1] neg_hi:[0,0,1]" for q in range(10)]
    a("s_cbranch_scc0 L_y4")
    for x in resfma(FA): a(x)
    a.label("L_y5")
    for x in wo_a[40:]: a(x)
    last = woreads(9, WF)
    groups = ((0, 1), (2, 3), (4, 5), (6, 7), (8, 9)); ends = (2, 4, 6, 8, 12)
    def project(kh, n):
        todo = oloads[n:]
        def vtree(g_):
            r = OF + 8*g_
            return [f"s_waitcnt vmcnt({12 - len(todo) - ends[g_]})\nv_max3_u32 v13, v{r}, v{r+1}, v{r+2}", f"v_max3_u32 v12, v{r+3}, v{r+4}, v{r+5}", f"v_max3_u32 v13, v13, v{r+6}, v{r+7}",
                    "v_max_u32 v13, v13, v12", f"v_cmp_eq_u32 vcc, s{sSENT}, v13"]
        a("s_waitcnt lgkmcnt(10)")
        for x in vtree(0): a(x)
        for g_, steps in enumerate(groups):
            a("s_cbranch_vccnz L_oretry")
            a.label(f"L_og{5*kh+g_}")
            if g_ == 0: a.stampw(9)
            if fd: a.stamp(g_ + 1, True)
            if g_ in (1, 4): a("s_waitcnt lgkmcnt(0)")
            if g_ == 4 and kh:
                a("s_barrier")
                for t in range(5): a(f"ds_read_b128 {vr(OF+4*t,4)}, v5 offset:{1024*t}")
            want = min(12, max(ends[min(g_+1, 4)], n + ramp*(g_+1) + (2 if n + ramp*(g_+1) > 8 else 0)), 12 - len(todo) + 5)
            now = todo[:max(0, want - (12 - len(todo)))]; del todo[:len(now)]
            nxt_ = vtree(g_+1) if g_ < 4 else []
            for k, st in enumerate(steps):
                for t in range(5):
                    a(f"v_mfma_f32_16x16x32_bf16 {vr(FA+4*t,4)}, {vr(WF+20*(st%9)+4*t,4)}, {vr(OF+4*st,4)}, {vr(FA+4*t,4)}")
                    if k == 0 and t < len(now): a(now[t])
                    if st in (2, 4): a(last[5*(st//2-1)+t])
                    if k == 0 and t == 4 and g_ < 4: a(f"s_mov_b32 s63, {5*kh+g_+1}")
                    if k == 1 and nxt_: a(nxt_[t])
        assert not todo
        if fd: a.stamp(6, True)
    project(0, n0)
    for t in range(5): a(f"ds_write_b128 v5, {vr(FA+4*t,4)} offset:{1024*t}")
    a("s_waitcnt lgkmcnt(0)"); a("s_barrier")
    a("s_branch L_fin")
    a.label("L_c2")
    if ql: a("s_cmp_lt_u32 s57, 4"); a("s_cbranch_scc0 L_c2h")
    wo_last()
    a.label("L_c2h")
    for r in range(0, 20, 2): a(f"v_mov_b64 {vr(FA+r,2)}, 0")
    a("s_mov_b32 s63, 5")
    otouch_addr()
    a(f"s_cmp_eq_u32 s{sWV}, 7"); a("s_cbranch_scc1 L_c7")
    for x in wo_a: a(x)
    a("s_waitcnt vmcnt(0)")
    a.label("L_c4")
    a.stampw(8)
    a("s_barrier")
    a.stampw(13)
    otouch()
    for l in oloads[:n1]: a(l)
    for x in wo_b: a(x)
    project(1, n1)
    a("s_waitcnt lgkmcnt(0)")
    for t in range(5):
        for q in range(4): a(f"v_add_f32 v{FA+4*t+q}, v{FA+4*t+q}, v{OF+4*t+q}")
        a(f"v_cvt_pk_bf16_f32 v{FA+4*t}, v{FA+4*t}, v{FA+4*t+1}"); a(f"v_cvt_pk_bf16_f32 v{FA+4*t+1}, v{FA+4*t+2}, v{FA+4*t+3}")
        a(f"ds_write_b64 v3, {vr(FA+4*t,2)} offset:{32*t}")
    a("s_waitcnt lgkmcnt(0)")
    for u in range(3): a(f"ds_read_b128 {vr(OF+4*u,4)}, v11 offset:{1024*u}")
    for u in range(3):
        a(f"s_waitcnt lgkmcnt({2-u})")
        a(f"buffer_store_dwordx4 {vr(OF+4*u,4)}, v{8+u}, s[{rOUT}:{rOUT+3}], s{sOUT} offen offset:{1024*u} {['', 'sc1', 'nt', 'sc0 sc1'][outfl]}")
    a.label("L_fin")
    if diag == 4:
        a.stampw(10); a("s_waitcnt vmcnt(0)"); a.stampw(11); a("s_waitcnt lgkmcnt(0)")
        a(f"s_cmp_lt_u32 s{sJR}, {plo}"); a("s_cbranch_scc1 L_pe"); a(f"s_cmp_ge_u32 s{sJR}, {phi}"); a("s_cbranch_scc1 L_pe")
        a(f"s_cmp_lt_u32 s{sWV}, {pw0}"); a("s_cbranch_scc1 L_pe"); a(f"s_cmp_ge_u32 s{sWV}, {pw1}"); a("s_cbranch_scc1 L_pe")
        a("s_sub_u32 s74, s74, s72"); a("s_min_u32 s74, s74, 5000"); a("s_lshl_b32 s74, s74, 2"); a("s_add_u32 s74, s74, 4000")
        a.label("L_pr"); a("s_memrealtime s[76:77]"); a("s_waitcnt lgkmcnt(0)"); a("s_sub_u32 s76, s76, s72"); a("s_cmp_lt_u32 s76, s74"); a("s_cbranch_scc1 L_pr")
        a.label("L_pe")
    elif diag:
        if not cut: a.stampw(10)
        a("s_waitcnt vmcnt(0)")
        a.stampw(11)
        a(f"s_lshl3_add_u32 s3, s2, s{sWV}"); a("s_lshl_b32 s3, s3, 6"); a(f"s_add_u32 s3, s3, {WS_DIAG}")
        a("s_mov_b64 exec, 1")
        for i in range(14):
            a(f"v_mov_b32 v8, s{72+2*i}"); a(f"buffer_store_dword v8, off, {WS}, s3 offset:{4*i}")
    a("s_endpgm")

    a.label("L_oretry")
    a.poll(oloads, range(OF, OF+40), 13, 0)
    a(f"s_cmp_gt_u32 s3, {SPIN}"); a(f"s_cselect_b32 s{sSENT}, 1, s{sSENT}")
    for g_ in range(9): a(f"s_cmp_eq_u32 s63, {g_}"); a(f"s_cbranch_scc1 L_og{g_}")
    a("s_branch L_og9")
    a.label("L_y0")
    a("s_cmp_eq_u32 s61, 2"); a("s_cselect_b32 s60, 20480, 0"); a(f"s_cselect_b32 s{sK1}, s{sK2}, s{sK1}")
    a(f"s_and_b32 s3, s{sJ}, 7"); a("s_mul_i32 s3, s3, 2560"); a("s_add_u32 s60, s60, s3"); a(f"s_add_u32 s60, s60, {WS_YP}")
    a("v_and_b32 v15, 7, v0"); a("v_lshlrev_b32 v15, 4, v15"); a("v_and_b32 v13, 48, v0"); a("v_lshl_add_u32 v15, v13, 3, v15")
    for l in yloads: a(l)
    for r in range(0, 20, 2): a(f"v_mov_b64 {vr(FA+r,2)}, 0")
    a("s_branch L_y1")
    a.label("L_y2")
    a.recheck(yloads, range(OF, OF+20), 13)
    a(f"s_and_b32 s53, s{sK1}, 0xffff0000"); a("s_cmp_lt_i32 s53, 0"); a("s_mov_b32 s3, 0xffff0000"); a("s_cselect_b32 s3, 0x80000000, s3"); a("s_xor_b32 s53, s53, s3")
    a(f"v_mov_b32 v12, {LOG2E|0x80000000:#x}"); a("v_mul_f32 v12, s53, v12"); a("v_exp_f32 v12, v12"); a("v_add_f32 v12, 1.0, v12"); a("v_rcp_f32 v12, v12")
    a(f"s_andn2_b32 s3, 15, s{sK1}"); a("v_and_b32 v13, 15, v0"); a("v_cmp_eq_u32 vcc, s3, v13")
    a("v_cvt_pk_bf16_f32 v12, v12, v12"); a("v_and_b32 v12, 0xffff0000, v12")
    for ctl in ("quad_perm:[1,0,3,2]", "quad_perm:[2,3,0,1]", "row_half_mirror"):
        for q in range(20): a(f"v_add_f32_dpp v{OF+q}, v{OF+q}, v{OF+q} {ctl} row_mask:0xf bank_mask:0xf")
    a("s_mov_b64 exec, vcc")
    for q in range(0, 20, 2): a(f"v_pk_mul_f32 {vr(FA+q,2)}, {vr(OF+q,2)}, v[12:13] op_sel_hi:[1,0]")
    a("s_mov_b64 exec, -1")
    a("s_cmp_eq_u32 s61, 3"); a("s_cbranch_scc0 L_y3")
    a("s_mov_b32 s61, 2"); a(f"s_mov_b32 s{sK1}, s{sK2}"); a("s_add_u32 s60, s60, 20480"); a(f"v_mov_b32 v{OF}, s{sSENT}"); a("s_branch L_y2")
    a.label("L_y4")
    for x in resfma(RT): a(x)
    for q in range(0, 20, 2): a(f"v_pk_add_f32 {vr(FA+q,2)}, {vr(FA+q,2)}, {vr(RT+q,2)}")
    a("s_branch L_y5")
    a.label("L_c7")
    a("v_lshlrev_b32 v4, 9, v0")
    if po == 1: a.cnt_watch(2, 4, f"s{sOHP}", f"{SENT + 16:#x}", OF + 37, [wo_a[:osam], wo_a[osam:(osam+50)//2], wo_a[(osam+50)//2:]], True)
    else:
        for x in wo_a[:osam]: a(x)
        a(f"v_mov_b32 v12, {SENT + 16:#x}"); a("s_mov_b64 exec, 3"); a("v_mov_b32 v12, 0"); a(f"buffer_atomic_or v12, v4, {WS}, s{sOHP} offen sc0 sc1"); a("s_mov_b64 exec, -1")
        for x in wo_a[osam:]: a(x)
        a("s_waitcnt vmcnt(0)"); a(f"v_cmp_ne_u32 vcc, {SENT + 16:#x}, v12"); a("s_cbranch_vccz L_c4")
        a.cnt_poll(2, 4, f"s{sOHP}", f"{SENT + 16:#x}", 12)
    a("s_branch L_c4")
    a.label("L_kagain")
    a("s_add_u32 s53, s53, 1"); a(f"s_cmp_gt_u32 s53, {SPIN}"); a("s_cbranch_scc0 L_kfull"); a("s_branch L_kred")
    a.label("L_qlate")
    a.poll([fload], [253], OT, 0)
    for l in qloads: a(l)
    a("s_waitcnt vmcnt(0)"); a("s_branch L_phi")

    a.label("L_qaddr")
    a(f"s_and_b32 s3, s{sX}, 1"); a("s_lshl1_add_u32 s3, s3, s57"); a("s_sub_u32 s3, s3, 4"); a("s_mul_i32 s58, s3, 655360")
    a("s_lshl1_add_u32 s3, s54, s61"); a("s_mul_i32 s3, s3, 2560"); a("s_add_u32 s58, s58, s3"); a(f"s_add_u32 s58, s58, {WS_Q}")
    a("s_mul_i32 s3, s60, 163840"); a("s_sub_u32 s62, 491520, s3")
    a("v_mov_b32 v12, s3"); a("v_mov_b32 v13, s62"); a("v_cmp_gt_u32 vcc, 32, v0")
    a("s_add_u32 s59, s58, s62"); a("s_add_u32 s62, s58, s3")
    a("v_and_b32 v7, 1, v3"); a("v_mul_u32_u24 v7, 81920, v7"); a("v_cndmask_b32 v12, v13, v12, vcc")
    a("v_lshrrev_b32 v14, 5, v0"); a("v_lshl_add_u32 v14, v14, 9, v7"); a(f"v_lshl_add_u32 v{E0}, v6, 4, v14")
    a("v_add_u32 v12, v12, v7"); a(f"v_lshl_add_u32 v{E1}, v6, 3, v12"); a(f"v_mov_b32 v{E2}, {L_KVR}")
    a(f"v_mov_b64 {vr(KP-1,2)}, 0"); a(f"v_mov_b32 v{KP+1}, 0")
    a(f"s_cmp_eq_u32 s{sJR}, 16"); a("s_cbranch_scc1 L_qaret")
    a("s_waitcnt vmcnt(0)"); a("s_branch L_qaret")
    a.label("L_qepi")
    a(f"ds_read_b32 v{E3}, v{E2}")
    for n, m in enumerate((2, 3, 0, 1)):
        A = ACC + 20*m; T = 96 + 12*m
        cv = [f"v_cvt_pk_bf16_f32 v{T+q}, v{A+2*q}, v{A+2*q+1}" for q in range(10)]
        if n < 3: weave(aug((3, 0, 1)[n]), ([""]*2 if n == 0 else []) + cv, 2)
        else:
            for x in cv: a(x)
        if n == 0: a("s_waitcnt lgkmcnt(0)"); a(f"v_readfirstlane_b32 s3, v{E3}")
        for q in (0, 1, 4, 5): a(f"v_permlane16_swap_b32 v{T+q}, v{T+q+2}")
        if n == 0: a("s_cmp_eq_u32 s3, 0")
        a(f"s_cbranch_scc1 L_qs{m}")
        for fl in ("sc1", ""):
            a(f"buffer_store_dwordx4 {vr(T,4)}, v{E0}, {WS}, s62 offen offset:{(m>>1)*1280+(m&1)*256} {fl}")
            a(f"buffer_store_dwordx4 {vr(T+4,4)}, v{E0}, {WS}, s59 offen offset:{(m>>1)*1280+(m&1)*256} {fl}")
            a(f"buffer_store_dwordx2 {vr(T+8,2)}, v{E1}, {WS}, s58 offen offset:{1024+(m>>1)*1280+(m&1)*128} {fl}")
            if fl: a(f"s_branch L_qe{m}"); a.label(f"L_qs{m}")
        a.label(f"L_qe{m}")
    a.stampw(3)
    for x in oareads: a(x)
    a("s_waitcnt vmcnt(0) lgkmcnt(0)"); a("s_barrier")
    a.label("L_ophase")
    if qd: a.stamp(6, True)
    a("v_lshlrev_b32 v252, 10, v0"); a("s_mov_b64 exec, 3")
    a.poll([f"buffer_load_dword v253, v252, {WS}, s{sFQ} offen sc1"], [253], OT, 0)
    a("s_mov_b64 exec, -1")
    if qd: a.stamp(7, True)
    for l in qloads: a(l)
    a(f"s_add_u32 s3, s{sQA}, 10240")
    a(f"buffer_load_dwordx4 {vr(QF2,4)}, v7, {WS}, s3 offen sc1"); a(f"buffer_load_dwordx2 {vr(QF2+4,2)}, v1, {WS}, s3 offen offset:1024 sc1")
    a(f"buffer_load_dword v130, v255, {WS}, 0 offen offset:1024 sc1")
    gather_sgprs()
    a("s_waitcnt vmcnt(0)")
    if qd: a.stamp(8, True)
    for P, Q_ in ((96, QF), (P0, QF2)):
        a(f"v_mfma_f32_32x32x16_bf16 {vr(P,16)}, {vr(OA,4)}, {vr(Q_,4)}, 0")
        a(f"v_mfma_f32_32x32x8_bf16 {vr(P,16)}, {vr(OA+8,2)}, {vr(Q_+4,2)}, {vr(P,16)}")
        a(f"v_mfma_f32_32x32x16_bf16 {vr(P+16,16)}, {vr(OA+4,4)}, {vr(Q_,4)}, 0")
        a(f"v_mfma_f32_32x32x8_bf16 {vr(P+16,16)}, {vr(OA+10,2)}, {vr(Q_+4,2)}, {vr(P+16,16)}")
    a(f"s_cmp_lt_u32 s{sWV}, 4"); a("s_cbranch_scc1 L_op1")
    wo_round(0); wo_round(1)
    a.label("L_op1")
    a(f"v_mov_b32 v128, v{OT+2}"); qscale(128); qscale(130)
    sa = softmax_ops(list(range(96, 116)), PHQ2, 128, OT); sb = softmax_ops(list(range(P0, P0+20)), PHQ, 130, OT)
    for x in sa[:11] + sb[:11] + sa[11:]: a(x)
    a.stampw(4)
    a(f"s_cmp_lt_u32 s{sWV}, 4"); a("s_cbranch_scc1 L_op2")
    wo_round(2); wo_round(3)
    a.label("L_op2")
    for x in sb[11:]: a(x)
    a.stampw(5)
    a(f"s_cmp_lt_u32 s{sWV}, 4"); a("s_cbranch_scc0 L_op3")
    a(tload); a("s_branch L_kvwait")
    a.label("L_op3")
    ksample = lambda r: f"s_mov_b64 exec, 1\nv_mov_b32 v{r}, 0\nbuffer_atomic_or v{r}, v0, {WS}, s{sKHP} offen sc0 sc1\ns_mov_b64 exec, -1"
    a(f"s_cmp_eq_u32 s{sWV}, 7"); a("s_cbranch_scc1 L_op4")
    if ql: wo_last()
    a("s_branch L_kvwait")
    a.label("L_op4")
    if pp: a(ksample(18))
    if ql: wo_round(4)
    if pp: a(ksample(19))
    a.label("L_phix")
    a.cnt_watch(1, 0, f"s{sKHP}", f"{SENT + 16:#x}", 18, [None, None, []] if pp else [[], [], []], pp)
    a("s_barrier")
    a(f"s_lshl_b32 s53, s{sX}, 7"); a(f"s_add_u32 s53, s53, {WS_FH}"); a("v_lshlrev_b32 v16, 10, v0")
    a("v_lshrrev_b32 v14, 2, v0"); a("v_lshlrev_b32 v14, 9, v14"); a("v_lshl_add_u32 v14, v0, 7, v14"); a("v_mov_b32 v15, 1")
    a("s_cmp_lt_u32 s57, 4"); a("s_cselect_b64 s[54:55], 15, 0xff")
    a.cnt_poll(2, 16, "s53", f"{SENT + 32:#x}", 21)
    a("s_branch L_kred")
    for k, n in enumerate((hk0, hk1)):
        if pp:
            a.label(f"L_hk{n}")
            a("s_mov_b64 exec, 1"); a(f"v_mov_b32 v{18+k}, 0"); a(f"buffer_atomic_or v{18+k}, v0, {WS}, s{sKHP} offen sc0 sc1"); a("s_mov_b64 exec, -1"); a(f"s_branch L_hr{n}")
    a.label("L_o2")
    m1 = omfma(P1, PHQ2); m0 = omfma(P0, PHQ)
    for q in range(3): a(f"s_waitcnt lgkmcnt({2-q})"); a(m1[q])
    for x in m0: a(x)
    ofin(P1, 24)
    a(f"s_add_u32 s{sO0}, s{sO0}, 327680"); a(f"s_add_u32 s{sO1}, s{sO1}, 327680")
    a("s_branch L_o1")

    a.label("L_helper")
    for r, off in ((rWR, 40), (rG, 48), (rU, 56), (rDN, 64)): a(f"s_load_dwordx2 s[{r}:{r+1}], s[0:1], {off}")
    a.srdw(rWR, D*2)
    XR, CR, WR, FF = 16, 36, 56, 76
    a(f"s_sub_u32 s54, s{sJR}, 24"); a(f"s_lshl3_add_u32 s55, s{sX}, s54")
    a(f"s_lshl3_add_u32 s56, s55, s{sWV}")
    a("v_lshrrev_b32 v3, 4, v0"); a("v_and_b32 v4, 15, v0"); a("v_lshlrev_b32 v4, 4, v4")
    a("s_lshl_b32 s3, s56, 2"); a("v_add_u32 v5, s3, v3"); a("s_movk_i32 s3, 1280"); a("v_mad_u32_u24 v6, v5, s3, v4")
    a(f"s_lshr_b32 s57, s{sX}, 1"); a(f"s_and_b32 s58, s{sX}, 1")
    a("s_lshl3_add_u32 s59, s57, s54"); a("s_lshr_b32 s60, s59, 1"); a("s_and_b32 s59, s59, 1")
    a("s_mul_i32 s3, s60, 52"); a("s_lshr_b32 s3, s3, 8"); a("s_add_u32 s3, s3, s58"); a("s_mul_i32 s3, s3, 640"); a("s_lshl_b32 s61, s60, 7"); a("s_add_u32 s61, s61, s3")
    a(f"s_lshr_b32 s3, s{sWV}, 2"); a("s_lshl1_add_u32 s3, s3, s59"); a(f"s_and_b32 s53, s{sWV}, 3"); a("s_lshl2_add_u32 s3, s3, s53"); a("s_mul_i32 s3, s3, 30720"); a("s_add_u32 s3, s3, s61")
    a("s_cmp_eq_u32 s60, 15"); a(f"s_cselect_b32 s3, {OOB:#x}, s3")
    a("v_lshrrev_b32 v7, 3, v0"); a("v_mul_u32_u24 v7, 3840, v7"); a("v_and_b32 v8, 7, v0"); a("v_lshl_add_u32 v7, v8, 4, v7"); a("v_add_u32 v7, s3, v7")
    a("s_waitcnt lgkmcnt(0)")
    if cut: a.stamp(3)
    hv = VM(a)
    def hld(o):
        i = int(o[1])
        if o[0] == "x": hv(f"buffer_load_dwordx4 {vr(XR+4*i,4)}, v6, s[{rX}:{rX+3}], 0 offen offset:{256*i}", "x")
        else: a(f"s_mov_b32 s62, {491520*i}"); hv(f"buffer_load_dwordx4 {vr(CR+4*i,4)}, v7, s[{rW}:{rW+3}], s62 offen", "c")
    first, later = [("x1 c1 | x2 | x3 x4 x0", "c2 c3 c4 c0"), ("x1 c1 | x2 c2 | x3 x4 x0", "c3 c4 c0"), ("x1 c1 | x2 c2 | x3 c3 | x4 c4 | x0 c0", ""), ("x1 x2 | x3 x4 x0", "c1 c2 c3 c4 c0")][hord]
    later = later.split()
    for o in first.split():
        if o == "|": a("s_barrier")
        else: hld(o)
    for i in range(5): hv(f"buffer_load_dwordx4 {vr(WR+4*i,4)}, v4, s[{rWR}:{rWR+3}], 0 offen offset:{256*i}", "wr")
    srds(); a.srdw(rG, D*F*2)
    a("v_lshlrev_b32 v2, 4, v0")
    for q in range(4): a(f"v_mov_b32 v{12+q}, s{sSENT}")
    a("s_mul_i32 s62, s56, 3072"); a(f"s_add_u32 s62, s62, {WS_CLR}")
    if noclr & 4: a(f"s_mov_b32 s62, {OOB:#x}")
    for i in range(3): hv(f"buffer_store_dwordx4 v[12:15], v2, {WS}, s62 offen offset:{1024*i} sc1", "clr")
    a("v_lshrrev_b32 v130, 3, v0"); a("v_mul_u32_u24 v130, 3072, v130"); a("v_lshl_add_u32 v130, v8, 4, v130")
    a(f"s_cmp_ge_u32 s{sWV}, 3"); a("s_cselect_b32 s64, 3, 0"); a(f"s_cselect_b64 s[{rG}:{rG+1}], s[{rU}:{rU+1}], s[{rG}:{rG+1}]")
    a(f"s_sub_u32 s65, s{sWV}, s64")
    a("s_mul_i32 s68, s54, 245760"); a(f"s_mul_i32 s3, s{sX}, 384"); a("s_add_u32 s68, s68, s3"); a("s_lshl_b32 s3, s65, 7"); a("s_add_u32 s68, s68, s3")
    a(f"s_mul_i32 s69, s{sWV}, 10240"); a("s_movk_i32 s70, 24576"); a("s_movk_i32 s71, 1024"); a("s_mov_b32 s67, -1")
    a(f"s_cmp_lt_u32 s{sWV}, 6"); a("s_cbranch_scc1 L_hsw")
    a(f"s_mov_b64 s[{rG}:{rG+1}], s[{rDN}:{rDN+1}]")
    a("v_mul_u32_u24 v130, 6554, v0"); a("v_lshrrev_b32 v130, 16, v130"); a("v_mul_u32_u24 v130, 1120, v130"); a("v_add_u32 v130, v130, v2")
    a(f"s_sub_u32 s3, 7, s{sWV}"); a(f"s_mul_i32 s69, s3, {960*(f0+f1)}"); a(f"s_add_u32 s69, s69, {L_DI}"); a(f"s_mul_i32 s3, s3, {7680*(f0+f1)}")
    a(f"s_mul_i32 s68, s{sX}, 245760"); a("s_add_u32 s68, s68, s3"); a("s_mul_i32 s3, s54, 160"); a("s_add_u32 s68, s68, s3")
    a("s_movk_i32 s70, 7680"); a("s_movk_i32 s71, 960"); a("s_mov_b32 s67, 0x0fffffff")
    a.label("L_hsw")
    def ffn_dma(n):
        if n == 0: return
        a("s_mov_b32 exec_hi, s67")
        for _ in range(n):
            a("s_mov_b32 m0, s69"); a("s_add_u32 s69, s69, s71")
            hv(f"buffer_load_dwordx4 v130, s[{rG}:{rG+3}], s68 offen {'nt' if fnt else ''} lds", "f")
            a("s_add_u32 s68, s68, s70")
        a("s_mov_b32 exec_hi, -1")
    def oclear():
        a("s_mul_i32 s66, s56, 5120"); a(f"s_add_u32 s66, s66, {WS_O}"); a("s_add_u32 s63, s66, 4096")
        for i in range(5): hv(f"buffer_store_dwordx4 v[12:15], v2, {WS}, s{66 if i < 4 else 63} offen offset:{1024*(i%4)} sc1", "oc")
    a.readyaddr(117)
    hv.wait("x")
    a.stampw(1)
    for o in later[:-2]: hld(o)
    for q in range(20):
        a(f"v_lshlrev_b32 v{FF+2*q}, 16, v{XR+q}"); a(f"v_and_b32 v{FF+2*q+1}, 0xffff0000, v{XR+q}")
    a(f"v_pk_add_f32 v[120:121], {vr(FF,2)}, {vr(FF+2,2)}"); a(f"v_pk_add_f32 v[122:123], {vr(FF+4,2)}, {vr(FF+6,2)}")
    for q in range(8, 40, 4):
        a(f"v_pk_add_f32 v[120:121], v[120:121], {vr(FF+q,2)}"); a(f"v_pk_add_f32 v[122:123], v[122:123], {vr(FF+q+2,2)}")
    a("v_pk_add_f32 v[120:121], v[120:121], v[122:123]"); a("v_add_f32 v120, v120, v121")
    a.rowsum16(120)
    a("v_mul_f32 v120, 0x3acccccd, v120")
    hv(a.readyload(118, 117), "rdy")
    for o in later[-2:]: hld(o)
    for q in range(20): a(f"v_pk_add_f32 {vr(FF+2*q,2)}, {vr(FF+2*q,2)}, v[120:121] op_sel_hi:[1,0] neg_lo:[0,1] neg_hi:[0,1]")
    a(f"v_pk_mul_f32 v[122:123], {vr(FF,2)}, {vr(FF,2)}"); a(f"v_pk_mul_f32 v[124:125], {vr(FF+2,2)}, {vr(FF+2,2)}")
    for q in range(4, 40, 4):
        a(f"v_pk_fma_f32 v[122:123], {vr(FF+q,2)}, {vr(FF+q,2)}, v[122:123]"); a(f"v_pk_fma_f32 v[124:125], {vr(FF+q+2,2)}, {vr(FF+q+2,2)}, v[124:125]")
    a("v_pk_add_f32 v[122:123], v[122:123], v[124:125]"); a("v_add_f32 v122, v122, v123")
    a.rowsum16(122)
    a("v_mul_f32 v122, 0x3acccccd, v122")
    a("v_cvt_pk_bf16_f32 v122, v122, v122"); a("v_and_b32 v122, 0xffff0000, v122"); a("v_add_f32 v122, 0x3727c5ac, v122")
    a("v_cvt_pk_bf16_f32 v122, v122, v122"); a("v_and_b32 v122, 0xffff0000, v122"); a("v_sqrt_f32 v122, v122")
    a("v_cvt_pk_bf16_f32 v126, v120, v122")
    a("v_and_b32 v122, 0xffff0000, v126"); a("v_rcp_f32 v124, v122"); a("v_lshlrev_b32 v121, 16, v126")
    a("v_sub_f32 v121, v120, v121"); a("v_mul_f32 v125, v121, v124")
    a("v_mov_b32 v128, 0"); a("v_mov_b32 v129, 0")
    for q in range(20): a(f"v_pk_fma_f32 {vr(FF+2*q,2)}, {vr(FF+2*q,2)}, v[124:125], v[124:125] op_sel:[0,0,1] op_sel_hi:[1,0,1]")
    for q in range(20): a(f"v_cvt_pk_bf16_f32 v{XR+q}, v{FF+2*q}, v{FF+2*q+1}")
    hv.wait("wr")
    for q in range(20): a(f"v_dot2c_f32_bf16 v{128+(q&1)}, v{XR+q}, v{WR+q}")
    a("v_add_f32 v128, v128, v129")
    a.rowsum16(128)
    a("v_cvt_pk_bf16_f32 v128, v128, v128"); a("v_ashrrev_i32 v129, 31, v128"); a("v_or_b32 v129, 0x80000000, v129"); a("v_xor_b32 v128, v128, v129")
    a("v_and_b32 v128, 0xffff0000, v128"); a("v_sub_u32 v129, 2047, v5"); a("v_or_b32 v127, v128, v129")
    a(f"s_lshl_b32 s3, s{sWV}, 5"); a(f"s_add_u32 s3, s3, {L_HM}"); a("v_lshl_add_u32 v129, v3, 3, s3")
    a("ds_write_b64 v129, v[126:127]")
    a(f"v_mov_b32 v1, {L_XN+512}"); a("v_mov_b64 v[120:121], 0"); a("ds_write_b64 v1, v[120:121] offset:16"); a("ds_write_b32 v1, v120 offset:24")
    hv.wait("clr", "rdy", lgkm=True)
    a.readycheck(118, 117)
    a("s_barrier")
    a(f"s_cmp_eq_u32 s{sWV}, 7"); a("s_cbranch_scc0 L_h2")
    a("s_setprio 1")
    a("v_and_b32 v129, 31, v0"); a(f"v_lshlrev_b32 v128, 3, v129"); a(f"v_add_u32 v128, {L_HM}, v128"); a("ds_read_b64 v[126:127], v128")
    a("s_lshl_b32 s63, s55, 7"); a(f"s_add_u32 s62, s63, {WS_SM}"); a(f"s_add_u32 s66, s63, {WS_C1}"); a("v_lshlrev_b32 v129, 2, v129"); a("v_mov_b32 v125, 0")
    a("s_getreg_b32 s3, hwreg(HW_REG_XCC_ID)"); a("v_mov_b32 v124, s3")
    a("s_waitcnt lgkmcnt(0)")
    a(f"buffer_store_dword v126, v129, {WS}, s62 offen sc1")
    a.top2(127, 125, 128, 62, 63)
    a("v_mov_b32 v122, s62"); a("v_mov_b32 v123, s63")
    a("s_mov_b64 exec, 1")
    a(f"buffer_store_dwordx3 v[122:124], off, {WS}, s66 sc1")
    a("s_mov_b64 exec, -1")
    a("s_and_b32 s3, s55, 3"); a("s_lshl_b32 s3, s3, 10")
    a.cnt_add(8, "s3", 126)
    a("s_waitcnt vmcnt(3)"); a("s_branch L_h2a")
    a.label("L_h2")
    a("s_waitcnt vmcnt(0)")
    a.label("L_h2a")
    a.stampw(2)
    ffn_dma(f0)
    a("s_mov_b32 s62, 0x00003f80"); a("s_mov_b32 s63, 0x3f800000")
    for r in range(0, 8, 2): a(f"v_mov_b64 {vr(FF+r,2)}, 0")
    for i in range(5):
        for q in range(4):
            a(f"v_dot2c_f32_bf16 v{FF+2*q}, s62, v{CR+4*i+q}"); a(f"v_dot2c_f32_bf16 v{FF+2*q+1}, s63, v{CR+4*i+q}")
    for q in range(4): a(f"v_permlane32_swap_b32 v{FF+q}, v{FF+q+4}")
    a(f"v_pk_add_f32 {vr(FF,2)}, {vr(FF,2)}, {vr(FF+4,2)}"); a(f"v_pk_add_f32 {vr(FF+2,2)}, {vr(FF+2,2)}, {vr(FF+6,2)}")
    for q in range(2): a(f"v_permlane16_swap_b32 v{FF+q}, v{FF+q+2}")
    a(f"v_pk_add_f32 {vr(FF,2)}, {vr(FF,2)}, {vr(FF+2,2)}")
    for q in range(2): a(f"v_add_f32_dpp v{FF+q}, v{FF+q}, v{FF+q} row_ror:8 row_mask:0xf bank_mask:0xf")
    a(f"s_lshl_b32 s3, s{sWV}, 8"); a(f"s_add_u32 s3, s3, {L_HM+256}"); a("v_lshl_add_u32 v129, v8, 5, s3"); a("v_lshl_add_u32 v129, v3, 3, v129")
    a(f"ds_write_b64 v129, {vr(FF,2)}")
    a("v_mov_b32 v39, v1")
    a("s_waitcnt lgkmcnt(0)"); a("s_barrier")
    a(f"s_cmp_eq_u32 s{sWV}, 0"); a("s_cbranch_scc0 L_h3")
    a("v_lshlrev_b32 v119, 2, v0"); a(f"v_add_u32 v128, {L_HM+256}, v119")
    for q in range(8): a(f"ds_read_b32 v{FF+q}, v128 offset:{256*q}")
    a("s_lshl_b32 s63, s61, 1"); a("s_mul_i32 s3, s59, 7680"); a("s_add_u32 s63, s63, s3"); a(f"s_add_u32 s63, s63, {WS_CS}")
    a("s_cmp_eq_u32 s60, 15"); a(f"s_cselect_b32 s63, {OOB:#x}, s63")
    a("s_waitcnt lgkmcnt(0)")
    a(f"v_pk_add_f32 {vr(FF,2)}, {vr(FF,2)}, {vr(FF+2,2)}"); a(f"v_pk_add_f32 {vr(FF+4,2)}, {vr(FF+4,2)}, {vr(FF+6,2)}")
    a(f"v_pk_add_f32 {vr(FF,2)}, {vr(FF,2)}, {vr(FF+4,2)}"); a(f"v_add_f32 v{FF}, v{FF}, v{FF+1}")
    a(f"v_and_b32 v{FF+1}, 0xffff0000, v{FF}"); a(f"v_sub_f32 v{FF}, v{FF}, v{FF+1}"); a(f"v_cvt_pk_bf16_f32 v{FF}, v{FF+1}, v{FF}")
    a(f"buffer_store_dword v{FF}, v119, {WS}, s63 offen sc1")
    a.label("L_h3")
    a("s_barrier")
    a(f"s_cmp_eq_u32 s{sWV}, 7"); a("s_cbranch_scc1 L_hroute")
    if p6:
        a(f"s_cmp_eq_u32 s{sWV}, 6"); a("s_cbranch_scc0 L_h3p"); a("s_setprio 1"); a.label("L_h3p")
    ffn_dma(10 - f0 - f1)
    a(f"s_cmp_eq_u32 s{sWV}, 6"); a("s_cbranch_scc0 L_h4")
    a("s_mov_b32 s53, 0")
    a.label("L_h4a"); ffn_dma(1); a("s_add_u32 s53, s53, 1"); a(f"s_cmp_lt_u32 s53, {22 - f0 - f1}"); a("s_cbranch_scc1 L_h4a")
    a.label("L_h4")
    if wt:
        a("s_mul_i32 s3, s56, 1600"); a("v_min_u32 v9, 12, v0"); a("v_lshlrev_b32 v9, 7, v9")
        a(f"buffer_load_dword v116, v9, s[{rWO}:{rWO+3}], s3 offen")
    oclear()
    a("s_or_b32 s3, s56, 7"); a("s_mul_i32 s3, s3, 5120"); a(f"s_lshl_b32 s53, s{sWV}, 10"); a("s_add_u32 s3, s3, s53"); a(f"s_add_u32 s3, s3, {WS_O}")
    a(f"s_cmp_lt_u32 s{sWV}, 5"); a(f"s_cselect_b32 s3, s3, {OOB:#x}")
    a(f"buffer_store_dwordx4 v[12:15], v2, {WS}, s3 offen sc1")
    if cut: a("s_branch L_fin")
    a("v_lshrrev_b32 v5, 5, v0"); a("v_bfe_u32 v4, v0, 2, 2"); a("v_lshl_add_u32 v6, v5, 3, v4"); a("v_and_b32 v11, 1, v0")
    a("v_bfe_u32 v9, v0, 4, 1"); a("v_and_b32 v131, 3, v0"); a("v_lshl_add_u32 v131, v9, 2, v131"); a("v_lshlrev_b32 v131, 3, v131")
    GB = 132; DG = 176
    a("v_and_b32 v26, 31, v0"); a("v_lshlrev_b32 v36, 2, v26"); a("s_movk_i32 s3, 768"); a("v_mad_u32_u24 v36, v5, s3, v36")
    a("s_mul_i32 s62, s55, 3072"); a("s_lshl_b32 s3, s64, 9"); a("s_add_u32 s62, s62, s3"); a("s_lshl_b32 s3, s65, 8"); a("s_add_u32 s62, s62, s3"); a(f"s_add_u32 s62, s62, {WS_GP}")
    a("s_mov_b32 s60, 0")
    wo_addr()
    a("v_mul_u32_u24 v10, 160, v11"); a("v_lshl_add_u32 v10, v5, 4, v10"); a(f"v_add_u32 v10, {L_XN}, v10")
    a("v_cmp_gt_u32 vcc, 32, v0")
    a(f"s_cmp_lt_u32 s{sWV}, 6"); a("s_cbranch_scc0 L_h5a")
    a(f"s_mul_i32 s3, s{sWV}, 10240"); a("v_lshl_add_u32 v9, v6, 7, v131"); a("v_add_u32 v9, s3, v9")
    a("s_waitcnt vmcnt(6)")
    for s_ in range(5):
        for nt in range(2):
            for j in range(2): a(f"ds_read_b64_tr_b16 {vr(GB+8*s_+4*nt+2*j,2)}, v9 offset:{2048*s_+512*j+64*nt}")
    a.label("L_h5a")
    def ldspoll(off, n):
        top = a.newlab("L_lp"); out = a.newlab("L_lo")
        a("s_mov_b32 s53, 0")
        a.label(top)
        a(f"ds_read_b32 v9, v39 offset:{off}"); a("s_add_u32 s53, s53, 1"); a(f"s_cmp_gt_u32 s53, {64*SPIN}"); a(f"s_cbranch_scc1 {out}")
        a("s_waitcnt lgkmcnt(0)"); a("v_readfirstlane_b32 s3, v9"); a(f"s_cmp_lt_u32 s3, {n}"); a(f"s_cbranch_scc1 {top}")
        a.label(out)
    a("s_waitcnt vmcnt(0) lgkmcnt(0)")
    a("v_mov_b32 v9, 1"); a("s_mov_b64 exec, 1"); a("ds_add_u32 v39, v9 offset:24"); a("s_mov_b64 exec, -1")
    a.stampw(12)
    a(f"s_cmp_eq_u32 s{sWV}, 6"); a("s_cbranch_scc1 L_hbulk")
    a("v_and_b32 v9, 15, v0"); a("v_lshlrev_b32 v37, 3, v9"); a("v_mul_u32_u24 v38, 768, v3"); a("v_add_u32 v37, v37, v38")
    a("v_bfe_u32 v38, v0, 4, 1"); a("v_mul_u32_u24 v38, 384, v38"); a("v_lshl_add_u32 v38, v9, 2, v38"); a("v_lshl_add_u32 v38, v5, 1, v38")
    a(f"s_lshl_b32 s3, s{sWV}, 6"); a(f"s_add_u32 s3, s3, {L_HB}"); a("v_add_u32 v38, s3, v38")
    a(f"s_mul_i32 s66, s{sX}, 24576"); a(f"s_lshl_b32 s3, s{sWV}, 7"); a("s_add_u32 s66, s66, s3"); a(f"s_add_u32 s66, s66, {WS_GP}")
    gl = ["s_mov_b32 s63, s66"]
    for p in range(8):
        gl.append(f"buffer_load_dwordx2 {vr(FF+2*p,2)}, v37, {WS}, s63 offen offset:{3072*(p&1)} sc1")
        if p & 1 and p < 7: gl.append("s_add_u32 s63, s63, 6144")
    for x in gl: a(x)
    ldspoll(16, 1)
    a.stampw(3)
    a("ds_read_b96 v[122:124], v39")
    for s_ in range(5): a(f"ds_read_b128 {vr(XR+4*s_,4)}, v10 offset:{32*s_}")
    for s_ in range(5):
        a(f"s_waitcnt lgkmcnt({4-s_})")
        for nt in range(2): a(f"v_mfma_f32_32x32x16_bf16 {vr(DG+16*nt,16)}, {vr(XR+4*s_,4)}, {vr(GB+8*s_+4*nt,4)}, {vr(DG+16*nt,16) if s_ else 0}")
    a("v_readfirstlane_b32 s53, v124")
    for nt in range(2): a(f"v_cndmask_b32 v{120+nt}, v{DG+16*nt+1}, v{DG+16*nt}, vcc")
    a("s_cmp_eq_u32 s53, 0"); a("s_cbranch_scc1 L_h7")
    for nt in range(2): a(f"buffer_store_dword v{120+nt}, v36, {WS}, s62 offen offset:{128*nt} sc1")
    a("s_branch L_h8")
    a.label("L_h7")
    for nt in range(2): a(f"buffer_store_dword v{120+nt}, v36, {WS}, s62 offen offset:{128*nt}")
    a.label("L_h8")
    a.stampw(4)
    a("s_waitcnt vmcnt(0)")
    a.poll(gl, range(FF, FF+16), 10, 0)
    for q in range(4): a(f"v_pk_add_f32 {vr(FF+2*q,2)}, {vr(FF+2*q,2)}, {vr(FF+2*q+8,2)}")
    for q in range(2): a(f"v_pk_add_f32 {vr(FF+2*q,2)}, {vr(FF+2*q,2)}, {vr(FF+2*q+4,2)}")
    a(f"v_pk_add_f32 {vr(FF,2)}, {vr(FF,2)}, {vr(FF+2,2)}")
    a(f"v_permlane32_swap_b32 v{FF}, v{FF+1}")
    a(f"v_cvt_pk_bf16_f32 v120, v{FF}, v{FF+1}"); a("v_lshlrev_b32 v121, 16, v120"); a("v_and_b32 v120, 0xffff0000, v120")
    a(f"v_mul_f32 v119, {LOG2E|0x80000000:#x}, v121"); a("v_exp_f32 v119, v119"); a("v_add_f32 v119, 1.0, v119"); a("v_rcp_f32 v119, v119")
    a("v_mul_f32 v121, v121, v119"); a("v_cvt_pk_bf16_f32 v121, v121, v121"); a("v_and_b32 v121, 0xffff0000, v121")
    a("v_mul_f32 v121, v121, v120"); a("v_cvt_pk_bf16_f32 v121, v121, v121")
    a("ds_write_b16 v38, v121")
    a("v_mov_b32 v9, 1"); a("s_mov_b64 exec, 1"); a("ds_add_u32 v39, v9 offset:20"); a("s_mov_b64 exec, -1")
    a(f"s_cmp_lt_u32 s{sWV}, 5"); a("s_cbranch_scc0 L_h13")
    ldspoll(24, 7)
    a("v_lshl_add_u32 v8, v3, 3, v4"); a("v_mul_u32_u24 v8, 160, v8"); a("v_and_b32 v10, 3, v0"); a("v_lshl_add_u32 v8, v10, 3, v8")
    a(f"s_lshl_b32 s3, s{sWV}, 5"); a(f"s_add_u32 s3, s3, {L_DI}"); a("v_add_u32 v8, s3, v8")
    for s_ in range(6):
        for j in range(2): a(f"ds_read_b64_tr_b16 {vr(GB+4*s_+2*j,2)}, v8 offset:{5120*s_+640*j}")
    a("v_mul_u32_u24 v10, 384, v11"); a("v_lshl_add_u32 v10, v3, 4, v10"); a(f"v_add_u32 v10, {L_HB}, v10")
    ldspoll(20, 6)
    a.stampw(5)
    for s_ in range(6):
        a(f"ds_read_b128 {vr(40+4*s_,4)}, v10 offset:{64*s_}")
    a("v_and_b32 v9, 3, v0"); a("v_lshlrev_b32 v9, 2, v9"); a("v_lshl_add_u32 v9, v4, 7, v9"); a("s_movk_i32 s3, 20480"); a("v_mad_u32_u24 v9, v3, s3, v9"); a("v_cmp_gt_u32 vcc, 16, v0")
    a(f"s_lshl_b32 s62, s{sX}, 4"); a("s_mul_i32 s3, s54, 2560"); a("s_add_u32 s62, s62, s3"); a(f"s_lshl_b32 s3, s{sWV}, 9"); a("s_add_u32 s62, s62, s3"); a(f"s_add_u32 s62, s62, {WS_YP}")
    a("s_waitcnt lgkmcnt(0)")
    for s_ in range(6): a(f"v_mfma_f32_16x16x32_bf16 {vr(DG,4)}, {vr(40+4*s_,4)}, {vr(GB+4*s_,4)}, {vr(DG,4) if s_ else 0}")
    a(f"v_cndmask_b32 v120, v{DG+1}, v{DG}, vcc")
    a("s_mov_b32 exec_hi, 0"); a(f"buffer_store_dword v120, v9, {WS}, s62 offen sc1"); a("s_mov_b32 exec_hi, -1")
    a.stampw(6)
    a("s_branch L_h13")
    a.label("L_hroute")
    a(f"s_lshl_b32 s53, s{sX}, 7"); a("v_lshlrev_b32 v124, 10, v0")
    a.cnt_poll(4, 124, "s53", f"{SENT + 16:#x}", 125)
    a.stampw(3)
    a("v_lshlrev_b32 v126, 7, v0"); a(f"v_add_u32 v126, {WS_C1}, v126")
    a.poll([f"buffer_load_dwordx3 v[122:124], v126, {WS}, 0 offen sc1"], [122, 123, 124], 125, 0)
    a.stampw(4)
    a("s_getreg_b32 s3, hwreg(HW_REG_XCC_ID)"); a("v_cmp_ne_u32 vcc, s3, v124"); a(f"s_lshl_b32 s3, s{sX}, 3"); a("s_lshr_b64 s[62:63], vcc, s3"); a("s_and_b32 s62, s62, 0xff")
    if not loc: a("s_mov_b32 s62, 1")
    a.top2(122, 123, 125, sK1, sK2)
    a(f"v_mov_b32 v122, s{sK1}"); a(f"v_mov_b32 v123, s{sK2}"); a("v_mov_b32 v124, s62"); a("ds_write_b96 v39, v[122:124]")
    a("s_cmp_eq_u32 s55, 0"); a(f"s_mov_b32 s3, {WS_TOP}"); a(f"s_cselect_b32 s3, s3, {OOB:#x}")
    a("s_mov_b64 exec, 1"); a(f"buffer_store_dwordx2 v[122:123], off, {WS}, s3 sc1"); a("s_mov_b64 exec, 0xfffff")
    a("v_cmp_lt_u32 vcc, 9, v0"); a("v_cndmask_b32 v9, v122, v123, vcc"); a("v_and_b32 v9, 0x7ff, v9"); a("v_sub_u32 v9, 2047, v9")
    a("v_lshlrev_b32 v10, 2, v9"); a(f"v_add_u32 v10, {WS_SM}, v10"); a("v_mul_u32_u24 v9, 1280, v9"); a("v_add_u32 v9, v9, v2")
    a("v_subrev_u32 v11, 160, v9"); a("v_cndmask_b32 v9, v9, v11, vcc"); a("s_mul_i32 s53, s54, 160")
    a.stampw(5)
    a(f"buffer_load_dwordx4 {vr(XR,4)}, v9, s[{rX}:{rX+3}], s53 offen")
    a.poll([f"buffer_load_dword v126, v10, {WS}, 0 offen sc1"], [126], 125, 0)
    a.stampw(6)
    a("v_and_b32 v122, 0xffff0000, v126"); a("v_rcp_f32 v124, v122"); a("v_lshlrev_b32 v120, 16, v126")
    for q in range(4):
        a(f"v_lshlrev_b32 v{FF+2*q}, 16, v{XR+q}"); a(f"v_and_b32 v{FF+2*q+1}, 0xffff0000, v{XR+q}")
    for q in range(4): a(f"v_pk_add_f32 {vr(FF+2*q,2)}, {vr(FF+2*q,2)}, v[120:121] op_sel_hi:[1,0] neg_lo:[0,1] neg_hi:[0,1]")
    for q in range(4): a(f"v_pk_mul_f32 {vr(FF+2*q,2)}, {vr(FF+2*q,2)}, v[124:125] op_sel_hi:[1,0]")
    for q in range(4): a(f"v_cvt_pk_bf16_f32 v{XR+q}, v{FF+2*q}, v{FF+2*q+1}")
    a(f"v_add_u32 v9, {L_XN}, v2"); a(f"ds_write_b128 v9, {vr(XR,4)}")
    a("s_mov_b64 exec, -1")
    a("v_mov_b32 v9, 1"); a("ds_write_b32 v39, v9 offset:16")
    a("s_setprio 0")
    if cut: a("s_branch L_fin")
    ldspoll(20, 6)
    a(f"s_lshl_b32 s53, s{sX}, 7"); a(f"s_add_u32 s53, s53, {WS_FH}"); a("v_lshlrev_b32 v9, 10, v0")
    a.cnt_poll(2, 9, "s53", f"{SENT + 32:#x}", 10)
    a("s_branch L_h13")
    a.label("L_hbulk")
    ldspoll(24, 7)
    a("s_and_b32 s3, s55, 1"); a("s_lshl_b32 s3, s3, 10"); a(f"s_add_u32 s3, s3, {WS_FH}")
    a.cnt_add(8, "s3", 120)
    a(f"s_add_u32 s68, s68, {19*40960}"); a(f"s_mov_b32 s69, {19*5120}")
    a.label("L_hb1")
    for x in unit_list(rWO, "s68", 0): a(x)
    a(f"s_waitcnt vmcnt({thr})")
    a("s_sub_u32 s68, s68, 40960"); a("s_sub_u32 s69, s69, 5120"); a("s_cbranch_scc0 L_hb1")
    a("s_mov_b32 s69, 0")
    for x in unit_list(rX, "s67", L_RES): a(x)
    a("s_add_u32 s67, s67, 40960")
    for x in unit_list(rX, "s67", L_RES + 5120): a(x)
    a("s_setprio 0")
    f_setup(96, 1)
    a("s_waitcnt vmcnt(0)"); a("s_branch L_h15")
    a.label("L_h13")
    a(f"s_cmp_lt_u32 s{sWV}, 4"); a("s_cbranch_scc0 L_h14")
    f_setup(96, 0)
    a("s_branch L_h15")
    a.label("L_h14")
    f_setup(96, 1)
    a.label("L_h15")
    a("s_waitcnt lgkmcnt(0)"); a("s_barrier")
    a("ds_read_b64 v[122:123], v39"); a("s_waitcnt lgkmcnt(0)")
    a(f"v_readfirstlane_b32 s{sK1}, v122"); a(f"v_readfirstlane_b32 s{sK2}, v123")
    a.stampw(7)
    a("v_lshlrev_b32 v1, 3, v0"); a("s_mov_b32 s63, 0")
    a(f"s_cmp_lt_u32 s{sWV}, 4"); a("s_cbranch_scc1 L_c1"); a("s_branch L_c2h")
    a.label("L_end")
    body, nn = hazard.fix(a.text() + "    s_endpgm\n")
    return body, nn


HEADER = open(os.path.join(os.path.dirname(os.path.abspath(__file__)), "header.txt")).read()

def full(extra=0, **kw):
    body, nn = gen(**kw)
    t = HEADER + f"; @launch grid=(256,1,1) block=(512,1,1) lds={LDS_BYTES}\n"
    if extra:
        l0 = f"; @launch kernel={NAME} grid=(256,1,1) block=(512,1,1) lds={LDS_BYTES}\n"
        l1 = "; @launch kernel=nop_kernel grid=(256,1,1) block=(256,1,1) lds=0\n"
        t = HEADER + (l0 + l1*extra if extra > 0 else l1*(-extra) + l0)
        body += ".p2align 8\n.globl nop_kernel\n.type nop_kernel,@function\nnop_kernel:\n    s_endpgm\n"
    t += f'.amdgcn_target "amdgcn-amd-amdhsa--gfx950"\n.text\n.globl {NAME}\n.p2align 12\n.p2align 8\n.type {NAME},@function\n{NAME}:\n'
    t += body
    t += f""".section .rodata,"a"
.p2align 6
.amdhsa_kernel {NAME}
  .amdhsa_next_free_vgpr 256
  .amdhsa_next_free_sgpr 102
  .amdhsa_accum_offset 256
  .amdhsa_group_segment_fixed_size 0
  .amdhsa_kernarg_size 96
  .amdhsa_user_sgpr_count 2
  .amdhsa_user_sgpr_kernarg_segment_ptr 1
  .amdhsa_system_sgpr_workgroup_id_x 1
.end_amdhsa_kernel
"""
    if extra:
        t += """.p2align 6
.amdhsa_kernel nop_kernel
  .amdhsa_next_free_vgpr 8
  .amdhsa_next_free_sgpr 16
  .amdhsa_accum_offset 8
  .amdhsa_group_segment_fixed_size 0
  .amdhsa_kernarg_size 96
  .amdhsa_user_sgpr_count 2
  .amdhsa_user_sgpr_kernarg_segment_ptr 1
  .amdhsa_system_sgpr_workgroup_id_x 1
.end_amdhsa_kernel
"""
    return t

if __name__ == "__main__":
    out = sys.argv[1] if len(sys.argv) > 1 else "parallel_sum__linear_kernel_hedgehog__moe_arch_mod__prompt.s"
    kw = {}
    for x in sys.argv[2:]:
        k, v = x.split("="); kw[k] = int(v)
    open(out, "w").write(full(**kw))
```

```python
import sys, os
sys.path.insert(0, os.path.dirname(os.path.abspath(__file__)))
from asmlib import Asm, vr, sr
import hazard

NAME = "parallel_sum__linear_kernel_hedgehog__moe_arch_mod__prompt_kernel"
S, D, F = 2048, 640, 1536
SENT = 0xFF81FF81
OOB = 0x7FF00000
WS_SM = 0x2000
WS_CS = 0x4000
WS_C1 = 0x8000
WS_FQ = 0xB000
WS_AH = 0x0000
WS_FH = 0x1000
WS_KH = 0xD000
WS_OH = 0xE000
WS_XID = 0xA000
WS_TOP = 0xA800
WS_Q = 0x10000
WS_CLR = WS_Q + 2621440
WS_GP = WS_CLR
WS_YP = WS_GP + 196608
WS_KV = WS_YP + 40960
assert WS_KV + 917504 <= WS_CLR + 512*3072
WS_O = WS_CLR + 512*3072
WS_END = WS_O + 2621440
WS_DIAG = 0x1000000
WS_BYTES = 1 << 28
WREG = 5152
SLOT = 16384 + 4*WREG
RING = 40960
RING_END = RING + 3*SLOT
TRI = 86016
MISC = RING_END
L_PHIO = MISC
L_STAT = L_PHIO + 1024
L_CS = L_STAT + 2048
L_KVR = L_CS + 1920
L_HM = L_KVR + 2048
L_OA = L_HM
L_RES = 102400
L_XCH = L_RES + 10240
L_OUTS = L_XCH + 20480
L_DI = 112640
L_XN = L_STAT
L_HB = L_CS
LDS_BYTES = 163840
sWV, sX, sJ, sJR = 4, 5, 6, 7
rX, rW, rWS, rWO, rOUT, rDBG, rPHI, rWR, rG, rU, rDN = 8, 12, 16, 20, 24, 28, 32, 36, 40, 44, 48
sSENT = 52
LOG2E = 0x3FB8AA3B
SPIN = 200000


class K(Asm):
    def __init__(self, diag):
        super().__init__()
        self.diag = diag
    def srdw(self, r, n):
        self(f"s_mov_b32 s{r+2}, {n}"); self(f"s_mov_b32 s{r+3}, 0x20000")
    def capture(self, fn):
        keep = self.L; self.L = []; fn(); lines = [x.strip() for x in self.L]; self.L = keep
        rd = lambda x: x.startswith(("s_cselect", "s_cbranch_scc", "s_addc"))
        wr = lambda x: x.startswith("s_") and not x.startswith(("s_mov", "s_mul", "s_cselect", "s_cbranch", "s_waitcnt", "s_getreg", "s_branch", "s_sleep", "s_nop"))
        units = [[]]; pend = set(); masked = False
        for i, x in enumerate(lines):
            units[-1].append(x)
            if x.endswith(":"): pend.discard(x[:-1])
            if x.endswith(":") and any(y.endswith(" " + x[:-1]) for y in lines[i:]): pend.add("loop" + x)
            if x.startswith(("s_cbranch", "s_branch")):
                t = x.split()[1]
                if t + ":" in lines[i:]: pend.add(t)
                elif not any(y.endswith(" " + t) for y in lines[i+1:]): pend.discard("loop" + t + ":")
            if x.startswith("s_mov_b64 exec"): masked = not x.endswith("-1")
            live = next((rd(y) for y in lines[i+1:] if rd(y) or wr(y)), False)
            if not live and not pend and not masked: units.append([])
        return ["\n".join(u) for u in units if u]
    mute = ()
    def stamp(self, i, force=False):
        if i in self.mute and not force: return
        if self.diag == 4:
            if i in (0, self.probe): self(f"s_memrealtime s[{72+2*min(i,1)}:{73+2*min(i,1)}]")
            return
        if self.diag == 3: self(f"s_memtime s[{72+2*i}:{73+2*i}]")
        elif self.diag == 1 or (self.diag and i in (0, 11)): self(f"s_memrealtime s[{72+2*i}:{73+2*i}]")
    def stampw(self, i):
        if i in self.mute: return
        if self.diag == 4:
            if i == self.probe: self("s_memrealtime s[74:75]"); self("s_waitcnt lgkmcnt(0)")
            return
        if self.diag == 3: self(f"s_memtime s[{72+2*i}:{73+2*i}]"); self("s_waitcnt lgkmcnt(0)")
        elif self.diag == 1 or (self.diag and i in (0, 11)): self(f"s_memrealtime s[{72+2*i}:{73+2*i}]"); self("s_waitcnt lgkmcnt(0)")
    def maxtree(self, dst, regs):
        regs = list(regs)
        if len(regs) == 1: self(f"v_mov_b32 v{dst}, v{regs[0]}"); return
        if len(regs) == 2: self(f"v_max_u32 v{dst}, v{regs[0]}, v{regs[1]}"); return
        self(f"v_max3_u32 v{dst}, v{regs[0]}, v{regs[1]}, v{regs[2]}"); regs = regs[3:]
        while len(regs) >= 2:
            self(f"v_max3_u32 v{dst}, v{dst}, v{regs[0]}, v{regs[1]}"); regs = regs[2:]
        if regs: self(f"v_max_u32 v{dst}, v{dst}, v{regs[0]}")
    def poll(self, loads, regs, tmp, code, pre_issued=False, sleep=0):
        top = self.newlab("L_poll"); chk = self.newlab("L_chk"); out = self.newlab("L_pdone")
        self("s_mov_b32 s3, 0")
        if pre_issued: self(f"s_branch {chk}")
        self.label(top)
        self("s_add_u32 s3, s3, 1"); self(f"s_cmp_gt_u32 s3, {SPIN}"); self(f"s_cbranch_scc1 {out}")
        if sleep: self(f"s_sleep {sleep}")
        for l in loads: self(l)
        self.label(chk)
        self("s_waitcnt vmcnt(0)")
        self.maxtree(tmp, regs)
        self(f"v_cmp_eq_u32 vcc, s{sSENT}, v{tmp}")
        self(f"s_cbranch_vccnz {top}")
        self.label(out)
    def cnt_add(self, n, soff, t, stride=7):
        self(f"v_lshlrev_b32 v{t}, {stride}, v0"); self(f"v_mov_b32 v{t+1}, 1")
        self(f"s_mov_b64 exec, {(1 << n) - 1:#x}")
        self(f"buffer_atomic_add v{t+1}, v{t}, s[{rWS}:{rWS+3}], {soff} offen sc1")
        self("s_mov_b64 exec, -1")
    def cnt_poll(self, n, va, soff, ve, t, cmp="ne"):
        top = self.newlab("L_cp"); out = self.newlab("L_cdone")
        self(f"s_mov_b64 exec, {(1 << n) - 1:#x}"); self("s_mov_b32 s3, 0")
        self.label(top)
        self(f"v_mov_b32 v{t}, 0")
        self("s_add_u32 s3, s3, 1"); self(f"s_cmp_gt_u32 s3, {SPIN}"); self(f"s_cbranch_scc1 {out}")
        self(f"buffer_atomic_or v{t}, v{va}, s[{rWS}:{rWS+3}], {soff} offen sc0 sc1")
        self("s_waitcnt vmcnt(0)")
        self(f"v_cmp_{cmp}_u32 vcc, {ve}, v{t}"); self(f"s_cbranch_vccnz {top}")
        self.label(out)
        self("s_mov_b64 exec, -1")
    def cnt_watch(self, n, va, soff, ve, t, work, pipelined):
        mask = f"{(1 << n) - 1:#x}"
        sample = lambda r: [f"v_mov_b32 v{r}, 0", f"buffer_atomic_or v{r}, v{va}, s[{rWS}:{rWS+3}], {soff} offen sc0 sc1"]
        if not pipelined:
            for x in sum(work, []): self(x)
            self.cnt_poll(n, va, soff, ve, t); return
        top = self.newlab("L_cw"); out = self.newlab("L_cwdone")
        for k in range(3):
            if work[k] is None: continue
            for x in work[k]: self(x)
            self(f"s_mov_b64 exec, {mask}")
            for x in sample(t + k): self(x)
            if k < 2: self("s_mov_b64 exec, -1")
        self("s_mov_b32 s3, 0")
        self.label(top)
        for k in range(3):
            self("s_waitcnt vmcnt(2)"); self(f"v_cmp_ne_u32 vcc, {ve}, v{t+k}"); self(f"s_cbranch_vccz {out}")
            for x in sample(t + k): self(x)
        self("s_add_u32 s3, s3, 1"); self(f"s_cmp_gt_u32 s3, {SPIN}"); self(f"s_cbranch_scc0 {top}")
        self.label(out)
        self("s_mov_b64 exec, -1")
    def readyload(self, v, va): return f"buffer_load_dword v{v}, v{va}, s[{rDBG}:{rDBG+3}], 0 offen sc1"
    def readyaddr(self, va): self(f"v_and_b32 v{va}, 31, v0"); self(f"v_lshlrev_b32 v{va}, 3, v{va}")
    def readycheck(self, v, va):
        top = self.newlab("L_rp"); out = self.newlab("L_rdone")
        self("s_mov_b32 s3, 0")
        self.label(top)
        self(f"v_cmp_eq_u32 vcc, 0, v{v}"); self(f"s_cbranch_vccz {out}")
        self("s_add_u32 s3, s3, 1"); self(f"s_cmp_gt_u32 s3, {SPIN}"); self(f"s_cbranch_scc1 {out}")
        self("s_sleep 8")
        self(self.readyload(v, va)); self("s_waitcnt vmcnt(0)")
        self(f"s_branch {top}")
        self.label(out)
    def recheck(self, loads, regs, tmp, sleep=0):
        ok = self.newlab("L_ok")
        self.maxtree(tmp, regs); self(f"v_cmp_eq_u32 vcc, s{sSENT}, v{tmp}"); self(f"s_cbranch_vccz {ok}")
        self.poll(loads, regs, tmp, 0, sleep=sleep)
        self.label(ok)
    def wavemax_u32(self, v, t, sdst):
        self(f"v_max_u32_dpp v{t}, v{v}, v{v} row_ror:8 row_mask:0xf bank_mask:0xf")
        for k in (4, 2, 1): self(f"v_max_u32_dpp v{t}, v{t}, v{t} row_ror:{k} row_mask:0xf bank_mask:0xf")
        self(f"v_max_u32_dpp v{t}, v{t}, v{t} row_bcast:15 row_mask:0xa bank_mask:0xf")
        self(f"v_max_u32_dpp v{t}, v{t}, v{t} row_bcast:31 row_mask:0xc bank_mask:0xf")
        self(f"v_readlane_b32 s{sdst}, v{t}, 63")
    def top2(self, k1, k2, t, s1, s2):
        self.wavemax_u32(k1, t, s1)
        self(f"v_cmp_eq_u32 vcc, s{s1}, v{k1}")
        self(f"v_cndmask_b32 v{k1}, v{k1}, v{k2}, vcc")
        self.wavemax_u32(k1, t, s2)
    def rowsum16(self, v):
        for k in (8, 4, 2, 1): self(f"v_add_f32_dpp v{v}, v{v}, v{v} row_ror:{k} row_mask:0xf bank_mask:0xf")


def softmax_plain(P, O, t0, scale=None, npair=None):
    L = []
    a, b = t0, t0 + 1
    L.append(f"v_max3_f32 v{a}, v{P[0]}, v{P[1]}, v{P[2]}"); L.append(f"v_max3_f32 v{b}, v{P[3]}, v{P[4]}, v{P[5]}")
    for i in range(6, 18, 4):
        L.append(f"v_max3_f32 v{a}, v{a}, v{P[i]}, v{P[i+1]}"); L.append(f"v_max3_f32 v{b}, v{b}, v{P[i+2]}, v{P[i+3]}")
    L.append(f"v_max3_f32 v{a}, v{a}, v{P[18]}, v{P[19]}"); L.append(f"v_max_f32 v{a}, v{a}, v{b}")
    if scale is None:
        for i in range(20): L.append(f"v_sub_f32 v{P[i]}, v{P[i]}, v{a}")
    else:
        L.append(f"v_mul_f32 v{a}, v{scale}, v{a}")
        for i in range(20): L.append(f"v_fma_f32 v{P[i]}, v{P[i]}, v{scale}, -v{a}")
    for i in range(20): L.append(f"v_exp_f32 v{P[i]}, v{P[i]}")
    L.append(f"v_add_f32 v{a}, v{P[0]}, v{P[1]}"); L.append(f"v_add_f32 v{b}, v{P[2]}, v{P[3]}")
    for i in range(4, 20, 2): L.append(f"v_add_f32 v{a}, v{a}, v{P[i]}"); L.append(f"v_add_f32 v{b}, v{b}, v{P[i+1]}")
    L.append(f"v_add_f32 v{a}, v{a}, v{b}"); L.append(f"v_rcp_f32 v{a}, v{a}")
    if npair is not None: L.append(f"v_mul_f32 v{a}, v{a}, v{npair}")
    for i in range(20): L.append(f"v_mul_f32 v{P[i]}, v{P[i]}, v{a}")
    for i in range(0, 20, 2): L.append(f"v_cvt_pk_bf16_f32 v{O+i//2}, v{P[i]}, v{P[i+1]}")
    return L


def softmax_ops(P, O, cpair, t0, npair=None):
    L = []
    a, b = t0, t0 + 1
    L.append(f"v_max3_f32 v{a}, v{P[0]}, v{P[1]}, v{P[2]}"); L.append(f"v_max3_f32 v{b}, v{P[3]}, v{P[4]}, v{P[5]}")
    for i in range(6, 18, 4):
        L.append(f"v_max3_f32 v{a}, v{a}, v{P[i]}, v{P[i+1]}"); L.append(f"v_max3_f32 v{b}, v{b}, v{P[i+2]}, v{P[i+3]}")
    L.append(f"v_max3_f32 v{a}, v{a}, v{P[18]}, v{P[19]}"); L.append(f"v_max_f32 v{a}, v{a}, v{b}")
    L.append(f"v_mul_f32 v{cpair+1}, v{cpair}, v{a}")
    for i in range(0, 20, 2):
        L.append(f"v_pk_fma_f32 {vr(P[i],2)}, {vr(P[i],2)}, {vr(cpair,2)}, {vr(cpair,2)} op_sel:[0,0,1] op_sel_hi:[1,0,1] neg_lo:[0,0,1] neg_hi:[0,0,1]")
    for i in range(20): L.append(f"v_exp_f32 v{P[i]}, v{P[i]}")
    L.append(f"v_pk_add_f32 {vr(t0,2)}, {vr(P[0],2)}, {vr(P[2],2)}"); L.append(f"v_pk_add_f32 {vr(t0+2,2)}, {vr(P[4],2)}, {vr(P[6],2)}")
    for i in range(8, 20, 4):
        L.append(f"v_pk_add_f32 {vr(t0,2)}, {vr(t0,2)}, {vr(P[i],2)}"); L.append(f"v_pk_add_f32 {vr(t0+2,2)}, {vr(t0+2,2)}, {vr(P[i+2],2)}")
    L.append(f"v_pk_add_f32 {vr(t0,2)}, {vr(t0,2)}, {vr(t0+2,2)}")
    L.append(f"v_add_f32 v{a}, v{a}, v{b}"); L.append(f"v_rcp_f32 v{a}, v{a}")
    if npair is not None: L.append(f"v_mul_f32 v{a}, v{a}, v{npair}")
    for i in range(0, 20, 2): L.append(f"v_pk_mul_f32 {vr(P[i],2)}, {vr(P[i],2)}, {vr(t0,2)} op_sel_hi:[1,0]")
    for i in range(0, 20, 2): L.append(f"v_cvt_pk_bf16_f32 v{O+i//2}, v{P[i]}, v{P[i+1]}")
    return L


class VM:
    def __init__(self, a): self.a = a; self.ops = []
    def __call__(self, text, tag): self.a(text); self.ops.append(tag)
    def count(self, *tags, opt=False):
        last = max(i for i, t in enumerate(self.ops) if t in tags)
        return sum(1 for t in self.ops[last+1:] if opt or t != "opt")
    def wait(self, *tags, lgkm=False): self.a(f"s_waitcnt vmcnt({self.count(*tags)})" + (" lgkmcnt(0)" if lgkm else ""))


def gen(diag=False, touch=10, defer=8, rot=1, cpf=1, cut=0, noclr=0, outfl=0, f0=3, hord=1, fd=0, fnt=1, po=0, wt=0, tw=0, p6=0, ot=0, ramp=2, nowo=0, khe=5, ohe=1, loc=1, osam=0, qw=0, thr=30, qt=1, qd=0, kd=0, kno=0, kpk=1, lpr=0, fl=1, kvp=1, rev=1, wv=1, wrt=1, n0=4, n1=4, pp=0, hk0=60, hk1=82, probe=0, plo=0, phi=32, pw0=0, pw1=8, ql=0):
    f1 = 0
    a = K(diag); a.probe = probe; a.mute = (4, 5, 12, 6, 7, 8) if kd else (6, 7, 8, 13) if qd else (1, 2, 3, 4, 5, 6, 9) if fd else ()
    WS = f"s[{rWS}:{rWS+3}]"
    sK1, sK2 = 100, 101
    ACC = 16; SET = [96, 132]; XA = [168, 169]; MK, MV, EX = 170, 171, 172
    PA = 176; PX = 196; STAT = 208; AUG = 224
    E0, E1, E2, E3, E4 = 240, 241, 242, 243, 244
    KB, KA0, KA1, KP = 245, 247, 249, 251
    Pb = [96, 116]; PH = 156; CP = 234; TT = 236
    QF = 16; QF2 = 22; OA = 28; P0 = 40; P1 = 56; PHQ = 72; PHQ2 = 82; OT = 92; KL = 40
    FA = 16; OF = 36; WF = 76; WST = (176, 96)
    def lanefields():
        a("v_lshrrev_b32 v3, 4, v0"); a("v_bfe_u32 v4, v0, 2, 2"); a("v_and_b32 v5, 3, v0"); a("v_and_b32 v6, 15, v0")
    def kepi_addr(th, ch):
        a("v_and_b32 v7, 1, v0"); a("v_bfe_u32 v12, v0, 1, 1"); a("v_lshl_or_b32 v7, v12, 2, v7"); a("v_bfe_u32 v12, v0, 2, 1"); a("v_lshl_or_b32 v7, v12, 1, v7")
        a("v_lshlrev_b32 v7, 4, v7")
        a(f"s_lshl_b32 s3, {th}, 13"); a(f"s_add_u32 s3, s3, {TRI}"); a("v_lshl_add_u32 v7, v6, 7, v7"); a("v_add_u32 v7, s3, v7")
        a(f"s_lshl_b32 s58, {ch}, 15")
        a("v_lshrrev_b32 v12, 1, v3"); a("v_and_b32 v13, 1, v3")
        a("v_lshl_add_u32 v14, v12, 14, v7"); a("v_add_u32 v14, s58, v14")
        a("v_lshlrev_b32 v15, 5, v13"); a(f"v_xor_b32 v{E0}, v14, v15"); a(f"v_xor_b32 v{E1}, 16, v{E0}")
        a(f"v_xor_b32 v{E2}, 96, v14"); a(f"v_lshl_add_u32 v{E2}, v13, 3, v{E2}")
    def phi_addr(base):
        a("v_lshrrev_b32 v7, 1, v5")
        a("v_mul_u32_u24 v12, 640, v7"); a("v_lshl_add_u32 v13, v3, 2, v4"); a("v_mul_u32_u24 v13, 40, v13"); a(f"v_add3_u32 v12, v12, v13, {base}")
        a("v_mul_u32_u24 v13, 1440, v7"); a("v_mul_u32_u24 v14, 40, v4"); a(f"v_add3_u32 v13, v13, v14, {base}")
        a("v_bfe_u32 v7, v0, 3, 1"); a("v_add_u32 v14, -1, v7"); a("v_not_b32 v15, v14")
        a("v_cmp_eq_u32 vcc, v7, v3"); a("v_bfe_i32 v2, v0, 2, 1"); a("v_and_b32 v2, 0x80008000, v2"); a("v_cndmask_b32 v7, 0, -1, vcc")
    def phi_build():
        for T in range(5):
            a(f"ds_read_b64_tr_b16 {vr(PA+4*T,2)}, v12 offset:{160+8*T}"); a(f"ds_read_b64_tr_b16 {vr(PX+2*T,2)}, v13 offset:{8*T}")
        a("s_waitcnt lgkmcnt(0)")
        for T in range(5):
            for q in range(2):
                a(f"v_bitop3_b32 v{PA+4*T+2+q}, v{PA+4*T+q}, v2, v15 bitop3:0x28")
                a(f"v_bitop3_b32 v{PA+4*T+q}, v{PA+4*T+q}, v2, v14 bitop3:0x28")
                a(f"v_bitop3_b32 v{PX+2*T+q}, v{PX+2*T+q}, v2, v7 bitop3:0x28")
    def phi_mm(P, T):
        mm = [f"v_mfma_f32_16x16x32_bf16 {vr(P+4*u,4)}, {vr(PA+4*u,4)}, {vr(T,4)}, 0" for u in range(5)]
        return mm + [f"v_mfma_f32_16x16x16_bf16 {vr(P+4*u,4)}, {vr(PX+2*u,2)}, {vr(T+4,2)}, {vr(P+4*u,4)}" for u in range(5)]
    def ktile(m, P, packed, ins, k):
        if kno & 1: ins = [x for x in ins if "buffer" not in x]
        if kd: a.stamp((12, 6)[k], True)
        if packed: sm = [f"v_mov_b32 v{CP}, v{STAT+4*m+3}"] + softmax_ops(list(range(P, P+20)), PH, CP, TT, npair=STAT+4*m+2)
        else: sm = softmax_plain(list(range(P, P+20)), PH, TT, scale=STAT+4*m+3, npair=STAT+4*m+2)
        slots = [i for i, x in enumerate(sm) if x.startswith(("v_exp", "v_fma", "v_max3"))]
        at = {}
        for q, x in enumerate(ins): at.setdefault(slots[q*len(slots)//len(ins)], []).append(x)
        wr = {f"v{PH+3},": f"ds_write_b128 v{E0}, {vr(PH,4)} offset:{2048*m}", f"v{PH+7},": f"ds_write_b128 v{E1}, {vr(PH+4,4)} offset:{2048*m}", f"v{PH+9},": f"ds_write_b64 v{E2}, {vr(PH+8,2)} offset:{2048*m}"}
        for idx, x in enumerate(sm):
            a(x)
            for y in at.get(idx, []): a(y)
            if x.startswith("v_cvt_pk") and x.split()[1] in wr: a(wr[x.split()[1]])
    sHD, sT32, sQA, sFQ, sKVA, sO0, sO1, sHINT, sKHP, sF0, sF1, sF2, sOUT, sAUX, sOHP, sT16 = range(36, 52)
    def ohead(dst):
        a(f"s_lshr_b32 s{dst}, s{sJR}, 1"); a(f"s_sub_u32 s3, s{sJR}, 8"); a("s_cmp_lt_u32 s57, 4"); a(f"s_cselect_b32 s{dst}, s{dst}, s3")
        a(f"s_and_b32 s3, s{sX}, 1"); a(f"s_lshl4_add_u32 s{dst}, s3, s{dst}")
    def o_sgprs():
        ohead(sHD)
        a(f"s_and_b32 s3, s{sJR}, 1"); a("s_cmp_lt_u32 s57, 4"); a("s_cselect_b32 s3, s3, 0")
        a(f"s_and_b32 s{sT32}, s{sX}, 6"); a(f"s_add_u32 s{sT32}, s{sT32}, s3"); a(f"s_lshl3_add_u32 s{sT32}, s{sT32}, s{sWV}")
        a(f"s_lshl_b32 s3, s{sHD}, 6"); a(f"s_add_u32 s3, s3, s{sT32}"); a(f"s_mul_i32 s{sQA}, s3, 1280"); a(f"s_add_u32 s{sQA}, s{sQA}, {WS_Q}")
        a(f"s_and_b32 s{sFQ}, s{sT32}, 60"); a(f"s_lshr_b32 s3, s{sHD}, 3"); a(f"s_add_u32 s{sFQ}, s{sFQ}, s3"); a(f"s_lshl_b32 s{sFQ}, s{sFQ}, 7"); a(f"s_add_u32 s{sFQ}, s{sFQ}, {WS_FQ}")
        a(f"s_mul_i32 s{sKVA}, s{sHD}, 28672"); a(f"s_add_u32 s{sKVA}, s{sKVA}, {WS_KV}")
        a(f"s_mul_i32 s{sO0}, s{sT32}, 40960"); a(f"s_add_u32 s{sO0}, s{sO0}, {WS_O}"); a(f"s_lshl_b32 s3, s{sHD}, 7"); a(f"s_add_u32 s{sO1}, s{sO0}, s3"); a(f"s_add_u32 s{sO1}, s{sO1}, 16384")
        a(f"s_lshl2_add_u32 s{sO0}, s3, s{sO0}")
        a(f"s_and_b32 s3, s{sHD}, 28"); a(f"s_lshr_b32 s{sKHP}, s{sX}, 1"); a(f"s_add_u32 s3, s3, s{sKHP}"); a("s_lshl_b32 s3, s3, 7"); a(f"s_add_u32 s{sKHP}, s3, {WS_KH}")
    def o_vgprs(T):
        a(f"v_and_b32 v{T}, 31, v0"); a(f"v_lshlrev_b32 v1, 3, v{T}"); a(f"s_lshl_b32 s3, s{sT32}, 7"); a(f"s_add_u32 s3, s3, {WS_SM}"); a(f"v_lshl_add_u32 v255, v{T}, 2, s3"); a(f"v_lshrrev_b32 v{T+1}, 5, v0"); a(f"v_mov_b32 v{T+2}, {OOB:#x}")
        a(f"s_lshl_b32 s3, s{sWV}, 6"); a("v_add_u32 v14, s3, v0"); a("v_cmp_lt_u32 vcc, 419, v14"); a("v_lshlrev_b32 v14, 2, v14")
        a(f"v_min_u32 v{T}, 20, v{T}"); a(f"v_cndmask_b32 v15, v14, v{T+2}, vcc"); a(f"v_add_u32 v14, {L_KVR}, v14")
        a(f"v_mul_u32_u24 v{T+3}, 21, v{T+1}"); a(f"v_add_u32 v{T}, v{T}, v{T+3}"); a(f"s_mov_b32 s3, {L_KVR}")
        a(f"v_lshl_add_u32 v254, v{T}, 3, s3"); a(f"v_lshl_add_u32 v207, v{T}, 4, s3"); a("v_mov_b32 v253, 0")
        a("v_bfe_u32 v12, v0, 4, 1"); a("v_mul_u32_u24 v12, 20480, v12"); a(f"v_and_b32 v{T}, 15, v0"); a("v_cmp_gt_u32 vcc, 32, v0")
        a(f"v_lshl_add_u32 v13, v{T}, 3, v12"); a(f"v_lshl_add_u32 v12, v{T}, 4, v12"); a(f"v_lshl_add_u32 v12, v{T+1}, 8, v12"); a(f"v_cndmask_b32 v13, v{T+2}, v13, vcc")
    def f_setup(T, kh):
        a(f"s_lshr_b32 s3, s{sJ}, 3"); a(f"s_lshl3_add_u32 s{sOHP}, s{sX}, s3"); a(f"s_lshl_b32 s{sOHP}, s{sOHP}, 7"); a(f"s_add_u32 s{sOHP}, s{sOHP}, {WS_OH}")
        a(f"s_lshl2_add_u32 s3, s{sX}, s3"); a(f"s_and_b32 s53, s{sWV}, 3"); a(f"s_lshl2_add_u32 s{sT16}, s3, s53")
        a(f"s_mul_i32 s{sOUT}, s{sT16}, 20480"); a(f"s_add_u32 s{sF0}, s{sOUT}, {WS_O + 8192*kh}"); a(f"s_add_u32 s{sF1}, s{sF0}, 4096"); a(f"s_add_u32 s{sF2}, s{sOUT}, {WS_O + 16384 + 2048*kh}")
        a(f"s_and_b32 s3, s{sJ}, 7"); a("s_mul_i32 s3, s3, 160"); a(f"s_add_u32 s{sOUT}, s{sOUT}, s3")
        if not kh: a(f"s_lshl_b32 s{sAUX}, s{sT16}, 6"); a(f"s_add_u32 s{sAUX}, s{sAUX}, {WS_SM}")
        a("v_lshlrev_b32 v7, 4, v0"); a(f"v_lshrrev_b32 v{T}, 4, v0"); a(f"v_bfe_u32 v{T+1}, v0, 2, 2"); a(f"v_and_b32 v{T+2}, 3, v0")
        a(f"v_mul_u32_u24 v{T+1}, 160, v{T+1}"); a(f"v_lshl_add_u32 v{T+1}, v{T+2}, 3, v{T+1}")
        if kh: a(f"v_add_u32 v{T+1}, 51200, v{T+1}")
        a(f"v_lshrrev_b32 v{T+2}, 5, v0"); a(f"v_mul_u32_u24 v{T+2}, 3200, v{T+2}"); a(f"v_and_b32 v6, 1, v{T}"); a("v_mul_u32_u24 v6, 640, v6"); a(f"v_add3_u32 v6, v6, v{T+2}, v{T+1}")
        a(f"v_mul_u32_u24 v2, 3200, v{T}"); a(f"v_add_u32 v2, v2, v{T+1}")
        a("s_mul_i32 s3, s53, 2560"); a(f"s_add_u32 s3, s3, {L_OUTS if kh else L_RES}")
        a(f"v_and_b32 v{T+1}, 15, v0"); a(f"v_mul_u32_u24 v3, 160, v{T+1}"); a(f"v_lshl_add_u32 v3, v{T}, 3, v3"); a("v_add_u32 v3, s3, v3")
        if kh: a("v_add_u32 v11, s3, v7")
        else: a(f"v_lshlrev_b32 v4, 2, v{T+1}")
        a("s_mul_i32 s3, s53, 5120"); a(f"s_add_u32 s3, s3, {L_XCH}"); a("v_add_u32 v5, s3, v7")
        if kh:
            a(f"v_mul_u32_u24 v{T}, 6554, v0"); a("s_movk_i32 s3, 1120"); a("v_cmp_gt_u32 vcc, 32, v0")
            for u in range(3):
                if u: a(f"v_add_u32 v{T}, {64*6554}, v{T}")
                a(f"v_lshrrev_b32 v{T+1}, 16, v{T}"); a(f"v_mad_u32_u24 v{8+u}, v{T+1}, s3, v7")
            a(f"v_mov_b32 v{T}, {OOB:#x}"); a(f"v_cndmask_b32 v10, v{T}, v10, vcc")
    qloads = [f"buffer_load_dwordx4 {vr(QF,4)}, v7, {WS}, s{sQA} offen sc1", f"buffer_load_dwordx2 {vr(QF+4,2)}, v1, {WS}, s{sQA} offen offset:1024 sc1",
              f"buffer_load_dword v{OT+2}, v255, {WS}, 0 offen sc1"]
    fload = f"s_mov_b64 exec, 1\nbuffer_load_dword v253, off, {WS}, s{sFQ} sc1\ns_mov_b64 exec, -1"
    tload = f"s_mov_b32 s70, {WS_TOP}\nv_mov_b64 v[230:231], 0\ns_mov_b64 exec, 1\nbuffer_load_dwordx2 v[230:231], off, {WS}, s70 sc1\ns_mov_b64 exec, -1"
    oareads = [f"v_add_u32 v{OT}, {L_OA}, v7"] + [f"ds_read_b128 {vr(OA+4*i,4)}, v{OT} offset:{1024*i}" for i in range(3)]
    a("s_cmp_ge_u32 s2, 256"); a("s_cbranch_scc1 L_end")
    a.stamp(0)
    for r, off in ((rX, 0), (rW, 8), (rWS, 88), (rPHI, 16), (rWO, 24), (rOUT, 72), (rDBG, 80)):
        a(f"s_load_dwordx2 s[{r}:{r+1}], s[0:1], {off}")
    a("v_lshrrev_b32 v1, 6, v0"); a("v_and_b32 v0, 63, v0")
    a(f"s_lshr_b32 s{sJ}, s2, 3"); a(f"v_readfirstlane_b32 s{sWV}, v1")
    a(f"s_and_b32 s{sX}, s2, 7"); a(f"s_add_u32 s{sJR}, s{sJ}, 24"); a(f"s_and_b32 s{sJR}, s{sJR}, 31")
    if cpf:
        a(f"s_cmp_eq_u32 s{sWV}, 0"); a("s_cbranch_scc0 L_nopf")
        a("s_getpc_b64 s[96:97]"); a.label("L_pc")
        a("s_mov_b32 s98, L_end-L_pc"); a("s_mov_b32 s99, 0x20000")
        a(f"s_and_b32 s3, s{sJ}, 3"); a("s_lshl_b32 s3, s3, 13"); a("v_lshlrev_b32 v1, 7, v0")
        a("buffer_load_dword v255, v1, s[96:99], s3 offen")
        a.label("L_nopf")
    def srds():
        a.srdw(rWS, WS_BYTES); a.srdw(rPHI, 32*800); a.srdw(rWO, 0 if nowo else D*D*2); a.srdw(rOUT, S*D*2); a.srdw(rDBG, 256)
        a(f"s_mov_b32 s{sSENT}, {SENT:#x}")
    a.srdw(rX, S*D*2); a.srdw(rW, D*3*D*2)
    a(f"s_cmp_ge_u32 s{sJR}, 24"); a("s_cbranch_scc1 L_helper")
    a(f"s_lshr_b32 s54, s{sX}, 1"); a(f"s_and_b32 s3, s{sJR}, 3"); a("s_lshl2_add_u32 s54, s54, s3"); a(f"s_lshr_b32 s57, s{sJR}, 2")
    a(f"s_cmp_lt_u32 s{sWV}, 4"); a("s_cbranch_scc0 L_loader")
    a("s_setprio 3")
    a.srdw(rPHI, 32*800)
    ohead(59)
    a("s_lshl2_add_u32 s3, s3, s57"); a(f"s_and_b32 s60, s{sWV}, 1"); a("s_lshl1_add_u32 s3, s3, s60"); a("s_mul_i32 s58, s3, 1600")
    a(f"s_lshl_b32 s65, s{sWV}, 11"); a("s_mov_b32 m0, s65"); a("v_lshlrev_b32 v2, 4, v0"); a("v_lshlrev_b32 v3, 2, v0")
    a("s_mul_i32 s59, s59, 800"); a(f"s_lshl_b32 s3, s{sWV}, 8"); a("s_add_u32 s59, s59, s3")
    a("s_waitcnt lgkmcnt(0)")
    a(f"buffer_load_dwordx4 v2, s[{rPHI}:{rPHI+3}], s58 offen lds")
    a(f"buffer_load_dwordx4 v2, s[{rPHI}:{rPHI+3}], s58 offen offset:1024 lds")
    a(f"s_add_u32 m0, s3, {L_PHIO}")
    a(f"s_cmp_eq_u32 s{sJR}, 16")
    a(f"buffer_load_dword v3, s[{rPHI}:{rPHI+3}], s59 offen lds")
    a("s_cbranch_scc0 L_mfma")
    a.srdw(rWS, WS_BYTES)
    for q in range(4): a(f"v_mov_b32 v{12+q}, {SENT:#x}")
    a(f"s_lshl_b32 s3, s{sX}, 13"); a("s_add_u32 s3, s3, s65")
    for i in range(2): a(f"buffer_store_dwordx4 v[12:15], v2, {WS}, s3 offen offset:{1024*i} sc1")
    a.srdw(rDBG, 256); a("s_lshr_b32 s3, s3, 8"); a("s_mov_b64 exec, 1"); a("s_waitcnt vmcnt(0)")
    a(f"buffer_store_dword v12, off, s[{rDBG}:{rDBG+3}], s3 sc1"); a("s_mov_b64 exec, -1")
    a("s_branch L_mfma")

    a.label("L_loader")
    a("s_setprio 2")
    a(f"s_and_b32 s3, s{sX}, 1"); a("s_mul_i32 s55, s3, 640")
    a("s_mul_i32 s58, s57, 160"); a("s_sub_u32 s59, s58, 1280")
    a("s_cmp_lt_u32 s57, 4")
    a("s_cselect_b32 s56, 1120, 0"); a("s_cselect_b32 s59, 1280, s59")
    a("s_add_u32 s55, s55, s58"); a("s_add_u32 s55, s55, s59")
    a(f"s_sub_u32 s60, s{sWV}, 4")
    XV = [16, 17, 18, 19]; WV = [20, 21, 22, 23, 24]; WOV = [224, 225, 226, 227, 228]
    a("v_lshrrev_b32 v8, 3, v0"); a("v_and_b32 v9, 7, v0")
    a("v_bfe_u32 v10, v0, 4, 1"); a("v_lshrrev_b32 v11, 5, v0"); a("v_lshl_add_u32 v10, v10, 1, v11")
    a("s_lshl2_add_u32 s3, s54, s60"); a("s_mul_i32 s3, s3, 40960")
    a("v_mul_u32_u24 v8, 1280, v8"); a("v_xor_b32 v9, v9, v10"); a("v_add_u32 v8, s3, v8")
    a(f"v_lshl_add_u32 v{XV[0]}, v9, 4, v8"); a(f"v_xor_b32 v11, 64, v{XV[0]}")
    a(f"v_add_u32 v{XV[1]}, {10240-1024}, v11"); a(f"v_add_u32 v{XV[2]}, {20480-2048}, v{XV[0]}"); a(f"v_add_u32 v{XV[3]}, {30720-3072}, v11")
    a("s_mul_i32 s3, s60, 61440"); a("s_add_u32 s3, s3, s55")
    a("s_lshl_b32 s61, s60, 12")
    a(f"s_mul_i32 s62, s60, {WREG}"); a("s_add_u32 s62, s62, 16384")
    a("s_movk_i32 s63, 3520")
    a("v_lshl_add_u32 v12, v0, 4, s3"); a("v_mul_u32_u24 v13, 6554, v0")
    for i in range(5):
        if i: a(f"v_add_u32 v13, {64*6554}, v13")
        a("v_lshrrev_b32 v10, 17, v13"); a("v_bfe_u32 v9, v13, 16, 1")
        a("v_mad_u32_u24 v8, v10, s63, v12"); a(f"v_mad_u32_u24 v{WV[i]}, v9, s56, v8")
    a(f"v_add_u32 v{WV[4]}, 4096, v{WV[4]}")
    if rot: a(f"s_xor_b32 s71, s{sJR}, s57"); a("s_bfe_u32 s63, s71, 0x10001"); a("s_and_b32 s71, s71, 1")
    else: a("s_mov_b32 s71, 0")
    a("s_waitcnt lgkmcnt(0)")
    if cut: a.stamp(10)
    vm = VM(a)
    def issue(c, extra=()):
        extra = list(extra); per = -(-len(extra) // 9)
        def more():
            for y in extra[:per]: a(y)
            del extra[:per]
        slot = RING + (c % 3)*SLOT
        xs = [f"buffer_load_dwordx4 v{XV[i]}, s[{rX}:{rX+3}], s65 offen offset:{1024*i} lds" for i in range(4)]
        ws = [f"buffer_load_dwordx4 v{WV[i]}, s[{rW}:{rW+3}], s66 offen offset:{1024*(i%4)} lds" for i in range(5)]
        a(f"s_xor_b32 s66, s71, {c}")
        a(f"s_add_u32 m0, s61, {slot}")
        a("s_lshl_b32 s65, s66, 7"); a("s_mul_i32 s66, s66, 245760")
        two = rev and (rev == 2 or c % 2 == 0)
        if two: a("s_cmp_eq_u32 s63, 0"); a(f"s_cbranch_scc0 L_rv{c}")
        assert not (two and extra)
        for x in xs: more(); vm(x, c)
        a(f"s_add_u32 m0, s62, {slot}")
        for x in ws[:4]: more(); vm(x, c)
        a("s_add_u32 m0, m0, 4096")
        more(); vm(ws[4], c)
        if two:
            a(f"s_branch L_re{c}"); a.label(f"L_rv{c}")
            a(f"s_add_u32 m0, s62, {slot + 4096}"); a(ws[4])
            a(f"s_add_u32 m0, s62, {slot}")
            for x in ws[3::-1]: a(x)
            a(f"s_add_u32 m0, s61, {slot}")
            for x in xs[::-1]: a(x)
            a.label(f"L_re{c}")
    def bar(c, *extra, lgkm=False):
        if vm.count(c, *extra, opt=True) != vm.count(c, *extra):
            lb = a.newlab("L_bw")
            a("s_cmp_lt_u32 s57, 4"); a(f"s_waitcnt vmcnt({vm.count(c, *extra, opt=True)})"); a(f"s_cbranch_scc0 {lb}"); vm.wait(c, *extra); a.label(lb)
        else: vm.wait(c, *extra, lgkm=lgkm)
        a("s_barrier")
        if cut and c < 8: a.stamp(c + 2)
    def wo_addr():
        a("v_mul_u32_u24 v98, 6554, v0"); a("v_lshlrev_b32 v97, 4, v0"); a("s_movk_i32 s3, 1120")
        for i in range(5):
            if i: a(f"v_add_u32 v98, {64*6554}, v98")
            a("v_lshrrev_b32 v96, 16, v98"); a(f"v_mad_u32_u24 v{WOV[i]}, v96, s3, v97")
        a(f"v_add_u32 v{WOV[4]}, 4096, v{WOV[4]}")
        a(f"s_and_b32 s67, s{sJ}, 7"); a("s_mul_i32 s67, s67, 160")
        a("s_mul_i32 s68, s60, 40960"); a("s_add_u32 s68, s68, s67")
        a("s_mul_i32 s69, s60, 5120")
        a(f"s_lshr_b32 s3, s{sJ}, 3"); a(f"s_lshl2_add_u32 s3, s{sX}, s3"); a("s_mul_i32 s67, s3, 81920"); a("s_add_u32 s67, s67, s68")
        a(f"s_bfe_u32 s3, s{sJ}, 0x10003" if wrt else "s_mov_b32 s3, 0")
        a("s_mul_i32 s98, s3, 163840"); a("s_add_u32 s96, s68, s98"); a("s_sub_u32 s98, s68, s98")
        a("s_mul_i32 s99, s3, 20480"); a("s_add_u32 s97, s69, s99"); a("s_sub_u32 s99, s69, s99")
    def unit_list(srd, soff, m0):
        L = [f"buffer_load_dwordx4 v{WOV[i]}, s[{srd}:{srd+3}], {soff} offen offset:{1024*i} lds" for i in range(4)]
        L[0] = f"s_add_u32 m0, s69, {m0}\ns_nop 0\n" + L[0]
        return L + [f"s_add_u32 m0, m0, 4096\ns_nop 0\nbuffer_load_dwordx4 v{WOV[4]}, s[{srd}:{srd+3}], {soff} offen lds"]
    def wo_list(r):
        L = unit_list(rWO, "s65", 20480*r)
        L[0] = L[0].replace("s_nop 0", f"s_add_u32 s65, s{68 if r == 4 else 96 + 2*(r&1)}, {163840*r}")
        if r < 4: L[0] = L[0].replace("m0, s69", f"m0, s{97 + 2*(r&1)}")
        return L
    def wo_round(r):
        for x in wo_list(r): vm(x, "wo")
    def wo_last():
        wo_round(4)
        lb = a.newlab("L_res")
        a(f"s_cmp_lt_u32 s{sWV}, 6"); a(f"s_cbranch_scc0 {lb}")
        for x in unit_list(rX, "s67", L_RES): a(x)
        a.label(lb)
    def set1():
        srds()
        lanefields()
        a("s_lshr_b32 s64, s60, 1"); a("s_and_b32 s53, s60, 1")
        kepi_addr("s64", "s53")
        a("s_lshl_b32 s3, s64, 10"); a(f"s_add_u32 s3, s3, {L_STAT}"); a("v_lshl_add_u32 v206, v6, 4, s3")
        a("s_lshl_b32 s64, s60, 11")
        phi_addr("s64")
    def set_o():
        o_sgprs(); o_vgprs(96); a.readyaddr(43)
        a(f"s_lshr_b32 s3, s{sT32}, 3"); a(f"s_and_b32 s53, s{sHD}, 1"); a("s_lshl1_add_u32 s3, s3, s53"); a("s_lshl_b32 s3, s3, 9"); a(f"s_add_u32 s{sHINT}, s3, {WS_OH}")
    def set_oa():
        a("v_lshrrev_b32 v96, 5, v0"); a("v_bfe_u32 v97, v0, 2, 2"); a("v_bfe_u32 v98, v0, 4, 1"); a("v_bfe_u32 v99, v0, 1, 1"); a("v_lshl_add_u32 v98, v98, 1, v99")
        a(f"s_bitcmp0_b32 s{sHD}, 0"); a("s_cselect_b32 s3, 160, 0"); a("s_cselect_b32 s53, 0, 640")
        a(f"s_add_u32 s3, s3, {L_PHIO}"); a(f"s_add_u32 s53, s53, {L_PHIO}")
        a("v_mul_u32_u24 v99, 40, v97"); a("v_add_u32 v100, s53, v99"); a("v_mul_u32_u24 v101, 320, v96"); a("v_add3_u32 v99, v99, v101, s3")
        a("v_lshl_add_u32 v101, v98, 3, v99"); a("v_lshl_add_u32 v98, v98, 3, v100")
        a(f"ds_read_b64_tr_b16 {vr(OA,2)}, v101"); a(f"ds_read_b64_tr_b16 {vr(OA+2,2)}, v101 offset:160")
        a(f"ds_read_b64_tr_b16 {vr(OA+4,2)}, v99 offset:32"); a(f"ds_read_b64_tr_b16 {vr(OA+6,2)}, v99 offset:192")
        a(f"ds_read_b64_tr_b16 {vr(OA+8,2)}, v98"); a(f"ds_read_b64_tr_b16 {vr(OA+10,2)}, v100 offset:32")
        a("v_bfe_i32 v102, v0, 2, 1"); a("v_and_b32 v102, 0x80008000, v102"); a("v_add_u32 v103, -1, v96"); a(f"v_add_u32 v104, {L_OA}, v7")
        a("s_waitcnt lgkmcnt(0)")
        for q in range(8): a(f"v_xor_b32 v{OA+q}, v102, v{OA+q}")
        for q in range(8, 12): a(f"v_bitop3_b32 v{OA+q}, v{OA+q}, v102, v103 bitop3:0x28")
        a("s_cmp_eq_u32 s60, 0"); a("s_cbranch_scc0 L_oa")
        for i in range(3): a(f"ds_write_b128 v104, {vr(OA+4*i,4)} offset:{1024*i}")
        a.label("L_oa")
    def set_st():
        wo_addr()
        a("v_and_b32 v56, 31, v0"); a("s_lshl2_add_u32 s3, s54, s60"); a("s_lshl_b32 s3, s3, 7"); a(f"s_add_u32 s3, s3, {WS_SM}")
        a("v_lshl_add_u32 v57, v56, 2, s3")
        a("s_lshr_b32 s58, s60, 1"); a("s_and_b32 s59, s60, 1")
        a("s_add_u32 s3, s56, 160"); a("s_mul_i32 s3, s3, s58"); a("s_add_u32 s3, s3, s55"); a("s_lshl_b32 s3, s3, 1")
        a("s_mul_i32 s53, s59, 7680"); a("s_add_u32 s3, s3, s53"); a(f"s_add_u32 s3, s3, {WS_CS}")
        a("v_min_u32 v59, 39, v0"); a("v_lshl_add_u32 v58, v59, 3, s3")
        a("s_lshl_b32 s3, s60, 9"); a(f"s_add_u32 s3, s3, {L_STAT}"); a("v_lshl_add_u32 v56, v56, 4, s3")
        a("s_mul_i32 s3, s59, 640"); a("s_mul_i32 s53, s58, 320"); a("s_add_u32 s3, s3, s53"); a(f"s_add_u32 s3, s3, {L_CS}"); a("v_lshl_add_u32 v68, v59, 3, s3")
        a("s_mul_i32 s3, s60, 160"); a(f"s_add_u32 s3, s3, {L_CS+1280}"); a("v_lshl_add_u32 v69, v59, 2, s3"); a("v_mov_b32 v61, 0")
        a("ds_write_b32 v69, v61")
    def set_xid():
        a.readycheck(42, 43)
        a("s_getreg_b32 s64, hwreg(HW_REG_XCC_ID)"); a(f"s_mul_i32 s70, s{sX}, 192"); a(f"s_add_u32 s70, s70, {WS_XID}")
        a("s_cmp_eq_u32 s60, 0"); a("s_cbranch_scc0 L_xid")
        a("v_mov_b32 v44, s64"); a(f"s_lshl3_add_u32 s3, s{sJR}, s70")
        a("s_mov_b64 exec, 1"); a(f"buffer_store_dword v44, off, {WS}, s3 sc1"); a("s_mov_b64 exec, -1")
        a.label("L_xid")
        a("v_min_u32 v45, 23, v0"); a("v_lshlrev_b32 v45, 3, v45")
    plan = {1: [set1], 3: [phi_build, set_o], 5: [lambda: f_setup(96, 1), set_oa], 7: [set_xid, set_st]}
    for c in range(10):
        extra = sum((a.capture(f) for f in plan.get(c, [])), [])
        if wv: issue(c, extra)
        else:
            issue(c)
            for y in extra: a(y)
        if c == 4: vm(a.readyload(42, 43), "rdy")
        if 0 < c < 9: bar(c - 1)
    statloads = [f"buffer_load_dword v60, v57, {WS}, 0 offen sc1", f"buffer_load_dwordx2 v[62:63], v58, {WS}, 0 offen sc1"]
    bar(8)
    a("s_cmp_lt_u32 s57, 4"); a("s_cbranch_scc1 L_nx")
    a(f"buffer_load_dword v44, v45, {WS}, s70 offen sc1")
    a.label("L_nx")
    for l in statloads: vm(l, "st")
    a("s_cmp_lt_u32 s57, 4"); a("s_cbranch_scc1 L_r0")
    if qt:
        a(f"s_and_b32 s3, s{sX}, 1"); a("s_lshl1_add_u32 s3, s3, s57"); a("s_sub_u32 s3, s3, 4"); a("s_lshl2_add_u32 s3, s3, s60"); a("s_mul_i32 s58, s3, 163840")
        a("s_mul_i32 s3, s54, 5120"); a("s_add_u32 s58, s58, s3"); a(f"s_add_u32 s58, s58, {WS_Q}"); a("s_add_u32 s59, s58, 81920")
        a("v_lshlrev_b32 v47, 7, v0"); a("s_mov_b32 exec_hi, 0xff")
        for r in (58, 59): a(f"buffer_load_dword v48, v47, {WS}, s{r} offen")
        a("s_mov_b32 exec_hi, -1")
        a(fload); a("v_mov_b32 v47, 0")
    if qw <= 0: a(f"s_waitcnt vmcnt({3 if qt else 0})"); a("s_branch L_r0d")
    a.label("L_r0")
    wo_round(0)
    a.label("L_r0d")
    bar(9, "st")
    a.stamp(1)
    if cut: a("s_barrier"); a("s_branch L_fin")
    a.recheck(statloads, [60, 62, 63], 41)
    a("ds_write_b64 v68, v[62:63]")
    a("v_and_b32 v66, 0xffff0000, v60"); a("v_rcp_f32 v66, v66")
    a("v_and_b32 v64, 0xffff, v60"); a("v_lshl_or_b32 v64, v64, 16, v64"); a("v_xor_b32 v64, 0x80008000, v64")
    a("v_lshrrev_b32 v65, 16, v60"); a(f"v_mul_f32 v67, {LOG2E:#x}, v66")
    a("ds_write_b128 v56, v[64:67]")
    a("s_cmp_lt_u32 s57, 4"); a("s_cbranch_scc0 L_lq")
    wo_round(1)
    a("s_waitcnt lgkmcnt(0)"); a.stamp(2); a("s_barrier")
    a(f"s_setprio {lpr}")
    for m in (2, 3): a(f"ds_read_b128 {vr(STAT+4*m,4)}, v206 offset:{256*m}")
    a(f"s_lshl_b32 s58, s{sX}, 7"); a("v_lshlrev_b32 v45, 10, v0"); a(f"v_mov_b32 v44, {SENT + 16:#x}")
    a(f"s_cmp_eq_u32 s{sWV}, 7"); a("s_cbranch_scc0 L_ah")
    a("s_mov_b64 exec, 15"); a("v_mov_b32 v44, 0"); a(f"buffer_atomic_or v44, v45, {WS}, s58 offen sc0 sc1"); a("s_mov_b64 exec, -1")
    a.label("L_ah")
    if not kno & 2: wo_round(2)
    if kd: a.stamp(8, True)
    a("s_barrier")
    if kd: a.stamp(4, True); a("s_waitcnt lgkmcnt(0)")
    for m in (2, 3):
        T = 136 + 6*(m-2)
        a(f"ds_read_b128 {vr(T,4)}, v{E0} offset:{2048*m}"); a(f"ds_read_b64 {vr(T+4,2)}, v{E2} offset:{2048*m}")
    a("s_waitcnt lgkmcnt(2)")
    for x in phi_mm(Pb[0], 136): a(x)
    a("s_waitcnt lgkmcnt(0)")
    mm3 = phi_mm(Pb[1], 142)
    for x in mm3[:3]: a(x)
    ktile(2, Pb[0], False, mm3[3:] + wo_list(3), 0)
    ktile(3, Pb[1], kpk, [fload], 1)
    a("s_waitcnt vmcnt(0)")
    for l in qloads: a(l)
    def topcheck():
        a.recheck([tload], [230, 231], OT, sleep=8)
        a(f"v_readfirstlane_b32 s{sK1}, v230"); a(f"v_readfirstlane_b32 s{sK2}, v231")
    if kd: a.stamp(7, True)
    a(f"v_cmp_ne_u32 vcc, {SENT + 16:#x}, v44"); a("s_cbranch_vccz L_ah2")
    a.cnt_poll(4, 45, "s58", f"{SENT + 16:#x}", 44)
    a.label("L_ah2")
    a.stamp(3)
    if lpr: a("s_setprio 0")
    a("s_waitcnt lgkmcnt(0)"); a("s_barrier")
    a("s_waitcnt vmcnt(0)")
    a("s_branch L_qchk")
    a.label("L_lq")
    a("v_cmp_ne_u32 vcc, s64, v44"); a(f"v_mov_b32 v46, {L_KVR}"); a("s_or_b32 s64, vcc_lo, vcc_hi")
    if not loc: a("s_mov_b32 s64, 1")
    a("v_mov_b32 v44, s64")
    a("s_cmp_eq_u32 s60, 0"); a("s_cbranch_scc0 L_lq1")
    a("ds_write_b32 v46, v44")
    a.label("L_lq1")
    a(f"s_and_b32 s3, s{sX}, 1"); a("s_lshl1_add_u32 s3, s3, s57"); a("s_lshl2_add_u32 s3, s54, s3"); a("s_lshl_b32 s3, s3, 7"); a(f"s_add_u32 s3, s3, {WS_FQ - 512}")
    a("s_waitcnt lgkmcnt(0)"); a.stamp(2); a("s_barrier")
    a("s_setprio 0")
    a("s_cmp_eq_u32 s60, 0")
    a("s_barrier")
    a("s_cbranch_scc0 L_ophase")
    a("s_mov_b64 exec, 1"); a("s_cmp_eq_u32 s64, 0"); a("s_cbranch_scc1 L_lq2")
    a(f"buffer_store_dword v0, off, {WS}, s3 sc1"); a("s_mov_b64 exec, -1"); a("s_branch L_ophase")
    a.label("L_lq2")
    a(f"buffer_store_dword v0, off, {WS}, s3"); a("s_mov_b64 exec, -1"); a("s_branch L_ophase")

    a.label("L_mfma")
    a("s_setprio 0")
    srds()
    a(f"s_and_b32 s60, s{sWV}, 1"); a(f"s_lshr_b32 s61, s{sWV}, 1")
    lanefields()
    a(f"v_mul_u32_u24 v7, {WREG}, v3"); a("v_mul_u32_u24 v12, 320, v4"); a("s_movk_i32 s3, 16384"); a("v_add3_u32 v7, v7, v12, s3")
    a("s_mul_i32 s66, s60, 80"); a("s_sub_u32 s67, 240, s66")
    a("v_lshl_add_u32 v12, v5, 3, v7"); a("v_add_u32 v9, s66, v12"); a("v_add_u32 v10, s67, v12")
    a("v_mov_b32 v12, s66"); a("v_mov_b32 v13, s67"); a("v_cmp_lt_u32 vcc, 1, v5"); a("v_and_b32 v14, 1, v5"); a("v_mul_u32_u24 v14, 72, v14")
    a("v_cndmask_b32 v15, v12, v13, vcc"); a("v_add3_u32 v11, v7, v15, v14")
    a("v_and_b32 v7, 2, v0"); a("v_bfe_u32 v14, v0, 2, 1"); a("v_or_b32 v7, v7, v14"); a("v_bfe_u32 v14, v0, 3, 1"); a("v_lshl_add_u32 v7, v14, 2, v7")
    a("v_lshlrev_b32 v14, 1, v3"); a("v_xor_b32 v7, v7, v14"); a("v_lshlrev_b32 v7, 4, v7"); a("v_lshl_add_u32 v7, v6, 7, v7")
    a("s_lshl_b32 s3, s61, 13"); a("v_add_u32 v8, s3, v7")
    a(f"v_add_u32 v{XA[0]}, {RING}, v8"); a(f"v_add_u32 v{MK}, {RING}, v9"); a(f"v_add_u32 v{MV}, {RING}, v10"); a(f"v_add_u32 v{EX}, {RING}, v11")
    a(f"v_xor_b32 v{XA[1]}, 16, v{XA[0]}")
    a("v_min_u32 v7, 2, v3"); a("v_mul_u32_u24 v7, 640, v7"); a(f"v_add_u32 v7, {L_CS}, v7")
    a("v_lshl_add_u32 v14, v6, 2, v7"); a("v_lshl_add_u32 v173, v12, 1, v14"); a("v_lshl_add_u32 v174, v13, 1, v14")
    a("v_cmp_lt_u32 vcc, 1, v4"); a("v_and_b32 v14, 1, v4"); a("v_mul_u32_u24 v14, 144, v14")
    a("v_cndmask_b32 v15, v12, v13, vcc"); a("v_lshl_add_u32 v15, v15, 1, v14"); a("v_lshl_add_u32 v14, v5, 2, v7"); a("v_add_u32 v175, v14, v15")
    a("s_lshl_b32 s3, s61, 10"); a(f"s_add_u32 s3, s3, {L_STAT}"); a("v_lshl_add_u32 v206, v6, 4, s3")
    for r in range(0, 80, 2): a(f"v_mov_b64 {vr(ACC+r,2)}, 0")
    for r in range(0, 36, 2): a(f"v_mov_b64 {vr(SET[1]+r,2)}, 0")
    for t in range(5): a(f"v_mov_b32 v{AUG+2*t+1}, 0")
    a("s_mov_b32 s68, 0"); a(f"s_mov_b32 s69, {RING}")
    o_sgprs()
    a("s_cmp_lt_u32 s57, 4"); a("s_cbranch_scc0 L_qaddr")
    kepi_addr("s61", "s60")
    a("s_sub_u32 s59, 32768, s58")
    a("v_add_u32 v14, s59, v7"); a("v_lshlrev_b32 v15, 4, v12"); a(f"v_xor_b32 v{E3}, 64, v14"); a(f"v_xor_b32 v{E3}, v{E3}, v15"); a(f"v_lshl_add_u32 v{E3}, v13, 3, v{E3}")
    a("v_xor_b32 v14, 112, v14"); a("v_lshl_add_u32 v14, v13, 14, v14"); a("v_xor_b32 v12, 1, v12"); a(f"v_lshl_add_u32 v{E4}, v12, 3, v14")
    a("v_lshrrev_b32 v7, 5, v0"); a("v_lshl_add_u32 v12, v7, 3, v4"); a("v_lshlrev_b32 v12, 7, v12")
    a("v_and_b32 v13, 1, v4"); a("v_lshrrev_b32 v14, 1, v4"); a("v_lshl_or_b32 v13, v14, 2, v13"); a("v_lshl_or_b32 v12, v13, 4, v12")
    a(f"s_lshl_b32 s3, s{sWV}, 14"); a(f"s_add_u32 s3, s3, {TRI}"); a("v_add_u32 v12, s3, v12")
    a("v_and_b32 v13, 1, v5"); a("v_lshrrev_b32 v14, 1, v5"); a("v_and_b32 v15, 1, v3")
    a(f"v_lshl_or_b32 v{KA0}, v13, 1, v15"); a(f"v_lshlrev_b32 v{KA0}, 4, v{KA0}"); a(f"v_xor_b32 v{KA0}, v{KA0}, v12"); a(f"v_lshl_add_u32 v{KA0}, v14, 3, v{KA0}")
    a(f"v_xor_b32 v{KA1}, 96, v12"); a(f"v_lshl_add_u32 v{KA1}, v13, 3, v{KA1}")
    a("s_cmp_eq_u32 s60, 0"); a("s_mov_b32 s3, 0xfffeba98"); a("s_cselect_b32 s3, 0xfffba98e, s3")
    a("v_lshl_add_u32 v13, v15, 2, v5"); a("v_lshlrev_b32 v13, 2, v13"); a("v_bfe_u32 v13, s3, v13, 4"); a("v_lshlrev_b32 v13, 3, v13")
    a(f"v_xor_b32 v{KB}, v13, v12")
    for r in (KB, KA0, KA1): a(f"v_xor_b32 v{r+1}, 32, v{r}")
    a("v_and_b32 v13, 31, v0"); a("v_mul_u32_u24 v14, 21, v7"); a("v_add_u32 v14, v14, v13"); a("v_cmp_lt_u32 vcc, 20, v13")
    a(f"v_mov_b32 v15, {OOB:#x}"); a(f"v_lshlrev_b32 v{KP}, 4, v14"); a(f"v_lshlrev_b32 v{KP+1}, 3, v14")
    a(f"v_cndmask_b32 v{KP}, v{KP}, v15, vcc"); a(f"v_cndmask_b32 v{KP+1}, v{KP+1}, v15, vcc")
    a(f"s_and_b32 s3, s{sX}, 1"); a("s_lshl2_add_u32 s3, s3, s57"); a(f"s_lshl2_add_u32 s3, s3, s{sWV}"); a("s_lshl4_add_u32 s3, s3, s54")
    a("s_mul_i32 s62, s3, 1792"); a(f"s_add_u32 s62, s62, {WS_KV}")
    a(f"s_and_b32 s3, s{sX}, 1"); a("s_lshl2_add_u32 s3, s3, s57"); a("s_lshl_b32 s3, s3, 9"); a(f"s_add_u32 s3, s3, {WS_KH}")
    a(f"s_cmp_eq_u32 s{sWV}, 3"); a(f"s_cselect_b32 s{sHINT}, s3, {OOB:#x}")
    phi_addr("s65")
    a("s_waitcnt vmcnt(0)")
    phi_build()
    a.label("L_qaret")
    o_vgprs(96); f_setup(96, 0)
    def reads(s, st):
        X = [f"ds_read_b128 {vr(st+4*m,4)}, v{XA[s]} offset:{2048*m}" for m in range(4)]
        Wr = []
        for t in range(5):
            for j in range(2):
                reg = [MK, MK, MV, MV, EX][t]; off = s*2560 + j*1280 + [8, 40, 8, 40, 0][t]
                Wr.append(f"ds_read_b64_tr_b16 {vr(st+16+4*t+2*j,2)}, v{reg} offset:{off}")
        return [X[0]] + Wr[0:2] + X[1:] + Wr[2:]
    def mf(i, st):
        t, m = divmod(i, 4)
        return f"v_mfma_f32_16x16x32_bf16 {vr(ACC+20*m+4*t,4)}, {vr(st+16+4*t,4)}, {vr(st+4*m,4)}, {vr(ACC+20*m+4*t,4)}"
    need = lambda i: (3 + i if i < 4 else 6 + 2*(i//4))
    R0 = reads(0, SET[0]); R1 = reads(1, SET[1])
    seq = [(i, 1) for i in range(20 - defer, 20)] + [(i, 0) for i in range(20)] + [(i, 1) for i in range(20 - defer)]
    fill = [[] for _ in seq]
    k = 0; g = 0
    while k < 14: fill[g] += R0[k:k+2]; k += 2; g += 1
    g = max(g, defer); k = 0
    while k < 14: fill[g].append(R1[k]); k += 1; g += 1
    fill[g] += [f"s_add_u32 s69, s69, {SLOT}", f"s_cmp_eq_u32 s69, {RING_END}", f"s_cselect_b32 s69, {RING}, s69"]
    for q, h in enumerate([f"v_add_u32 v{XA[0]}, s69, v8", f"v_add_u32 v{MK}, s69, v9", f"v_add_u32 v{MV}, s69, v10", f"v_add_u32 v{EX}, s69, v11", f"v_xor_b32 v{XA[1]}, 16, v{XA[0]}"]):
        fill[g+1+q].append(h)
    fill[g+6] += ["s_add_u32 s68, s68, 1", "s_cmp_lt_u32 s68, 10"]
    a.stampw(1)
    a.label("L_mloop")
    a("s_barrier")
    issued = 0; done = 0
    for idx, (i, st) in enumerate(seq):
        if idx >= defer:
            n = need(i) + (14 if st == 1 else 0)
            if idx == len(seq) - 1: n = 28
            if n > done: a(f"s_waitcnt lgkmcnt({min(15, issued - n)})"); done = n
        a(mf(i, SET[st]))
        for f in fill[idx]:
            if f.startswith("ds_"): issued += 1
            a(f)
    a("s_cbranch_scc1 L_mloop")
    a("s_barrier")
    RA = [f"ds_read_b128 {vr(STAT+4*m,4)}, v206 offset:{256*m}" for m in range(4)]
    RA += [f"ds_read_b32 v{AUG+2*t}, v{[173,173,174,174,175][t]} offset:{[16,80,16,80,0][t]}" for t in range(5)]
    k = 0
    for i in range(20 - defer, 20):
        a(mf(i, SET[1]))
        for r in RA[k:k+2]: a(r)
        k += 2
    for r in RA[k:]: a(r)
    a("s_waitcnt lgkmcnt(0)")
    aug = lambda m: [f"v_mfma_f32_16x16x16_bf16 {vr(ACC+20*m+4*t,4)}, {vr(AUG+2*t,2)}, {vr(STAT+4*m,2)}, {vr(ACC+20*m+4*t,4)}" for t in range(5)]
    a.stampw(2)
    for x in aug(2): a(x)
    if cut: a("s_branch L_fin")
    a("s_cmp_lt_u32 s57, 4"); a("s_cbranch_scc0 L_qepi")

    KT = [136, 142, 148, 166]; VT = [8, 172]
    def kcv(m): return [f"v_cvt_pk_bf16_f32 v{KT[m]+q}, v{ACC+20*m+4*t+2*h}, v{ACC+20*m+4*t+2*h+1}" for q, (t, h) in enumerate([(0,0),(0,1),(1,0),(1,1),(4,0),(4,1)])]
    def vwork(m):
        A = ACC + 20*m; T = VT[m & 1]; X = KT[m] + 4
        return [f"v_cvt_pk_bf16_f32 v{T+q}, v{A+8+2*q}, v{A+9+2*q}" for q in range(4)] + [
                f"v_cndmask_b32 v{X}, v{X}, v{STAT+4*m+1}, vcc", f"v_cndmask_b32 v{X+1}, v{X+1}, v{AUG+1}, vcc",
                f"ds_write_b64 v{E3}, {vr(T,2)} offset:{2048*m}", f"ds_write_b64 v{E3}, {vr(T+2,2)} offset:{16384+2048*m}", f"ds_write_b64 v{E4}, {vr(X,2)} offset:{2048*m}"]
    def weave(main, fillers, n):
        k = 0
        for x in main:
            a(x)
            for y in fillers[k:k+n]: a(y)
            k += n
        for y in fillers[k:]: a(y)
    a("v_cmp_gt_u32 vcc, 32, v0")
    hand = lambda m: [f"ds_write_b128 v{E0}, {vr(KT[m],4)} offset:{2048*m}", f"ds_write_b64 v{E2}, {vr(KT[m]+4,2)} offset:{2048*m}"]
    weave(aug(3), ["", ""] + kcv(2), 2)
    for x in hand(2): a(x)
    weave(aug(0), kcv(3) + hand(3), 2)
    weave(aug(1), ["", ""] + kcv(0), 2)
    if kd: a.stamp(8, True)
    a("s_waitcnt lgkmcnt(0)"); a("s_barrier")
    if kd: a.stamp(4, True)
    weave(phi_mm(Pb[0], KT[0]), kcv(1) + vwork(2) + vwork(3), 2)
    for x in vwork(0): a(x)
    ktile(0, Pb[0], False, phi_mm(Pb[1], KT[1]) + vwork(1), 0)
    ktile(1, Pb[1], kpk, oareads, 1)
    a(fload)
    if kd: a.stamp(7, True)
    if kvp: a("s_setprio 1")
    a("s_waitcnt lgkmcnt(0)"); a("s_barrier")
    a.stampw(3)
    D0, D1, FR = 96, 112, 128
    def kvreads(ks):
        f = FR + 12*(ks % 3)
        return [f"ds_read_b64_tr_b16 {vr(f+4*o+2*j,2)}, v{[KB,KA0,KA1][o]+j} offset:{2048*ks+512*j}" for o in range(3) for j in range(2)]
    for x in kvreads(0) + kvreads(1): a(x)
    a("v_lshlrev_b32 v8, 7, v0"); a("v_mov_b32 v9, 1")
    a("s_waitcnt vmcnt(0)")
    for l in qloads: a(l)
    khint = f"s_mov_b64 exec, 15\nbuffer_atomic_add v9, v8, {WS}, s{sHINT} offen sc1\ns_mov_b64 exec, -1"
    for ks in range(8):
        f = FR + 12*(ks % 3)
        if ks == khe: a(khint)
        a(f"s_waitcnt lgkmcnt({6 if ks < 7 else 0})")
        a(f"v_mfma_f32_32x32x16_bf16 {vr(D0,16)}, {vr(f+4,4)}, {vr(f,4)}, {vr(D0,16) if ks else 0}")
        if ks < 6:
            for x in kvreads(ks+2)[:3]: a(x)
        a(f"v_mfma_f32_32x32x16_bf16 {vr(D1,16)}, {vr(f+8,4)}, {vr(f,4)}, {vr(D1,16) if ks else 0}")
        if ks < 6:
            for x in kvreads(ks+2)[3:]: a(x)
    if khe == 8: a(khint)
    for q in range(4): a(f"v_cvt_pk_bf16_f32 v{FR+q}, v{D0+2*q}, v{D0+2*q+1}")
    a(f"buffer_store_dwordx4 {vr(FR,4)}, v{KP}, {WS}, s62 offen sc1")
    for q in range(4, 8): a(f"v_cvt_pk_bf16_f32 v{FR+q}, v{D0+2*q}, v{D0+2*q+1}")
    a(f"buffer_store_dwordx4 {vr(FR+4,4)}, v{KP}, {WS}, s62 offen offset:672 sc1")
    for q in range(8, 10): a(f"v_cvt_pk_bf16_f32 v{FR+q}, v{D0+2*q}, v{D0+2*q+1}")
    a(f"buffer_store_dwordx2 {vr(FR+8,2)}, v{KP+1}, {WS}, s62 offen offset:1344 sc1")
    if khe == 9: a(khint)
    if kvp: a("s_setprio 0")
    a(tload)
    a("s_waitcnt vmcnt(5)")
    a.label("L_qchk")
    a(f"v_cmp_eq_u32 vcc, s{sSENT}, v253"); a("s_cbranch_vccnz L_qlate")

    a.label("L_phi")
    a.stampw(4)
    a(f"v_mfma_f32_32x32x16_bf16 {vr(P0,16)}, {vr(OA,4)}, {vr(QF,4)}, 0")
    a(f"v_mfma_f32_32x32x8_bf16 {vr(P0,16)}, {vr(OA+8,2)}, {vr(QF+4,2)}, {vr(P0,16)}")
    a(f"v_mfma_f32_32x32x16_bf16 {vr(P1,16)}, {vr(OA+4,4)}, {vr(QF,4)}, 0")
    a(f"v_mfma_f32_32x32x8_bf16 {vr(P1,16)}, {vr(OA+10,2)}, {vr(QF+4,2)}, {vr(P1,16)}")
    def gather_sgprs():
        a("s_mov_b32 s62, 0x00003f80"); a("s_mov_b32 s64, 0x3f800000"); a("s_mov_b32 s53, 0")
        for q in range(5): a(f"s_add_u32 s{[54,55,56,58,59][q]}, s{sKVA}, {5376*(q+1)}")
    def qscale(r): a(f"v_and_b32 v{r}, 0xffff0000, v{r}"); a(f"v_rcp_f32 v{r}, v{r}"); a(f"v_mul_f32 v{r}, {LOG2E:#x}, v{r}")
    qscale(OT+2); gather_sgprs()
    a(f"s_cmp_eq_u32 s{sWV}, 7")
    for n, x in enumerate(softmax_plain(list(range(P0, P0+20)), PHQ, OT, scale=OT+2)):
        if pp and n in (hk0, hk1): a(f"s_cbranch_scc1 L_hk{n}"); a.label(f"L_hr{n}")
        a(x)
    a.stampw(5)
    a("s_cbranch_scc1 L_phix")
    a.label("L_kvwait")
    def woreads(st, dst):
        R = []
        for t in range(5):
            for j in range(2):
                if st < 8: R.append(f"ds_read_b64_tr_b16 {vr(dst+4*t+2*j,2)}, v6 offset:{6400*st+1280*j+32*t}")
                else: R.append(f"ds_read_b64_tr_b16 {vr(dst+4*t+2*j,2)}, v2 offset:{2560+25600*(st-8)+12800*j+32*t}")
        return R
    a("s_barrier")
    a.stampw(12)
    a.label("L_kfull")
    for p in range(16): a(f"buffer_load_dword v{KL+p}, v15, {WS}, s{[sKVA,54,55,56,58,59][p//3]} offen offset:{1792*(p%3)} sc1")
    a("v_mov_b64 v[16:17], 0"); a("v_mov_b64 v[18:19], 0"); a(f"v_mov_b32 v{OT}, 0")
    for p in range(0, 16, 2):
        if p % 4 == 0: a(f"s_waitcnt vmcnt({12-p})")
        for q in range(2): a(f"v_dot2c_f32_bf16 v{16+2*q}, s62, v{KL+p+q}"); a(f"v_dot2c_f32_bf16 v{17+2*q}, s64, v{KL+p+q}")
        a(f"v_max3_u32 v{OT}, v{OT}, v{KL+p}, v{KL+p+1}")
    a(f"v_cmp_eq_u32 vcc, s{sSENT}, v{OT}"); a("s_cbranch_vccnz L_kagain")
    a("v_pk_add_f32 v[16:17], v[16:17], v[18:19]"); a("v_cvt_pk_bf16_f32 v16, v16, v17")
    a("ds_write_b32 v14, v16")
    a.label("L_kred")
    a.stampw(6)
    a("s_waitcnt lgkmcnt(0)"); a("s_barrier")
    a(f"ds_read_b128 {vr(OA,4)}, v207"); a(f"ds_read_b128 {vr(OA+4,4)}, v207 offset:672"); a(f"ds_read_b64 {vr(OA+8,2)}, v254 offset:1344")
    def ohint():
        lb = a.newlab("L_oh")
        a(f"s_cmp_eq_u32 s{sWV}, 7"); a(f"s_cbranch_scc0 {lb}")
        a("s_mov_b64 exec, s[54:55]"); a(f"buffer_atomic_add v15, v14, {WS}, s{sHINT} offen sc1"); a("s_mov_b64 exec, -1")
        a.label(lb)
    def omfma(P, PHI): return [f"v_mfma_f32_32x32x16_bf16 {vr(P,16)}, {vr(OA,4)}, {vr(PHI,4)}, 0",
                               f"v_mfma_f32_32x32x16_bf16 {vr(P,16)}, {vr(OA+4,4)}, {vr(PHI+4,4)}, {vr(P,16)}",
                               f"v_mfma_f32_32x32x8_bf16 {vr(P,16)}, {vr(OA+8,2)}, {vr(PHI+8,2)}, {vr(P,16)}"]
    def ofin(P, T):
        a(f"v_add_f32 v16, 0x358637bd, v{P+12}"); a("v_rcp_f32 v16, v16")
        for q in range(8): a(f"v_mul_f32 v{P+q}, v{P+q}, v16")
        for q in range(4): a(f"v_cvt_pk_bf16_f32 v{T+q}, v{P+2*q}, v{P+2*q+1}")
        a(f"buffer_store_dwordx4 {vr(T,4)}, v12, {WS}, s{sO0} offen sc1")
        for q in range(8, 12): a(f"v_mul_f32 v{P+q}, v{P+q}, v16")
        for q in range(4, 6): a(f"v_cvt_pk_bf16_f32 v{T+q}, v{P+2*q}, v{P+2*q+1}")
        a(f"buffer_store_dwordx2 {vr(T+4,2)}, v13, {WS}, s{sO1} offen sc1")
    a("s_cmp_lt_u32 s57, 4"); a("s_cbranch_scc0 L_o2")
    for q, x in enumerate(omfma(P0, PHQ)): a(f"s_waitcnt lgkmcnt({2-q})"); a(x)
    a.label("L_o1")
    if ohe == 1: ohint()
    ofin(P0, 18)
    if ohe == 0: ohint()
    a.stampw(7)

    a.label("L_final")
    yloads = [f"buffer_load_dwordx4 {vr(OF+4*t,4)}, v15, {WS}, s60 offen offset:{512*t} sc1" for t in range(5)]
    RT = WF + 160
    wo_a = sum((woreads(st, WF + 20*st) for st in (0, 1, 2, 3, 8)), [])
    wo_b = sum((woreads(st, WF + 20*st) for st in (4, 5, 6, 7)), [])
    oloads = [f"buffer_load_dwordx4 {vr(OF+4*st,4)}, v7, {WS}, s{sF0+st//4} offen offset:{1024*(st%4)} sc1" for st in range(8)]
    oloads += [f"buffer_load_dwordx2 {vr(OF+32+2*q,2)}, v1, {WS}, s{sF2} offen offset:{512*q} sc1" for q in range(4)]
    def otouch_addr():
        if not ot: return
        a(f"s_and_b32 s3, s{sJ}, 7"); a("v_lshl_add_u32 v14, v0, 3, s3"); a("v_lshlrev_b32 v14, 7, v14")
        a(f"s_sub_u32 s3, s{sF2}, s{sF1}"); a("s_sub_u32 s3, s3, 4096"); a("v_cmp_lt_u32 vcc, 3, v0"); a("v_add_u32 v15, s3, v14"); a("v_cndmask_b32 v14, v14, v15, vcc")
    def otouch():
        if ot: a("s_mov_b64 exec, 63"); a(f"buffer_load_dword v15, v14, {WS}, s{sF1} offen sc1"); a("s_mov_b64 exec, -1")
    a("v_lshlrev_b32 v1, 3, v0"); a("s_mov_b32 s63, 0")
    a(f"s_cmp_lt_u32 s{sWV}, 4"); a("s_cbranch_scc0 L_c2")
    topcheck()
    a.label("L_c1")
    a(f"buffer_load_dword v14, v4, {WS}, s{sAUX} offen sc1")
    a(f"s_not_b32 s3, s{sK1}"); a("s_bfe_u32 s3, s3, 0x70004"); a(f"s_cmp_eq_u32 s3, s{sT16}"); a("s_cselect_b32 s61, 1, 0")
    a(f"s_not_b32 s3, s{sK2}"); a("s_bfe_u32 s3, s3, 0x70004"); a(f"s_cmp_eq_u32 s3, s{sT16}"); a("s_cselect_b32 s3, 2, 0")
    a("s_or_b32 s61, s61, s3"); a("s_cbranch_scc1 L_y0")
    a.label("L_y1")
    for x in wo_a[:40] + wo_b: a(x)
    a("s_cmp_eq_u32 s61, 0")
    a("s_waitcnt vmcnt(0)")
    a("v_and_b32 v8, 0xffff0000, v14"); a("v_rcp_f32 v8, v8"); a("v_lshlrev_b32 v9, 16, v14")
    a("v_mul_f32 v9, v9, v8"); a("v_add_f32 v8, 1.0, v8")
    a("s_cbranch_scc0 L_y2")
    a.label("L_y3")
    otouch_addr()
    a.stampw(8)
    a("s_barrier")
    a.stampw(13)
    otouch()
    for l in oloads[:n0]: a(l)
    for t in range(5): a(f"ds_read_b64 {vr(RT+10+2*t,2)}, v3 offset:{32*t}")
    a("s_cmp_eq_u32 s61, 0")
    a("s_waitcnt lgkmcnt(0)")
    for q in range(10):
        a(f"v_lshlrev_b32 v{RT+2*q}, 16, v{RT+10+q}"); a(f"v_and_b32 v{RT+2*q+1}, 0xffff0000, v{RT+10+q}")
    resfma = lambda d: [f"v_pk_fma_f32 {vr(d+2*q,2)}, {vr(RT+2*q,2)}, v[8:9], v[8:9] op_sel:[0,0,1] op_sel_hi:[1,0,1] neg_lo:[0,0,1] neg_hi:[0,0,1]" for q in range(10)]
    a("s_cbranch_scc0 L_y4")
    for x in resfma(FA): a(x)
    a.label("L_y5")
    for x in wo_a[40:]: a(x)
    last = woreads(9, WF)
    groups = ((0, 1), (2, 3), (4, 5), (6, 7), (8, 9)); ends = (2, 4, 6, 8, 12)
    def project(kh, n):
        todo = oloads[n:]
        def vtree(g_):
            r = OF + 8*g_
            return [f"s_waitcnt vmcnt({12 - len(todo) - ends[g_]})\nv_max3_u32 v13, v{r}, v{r+1}, v{r+2}", f"v_max3_u32 v12, v{r+3}, v{r+4}, v{r+5}", f"v_max3_u32 v13, v13, v{r+6}, v{r+7}",
                    "v_max_u32 v13, v13, v12", f"v_cmp_eq_u32 vcc, s{sSENT}, v13"]
        a("s_waitcnt lgkmcnt(10)")
        for x in vtree(0): a(x)
        for g_, steps in enumerate(groups):
            a("s_cbranch_vccnz L_oretry")
            a.label(f"L_og{5*kh+g_}")
            if g_ == 0: a.stampw(9)
            if fd: a.stamp(g_ + 1, True)
            if g_ in (1, 4): a("s_waitcnt lgkmcnt(0)")
            if g_ == 4 and kh:
                a("s_barrier")
                for t in range(5): a(f"ds_read_b128 {vr(OF+4*t,4)}, v5 offset:{1024*t}")
            want = min(12, max(ends[min(g_+1, 4)], n + ramp*(g_+1) + (2 if n + ramp*(g_+1) > 8 else 0)), 12 - len(todo) + 5)
            now = todo[:max(0, want - (12 - len(todo)))]; del todo[:len(now)]
            nxt_ = vtree(g_+1) if g_ < 4 else []
            for k, st in enumerate(steps):
                for t in range(5):
                    a(f"v_mfma_f32_16x16x32_bf16 {vr(FA+4*t,4)}, {vr(WF+20*(st%9)+4*t,4)}, {vr(OF+4*st,4)}, {vr(FA+4*t,4)}")
                    if k == 0 and t < len(now): a(now[t])
                    if st in (2, 4): a(last[5*(st//2-1)+t])
                    if k == 0 and t == 4 and g_ < 4: a(f"s_mov_b32 s63, {5*kh+g_+1}")
                    if k == 1 and nxt_: a(nxt_[t])
        assert not todo
        if fd: a.stamp(6, True)
    project(0, n0)
    for t in range(5): a(f"ds_write_b128 v5, {vr(FA+4*t,4)} offset:{1024*t}")
    a("s_waitcnt lgkmcnt(0)"); a("s_barrier")
    a("s_branch L_fin")
    a.label("L_c2")
    if ql: a("s_cmp_lt_u32 s57, 4"); a("s_cbranch_scc0 L_c2h")
    wo_last()
    a.label("L_c2h")
    for r in range(0, 20, 2): a(f"v_mov_b64 {vr(FA+r,2)}, 0")
    a("s_mov_b32 s63, 5")
    if tw == 1:
        a("s_mov_b64 exec, 1"); a(f"buffer_load_dword v15, off, s[{rOUT}:{rOUT+3}], s{sOUT}"); a("s_mov_b64 exec, -1")
    if tw == 2:
        for u in range(3): a(f"buffer_load_dword v15, v{8+u}, s[{rOUT}:{rOUT+3}], s{sOUT} offen offset:{1024*u}")
    otouch_addr()
    a(f"s_cmp_eq_u32 s{sWV}, 7"); a("s_cbranch_scc1 L_c7")
    for x in wo_a: a(x)
    a("s_waitcnt vmcnt(0)")
    a.label("L_c4")
    a.stampw(8)
    a("s_barrier")
    a.stampw(13)
    otouch()
    for l in oloads[:n1]: a(l)
    for x in wo_b: a(x)
    project(1, n1)
    a("s_waitcnt lgkmcnt(0)")
    for t in range(5):
        for q in range(4): a(f"v_add_f32 v{FA+4*t+q}, v{FA+4*t+q}, v{OF+4*t+q}")
        a(f"v_cvt_pk_bf16_f32 v{FA+4*t}, v{FA+4*t}, v{FA+4*t+1}"); a(f"v_cvt_pk_bf16_f32 v{FA+4*t+1}, v{FA+4*t+2}, v{FA+4*t+3}")
        a(f"ds_write_b64 v3, {vr(FA+4*t,2)} offset:{32*t}")
    a("s_waitcnt lgkmcnt(0)")
    for u in range(3): a(f"ds_read_b128 {vr(OF+4*u,4)}, v11 offset:{1024*u}")
    for u in range(3):
        a(f"s_waitcnt lgkmcnt({2-u})")
        a(f"buffer_store_dwordx4 {vr(OF+4*u,4)}, v{8+u}, s[{rOUT}:{rOUT+3}], s{sOUT} offen offset:{1024*u} {['', 'sc1', 'nt', 'sc0 sc1'][outfl]}")
    a.label("L_fin")
    if diag == 4:
        a.stampw(10); a("s_waitcnt vmcnt(0)"); a.stampw(11); a("s_waitcnt lgkmcnt(0)")
        a(f"s_cmp_lt_u32 s{sJR}, {plo}"); a("s_cbranch_scc1 L_pe"); a(f"s_cmp_ge_u32 s{sJR}, {phi}"); a("s_cbranch_scc1 L_pe")
        a(f"s_cmp_lt_u32 s{sWV}, {pw0}"); a("s_cbranch_scc1 L_pe"); a(f"s_cmp_ge_u32 s{sWV}, {pw1}"); a("s_cbranch_scc1 L_pe")
        a("s_sub_u32 s74, s74, s72"); a("s_min_u32 s74, s74, 5000"); a("s_lshl_b32 s74, s74, 2"); a("s_add_u32 s74, s74, 4000")
        a.label("L_pr"); a("s_memrealtime s[76:77]"); a("s_waitcnt lgkmcnt(0)"); a("s_sub_u32 s76, s76, s72"); a("s_cmp_lt_u32 s76, s74"); a("s_cbranch_scc1 L_pr")
        a.label("L_pe")
    elif diag:
        if not cut: a.stampw(10)
        a("s_waitcnt vmcnt(0)")
        a.stampw(11)
        a(f"s_lshl3_add_u32 s3, s2, s{sWV}"); a("s_lshl_b32 s3, s3, 6"); a(f"s_add_u32 s3, s3, {WS_DIAG}")
        a("s_mov_b64 exec, 1")
        for i in range(14):
            a(f"v_mov_b32 v8, s{72+2*i}"); a(f"buffer_store_dword v8, off, {WS}, s3 offset:{4*i}")
    a("s_endpgm")

    a.label("L_oretry")
    a.poll(oloads, range(OF, OF+40), 13, 0)
    a(f"s_cmp_gt_u32 s3, {SPIN}"); a(f"s_cselect_b32 s{sSENT}, 1, s{sSENT}")
    for g_ in range(9): a(f"s_cmp_eq_u32 s63, {g_}"); a(f"s_cbranch_scc1 L_og{g_}")
    a("s_branch L_og9")
    a.label("L_y0")
    a("s_cmp_eq_u32 s61, 2"); a("s_cselect_b32 s60, 20480, 0"); a(f"s_cselect_b32 s{sK1}, s{sK2}, s{sK1}")
    a(f"s_and_b32 s3, s{sJ}, 7"); a("s_mul_i32 s3, s3, 2560"); a("s_add_u32 s60, s60, s3"); a(f"s_add_u32 s60, s60, {WS_YP}")
    a("v_and_b32 v15, 7, v0"); a("v_lshlrev_b32 v15, 4, v15"); a("v_and_b32 v13, 48, v0"); a("v_lshl_add_u32 v15, v13, 3, v15")
    for l in yloads: a(l)
    for r in range(0, 20, 2): a(f"v_mov_b64 {vr(FA+r,2)}, 0")
    a("s_branch L_y1")
    a.label("L_y2")
    a.recheck(yloads, range(OF, OF+20), 13)
    a(f"s_and_b32 s53, s{sK1}, 0xffff0000"); a("s_cmp_lt_i32 s53, 0"); a("s_mov_b32 s3, 0xffff0000"); a("s_cselect_b32 s3, 0x80000000, s3"); a("s_xor_b32 s53, s53, s3")
    a(f"v_mov_b32 v12, {LOG2E|0x80000000:#x}"); a("v_mul_f32 v12, s53, v12"); a("v_exp_f32 v12, v12"); a("v_add_f32 v12, 1.0, v12"); a("v_rcp_f32 v12, v12")
    a(f"s_andn2_b32 s3, 15, s{sK1}"); a("v_and_b32 v13, 15, v0"); a("v_cmp_eq_u32 vcc, s3, v13")
    a("v_cvt_pk_bf16_f32 v12, v12, v12"); a("v_and_b32 v12, 0xffff0000, v12")
    for ctl in ("quad_perm:[1,0,3,2]", "quad_perm:[2,3,0,1]", "row_half_mirror"):
        for q in range(20): a(f"v_add_f32_dpp v{OF+q}, v{OF+q}, v{OF+q} {ctl} row_mask:0xf bank_mask:0xf")
    a("s_mov_b64 exec, vcc")
    for q in range(0, 20, 2): a(f"v_pk_mul_f32 {vr(FA+q,2)}, {vr(OF+q,2)}, v[12:13] op_sel_hi:[1,0]")
    a("s_mov_b64 exec, -1")
    a("s_cmp_eq_u32 s61, 3"); a("s_cbranch_scc0 L_y3")
    a("s_mov_b32 s61, 2"); a(f"s_mov_b32 s{sK1}, s{sK2}"); a("s_add_u32 s60, s60, 20480"); a(f"v_mov_b32 v{OF}, s{sSENT}"); a("s_branch L_y2")
    a.label("L_y4")
    for x in resfma(RT): a(x)
    for q in range(0, 20, 2): a(f"v_pk_add_f32 {vr(FA+q,2)}, {vr(FA+q,2)}, {vr(RT+q,2)}")
    a("s_branch L_y5")
    a.label("L_c7")
    a("v_lshlrev_b32 v4, 9, v0")
    if po == 1: a.cnt_watch(2, 4, f"s{sOHP}", f"{SENT + 16:#x}", OF + 37, [wo_a[:osam], wo_a[osam:(osam+50)//2], wo_a[(osam+50)//2:]], True)
    else:
        for x in wo_a[:osam]: a(x)
        a(f"v_mov_b32 v12, {SENT + 16:#x}"); a("s_mov_b64 exec, 3"); a("v_mov_b32 v12, 0"); a(f"buffer_atomic_or v12, v4, {WS}, s{sOHP} offen sc0 sc1"); a("s_mov_b64 exec, -1")
        for x in wo_a[osam:]: a(x)
        a("s_waitcnt vmcnt(0)"); a(f"v_cmp_ne_u32 vcc, {SENT + 16:#x}, v12"); a("s_cbranch_vccz L_c4")
        a.cnt_poll(2, 4, f"s{sOHP}", f"{SENT + 16:#x}", 12)
    a("s_branch L_c4")
    a.label("L_kagain")
    a("s_add_u32 s53, s53, 1"); a(f"s_cmp_gt_u32 s53, {SPIN}"); a("s_cbranch_scc0 L_kfull"); a("s_branch L_kred")
    a.label("L_qlate")
    a.poll([fload], [253], OT, 0)
    for l in qloads: a(l)
    a("s_waitcnt vmcnt(0)"); a("s_branch L_phi")

    a.label("L_qaddr")
    a(f"s_and_b32 s3, s{sX}, 1"); a("s_lshl1_add_u32 s3, s3, s57"); a("s_sub_u32 s3, s3, 4"); a("s_mul_i32 s58, s3, 655360")
    a("s_lshl1_add_u32 s3, s54, s61"); a("s_mul_i32 s3, s3, 2560"); a("s_add_u32 s58, s58, s3"); a(f"s_add_u32 s58, s58, {WS_Q}")
    a("s_mul_i32 s3, s60, 163840"); a("s_sub_u32 s62, 491520, s3")
    a("v_mov_b32 v12, s3"); a("v_mov_b32 v13, s62"); a("v_cmp_gt_u32 vcc, 32, v0")
    a("s_add_u32 s59, s58, s62"); a("s_add_u32 s62, s58, s3")
    a("v_and_b32 v7, 1, v3"); a("v_mul_u32_u24 v7, 81920, v7"); a("v_cndmask_b32 v12, v13, v12, vcc")
    a("v_lshrrev_b32 v14, 5, v0"); a("v_lshl_add_u32 v14, v14, 9, v7"); a(f"v_lshl_add_u32 v{E0}, v6, 4, v14")
    a("v_add_u32 v12, v12, v7"); a(f"v_lshl_add_u32 v{E1}, v6, 3, v12"); a(f"v_mov_b32 v{E2}, {L_KVR}")
    a(f"v_mov_b64 {vr(KP-1,2)}, 0"); a(f"v_mov_b32 v{KP+1}, 0")
    a(f"s_cmp_eq_u32 s{sJR}, 16"); a("s_cbranch_scc1 L_qaret")
    a("s_waitcnt vmcnt(0)"); a("s_branch L_qaret")
    a.label("L_qepi")
    a(f"ds_read_b32 v{E3}, v{E2}")
    for n, m in enumerate((2, 3, 0, 1)):
        A = ACC + 20*m; T = 96 + 12*m
        cv = [f"v_cvt_pk_bf16_f32 v{T+q}, v{A+2*q}, v{A+2*q+1}" for q in range(10)]
        if n < 3: weave(aug((3, 0, 1)[n]), ([""]*2 if n == 0 else []) + cv, 2)
        else:
            for x in cv: a(x)
        if n == 0: a("s_waitcnt lgkmcnt(0)"); a(f"v_readfirstlane_b32 s3, v{E3}")
        for q in (0, 1, 4, 5): a(f"v_permlane16_swap_b32 v{T+q}, v{T+q+2}")
        if n == 0: a("s_cmp_eq_u32 s3, 0")
        a(f"s_cbranch_scc1 L_qs{m}")
        for fl in ("sc1", ""):
            a(f"buffer_store_dwordx4 {vr(T,4)}, v{E0}, {WS}, s62 offen offset:{(m>>1)*1280+(m&1)*256} {fl}")
            a(f"buffer_store_dwordx4 {vr(T+4,4)}, v{E0}, {WS}, s59 offen offset:{(m>>1)*1280+(m&1)*256} {fl}")
            a(f"buffer_store_dwordx2 {vr(T+8,2)}, v{E1}, {WS}, s58 offen offset:{1024+(m>>1)*1280+(m&1)*128} {fl}")
            if fl: a(f"s_branch L_qe{m}"); a.label(f"L_qs{m}")
        a.label(f"L_qe{m}")
    a.stampw(3)
    for x in oareads: a(x)
    a("s_waitcnt vmcnt(0) lgkmcnt(0)"); a("s_barrier")
    a.label("L_ophase")
    if qd: a.stamp(6, True)
    a("v_lshlrev_b32 v252, 10, v0"); a("s_mov_b64 exec, 3")
    a.poll([f"buffer_load_dword v253, v252, {WS}, s{sFQ} offen sc1"], [253], OT, 0)
    a("s_mov_b64 exec, -1")
    if qd: a.stamp(7, True)
    for l in qloads: a(l)
    a(f"s_add_u32 s3, s{sQA}, 10240")
    a(f"buffer_load_dwordx4 {vr(QF2,4)}, v7, {WS}, s3 offen sc1"); a(f"buffer_load_dwordx2 {vr(QF2+4,2)}, v1, {WS}, s3 offen offset:1024 sc1")
    a(f"buffer_load_dword v130, v255, {WS}, 0 offen offset:1024 sc1")
    gather_sgprs()
    a("s_waitcnt vmcnt(0)")
    if qd: a.stamp(8, True)
    for P, Q_ in ((96, QF), (P0, QF2)):
        a(f"v_mfma_f32_32x32x16_bf16 {vr(P,16)}, {vr(OA,4)}, {vr(Q_,4)}, 0")
        a(f"v_mfma_f32_32x32x8_bf16 {vr(P,16)}, {vr(OA+8,2)}, {vr(Q_+4,2)}, {vr(P,16)}")
        a(f"v_mfma_f32_32x32x16_bf16 {vr(P+16,16)}, {vr(OA+4,4)}, {vr(Q_,4)}, 0")
        a(f"v_mfma_f32_32x32x8_bf16 {vr(P+16,16)}, {vr(OA+10,2)}, {vr(Q_+4,2)}, {vr(P+16,16)}")
    a(f"s_cmp_lt_u32 s{sWV}, 4"); a("s_cbranch_scc1 L_op1")
    wo_round(0); wo_round(1)
    a.label("L_op1")
    a(f"v_mov_b32 v128, v{OT+2}"); qscale(128); qscale(130)
    sa = softmax_ops(list(range(96, 116)), PHQ2, 128, OT); sb = softmax_ops(list(range(P0, P0+20)), PHQ, 130, OT)
    for x in sa[:11] + sb[:11] + sa[11:]: a(x)
    a.stampw(4)
    a(f"s_cmp_lt_u32 s{sWV}, 4"); a("s_cbranch_scc1 L_op2")
    wo_round(2); wo_round(3)
    a.label("L_op2")
    for x in sb[11:]: a(x)
    a.stampw(5)
    a(f"s_cmp_lt_u32 s{sWV}, 4"); a("s_cbranch_scc0 L_op3")
    a(tload); a("s_branch L_kvwait")
    a.label("L_op3")
    ksample = lambda r: f"s_mov_b64 exec, 1\nv_mov_b32 v{r}, 0\nbuffer_atomic_or v{r}, v0, {WS}, s{sKHP} offen sc0 sc1\ns_mov_b64 exec, -1"
    a(f"s_cmp_eq_u32 s{sWV}, 7"); a("s_cbranch_scc1 L_op4")
    if ql: wo_last()
    a("s_branch L_kvwait")
    a.label("L_op4")
    if pp: a(ksample(18))
    if ql: wo_round(4)
    if pp: a(ksample(19))
    a.label("L_phix")
    a.cnt_watch(1, 0, f"s{sKHP}", f"{SENT + 16:#x}", 18, [None, None, []] if pp else [[], [], []], pp)
    a("s_barrier")
    a(f"s_lshl_b32 s53, s{sX}, 7"); a(f"s_add_u32 s53, s53, {WS_FH}"); a("v_lshlrev_b32 v16, 10, v0")
    a("v_lshrrev_b32 v14, 2, v0"); a("v_lshlrev_b32 v14, 9, v14"); a("v_lshl_add_u32 v14, v0, 7, v14"); a("v_mov_b32 v15, 1")
    a("s_cmp_lt_u32 s57, 4"); a("s_cselect_b64 s[54:55], 15, 0xff")
    a.cnt_poll(2, 16, "s53", f"{SENT + 32:#x}", 21)
    a("s_branch L_kred")
    for k, n in enumerate((hk0, hk1)):
        if pp:
            a.label(f"L_hk{n}")
            a("s_mov_b64 exec, 1"); a(f"v_mov_b32 v{18+k}, 0"); a(f"buffer_atomic_or v{18+k}, v0, {WS}, s{sKHP} offen sc0 sc1"); a("s_mov_b64 exec, -1"); a(f"s_branch L_hr{n}")
    a.label("L_o2")
    m1 = omfma(P1, PHQ2); m0 = omfma(P0, PHQ)
    for q in range(3): a(f"s_waitcnt lgkmcnt({2-q})"); a(m1[q])
    for x in m0: a(x)
    ofin(P1, 24)
    a(f"s_add_u32 s{sO0}, s{sO0}, 327680"); a(f"s_add_u32 s{sO1}, s{sO1}, 327680")
    a("s_branch L_o1")

    a.label("L_helper")
    for r, off in ((rWR, 40), (rG, 48), (rU, 56), (rDN, 64)): a(f"s_load_dwordx2 s[{r}:{r+1}], s[0:1], {off}")
    a.srdw(rWR, D*2)
    XR, CR, WR, FF = 16, 36, 56, 76
    a(f"s_sub_u32 s54, s{sJR}, 24"); a(f"s_lshl3_add_u32 s55, s{sX}, s54")
    a(f"s_lshl3_add_u32 s56, s55, s{sWV}")
    a("v_lshrrev_b32 v3, 4, v0"); a("v_and_b32 v4, 15, v0"); a("v_lshlrev_b32 v4, 4, v4")
    a("s_lshl_b32 s3, s56, 2"); a("v_add_u32 v5, s3, v3"); a("s_movk_i32 s3, 1280"); a("v_mad_u32_u24 v6, v5, s3, v4")
    a(f"s_lshr_b32 s57, s{sX}, 1"); a(f"s_and_b32 s58, s{sX}, 1")
    a("s_lshl3_add_u32 s59, s57, s54"); a("s_lshr_b32 s60, s59, 1"); a("s_and_b32 s59, s59, 1")
    a("s_mul_i32 s3, s60, 52"); a("s_lshr_b32 s3, s3, 8"); a("s_add_u32 s3, s3, s58"); a("s_mul_i32 s3, s3, 640"); a("s_lshl_b32 s61, s60, 7"); a("s_add_u32 s61, s61, s3")
    a(f"s_lshr_b32 s3, s{sWV}, 2"); a("s_lshl1_add_u32 s3, s3, s59"); a(f"s_and_b32 s53, s{sWV}, 3"); a("s_lshl2_add_u32 s3, s3, s53"); a("s_mul_i32 s3, s3, 30720"); a("s_add_u32 s3, s3, s61")
    a("s_cmp_eq_u32 s60, 15"); a(f"s_cselect_b32 s3, {OOB:#x}, s3")
    a("v_lshrrev_b32 v7, 3, v0"); a("v_mul_u32_u24 v7, 3840, v7"); a("v_and_b32 v8, 7, v0"); a("v_lshl_add_u32 v7, v8, 4, v7"); a("v_add_u32 v7, s3, v7")
    a("s_waitcnt lgkmcnt(0)")
    if cut: a.stamp(3)
    hv = VM(a)
    def hld(o):
        i = int(o[1])
        if o[0] == "x": hv(f"buffer_load_dwordx4 {vr(XR+4*i,4)}, v6, s[{rX}:{rX+3}], 0 offen offset:{256*i}", "x")
        else: a(f"s_mov_b32 s62, {491520*i}"); hv(f"buffer_load_dwordx4 {vr(CR+4*i,4)}, v7, s[{rW}:{rW+3}], s62 offen", "c")
    first, later = [("x1 c1 | x2 | x3 x4 x0", "c2 c3 c4 c0"), ("x1 c1 | x2 c2 | x3 x4 x0", "c3 c4 c0"), ("x1 c1 | x2 c2 | x3 c3 | x4 c4 | x0 c0", ""), ("x1 x2 | x3 x4 x0", "c1 c2 c3 c4 c0")][hord]
    later = later.split()
    for o in first.split():
        if o == "|": a("s_barrier")
        else: hld(o)
    for i in range(5): hv(f"buffer_load_dwordx4 {vr(WR+4*i,4)}, v4, s[{rWR}:{rWR+3}], 0 offen offset:{256*i}", "wr")
    srds(); a.srdw(rG, D*F*2)
    a("v_lshlrev_b32 v2, 4, v0")
    for q in range(4): a(f"v_mov_b32 v{12+q}, s{sSENT}")
    a("s_mul_i32 s62, s56, 3072"); a(f"s_add_u32 s62, s62, {WS_CLR}")
    if noclr & 4: a(f"s_mov_b32 s62, {OOB:#x}")
    for i in range(3): hv(f"buffer_store_dwordx4 v[12:15], v2, {WS}, s62 offen offset:{1024*i} sc1", "clr")
    a("v_lshrrev_b32 v130, 3, v0"); a("v_mul_u32_u24 v130, 3072, v130"); a("v_lshl_add_u32 v130, v8, 4, v130")
    a(f"s_cmp_ge_u32 s{sWV}, 3"); a("s_cselect_b32 s64, 3, 0"); a(f"s_cselect_b64 s[{rG}:{rG+1}], s[{rU}:{rU+1}], s[{rG}:{rG+1}]")
    a(f"s_sub_u32 s65, s{sWV}, s64")
    a("s_mul_i32 s68, s54, 245760"); a(f"s_mul_i32 s3, s{sX}, 384"); a("s_add_u32 s68, s68, s3"); a("s_lshl_b32 s3, s65, 7"); a("s_add_u32 s68, s68, s3")
    a(f"s_mul_i32 s69, s{sWV}, 10240"); a("s_movk_i32 s70, 24576"); a("s_movk_i32 s71, 1024"); a("s_mov_b32 s67, -1")
    a(f"s_cmp_lt_u32 s{sWV}, 6"); a("s_cbranch_scc1 L_hsw")
    a(f"s_mov_b64 s[{rG}:{rG+1}], s[{rDN}:{rDN+1}]")
    a("v_mul_u32_u24 v130, 6554, v0"); a("v_lshrrev_b32 v130, 16, v130"); a("v_mul_u32_u24 v130, 1120, v130"); a("v_add_u32 v130, v130, v2")
    a(f"s_sub_u32 s3, 7, s{sWV}"); a(f"s_mul_i32 s69, s3, {960*(f0+f1)}"); a(f"s_add_u32 s69, s69, {L_DI}"); a(f"s_mul_i32 s3, s3, {7680*(f0+f1)}")
    a(f"s_mul_i32 s68, s{sX}, 245760"); a("s_add_u32 s68, s68, s3"); a("s_mul_i32 s3, s54, 160"); a("s_add_u32 s68, s68, s3")
    a("s_movk_i32 s70, 7680"); a("s_movk_i32 s71, 960"); a("s_mov_b32 s67, 0x0fffffff")
    a.label("L_hsw")
    def ffn_dma(n):
        if n == 0: return
        a("s_mov_b32 exec_hi, s67")
        for _ in range(n):
            a("s_mov_b32 m0, s69"); a("s_add_u32 s69, s69, s71")
            hv(f"buffer_load_dwordx4 v130, s[{rG}:{rG+3}], s68 offen {'nt' if fnt else ''} lds", "f")
            a("s_add_u32 s68, s68, s70")
        a("s_mov_b32 exec_hi, -1")
    def oclear():
        a("s_mul_i32 s66, s56, 5120"); a(f"s_add_u32 s66, s66, {WS_O}"); a("s_add_u32 s63, s66, 4096")
        for i in range(5): hv(f"buffer_store_dwordx4 v[12:15], v2, {WS}, s{66 if i < 4 else 63} offen offset:{1024*(i%4)} sc1", "oc")
    a.readyaddr(117)
    hv.wait("x")
    a.stampw(1)
    for o in later[:-2]: hld(o)
    for q in range(20):
        a(f"v_lshlrev_b32 v{FF+2*q}, 16, v{XR+q}"); a(f"v_and_b32 v{FF+2*q+1}, 0xffff0000, v{XR+q}")
    a(f"v_pk_add_f32 v[120:121], {vr(FF,2)}, {vr(FF+2,2)}"); a(f"v_pk_add_f32 v[122:123], {vr(FF+4,2)}, {vr(FF+6,2)}")
    for q in range(8, 40, 4):
        a(f"v_pk_add_f32 v[120:121], v[120:121], {vr(FF+q,2)}"); a(f"v_pk_add_f32 v[122:123], v[122:123], {vr(FF+q+2,2)}")
    a("v_pk_add_f32 v[120:121], v[120:121], v[122:123]"); a("v_add_f32 v120, v120, v121")
    a.rowsum16(120)
    a("v_mul_f32 v120, 0x3acccccd, v120")
    hv(a.readyload(118, 117), "rdy")
    for o in later[-2:]: hld(o)
    for q in range(20): a(f"v_pk_add_f32 {vr(FF+2*q,2)}, {vr(FF+2*q,2)}, v[120:121] op_sel_hi:[1,0] neg_lo:[0,1] neg_hi:[0,1]")
    a(f"v_pk_mul_f32 v[122:123], {vr(FF,2)}, {vr(FF,2)}"); a(f"v_pk_mul_f32 v[124:125], {vr(FF+2,2)}, {vr(FF+2,2)}")
    for q in range(4, 40, 4):
        a(f"v_pk_fma_f32 v[122:123], {vr(FF+q,2)}, {vr(FF+q,2)}, v[122:123]"); a(f"v_pk_fma_f32 v[124:125], {vr(FF+q+2,2)}, {vr(FF+q+2,2)}, v[124:125]")
    a("v_pk_add_f32 v[122:123], v[122:123], v[124:125]"); a("v_add_f32 v122, v122, v123")
    a.rowsum16(122)
    a("v_mul_f32 v122, 0x3acccccd, v122")
    a("v_cvt_pk_bf16_f32 v122, v122, v122"); a("v_and_b32 v122, 0xffff0000, v122"); a("v_add_f32 v122, 0x3727c5ac, v122")
    a("v_cvt_pk_bf16_f32 v122, v122, v122"); a("v_and_b32 v122, 0xffff0000, v122"); a("v_sqrt_f32 v122, v122")
    a("v_cvt_pk_bf16_f32 v126, v120, v122")
    a("v_and_b32 v122, 0xffff0000, v126"); a("v_rcp_f32 v124, v122"); a("v_lshlrev_b32 v121, 16, v126")
    a("v_sub_f32 v121, v120, v121"); a("v_mul_f32 v125, v121, v124")
    a("v_mov_b32 v128, 0"); a("v_mov_b32 v129, 0")
    for q in range(20): a(f"v_pk_fma_f32 {vr(FF+2*q,2)}, {vr(FF+2*q,2)}, v[124:125], v[124:125] op_sel:[0,0,1] op_sel_hi:[1,0,1]")
    for q in range(20): a(f"v_cvt_pk_bf16_f32 v{XR+q}, v{FF+2*q}, v{FF+2*q+1}")
    hv.wait("wr")
    for q in range(20): a(f"v_dot2c_f32_bf16 v{128+(q&1)}, v{XR+q}, v{WR+q}")
    a("v_add_f32 v128, v128, v129")
    a.rowsum16(128)
    a("v_cvt_pk_bf16_f32 v128, v128, v128"); a("v_ashrrev_i32 v129, 31, v128"); a("v_or_b32 v129, 0x80000000, v129"); a("v_xor_b32 v128, v128, v129")
    a("v_and_b32 v128, 0xffff0000, v128"); a("v_sub_u32 v129, 2047, v5"); a("v_or_b32 v127, v128, v129")
    a(f"s_lshl_b32 s3, s{sWV}, 5"); a(f"s_add_u32 s3, s3, {L_HM}"); a("v_lshl_add_u32 v129, v3, 3, s3")
    a("ds_write_b64 v129, v[126:127]")
    a(f"v_mov_b32 v1, {L_XN+512}"); a("v_mov_b64 v[120:121], 0"); a("ds_write_b64 v1, v[120:121] offset:16"); a("ds_write_b32 v1, v120 offset:24")
    hv.wait("clr", "rdy", lgkm=True)
    a.readycheck(118, 117)
    a("s_barrier")
    a(f"s_cmp_eq_u32 s{sWV}, 7"); a("s_cbranch_scc0 L_h2")
    a("s_setprio 1")
    a("v_and_b32 v129, 31, v0"); a(f"v_lshlrev_b32 v128, 3, v129"); a(f"v_add_u32 v128, {L_HM}, v128"); a("ds_read_b64 v[126:127], v128")
    a("s_lshl_b32 s63, s55, 7"); a(f"s_add_u32 s62, s63, {WS_SM}"); a(f"s_add_u32 s66, s63, {WS_C1}"); a("v_lshlrev_b32 v129, 2, v129"); a("v_mov_b32 v125, 0")
    a("s_getreg_b32 s3, hwreg(HW_REG_XCC_ID)"); a("v_mov_b32 v124, s3")
    a("s_waitcnt lgkmcnt(0)")
    a(f"buffer_store_dword v126, v129, {WS}, s62 offen sc1")
    a.top2(127, 125, 128, 62, 63)
    a("v_mov_b32 v122, s62"); a("v_mov_b32 v123, s63")
    a("s_mov_b64 exec, 1")
    a(f"buffer_store_dwordx3 v[122:124], off, {WS}, s66 sc1")
    a("s_mov_b64 exec, -1")
    a("s_and_b32 s3, s55, 3"); a("s_lshl_b32 s3, s3, 10")
    a.cnt_add(8, "s3", 126)
    a("s_waitcnt vmcnt(3)"); a("s_branch L_h2a")
    a.label("L_h2")
    a("s_waitcnt vmcnt(0)")
    a.label("L_h2a")
    a.stampw(2)
    ffn_dma(f0)
    a("s_mov_b32 s62, 0x00003f80"); a("s_mov_b32 s63, 0x3f800000")
    for r in range(0, 8, 2): a(f"v_mov_b64 {vr(FF+r,2)}, 0")
    for i in range(5):
        for q in range(4):
            a(f"v_dot2c_f32_bf16 v{FF+2*q}, s62, v{CR+4*i+q}"); a(f"v_dot2c_f32_bf16 v{FF+2*q+1}, s63, v{CR+4*i+q}")
    for q in range(4): a(f"v_permlane32_swap_b32 v{FF+q}, v{FF+q+4}")
    a(f"v_pk_add_f32 {vr(FF,2)}, {vr(FF,2)}, {vr(FF+4,2)}"); a(f"v_pk_add_f32 {vr(FF+2,2)}, {vr(FF+2,2)}, {vr(FF+6,2)}")
    for q in range(2): a(f"v_permlane16_swap_b32 v{FF+q}, v{FF+q+2}")
    a(f"v_pk_add_f32 {vr(FF,2)}, {vr(FF,2)}, {vr(FF+2,2)}")
    for q in range(2): a(f"v_add_f32_dpp v{FF+q}, v{FF+q}, v{FF+q} row_ror:8 row_mask:0xf bank_mask:0xf")
    a(f"s_lshl_b32 s3, s{sWV}, 8"); a(f"s_add_u32 s3, s3, {L_HM+256}"); a("v_lshl_add_u32 v129, v8, 5, s3"); a("v_lshl_add_u32 v129, v3, 3, v129")
    a(f"ds_write_b64 v129, {vr(FF,2)}")
    a("v_mov_b32 v39, v1")
    a("s_waitcnt lgkmcnt(0)"); a("s_barrier")
    a(f"s_cmp_eq_u32 s{sWV}, 0"); a("s_cbranch_scc0 L_h3")
    a("v_lshlrev_b32 v119, 2, v0"); a(f"v_add_u32 v128, {L_HM+256}, v119")
    for q in range(8): a(f"ds_read_b32 v{FF+q}, v128 offset:{256*q}")
    a("s_lshl_b32 s63, s61, 1"); a("s_mul_i32 s3, s59, 7680"); a("s_add_u32 s63, s63, s3"); a(f"s_add_u32 s63, s63, {WS_CS}")
    a("s_cmp_eq_u32 s60, 15"); a(f"s_cselect_b32 s63, {OOB:#x}, s63")
    a("s_waitcnt lgkmcnt(0)")
    a(f"v_pk_add_f32 {vr(FF,2)}, {vr(FF,2)}, {vr(FF+2,2)}"); a(f"v_pk_add_f32 {vr(FF+4,2)}, {vr(FF+4,2)}, {vr(FF+6,2)}")
    a(f"v_pk_add_f32 {vr(FF,2)}, {vr(FF,2)}, {vr(FF+4,2)}"); a(f"v_add_f32 v{FF}, v{FF}, v{FF+1}")
    a(f"v_and_b32 v{FF+1}, 0xffff0000, v{FF}"); a(f"v_sub_f32 v{FF}, v{FF}, v{FF+1}"); a(f"v_cvt_pk_bf16_f32 v{FF}, v{FF+1}, v{FF}")
    a(f"buffer_store_dword v{FF}, v119, {WS}, s63 offen sc1")
    a.label("L_h3")
    a("s_barrier")
    a(f"s_cmp_eq_u32 s{sWV}, 7"); a("s_cbranch_scc1 L_hroute")
    if p6:
        a(f"s_cmp_eq_u32 s{sWV}, 6"); a("s_cbranch_scc0 L_h3p"); a("s_setprio 1"); a.label("L_h3p")
    ffn_dma(10 - f0 - f1)
    a(f"s_cmp_eq_u32 s{sWV}, 6"); a("s_cbranch_scc0 L_h4")
    a("s_mov_b32 s53, 0")
    a.label("L_h4a"); ffn_dma(1); a("s_add_u32 s53, s53, 1"); a(f"s_cmp_lt_u32 s53, {22 - f0 - f1}"); a("s_cbranch_scc1 L_h4a")
    a.label("L_h4")
    if wt:
        a("s_mul_i32 s3, s56, 1600"); a("v_min_u32 v9, 12, v0"); a("v_lshlrev_b32 v9, 7, v9")
        a(f"buffer_load_dword v116, v9, s[{rWO}:{rWO+3}], s3 offen")
    oclear()
    a("s_or_b32 s3, s56, 7"); a("s_mul_i32 s3, s3, 5120"); a(f"s_lshl_b32 s53, s{sWV}, 10"); a("s_add_u32 s3, s3, s53"); a(f"s_add_u32 s3, s3, {WS_O}")
    a(f"s_cmp_lt_u32 s{sWV}, 5"); a(f"s_cselect_b32 s3, s3, {OOB:#x}")
    a(f"buffer_store_dwordx4 v[12:15], v2, {WS}, s3 offen sc1")
    if cut: a("s_branch L_fin")
    a("v_lshrrev_b32 v5, 5, v0"); a("v_bfe_u32 v4, v0, 2, 2"); a("v_lshl_add_u32 v6, v5, 3, v4"); a("v_and_b32 v11, 1, v0")
    a("v_bfe_u32 v9, v0, 4, 1"); a("v_and_b32 v131, 3, v0"); a("v_lshl_add_u32 v131, v9, 2, v131"); a("v_lshlrev_b32 v131, 3, v131")
    GB = 132; DG = 176
    a("v_and_b32 v26, 31, v0"); a("v_lshlrev_b32 v36, 2, v26"); a("s_movk_i32 s3, 768"); a("v_mad_u32_u24 v36, v5, s3, v36")
    a("s_mul_i32 s62, s55, 3072"); a("s_lshl_b32 s3, s64, 9"); a("s_add_u32 s62, s62, s3"); a("s_lshl_b32 s3, s65, 8"); a("s_add_u32 s62, s62, s3"); a(f"s_add_u32 s62, s62, {WS_GP}")
    a("s_mov_b32 s60, 0")
    wo_addr()
    a("v_mul_u32_u24 v10, 160, v11"); a("v_lshl_add_u32 v10, v5, 4, v10"); a(f"v_add_u32 v10, {L_XN}, v10")
    a("v_cmp_gt_u32 vcc, 32, v0")
    a(f"s_cmp_lt_u32 s{sWV}, 6"); a("s_cbranch_scc0 L_h5a")
    a(f"s_mul_i32 s3, s{sWV}, 10240"); a("v_lshl_add_u32 v9, v6, 7, v131"); a("v_add_u32 v9, s3, v9")
    a("s_waitcnt vmcnt(6)")
    for s_ in range(5):
        for nt in range(2):
            for j in range(2): a(f"ds_read_b64_tr_b16 {vr(GB+8*s_+4*nt+2*j,2)}, v9 offset:{2048*s_+512*j+64*nt}")
    a.label("L_h5a")
    def ldspoll(off, n):
        top = a.newlab("L_lp"); out = a.newlab("L_lo")
        a("s_mov_b32 s53, 0")
        a.label(top)
        a(f"ds_read_b32 v9, v39 offset:{off}"); a("s_add_u32 s53, s53, 1"); a(f"s_cmp_gt_u32 s53, {64*SPIN}"); a(f"s_cbranch_scc1 {out}")
        a("s_waitcnt lgkmcnt(0)"); a("v_readfirstlane_b32 s3, v9"); a(f"s_cmp_lt_u32 s3, {n}"); a(f"s_cbranch_scc1 {top}")
        a.label(out)
    a("s_waitcnt vmcnt(0) lgkmcnt(0)")
    a("v_mov_b32 v9, 1"); a("s_mov_b64 exec, 1"); a("ds_add_u32 v39, v9 offset:24"); a("s_mov_b64 exec, -1")
    a.stampw(12)
    a(f"s_cmp_eq_u32 s{sWV}, 6"); a("s_cbranch_scc1 L_hbulk")
    a("v_and_b32 v9, 15, v0"); a("v_lshlrev_b32 v37, 3, v9"); a("v_mul_u32_u24 v38, 768, v3"); a("v_add_u32 v37, v37, v38")
    a("v_bfe_u32 v38, v0, 4, 1"); a("v_mul_u32_u24 v38, 384, v38"); a("v_lshl_add_u32 v38, v9, 2, v38"); a("v_lshl_add_u32 v38, v5, 1, v38")
    a(f"s_lshl_b32 s3, s{sWV}, 6"); a(f"s_add_u32 s3, s3, {L_HB}"); a("v_add_u32 v38, s3, v38")
    a(f"s_mul_i32 s66, s{sX}, 24576"); a(f"s_lshl_b32 s3, s{sWV}, 7"); a("s_add_u32 s66, s66, s3"); a(f"s_add_u32 s66, s66, {WS_GP}")
    gl = ["s_mov_b32 s63, s66"]
    for p in range(8):
        gl.append(f"buffer_load_dwordx2 {vr(FF+2*p,2)}, v37, {WS}, s63 offen offset:{3072*(p&1)} sc1")
        if p & 1 and p < 7: gl.append("s_add_u32 s63, s63, 6144")
    for x in gl: a(x)
    ldspoll(16, 1)
    a.stampw(3)
    a("ds_read_b96 v[122:124], v39")
    for s_ in range(5): a(f"ds_read_b128 {vr(XR+4*s_,4)}, v10 offset:{32*s_}")
    for s_ in range(5):
        a(f"s_waitcnt lgkmcnt({4-s_})")
        for nt in range(2): a(f"v_mfma_f32_32x32x16_bf16 {vr(DG+16*nt,16)}, {vr(XR+4*s_,4)}, {vr(GB+8*s_+4*nt,4)}, {vr(DG+16*nt,16) if s_ else 0}")
    a("v_readfirstlane_b32 s53, v124")
    for nt in range(2): a(f"v_cndmask_b32 v{120+nt}, v{DG+16*nt+1}, v{DG+16*nt}, vcc")
    a("s_cmp_eq_u32 s53, 0"); a("s_cbranch_scc1 L_h7")
    for nt in range(2): a(f"buffer_store_dword v{120+nt}, v36, {WS}, s62 offen offset:{128*nt} sc1")
    a("s_branch L_h8")
    a.label("L_h7")
    for nt in range(2): a(f"buffer_store_dword v{120+nt}, v36, {WS}, s62 offen offset:{128*nt}")
    a.label("L_h8")
    a.stampw(4)
    a("s_waitcnt vmcnt(0)")
    a.poll(gl, range(FF, FF+16), 10, 0)
    for q in range(4): a(f"v_pk_add_f32 {vr(FF+2*q,2)}, {vr(FF+2*q,2)}, {vr(FF+2*q+8,2)}")
    for q in range(2): a(f"v_pk_add_f32 {vr(FF+2*q,2)}, {vr(FF+2*q,2)}, {vr(FF+2*q+4,2)}")
    a(f"v_pk_add_f32 {vr(FF,2)}, {vr(FF,2)}, {vr(FF+2,2)}")
    a(f"v_permlane32_swap_b32 v{FF}, v{FF+1}")
    a(f"v_cvt_pk_bf16_f32 v120, v{FF}, v{FF+1}"); a("v_lshlrev_b32 v121, 16, v120"); a("v_and_b32 v120, 0xffff0000, v120")
    a(f"v_mul_f32 v119, {LOG2E|0x80000000:#x}, v121"); a("v_exp_f32 v119, v119"); a("v_add_f32 v119, 1.0, v119"); a("v_rcp_f32 v119, v119")
    a("v_mul_f32 v121, v121, v119"); a("v_cvt_pk_bf16_f32 v121, v121, v121"); a("v_and_b32 v121, 0xffff0000, v121")
    a("v_mul_f32 v121, v121, v120"); a("v_cvt_pk_bf16_f32 v121, v121, v121")
    a("ds_write_b16 v38, v121")
    a("v_mov_b32 v9, 1"); a("s_mov_b64 exec, 1"); a("ds_add_u32 v39, v9 offset:20"); a("s_mov_b64 exec, -1")
    a(f"s_cmp_lt_u32 s{sWV}, 5"); a("s_cbranch_scc0 L_h13")
    ldspoll(24, 7)
    a("v_lshl_add_u32 v8, v3, 3, v4"); a("v_mul_u32_u24 v8, 160, v8"); a("v_and_b32 v10, 3, v0"); a("v_lshl_add_u32 v8, v10, 3, v8")
    a(f"s_lshl_b32 s3, s{sWV}, 5"); a(f"s_add_u32 s3, s3, {L_DI}"); a("v_add_u32 v8, s3, v8")
    for s_ in range(6):
        for j in range(2): a(f"ds_read_b64_tr_b16 {vr(GB+4*s_+2*j,2)}, v8 offset:{5120*s_+640*j}")
    a("v_mul_u32_u24 v10, 384, v11"); a("v_lshl_add_u32 v10, v3, 4, v10"); a(f"v_add_u32 v10, {L_HB}, v10")
    ldspoll(20, 6)
    a.stampw(5)
    for s_ in range(6):
        a(f"ds_read_b128 {vr(40+4*s_,4)}, v10 offset:{64*s_}")
    a("v_and_b32 v9, 3, v0"); a("v_lshlrev_b32 v9, 2, v9"); a("v_lshl_add_u32 v9, v4, 7, v9"); a("s_movk_i32 s3, 20480"); a("v_mad_u32_u24 v9, v3, s3, v9"); a("v_cmp_gt_u32 vcc, 16, v0")
    a(f"s_lshl_b32 s62, s{sX}, 4"); a("s_mul_i32 s3, s54, 2560"); a("s_add_u32 s62, s62, s3"); a(f"s_lshl_b32 s3, s{sWV}, 9"); a("s_add_u32 s62, s62, s3"); a(f"s_add_u32 s62, s62, {WS_YP}")
    a("s_waitcnt lgkmcnt(0)")
    for s_ in range(6): a(f"v_mfma_f32_16x16x32_bf16 {vr(DG,4)}, {vr(40+4*s_,4)}, {vr(GB+4*s_,4)}, {vr(DG,4) if s_ else 0}")
    a(f"v_cndmask_b32 v120, v{DG+1}, v{DG}, vcc")
    a("s_mov_b32 exec_hi, 0"); a(f"buffer_store_dword v120, v9, {WS}, s62 offen sc1"); a("s_mov_b32 exec_hi, -1")
    a.stampw(6)
    a("s_branch L_h13")
    a.label("L_hroute")
    a(f"s_lshl_b32 s53, s{sX}, 7"); a("v_lshlrev_b32 v124, 10, v0")
    a.cnt_poll(4, 124, "s53", f"{SENT + 16:#x}", 125)
    a.stampw(3)
    a("v_lshlrev_b32 v126, 7, v0"); a(f"v_add_u32 v126, {WS_C1}, v126")
    a.poll([f"buffer_load_dwordx3 v[122:124], v126, {WS}, 0 offen sc1"], [122, 123, 124], 125, 0)
    a.stampw(4)
    a("s_getreg_b32 s3, hwreg(HW_REG_XCC_ID)"); a("v_cmp_ne_u32 vcc, s3, v124"); a(f"s_lshl_b32 s3, s{sX}, 3"); a("s_lshr_b64 s[62:63], vcc, s3"); a("s_and_b32 s62, s62, 0xff")
    if not loc: a("s_mov_b32 s62, 1")
    a.top2(122, 123, 125, sK1, sK2)
    a(f"v_mov_b32 v122, s{sK1}"); a(f"v_mov_b32 v123, s{sK2}"); a("v_mov_b32 v124, s62"); a("ds_write_b96 v39, v[122:124]")
    a("s_cmp_eq_u32 s55, 0"); a(f"s_mov_b32 s3, {WS_TOP}"); a(f"s_cselect_b32 s3, s3, {OOB:#x}")
    a("s_mov_b64 exec, 1"); a(f"buffer_store_dwordx2 v[122:123], off, {WS}, s3 sc1"); a("s_mov_b64 exec, 0xfffff")
    a("v_cmp_lt_u32 vcc, 9, v0"); a("v_cndmask_b32 v9, v122, v123, vcc"); a("v_and_b32 v9, 0x7ff, v9"); a("v_sub_u32 v9, 2047, v9")
    a("v_lshlrev_b32 v10, 2, v9"); a(f"v_add_u32 v10, {WS_SM}, v10"); a("v_mul_u32_u24 v9, 1280, v9"); a("v_add_u32 v9, v9, v2")
    a("v_subrev_u32 v11, 160, v9"); a("v_cndmask_b32 v9, v9, v11, vcc"); a("s_mul_i32 s53, s54, 160")
    a.stampw(5)
    a(f"buffer_load_dwordx4 {vr(XR,4)}, v9, s[{rX}:{rX+3}], s53 offen")
    a.poll([f"buffer_load_dword v126, v10, {WS}, 0 offen sc1"], [126], 125, 0)
    a.stampw(6)
    a("v_and_b32 v122, 0xffff0000, v126"); a("v_rcp_f32 v124, v122"); a("v_lshlrev_b32 v120, 16, v126")
    for q in range(4):
        a(f"v_lshlrev_b32 v{FF+2*q}, 16, v{XR+q}"); a(f"v_and_b32 v{FF+2*q+1}, 0xffff0000, v{XR+q}")
    for q in range(4): a(f"v_pk_add_f32 {vr(FF+2*q,2)}, {vr(FF+2*q,2)}, v[120:121] op_sel_hi:[1,0] neg_lo:[0,1] neg_hi:[0,1]")
    for q in range(4): a(f"v_pk_mul_f32 {vr(FF+2*q,2)}, {vr(FF+2*q,2)}, v[124:125] op_sel_hi:[1,0]")
    for q in range(4): a(f"v_cvt_pk_bf16_f32 v{XR+q}, v{FF+2*q}, v{FF+2*q+1}")
    a(f"v_add_u32 v9, {L_XN}, v2"); a(f"ds_write_b128 v9, {vr(XR,4)}")
    a("s_mov_b64 exec, -1")
    a("v_mov_b32 v9, 1"); a("ds_write_b32 v39, v9 offset:16")
    a("s_setprio 0")
    if cut: a("s_branch L_fin")
    ldspoll(20, 6)
    a(f"s_lshl_b32 s53, s{sX}, 7"); a(f"s_add_u32 s53, s53, {WS_FH}"); a("v_lshlrev_b32 v9, 10, v0")
    a.cnt_poll(2, 9, "s53", f"{SENT + 32:#x}", 10)
    a("s_branch L_h13")
    a.label("L_hbulk")
    ldspoll(24, 7)
    a("s_and_b32 s3, s55, 1"); a("s_lshl_b32 s3, s3, 10"); a(f"s_add_u32 s3, s3, {WS_FH}")
    a.cnt_add(8, "s3", 120)
    a(f"s_add_u32 s68, s68, {19*40960}"); a(f"s_mov_b32 s69, {19*5120}")
    a.label("L_hb1")
    for x in unit_list(rWO, "s68", 0): a(x)
    a(f"s_waitcnt vmcnt({thr})")
    a("s_sub_u32 s68, s68, 40960"); a("s_sub_u32 s69, s69, 5120"); a("s_cbranch_scc0 L_hb1")
    a("s_mov_b32 s69, 0")
    for x in unit_list(rX, "s67", L_RES): a(x)
    a("s_add_u32 s67, s67, 40960")
    for x in unit_list(rX, "s67", L_RES + 5120): a(x)
    a("s_setprio 0")
    f_setup(96, 1)
    a("s_waitcnt vmcnt(0)"); a("s_branch L_h15")
    a.label("L_h13")
    a(f"s_cmp_lt_u32 s{sWV}, 4"); a("s_cbranch_scc0 L_h14")
    f_setup(96, 0)
    a("s_branch L_h15")
    a.label("L_h14")
    f_setup(96, 1)
    a.label("L_h15")
    a("s_waitcnt lgkmcnt(0)"); a("s_barrier")
    a("ds_read_b64 v[122:123], v39"); a("s_waitcnt lgkmcnt(0)")
    a(f"v_readfirstlane_b32 s{sK1}, v122"); a(f"v_readfirstlane_b32 s{sK2}, v123")
    a.stampw(7)
    a("v_lshlrev_b32 v1, 3, v0"); a("s_mov_b32 s63, 0")
    a(f"s_cmp_lt_u32 s{sWV}, 4"); a("s_cbranch_scc1 L_c1"); a("s_branch L_c2h")
    a.label("L_end")
    body, nn = hazard.fix(a.text() + "    s_endpgm\n")
    return body, nn


HEADER = open(os.path.join(os.path.dirname(os.path.abspath(__file__)), "header.txt")).read()

def full(extra=0, **kw):
    body, nn = gen(**kw)
    t = HEADER + f"; @launch grid=(256,1,1) block=(512,1,1) lds={LDS_BYTES}\n"
    if extra:
        l0 = f"; @launch kernel={NAME} grid=(256,1,1) block=(512,1,1) lds={LDS_BYTES}\n"
        l1 = "; @launch kernel=nop_kernel grid=(256,1,1) block=(256,1,1) lds=0\n"
        t = HEADER + (l0 + l1*extra if extra > 0 else l1*(-extra) + l0)
        body += ".p2align 8\n.globl nop_kernel\n.type nop_kernel,@function\nnop_kernel:\n    s_endpgm\n"
    t += f'.amdgcn_target "amdgcn-amd-amdhsa--gfx950"\n.text\n.globl {NAME}\n.p2align 12\n.p2align 8\n.type {NAME},@function\n{NAME}:\n'
    t += body
    t += f""".section .rodata,"a"
.p2align 6
.amdhsa_kernel {NAME}
  .amdhsa_next_free_vgpr 256
  .amdhsa_next_free_sgpr 102
  .amdhsa_accum_offset 256
  .amdhsa_group_segment_fixed_size 0
  .amdhsa_kernarg_size 96
  .amdhsa_user_sgpr_count 2
  .amdhsa_user_sgpr_kernarg_segment_ptr 1
  .amdhsa_system_sgpr_workgroup_id_x 1
.end_amdhsa_kernel
"""
    if extra:
        t += """.p2align 6
.amdhsa_kernel nop_kernel
  .amdhsa_next_free_vgpr 8
  .amdhsa_next_free_sgpr 16
  .amdhsa_accum_offset 8
  .amdhsa_group_segment_fixed_size 0
  .amdhsa_kernarg_size 96
  .amdhsa_user_sgpr_count 2
  .amdhsa_user_sgpr_kernarg_segment_ptr 1
  .amdhsa_system_sgpr_workgroup_id_x 1
.end_amdhsa_kernel
"""
    return t

if __name__ == "__main__":
    out = sys.argv[1] if len(sys.argv) > 1 else "parallel_sum__linear_kernel_hedgehog__moe_arch_mod__prompt.s"
    kw = {}
    for x in sys.argv[2:]:
        k, v = x.split("="); kw[k] = int(v)
    open(out, "w").write(full(**kw))
```

```python
import sys, os
sys.path.insert(0, os.path.dirname(os.path.abspath(__file__)))
from asmlib import Asm, vr, sr
import hazard

NAME = "parallel_sum__linear_kernel_hedgehog__moe_arch_mod__prompt_kernel"
S, D, F = 2048, 640, 1536
SENT = 0xFF81FF81
OOB = 0x7FF00000
WS_SM = 0x2000
WS_CS = 0x4000
WS_C1 = 0x8000
WS_FQ = 0xB000
WS_AH = 0x0000
WS_FH = 0x1000
WS_KH = 0xD000
WS_OH = 0xE000
WS_XID = 0xA000
WS_TOP = 0x1800
WS_Q = 0x10000
WS_CLR = WS_Q + 2621440
WS_GP = WS_CLR
WS_YP = WS_GP + 196608
WS_KV = WS_YP + 40960
assert WS_KV + 917504 <= WS_CLR + 512*3072
WS_O = WS_CLR + 512*3072
WS_END = WS_O + 2621440
WS_DIAG = 0x1000000
WS_BYTES = 1 << 28
WREG = 5152
SLOT = 16384 + 4*WREG
RING = 40960
RING_END = RING + 3*SLOT
TRI = 86016
MISC = RING_END
L_PHIO = MISC
L_STAT = L_PHIO + 1024
L_CS = L_STAT + 2048
L_KVR = L_CS + 1920
L_HM = L_KVR + 2048
L_OA = L_HM
L_RES = 102400
L_XCH = L_RES + 10240
L_OUTS = L_XCH + 20480
L_DI = 112640
L_XN = L_STAT
L_HB = L_CS
LDS_BYTES = 163840
sWV, sX, sJ, sJR = 4, 5, 6, 7
rX, rW, rWS, rWO, rOUT, rDBG, rPHI, rWR, rG, rU, rDN = 8, 12, 16, 20, 24, 28, 32, 36, 40, 44, 48
sSENT = 52
LOG2E = 0x3FB8AA3B
SPIN = 200000


class K(Asm):
    def __init__(self, diag):
        super().__init__()
        self.diag = diag
    def srdw(self, r, n):
        self(f"s_mov_b32 s{r+2}, {n}"); self(f"s_mov_b32 s{r+3}, 0x20000")
    def capture(self, fn):
        keep = self.L; self.L = []; fn(); lines = [x.strip() for x in self.L]; self.L = keep
        rd = lambda x: x.startswith(("s_cselect", "s_cbranch_scc", "s_addc"))
        wr = lambda x: x.startswith("s_") and not x.startswith(("s_mov", "s_mul", "s_cselect", "s_cbranch", "s_waitcnt", "s_getreg", "s_branch", "s_sleep", "s_nop"))
        units = [[]]; pend = set(); masked = False
        for i, x in enumerate(lines):
            units[-1].append(x)
            if x.endswith(":"): pend.discard(x[:-1])
            if x.endswith(":") and any(y.endswith(" " + x[:-1]) for y in lines[i:]): pend.add("loop" + x)
            if x.startswith(("s_cbranch", "s_branch")):
                t = x.split()[1]
                if t + ":" in lines[i:]: pend.add(t)
                elif not any(y.endswith(" " + t) for y in lines[i+1:]): pend.discard("loop" + t + ":")
            if x.startswith("s_mov_b64 exec"): masked = not x.endswith("-1")
            live = next((rd(y) for y in lines[i+1:] if rd(y) or wr(y)), False)
            if not live and not pend and not masked: units.append([])
        return ["\n".join(u) for u in units if u]
    mute = ()
    def stamp(self, i, force=False):
        if i in self.mute and not force: return
        if self.diag == 4:
            if i in (0, self.probe): self(f"s_memrealtime s[{72+2*min(i,1)}:{73+2*min(i,1)}]")
            return
        if self.diag == 3: self(f"s_memtime s[{72+2*i}:{73+2*i}]")
        elif self.diag == 1 or (self.diag and i in (0, 11)): self(f"s_memrealtime s[{72+2*i}:{73+2*i}]")
    def stampw(self, i):
        if i in self.mute: return
        if self.diag == 4:
            if i == self.probe: self("s_memrealtime s[74:75]"); self("s_waitcnt lgkmcnt(0)")
            return
        if self.diag == 3: self(f"s_memtime s[{72+2*i}:{73+2*i}]"); self("s_waitcnt lgkmcnt(0)")
        elif self.diag == 1 or (self.diag and i in (0, 11)): self(f"s_memrealtime s[{72+2*i}:{73+2*i}]"); self("s_waitcnt lgkmcnt(0)")
    def maxtree(self, dst, regs):
        regs = list(regs)
        if len(regs) == 1: self(f"v_mov_b32 v{dst}, v{regs[0]}"); return
        if len(regs) == 2: self(f"v_max_u32 v{dst}, v{regs[0]}, v{regs[1]}"); return
        self(f"v_max3_u32 v{dst}, v{regs[0]}, v{regs[1]}, v{regs[2]}"); regs = regs[3:]
        while len(regs) >= 2:
            self(f"v_max3_u32 v{dst}, v{dst}, v{regs[0]}, v{regs[1]}"); regs = regs[2:]
        if regs: self(f"v_max_u32 v{dst}, v{dst}, v{regs[0]}")
    def poll(self, loads, regs, tmp, code, pre_issued=False, sleep=0):
        top = self.newlab("L_poll"); chk = self.newlab("L_chk"); out = self.newlab("L_pdone")
        self("s_mov_b32 s3, 0")
        if pre_issued: self(f"s_branch {chk}")
        self.label(top)
        self("s_add_u32 s3, s3, 1"); self(f"s_cmp_gt_u32 s3, {SPIN}"); self(f"s_cbranch_scc1 {out}")
        if sleep: self(f"s_sleep {sleep}")
        for l in loads: self(l)
        self.label(chk)
        self("s_waitcnt vmcnt(0)")
        self.maxtree(tmp, regs)
        self(f"v_cmp_eq_u32 vcc, s{sSENT}, v{tmp}")
        self(f"s_cbranch_vccnz {top}")
        self.label(out)
    def cnt_add(self, n, soff, t, stride=7):
        self(f"v_lshlrev_b32 v{t}, {stride}, v0"); self(f"v_mov_b32 v{t+1}, 1")
        self(f"s_mov_b64 exec, {(1 << n) - 1:#x}")
        self(f"buffer_atomic_add v{t+1}, v{t}, s[{rWS}:{rWS+3}], {soff} offen sc1")
        self("s_mov_b64 exec, -1")
    def cnt_poll(self, n, va, soff, ve, t, cmp="ne"):
        top = self.newlab("L_cp"); out = self.newlab("L_cdone")
        self(f"s_mov_b64 exec, {(1 << n) - 1:#x}"); self("s_mov_b32 s3, 0")
        self.label(top)
        self(f"v_mov_b32 v{t}, 0")
        self("s_add_u32 s3, s3, 1"); self(f"s_cmp_gt_u32 s3, {SPIN}"); self(f"s_cbranch_scc1 {out}")
        self(f"buffer_atomic_or v{t}, v{va}, s[{rWS}:{rWS+3}], {soff} offen sc0 sc1")
        self("s_waitcnt vmcnt(0)")
        self(f"v_cmp_{cmp}_u32 vcc, {ve}, v{t}"); self(f"s_cbranch_vccnz {top}")
        self.label(out)
        self("s_mov_b64 exec, -1")
    def cnt_watch(self, n, va, soff, ve, t, work, pipelined):
        mask = f"{(1 << n) - 1:#x}"
        sample = lambda r: [f"v_mov_b32 v{r}, 0", f"buffer_atomic_or v{r}, v{va}, s[{rWS}:{rWS+3}], {soff} offen sc0 sc1"]
        if not pipelined:
            for x in sum(work, []): self(x)
            self.cnt_poll(n, va, soff, ve, t); return
        top = self.newlab("L_cw"); out = self.newlab("L_cwdone")
        for k in range(3):
            if work[k] is None: continue
            for x in work[k]: self(x)
            self(f"s_mov_b64 exec, {mask}")
            for x in sample(t + k): self(x)
            if k < 2: self("s_mov_b64 exec, -1")
        self("s_mov_b32 s3, 0")
        self.label(top)
        for k in range(3):
            self("s_waitcnt vmcnt(2)"); self(f"v_cmp_ne_u32 vcc, {ve}, v{t+k}"); self(f"s_cbranch_vccz {out}")
            for x in sample(t + k): self(x)
        self("s_add_u32 s3, s3, 1"); self(f"s_cmp_gt_u32 s3, {SPIN}"); self(f"s_cbranch_scc0 {top}")
        self.label(out)
        self("s_mov_b64 exec, -1")
    def readyload(self, v, va): return f"buffer_load_dword v{v}, v{va}, s[{rDBG}:{rDBG+3}], 0 offen sc1"
    def readyaddr(self, va): self(f"v_and_b32 v{va}, 31, v0"); self(f"v_lshlrev_b32 v{va}, 3, v{va}")
    def readycheck(self, v, va):
        top = self.newlab("L_rp"); out = self.newlab("L_rdone")
        self("s_mov_b32 s3, 0")
        self.label(top)
        self(f"v_cmp_eq_u32 vcc, 0, v{v}"); self(f"s_cbranch_vccz {out}")
        self("s_add_u32 s3, s3, 1"); self(f"s_cmp_gt_u32 s3, {SPIN}"); self(f"s_cbranch_scc1 {out}")
        self("s_sleep 8")
        self(self.readyload(v, va)); self("s_waitcnt vmcnt(0)")
        self(f"s_branch {top}")
        self.label(out)
    def recheck(self, loads, regs, tmp, sleep=0):
        ok = self.newlab("L_ok")
        self.maxtree(tmp, regs); self(f"v_cmp_eq_u32 vcc, s{sSENT}, v{tmp}"); self(f"s_cbranch_vccz {ok}")
        self.poll(loads, regs, tmp, 0, sleep=sleep)
        self.label(ok)
    def wavemax_u32(self, v, t, sdst):
        self(f"v_max_u32_dpp v{t}, v{v}, v{v} row_ror:8 row_mask:0xf bank_mask:0xf")
        for k in (4, 2, 1): self(f"v_max_u32_dpp v{t}, v{t}, v{t} row_ror:{k} row_mask:0xf bank_mask:0xf")
        self(f"v_max_u32_dpp v{t}, v{t}, v{t} row_bcast:15 row_mask:0xa bank_mask:0xf")
        self(f"v_max_u32_dpp v{t}, v{t}, v{t} row_bcast:31 row_mask:0xc bank_mask:0xf")
        self(f"v_readlane_b32 s{sdst}, v{t}, 63")
    def top2(self, k1, k2, t, s1, s2):
        self.wavemax_u32(k1, t, s1)
        self(f"v_cmp_eq_u32 vcc, s{s1}, v{k1}")
        self(f"v_cndmask_b32 v{k1}, v{k1}, v{k2}, vcc")
        self.wavemax_u32(k1, t, s2)
    def rowsum16(self, v):
        for k in (8, 4, 2, 1): self(f"v_add_f32_dpp v{v}, v{v}, v{v} row_ror:{k} row_mask:0xf bank_mask:0xf")


def softmax_plain(P, O, t0, scale=None, npair=None):
    L = []
    a, b = t0, t0 + 1
    L.append(f"v_max3_f32 v{a}, v{P[0]}, v{P[1]}, v{P[2]}"); L.append(f"v_max3_f32 v{b}, v{P[3]}, v{P[4]}, v{P[5]}")
    for i in range(6, 18, 4):
        L.append(f"v_max3_f32 v{a}, v{a}, v{P[i]}, v{P[i+1]}"); L.append(f"v_max3_f32 v{b}, v{b}, v{P[i+2]}, v{P[i+3]}")
    L.append(f"v_max3_f32 v{a}, v{a}, v{P[18]}, v{P[19]}"); L.append(f"v_max_f32 v{a}, v{a}, v{b}")
    if scale is None:
        for i in range(20): L.append(f"v_sub_f32 v{P[i]}, v{P[i]}, v{a}")
    else:
        L.append(f"v_mul_f32 v{a}, v{scale}, v{a}")
        for i in range(20): L.append(f"v_fma_f32 v{P[i]}, v{P[i]}, v{scale}, -v{a}")
    for i in range(20): L.append(f"v_exp_f32 v{P[i]}, v{P[i]}")
    L.append(f"v_add_f32 v{a}, v{P[0]}, v{P[1]}"); L.append(f"v_add_f32 v{b}, v{P[2]}, v{P[3]}")
    for i in range(4, 20, 2): L.append(f"v_add_f32 v{a}, v{a}, v{P[i]}"); L.append(f"v_add_f32 v{b}, v{b}, v{P[i+1]}")
    L.append(f"v_add_f32 v{a}, v{a}, v{b}"); L.append(f"v_rcp_f32 v{a}, v{a}")
    if npair is not None: L.append(f"v_mul_f32 v{a}, v{a}, v{npair}")
    for i in range(20): L.append(f"v_mul_f32 v{P[i]}, v{P[i]}, v{a}")
    for i in range(0, 20, 2): L.append(f"v_cvt_pk_bf16_f32 v{O+i//2}, v{P[i]}, v{P[i+1]}")
    return L


def softmax_ops(P, O, cpair, t0, npair=None):
    L = []
    a, b = t0, t0 + 1
    L.append(f"v_max3_f32 v{a}, v{P[0]}, v{P[1]}, v{P[2]}"); L.append(f"v_max3_f32 v{b}, v{P[3]}, v{P[4]}, v{P[5]}")
    for i in range(6, 18, 4):
        L.append(f"v_max3_f32 v{a}, v{a}, v{P[i]}, v{P[i+1]}"); L.append(f"v_max3_f32 v{b}, v{b}, v{P[i+2]}, v{P[i+3]}")
    L.append(f"v_max3_f32 v{a}, v{a}, v{P[18]}, v{P[19]}"); L.append(f"v_max_f32 v{a}, v{a}, v{b}")
    L.append(f"v_mul_f32 v{cpair+1}, v{cpair}, v{a}")
    for i in range(0, 20, 2):
        L.append(f"v_pk_fma_f32 {vr(P[i],2)}, {vr(P[i],2)}, {vr(cpair,2)}, {vr(cpair,2)} op_sel:[0,0,1] op_sel_hi:[1,0,1] neg_lo:[0,0,1] neg_hi:[0,0,1]")
    for i in range(20): L.append(f"v_exp_f32 v{P[i]}, v{P[i]}")
    L.append(f"v_pk_add_f32 {vr(t0,2)}, {vr(P[0],2)}, {vr(P[2],2)}"); L.append(f"v_pk_add_f32 {vr(t0+2,2)}, {vr(P[4],2)}, {vr(P[6],2)}")
    for i in range(8, 20, 4):
        L.append(f"v_pk_add_f32 {vr(t0,2)}, {vr(t0,2)}, {vr(P[i],2)}"); L.append(f"v_pk_add_f32 {vr(t0+2,2)}, {vr(t0+2,2)}, {vr(P[i+2],2)}")
    L.append(f"v_pk_add_f32 {vr(t0,2)}, {vr(t0,2)}, {vr(t0+2,2)}")
    L.append(f"v_add_f32 v{a}, v{a}, v{b}"); L.append(f"v_rcp_f32 v{a}, v{a}")
    if npair is not None: L.append(f"v_mul_f32 v{a}, v{a}, v{npair}")
    for i in range(0, 20, 2): L.append(f"v_pk_mul_f32 {vr(P[i],2)}, {vr(P[i],2)}, {vr(t0,2)} op_sel_hi:[1,0]")
    for i in range(0, 20, 2): L.append(f"v_cvt_pk_bf16_f32 v{O+i//2}, v{P[i]}, v{P[i+1]}")
    return L


class VM:
    def __init__(self, a): self.a = a; self.ops = []
    def __call__(self, text, tag): self.a(text); self.ops.append(tag)
    def count(self, *tags, opt=False):
        last = max(i for i, t in enumerate(self.ops) if t in tags)
        return sum(1 for t in self.ops[last+1:] if opt or t != "opt")
    def wait(self, *tags, lgkm=False): self.a(f"s_waitcnt vmcnt({self.count(*tags)})" + (" lgkmcnt(0)" if lgkm else ""))


def gen(diag=False, touch=10, defer=8, rot=1, cpf=1, cut=0, noclr=0, outfl=0, f0=4, hord=1, fd=0, fnt=1, po=0, wt=0, tw=0, wb=0, p6=0, ot=0, ramp=2, nowo=0, khe=2, ohe=3, loc=1, osam=0, qw=0, thr=30, qt=1, qd=0, kd=0, kno=0, kpk=1, lpr=0, fl=3, kvp=1, rev=1, wv=1, wrt=1, n0=4, n1=4, pp=2, qa=0, qb=3, wl=2, roff=24, xm=1, pad=0, mq=3, lp2=1, ko=0, ws=0, cst=0, bare=0, ini=1, xc=6, hb=0, ga=1, fe=1, ft=1, lp=2, nofn=0, nooc=0, hk0=50, hk1=82, probe=0, plo=0, phi=32, pw0=0, pw1=8, ql=0):
    f1 = 0
    assert pp == 2
    a = K(diag); a.probe = probe; a.mute = (4, 5, 12, 6, 7, 8) if kd else (6, 7, 8, 13) if qd else (1, 2, 3, 4, 5, 6, 9) if fd else (2, 3, 4, 5, 6, 7, 8, 9, 10) if cst else ()
    WS = f"s[{rWS}:{rWS+3}]"
    sK1, sK2 = 100, 101
    ACC = 16; SET = [96, 132]; XA = [168, 169]; MK, MV, EX = 170, 171, 172
    PA = 176; PX = 196; STAT = 208; AUG = 224
    E0, E1, E2, E3, E4 = 240, 241, 242, 243, 244
    KB, KA0, KA1, KP = 245, 247, 249, 251
    Pb = [96, 116]; PH = 156; CP = 234; TT = 236
    QF = 16; QF2 = 22; OA = 28; P0 = 40; P1 = 56; PHQ = 72; PHQ2 = 82; OT = 92; KL = 40
    FA = 16; OF = 36; WF = 76; WST = (176, 96)
    def lanefields():
        a("v_lshrrev_b32 v3, 4, v0"); a("v_bfe_u32 v4, v0, 2, 2"); a("v_and_b32 v5, 3, v0"); a("v_and_b32 v6, 15, v0")
    def kepi_addr(th, ch):
        a("v_and_b32 v7, 1, v0"); a("v_bfe_u32 v12, v0, 1, 1"); a("v_lshl_or_b32 v7, v12, 2, v7"); a("v_bfe_u32 v12, v0, 2, 1"); a("v_lshl_or_b32 v7, v12, 1, v7")
        a("v_lshlrev_b32 v7, 4, v7")
        a(f"s_lshl_b32 s3, {th}, 13"); a(f"s_add_u32 s3, s3, {TRI}"); a("v_lshl_add_u32 v7, v6, 7, v7"); a("v_add_u32 v7, s3, v7")
        a(f"s_lshl_b32 s58, {ch}, 15")
        a("v_lshrrev_b32 v12, 1, v3"); a("v_and_b32 v13, 1, v3")
        a("v_lshl_add_u32 v14, v12, 14, v7"); a("v_add_u32 v14, s58, v14")
        a("v_lshlrev_b32 v15, 5, v13"); a(f"v_xor_b32 v{E0}, v14, v15"); a(f"v_xor_b32 v{E1}, 16, v{E0}")
        a(f"v_xor_b32 v{E2}, 96, v14"); a(f"v_lshl_add_u32 v{E2}, v13, 3, v{E2}")
    def phi_addr(base):
        a("v_lshrrev_b32 v7, 1, v5")
        a("v_mul_u32_u24 v12, 640, v7"); a("v_lshl_add_u32 v13, v3, 2, v4"); a("v_mul_u32_u24 v13, 40, v13"); a(f"v_add3_u32 v12, v12, v13, {base}")
        a("v_mul_u32_u24 v13, 1440, v7"); a("v_mul_u32_u24 v14, 40, v4"); a(f"v_add3_u32 v13, v13, v14, {base}")
        a("v_bfe_u32 v7, v0, 3, 1"); a("v_add_u32 v14, -1, v7"); a("v_not_b32 v15, v14")
        a("v_cmp_eq_u32 vcc, v7, v3"); a("v_bfe_i32 v2, v0, 2, 1"); a("v_and_b32 v2, 0x80008000, v2"); a("v_cndmask_b32 v7, 0, -1, vcc")
    def phi_build():
        for T in range(5):
            a(f"ds_read_b64_tr_b16 {vr(PA+4*T,2)}, v12 offset:{160+8*T}"); a(f"ds_read_b64_tr_b16 {vr(PX+2*T,2)}, v13 offset:{8*T}")
        a("s_waitcnt lgkmcnt(0)")
        for T in range(5):
            for q in range(2):
                a(f"v_bitop3_b32 v{PA+4*T+2+q}, v{PA+4*T+q}, v2, v15 bitop3:0x28")
                a(f"v_bitop3_b32 v{PA+4*T+q}, v{PA+4*T+q}, v2, v14 bitop3:0x28")
                a(f"v_bitop3_b32 v{PX+2*T+q}, v{PX+2*T+q}, v2, v7 bitop3:0x28")
    def phi_mm(P, T):
        mm = [f"v_mfma_f32_16x16x32_bf16 {vr(P+4*u,4)}, {vr(PA+4*u,4)}, {vr(T,4)}, 0" for u in range(5)]
        return mm + [f"v_mfma_f32_16x16x16_bf16 {vr(P+4*u,4)}, {vr(PX+2*u,2)}, {vr(T+4,2)}, {vr(P+4*u,4)}" for u in range(5)]
    def ktile(m, P, packed, ins, k):
        if kno & 1: ins = [x for x in ins if "buffer" not in x]
        if kd: a.stamp((12, 6)[k], True)
        if packed: sm = [f"v_mov_b32 v{CP}, v{STAT+4*m+3}"] + softmax_ops(list(range(P, P+20)), PH, CP, TT, npair=STAT+4*m+2)
        else: sm = softmax_plain(list(range(P, P+20)), PH, TT, scale=STAT+4*m+3, npair=STAT+4*m+2)
        slots = [i for i, x in enumerate(sm) if x.startswith(("v_exp", "v_fma", "v_max3"))]
        at = {}
        for q, x in enumerate(ins): at.setdefault(slots[q*len(slots)//len(ins)], []).append(x)
        wr = {f"v{PH+3},": f"ds_write_b128 v{E0}, {vr(PH,4)} offset:{2048*m}", f"v{PH+7},": f"ds_write_b128 v{E1}, {vr(PH+4,4)} offset:{2048*m}", f"v{PH+9},": f"ds_write_b64 v{E2}, {vr(PH+8,2)} offset:{2048*m}"}
        for idx, x in enumerate(sm):
            a(x)
            for y in at.get(idx, []): a(y)
            if x.startswith("v_cvt_pk") and x.split()[1] in wr: a(wr[x.split()[1]])
    sHD, sT32, sQA, sFQ, sKVA, sO0, sO1, sHINT, sKHP, sF0, sF1, sF2, sOUT, sAUX, sOHP, sT16 = range(36, 52)
    def ohead(dst):
        if xm == 0:
            a(f"s_lshr_b32 s{dst}, s{sJR}, 1"); a(f"s_sub_u32 s3, s{sJR}, 8"); a("s_cmp_lt_u32 s57, 8"); a(f"s_cselect_b32 s{dst}, s{dst}, s3")
            a(f"s_and_b32 s3, s{sX}, 1"); a(f"s_lshl4_add_u32 s{dst}, s3, s{dst}")
        else:
            a(f"s_lshr_b32 s{dst}, s{sJR}, 2"); a(f"s_lshr_b32 s3, s{sJR}, 1"); a("s_sub_u32 s3, s3, 4"); a("s_cmp_lt_u32 s57, 8"); a(f"s_cselect_b32 s{dst}, s{dst}, s3")
            a(f"s_and_b32 s3, s{sX}, 3"); a(f"s_lshl3_add_u32 s{dst}, s3, s{dst}")
    def o_sgprs():
        ohead(sHD)
        if xm == 0:
            a(f"s_and_b32 s3, s{sJR}, 1"); a("s_cmp_lt_u32 s57, 8"); a("s_cselect_b32 s3, s3, 0"); a(f"s_and_b32 s{sT32}, s{sX}, 6")
        else:
            a(f"s_lshl_b32 s3, s{sJR}, 1"); a("s_cmp_lt_u32 s57, 8"); a(f"s_cselect_b32 s3, s{sJR}, s3"); a("s_and_b32 s3, s3, 3"); a(f"s_and_b32 s{sT32}, s{sX}, 4")
        a(f"s_add_u32 s{sT32}, s{sT32}, s3"); a(f"s_lshl3_add_u32 s{sT32}, s{sT32}, s{sWV}")
        a(f"s_lshl_b32 s3, s{sHD}, 6"); a(f"s_add_u32 s3, s3, s{sT32}"); a(f"s_mul_i32 s{sQA}, s3, 1280"); a(f"s_add_u32 s{sQA}, s{sQA}, {WS_Q}")
        a(f"s_and_b32 s{sFQ}, s{sT32}, 60"); a(f"s_lshr_b32 s3, s{sHD}, 3"); a(f"s_add_u32 s{sFQ}, s{sFQ}, s3"); a(f"s_lshl_b32 s{sFQ}, s{sFQ}, 7"); a(f"s_add_u32 s{sFQ}, s{sFQ}, {WS_FQ}")
        a(f"s_mul_i32 s{sKVA}, s{sHD}, 28672"); a(f"s_add_u32 s{sKVA}, s{sKVA}, {WS_KV}")
        a(f"s_mul_i32 s{sO0}, s{sT32}, 40960"); a(f"s_add_u32 s{sO0}, s{sO0}, {WS_O}"); a(f"s_lshl_b32 s3, s{sHD}, 7"); a(f"s_add_u32 s{sO1}, s{sO0}, s3"); a(f"s_add_u32 s{sO1}, s{sO1}, 16384")
        a(f"s_lshl2_add_u32 s{sO0}, s3, s{sO0}")
        if xm == 0: a(f"s_lshr_b32 s{sKHP}, s{sX}, 1")
        else: a(f"s_lshr_b32 s3, s{sX}, 2"); a(f"s_and_b32 s{sKHP}, s{sJR}, 1"); a(f"s_lshl1_add_u32 s{sKHP}, s3, s{sKHP}")
        a(f"s_and_b32 s3, s{sHD}, 28"); a(f"s_add_u32 s3, s3, s{sKHP}"); a("s_lshl_b32 s3, s3, 7"); a(f"s_add_u32 s{sKHP}, s3, {WS_KH}")
    def o_vgprs(T):
        a("v_lshlrev_b32 v7, 4, v0"); a(f"v_and_b32 v{T}, 31, v0"); a(f"v_lshlrev_b32 v1, 3, v{T}"); a(f"s_lshl_b32 s3, s{sT32}, 7"); a(f"s_add_u32 s3, s3, {WS_SM}"); a(f"v_lshl_add_u32 v255, v{T}, 2, s3")
        a(f"v_mov_b32 v{T+2}, {OOB:#x}"); a("v_mov_b32 v253, 0")
        a(f"s_lshl_b32 s3, s{sWV}, 4"); a("v_and_b32 v14, 15, v0"); a("v_add_u32 v14, s3, v14"); a("v_cmp_lt_u32 vcc, 104, v14"); a("v_lshlrev_b32 v14, 4, v14")
        a(f"v_lshrrev_b32 v{T+3}, 4, v0"); a(f"v_mul_u32_u24 v15, 7168, v{T+3}"); a("v_add_u32 v15, v15, v14"); a(f"v_cndmask_b32 v15, v15, v{T+2}, vcc")
        a(f"v_and_b32 v{T+3}, 1, v{T+3}"); a(f"v_lshl_add_u32 v14, v{T+3}, 3, v14"); a(f"v_add_u32 v14, {L_KVR}, v14")
    def o_late(T):
        a(f"v_and_b32 v{T}, 31, v0"); a(f"v_min_u32 v{T}, 20, v{T}"); a(f"v_lshrrev_b32 v{T+1}, 5, v0"); a(f"v_mov_b32 v{T+2}, {OOB:#x}")
        a(f"v_mul_u32_u24 v{T+3}, 21, v{T+1}"); a(f"v_add_u32 v{T}, v{T}, v{T+3}"); a(f"s_mov_b32 s3, {L_KVR}")
        a(f"v_lshl_add_u32 v254, v{T}, 3, s3"); a(f"v_lshl_add_u32 v207, v{T}, 4, s3")
        a("v_bfe_u32 v12, v0, 4, 1"); a("v_mul_u32_u24 v12, 20480, v12"); a(f"v_and_b32 v{T}, 15, v0"); a("v_cmp_gt_u32 vcc, 32, v0")
        a(f"v_lshl_add_u32 v13, v{T}, 3, v12"); a(f"v_lshl_add_u32 v12, v{T}, 4, v12"); a(f"v_lshl_add_u32 v12, v{T+1}, 8, v12"); a(f"v_cndmask_b32 v13, v{T+2}, v13, vcc")
    def f_setup(T, kh):
        a(f"s_lshr_b32 s3, s{sJ}, 3"); a(f"s_lshl3_add_u32 s{sOHP}, s{sX}, s3"); a(f"s_lshl_b32 s{sOHP}, s{sOHP}, 7"); a(f"s_add_u32 s{sOHP}, s{sOHP}, {WS_OH}")
        a(f"s_lshl2_add_u32 s3, s{sX}, s3"); a(f"s_and_b32 s53, s{sWV}, 3"); a(f"s_lshl2_add_u32 s{sT16}, s3, s53")
        a(f"s_mul_i32 s{sOUT}, s{sT16}, 20480"); a(f"s_add_u32 s{sF0}, s{sOUT}, {WS_O + 8192*kh}"); a(f"s_add_u32 s{sF1}, s{sF0}, 4096"); a(f"s_add_u32 s{sF2}, s{sOUT}, {WS_O + 16384 + 2048*kh}")
        a(f"s_and_b32 s3, s{sJ}, 7"); a("s_mul_i32 s3, s3, 160"); a(f"s_add_u32 s{sOUT}, s{sOUT}, s3")
        if not kh: a(f"s_lshl_b32 s{sAUX}, s{sT16}, 6"); a(f"s_add_u32 s{sAUX}, s{sAUX}, {WS_SM}")
        a("v_lshlrev_b32 v7, 4, v0"); a(f"v_lshrrev_b32 v{T}, 4, v0"); a(f"v_bfe_u32 v{T+1}, v0, 2, 2"); a(f"v_and_b32 v{T+2}, 3, v0")
        a(f"v_mul_u32_u24 v{T+1}, 160, v{T+1}"); a(f"v_lshl_add_u32 v{T+1}, v{T+2}, 3, v{T+1}")
        if kh: a(f"v_add_u32 v{T+1}, 51200, v{T+1}")
        a(f"v_lshrrev_b32 v{T+2}, 5, v0"); a(f"v_mul_u32_u24 v{T+2}, 3200, v{T+2}"); a(f"v_and_b32 v6, 1, v{T}"); a("v_mul_u32_u24 v6, 640, v6"); a(f"v_add3_u32 v6, v6, v{T+2}, v{T+1}")
        a(f"v_mul_u32_u24 v2, 3200, v{T}"); a(f"v_add_u32 v2, v2, v{T+1}")
        a("s_mul_i32 s3, s53, 2560"); a(f"s_add_u32 s3, s3, {L_OUTS if kh else L_RES}")
        a(f"v_and_b32 v{T+1}, 15, v0"); a(f"v_mul_u32_u24 v3, 160, v{T+1}"); a(f"v_lshl_add_u32 v3, v{T}, 3, v3"); a("v_add_u32 v3, s3, v3")
        if kh: a("v_add_u32 v11, s3, v7")
        else: a(f"v_lshlrev_b32 v4, 2, v{T+1}")
        a("s_mul_i32 s3, s53, 5120"); a(f"s_add_u32 s3, s3, {L_XCH}"); a("v_add_u32 v5, s3, v7")
        if kh:
            a(f"v_mul_u32_u24 v{T}, 6554, v0"); a("s_movk_i32 s3, 1120"); a("v_cmp_gt_u32 vcc, 32, v0")
            for u in range(3):
                if u: a(f"v_add_u32 v{T}, {64*6554}, v{T}")
                a(f"v_lshrrev_b32 v{T+1}, 16, v{T}"); a(f"v_mad_u32_u24 v{8+u}, v{T+1}, s3, v7")
            a(f"v_mov_b32 v{T}, {OOB:#x}"); a(f"v_cndmask_b32 v10, v{T}, v10, vcc")
    qloads = [f"buffer_load_dwordx4 {vr(QF,4)}, v7, {WS}, s{sQA} offen sc1", f"buffer_load_dwordx2 {vr(QF+4,2)}, v1, {WS}, s{sQA} offen offset:1024 sc1",
              f"buffer_load_dword v{OT+2}, v255, {WS}, 0 offen sc1"]
    fload = f"s_mov_b64 exec, 1\nbuffer_load_dword v253, off, {WS}, s{sFQ} sc1\ns_mov_b64 exec, -1"
    tload = f"s_mov_b32 s70, {WS_TOP}\nv_mov_b64 v[230:231], 0\ns_mov_b64 exec, 1\nbuffer_load_dwordx2 v[230:231], off, {WS}, s70 sc1\ns_mov_b64 exec, -1"
    oareads = [f"v_add_u32 v{OT}, {L_OA}, v7"] + [f"ds_read_b128 {vr(OA+4*i,4)}, v{OT} offset:{1024*i}" for i in range(3)]
    a("s_cmp_ge_u32 s2, 256"); a("s_cbranch_scc1 L_end")
    a.stamp(0)
    for r, off in ((rX, 0), (rW, 8), (rWS, 88), (rPHI, 16), (rWO, 24), (rOUT, 72), (rDBG, 80)):
        a(f"s_load_dwordx2 s[{r}:{r+1}], s[0:1], {off}")
    a("v_lshrrev_b32 v1, 6, v0"); a("v_and_b32 v0, 63, v0")
    a(f"s_lshr_b32 s{sJ}, s2, 3"); a(f"v_readfirstlane_b32 s{sWV}, v1")
    a(f"s_and_b32 s{sX}, s2, 7"); a(f"s_add_u32 s{sJR}, s{sJ}, {roff}"); a(f"s_and_b32 s{sJR}, s{sJR}, 31")
    if cpf:
        a(f"s_cmp_eq_u32 s{sWV}, 0"); a("s_cbranch_scc0 L_nopf")
        a("s_getpc_b64 s[96:97]"); a.label("L_pc")
        a("s_mov_b32 s98, L_end-L_pc"); a("s_mov_b32 s99, 0x20000")
        a(f"s_mul_i32 s3, s{sJ}, 5"); a("s_bfe_u32 s3, s3, 0x30003"); a("s_lshl_b32 s3, s3, 13"); a("v_lshlrev_b32 v1, 7, v0")
        a("buffer_load_dword v255, v1, s[96:99], s3 offen")
        a.label("L_nopf")
    def srds():
        a.srdw(rWS, WS_BYTES); a.srdw(rPHI, 32*800); a.srdw(rWO, 0 if nowo else D*D*2); a.srdw(rOUT, S*D*2); a.srdw(rDBG, 256)
        a(f"s_mov_b32 s{sSENT}, {SENT:#x}")
    a.srdw(rX, S*D*2); a.srdw(rW, D*3*D*2)
    a(f"s_cmp_ge_u32 s{sJR}, 24"); a("s_cbranch_scc1 L_helper")
    if xm == 0:
        a(f"s_lshr_b32 s54, s{sX}, 1"); a(f"s_and_b32 s3, s{sJR}, 3"); a("s_lshl2_add_u32 s54, s54, s3"); a(f"s_lshr_b32 s53, s{sJR}, 2")
        a(f"s_and_b32 s3, s{sX}, 1"); a("s_lshl2_add_u32 s57, s3, s53"); a("s_lshl1_add_u32 s3, s3, s53"); a("s_add_u32 s3, s3, 4")
    else:
        a(f"s_lshr_b32 s54, s{sX}, 2"); a(f"s_and_b32 s3, s{sJR}, 7"); a("s_lshl3_add_u32 s54, s54, s3"); a(f"s_lshr_b32 s53, s{sJR}, 3")
        a(f"s_and_b32 s3, s{sX}, 3"); a("s_lshl1_add_u32 s57, s3, s53"); a("s_add_u32 s3, s3, 8")
    a(f"s_cmp_lt_u32 s{sJR}, 16"); a("s_cselect_b32 s57, s57, s3")
    a(f"s_cmp_lt_u32 s{sWV}, 4"); a("s_cbranch_scc0 L_loader")
    a("s_setprio 3")
    a.srdw(rPHI, 32*800)
    ohead(59)
    a(f"s_and_b32 s60, s{sWV}, 1"); a("s_lshl1_add_u32 s3, s57, s60"); a("s_mul_i32 s58, s3, 1600")
    a(f"s_lshl_b32 s65, s{sWV}, 11"); a("s_mov_b32 m0, s65"); a("v_lshlrev_b32 v2, 4, v0"); a("v_lshlrev_b32 v3, 2, v0")
    a("s_mul_i32 s59, s59, 800"); a(f"s_lshl_b32 s3, s{sWV}, 8"); a("s_add_u32 s59, s59, s3")
    a("s_waitcnt lgkmcnt(0)")
    a(f"buffer_load_dwordx4 v2, s[{rPHI}:{rPHI+3}], s58 offen lds")
    a(f"buffer_load_dwordx4 v2, s[{rPHI}:{rPHI+3}], s58 offen offset:1024 lds")
    a(f"s_add_u32 m0, s3, {L_PHIO}")
    a(f"s_cmp_eq_u32 s{sJR}, 16")
    a(f"buffer_load_dword v3, s[{rPHI}:{rPHI+3}], s59 offen lds")
    a("s_cbranch_scc0 L_mfma")
    a.srdw(rWS, WS_BYTES)
    for q in range(4): a(f"v_mov_b32 v{12+q}, {SENT:#x}")
    a(f"s_lshl_b32 s3, s{sX}, 13"); a("s_add_u32 s3, s3, s65")
    for i in range(2): a(f"buffer_store_dwordx4 v[12:15], v2, {WS}, s3 offen offset:{1024*i} sc1")
    a.srdw(rDBG, 256); a("s_lshr_b32 s3, s3, 8"); a("s_mov_b64 exec, 1"); a("s_waitcnt vmcnt(0)")
    a(f"buffer_store_dword v12, off, s[{rDBG}:{rDBG+3}], s3 sc1"); a("s_mov_b64 exec, -1")
    a("s_branch L_mfma")

    a.label("L_loader")
    a(f"s_setprio {lp}")
    a("s_mul_i32 s55, s57, 160"); a("s_sub_u32 s59, s55, 2560")
    a("s_cmp_lt_u32 s57, 8")
    a("s_cselect_b32 s56, 1120, 0"); a("s_cselect_b32 s59, 1280, s59")
    a("s_add_u32 s55, s55, s59")
    a(f"s_sub_u32 s60, s{sWV}, 4")
    XV = [16, 17, 18, 19]; WV = [20, 21, 22, 23, 24]; WOV = [224, 225, 226, 227, 228]
    a("v_lshrrev_b32 v8, 3, v0"); a("v_and_b32 v9, 7, v0")
    a("v_bfe_u32 v10, v0, 4, 1"); a("v_lshrrev_b32 v11, 5, v0"); a("v_lshl_add_u32 v10, v10, 1, v11")
    a("s_lshl2_add_u32 s3, s54, s60"); a("s_mul_i32 s3, s3, 40960")
    a("v_mul_u32_u24 v8, 1280, v8"); a("v_xor_b32 v9, v9, v10"); a("v_add_u32 v8, s3, v8")
    a(f"v_lshl_add_u32 v{XV[0]}, v9, 4, v8"); a(f"v_xor_b32 v11, 64, v{XV[0]}")
    a(f"v_add_u32 v{XV[1]}, {10240-1024}, v11"); a(f"v_add_u32 v{XV[2]}, {20480-2048}, v{XV[0]}"); a(f"v_add_u32 v{XV[3]}, {30720-3072}, v11")
    a("s_mul_i32 s3, s60, 61440"); a("s_add_u32 s3, s3, s55")
    a("s_lshl_b32 s61, s60, 12")
    a(f"s_mul_i32 s62, s60, {WREG}"); a("s_add_u32 s62, s62, 16384")
    a("s_movk_i32 s63, 3520")
    a("v_lshl_add_u32 v12, v0, 4, s3"); a("v_mul_u32_u24 v13, 6554, v0")
    for i in range(5):
        if i: a(f"v_add_u32 v13, {64*6554}, v13")
        a("v_lshrrev_b32 v10, 17, v13"); a("v_bfe_u32 v9, v13, 16, 1")
        a("v_mad_u32_u24 v8, v10, s63, v12"); a(f"v_mad_u32_u24 v{WV[i]}, v9, s56, v8")
    a(f"v_add_u32 v{WV[4]}, 4096, v{WV[4]}")
    if rot: a(f"s_xor_b32 s71, s{sJR}, s53"); a("s_bfe_u32 s63, s71, 0x10001"); a("s_and_b32 s71, s71, 1")
    else: a("s_mov_b32 s71, 0"); a("s_mov_b32 s63, 0")
    a("s_waitcnt lgkmcnt(0)")
    if cut: a.stamp(10)
    vm = VM(a)
    def issue(c, extra=()):
        extra = list(extra); size = lambda u: u.count("\n") + 1
        total = sum(map(size, extra)); st = [0, 0]
        def more():
            st[0] += 1
            while extra and (st[0] == 9 or st[1] < total*st[0]/9): st[1] += size(extra[0]); a(extra.pop(0))
        slot = RING + (c % 3)*SLOT
        xs = [f"buffer_load_dwordx4 v{XV[i]}, s[{rX}:{rX+3}], s65 offen offset:{1024*i} lds" for i in range(4)]
        ws = [f"buffer_load_dwordx4 v{WV[i]}, s[{rW}:{rW+3}], s66 offen offset:{1024*(i%4)} lds" for i in range(5)]
        a(f"s_xor_b32 s66, s71, {c}")
        a(f"s_add_u32 m0, s61, {slot}")
        a("s_lshl_b32 s65, s66, 7"); a("s_mul_i32 s66, s66, 245760")
        two = rev and (rev == 2 or c % 2 == 0)
        if two: a("s_cmp_eq_u32 s63, 0"); a(f"s_cbranch_scc0 L_rv{c}")
        if two and extra: two = False; a.L.pop(); a.L.pop()
        for x in xs: more(); vm(x, c)
        a(f"s_add_u32 m0, s62, {slot}")
        for x in ws[:4]: more(); vm(x, c)
        a("s_add_u32 m0, m0, 4096")
        more(); vm(ws[4], c)
        if two:
            a(f"s_branch L_re{c}"); a.label(f"L_rv{c}")
            a(f"s_add_u32 m0, s62, {slot + 4096}"); a(ws[4])
            a(f"s_add_u32 m0, s62, {slot}")
            for x in ws[3::-1]: a(x)
            a(f"s_add_u32 m0, s61, {slot}")
            for x in xs[::-1]: a(x)
            a.label(f"L_re{c}")
    def bar(c, *extra, lgkm=False):
        if vm.count(c, *extra, opt=True) != vm.count(c, *extra):
            lb = a.newlab("L_bw")
            a("s_cmp_lt_u32 s57, 8"); a(f"s_waitcnt vmcnt({vm.count(c, *extra, opt=True)})"); a(f"s_cbranch_scc0 {lb}"); vm.wait(c, *extra); a.label(lb)
        else: vm.wait(c, *extra, lgkm=lgkm)
        a("s_barrier")
        if cut and c < 8: a.stamp(c + 2)
        if cst and c < 9: a.stamp(c + 2, True)
    def wo_addr():
        a("v_mul_u32_u24 v98, 6554, v0"); a("v_lshlrev_b32 v97, 4, v0"); a("s_movk_i32 s3, 1120")
        for i in range(5):
            if i: a(f"v_add_u32 v98, {64*6554}, v98")
            a("v_lshrrev_b32 v96, 16, v98"); a(f"v_mad_u32_u24 v{WOV[i]}, v96, s3, v97")
        a(f"v_add_u32 v{WOV[4]}, 4096, v{WOV[4]}")
        a(f"s_and_b32 s67, s{sJ}, 7"); a("s_mul_i32 s67, s67, 160")
        a("s_mul_i32 s68, s60, 40960"); a("s_add_u32 s68, s68, s67")
        a("s_mul_i32 s69, s60, 5120")
        a(f"s_lshr_b32 s3, s{sJ}, 3"); a(f"s_lshl2_add_u32 s3, s{sX}, s3"); a("s_mul_i32 s67, s3, 81920"); a("s_add_u32 s67, s67, s68")
        a(f"s_bfe_u32 s3, s{sJ}, 0x10003" if wrt else "s_mov_b32 s3, 0")
        a("s_mul_i32 s98, s3, 163840"); a("s_add_u32 s96, s68, s98"); a("s_sub_u32 s98, s68, s98")
        a("s_mul_i32 s99, s3, 20480"); a("s_add_u32 s97, s69, s99"); a("s_sub_u32 s99, s69, s99")
    def unit_list(srd, soff, m0):
        L = [f"buffer_load_dwordx4 v{WOV[i]}, s[{srd}:{srd+3}], {soff} offen offset:{1024*i} lds" for i in range(4)]
        L[0] = f"s_add_u32 m0, s69, {m0}\ns_nop 0\n" + L[0]
        return L + [f"s_add_u32 m0, m0, 4096\ns_nop 0\nbuffer_load_dwordx4 v{WOV[4]}, s[{srd}:{srd+3}], {soff} offen lds"]
    def wo_list(r):
        L = unit_list(rWO, "s65", 20480*r)
        L[0] = L[0].replace("s_nop 0", f"s_add_u32 s65, s{68 if r == 4 else 96 + 2*(r&1)}, {163840*r}")
        if r < 4: L[0] = L[0].replace("m0, s69", f"m0, s{97 + 2*(r&1)}")
        return L
    def wo_round(r):
        for x in wo_list(r): vm(x, "wo")
    def wo_last():
        wo_round(4)
        lb = a.newlab("L_res")
        a(f"s_cmp_lt_u32 s{sWV}, 6"); a(f"s_cbranch_scc0 {lb}")
        for x in unit_list(rX, "s67", L_RES): a(x)
        a.label(lb)
    def set1():
        srds()
        lanefields()
        a("s_lshr_b32 s64, s60, 1"); a("s_and_b32 s53, s60, 1")
        kepi_addr("s64", "s53")
        a("s_lshl_b32 s3, s64, 10"); a(f"s_add_u32 s3, s3, {L_STAT}"); a("v_lshl_add_u32 v206, v6, 4, s3")
        a("s_lshl_b32 s64, s60, 11")
        phi_addr("s64")
    def set_o():
        o_sgprs(); a.readyaddr(43)
        a(f"s_lshr_b32 s3, s{sT32}, 3"); a(f"s_and_b32 s53, s{sHD}, 1"); a("s_lshl1_add_u32 s3, s3, s53"); a("s_lshl_b32 s3, s3, 9"); a(f"s_add_u32 s{sHINT}, s3, {WS_OH}")
    def set_oa():
        a("v_lshrrev_b32 v96, 5, v0"); a("v_bfe_u32 v97, v0, 2, 2"); a("v_bfe_u32 v98, v0, 4, 1"); a("v_bfe_u32 v99, v0, 1, 1"); a("v_lshl_add_u32 v98, v98, 1, v99")
        a(f"s_bitcmp0_b32 s{sHD}, 0"); a("s_cselect_b32 s3, 160, 0"); a("s_cselect_b32 s53, 0, 640")
        a(f"s_add_u32 s3, s3, {L_PHIO}"); a(f"s_add_u32 s53, s53, {L_PHIO}")
        a("v_mul_u32_u24 v99, 40, v97"); a("v_add_u32 v100, s53, v99"); a("v_mul_u32_u24 v101, 320, v96"); a("v_add3_u32 v99, v99, v101, s3")
        a("v_lshl_add_u32 v101, v98, 3, v99"); a("v_lshl_add_u32 v98, v98, 3, v100")
        a(f"ds_read_b64_tr_b16 {vr(OA,2)}, v101"); a(f"ds_read_b64_tr_b16 {vr(OA+2,2)}, v101 offset:160")
        a(f"ds_read_b64_tr_b16 {vr(OA+4,2)}, v99 offset:32"); a(f"ds_read_b64_tr_b16 {vr(OA+6,2)}, v99 offset:192")
        a(f"ds_read_b64_tr_b16 {vr(OA+8,2)}, v98"); a(f"ds_read_b64_tr_b16 {vr(OA+10,2)}, v100 offset:32")
        a("v_bfe_i32 v102, v0, 2, 1"); a("v_and_b32 v102, 0x80008000, v102"); a("v_add_u32 v103, -1, v96"); a(f"v_add_u32 v104, {L_OA}, v7")
        a("s_waitcnt lgkmcnt(0)")
        for q in range(8): a(f"v_xor_b32 v{OA+q}, v102, v{OA+q}")
        for q in range(8, 12): a(f"v_bitop3_b32 v{OA+q}, v{OA+q}, v102, v103 bitop3:0x28")
        a("s_cmp_eq_u32 s60, 0"); a("s_cbranch_scc0 L_oa")
        for i in range(3): a(f"ds_write_b128 v104, {vr(OA+4*i,4)} offset:{1024*i}")
        a.label("L_oa")
    def set_st():
        wo_addr()
        a("v_and_b32 v56, 31, v0"); a("s_lshl2_add_u32 s3, s54, s60"); a("s_lshl_b32 s3, s3, 7"); a(f"s_add_u32 s3, s3, {WS_SM}")
        a("v_lshl_add_u32 v57, v56, 2, s3")
        a("s_lshr_b32 s58, s60, 1"); a("s_and_b32 s59, s60, 1")
        a("s_add_u32 s3, s56, 160"); a("s_mul_i32 s3, s3, s58"); a("s_add_u32 s3, s3, s55"); a("s_lshl_b32 s3, s3, 1")
        a("s_mul_i32 s53, s59, 7680"); a("s_add_u32 s3, s3, s53"); a(f"s_add_u32 s3, s3, {WS_CS}")
        a("v_min_u32 v59, 39, v0"); a("v_lshl_add_u32 v58, v59, 3, s3")
        a("s_lshl_b32 s3, s60, 9"); a(f"s_add_u32 s3, s3, {L_STAT}"); a("v_lshl_add_u32 v56, v56, 4, s3")
        a("s_mul_i32 s3, s59, 640"); a("s_mul_i32 s53, s58, 320"); a("s_add_u32 s3, s3, s53"); a(f"s_add_u32 s3, s3, {L_CS}"); a("v_lshl_add_u32 v68, v59, 3, s3")
        a("s_mul_i32 s3, s60, 160"); a(f"s_add_u32 s3, s3, {L_CS+1280}"); a("v_lshl_add_u32 v69, v59, 2, s3"); a("v_mov_b32 v61, 0")
        a("ds_write_b32 v69, v61")
    def set_xid():
        a.readycheck(42, 43)
        a("s_getreg_b32 s64, hwreg(HW_REG_XCC_ID)"); a(f"s_lshl_b32 s70, s{sX}, 9"); a(f"s_add_u32 s70, s70, {WS_XID}")
        a("s_cmp_eq_u32 s60, 0"); a("s_cbranch_scc0 L_xid")
        a("v_mov_b32 v44, s64"); a(f"s_and_b32 s3, s{sJR}, 3"); a("s_mul_i32 s3, s3, 127"); a(f"s_add_u32 s3, s3, s{sJR}"); a("s_add_u32 s3, s3, s70")
        a("s_mov_b64 exec, 1"); a(f"buffer_store_dword v44, off, {WS}, s3 sc1"); a("s_mov_b64 exec, -1")
        a.label("L_xid")
        a("v_min_u32 v45, 23, v0"); a("v_and_b32 v46, 3, v45"); a("v_mul_u32_u24 v46, 127, v46"); a("v_add_u32 v45, v45, v46")
    def konly(units, n):
        out = []
        for i in range(0, len(units), n):
            lb = a.newlab("L_ko"); out.append("\n".join(["s_cmp_lt_u32 s57, 8", f"s_cbranch_scc0 {lb}"] + units[i:i+n] + [lb + ":"]))
        return out
    cap = a.capture
    plan = {1: cap(set1), 3: konly(cap(phi_build), 5) + cap(lambda: o_vgprs(96)), 5: cap(set_oa), 7: []}
    if ini == 0: plan[3] = cap(set_o) + plan[3]; plan[7] += cap(set_st)
    if ini == 2: plan[1] += cap(set_o) + cap(set_st)
    for c in range(10):
        if c == xc - 2: vm(a.readyload(42, 43), "rdy")
        if c == xc: set_xid()
        issue(c, plan.get(c, []))
        if c == 0 and ini == 1: set_o(); set_st()
        if 0 < c < 9: bar(c - 1)
    statloads = [f"buffer_load_dword v60, v57, {WS}, 0 offen sc1", f"buffer_load_dwordx2 v[62:63], v58, {WS}, 0 offen sc1"]
    bar(8)
    if bare: bar(9); a.stamp(1); a("s_barrier"); a("s_branch L_fin")
    a("s_cmp_lt_u32 s57, 8"); a("s_cbranch_scc1 L_nx"); a("s_cmp_eq_u32 s60, 0"); a("s_cbranch_scc0 L_nx")
    a(f"buffer_load_dword v44, v45, {WS}, s70 offen sc1")
    a.label("L_nx")
    for l in statloads: vm(l, "st")
    a("s_cmp_lt_u32 s57, 8"); a("s_cbranch_scc1 L_r0")
    if qt:
        a("s_sub_u32 s3, s57, 8"); a("s_lshl2_add_u32 s3, s3, s60"); a("s_mul_i32 s58, s3, 163840")
        a("s_mul_i32 s3, s54, 5120"); a("s_add_u32 s58, s58, s3"); a(f"s_add_u32 s58, s58, {WS_Q}"); a("s_add_u32 s59, s58, 81920")
        a("v_lshlrev_b32 v47, 7, v0"); a("s_mov_b32 exec_hi, 0xff")
        for r in (58, 59): a(f"buffer_load_dword v48, v47, {WS}, s{r} offen")
        a("s_mov_b32 exec_hi, -1")
    a(fload)
    if qw <= 0: a(f"s_waitcnt vmcnt({3 if qt else 1})"); a("s_branch L_r0d")
    a.label("L_r0")
    wo_round(0)
    a.label("L_r0d")
    bar(9, "st")
    a.stamp(1)
    if cut: a("s_barrier"); a("s_branch L_fin")
    a.recheck(statloads, [60, 62, 63], 41)
    a("ds_write_b64 v68, v[62:63]")
    a("v_and_b32 v66, 0xffff0000, v60"); a("v_rcp_f32 v66, v66")
    a("v_and_b32 v64, 0xffff, v60"); a("v_lshl_or_b32 v64, v64, 16, v64"); a("v_xor_b32 v64, 0x80008000, v64")
    a("v_lshrrev_b32 v65, 16, v60"); a(f"v_mul_f32 v67, {LOG2E:#x}, v66")
    a("ds_write_b128 v56, v[64:67]")
    a("s_cmp_lt_u32 s57, 8"); a("s_cbranch_scc0 L_lq")
    if ws != 2: wo_round(1)
    a("s_waitcnt lgkmcnt(0)"); a.stamp(2); a("s_barrier")
    a(f"s_setprio {lpr}")
    for m in (2, 3): a(f"ds_read_b128 {vr(STAT+4*m,4)}, v206 offset:{256*m}")
    a(f"s_lshl_b32 s58, s{sX}, 7"); a("v_lshlrev_b32 v45, 10, v0"); a(f"v_mov_b32 v44, {SENT + 16:#x}")
    a(f"s_cmp_eq_u32 s{sWV}, 7"); a("s_cbranch_scc0 L_ah")
    a("s_mov_b64 exec, 15"); a("v_mov_b32 v44, 0"); a(f"buffer_atomic_or v44, v45, {WS}, s58 offen sc0 sc1"); a("s_mov_b64 exec, -1")
    a.label("L_ah")
    if not kno & 2 and ws in (0, 2): wo_round(2 if ws == 0 else 1)
    if kd: a.stamp(8, True)
    a("s_barrier")
    if kd: a.stamp(4, True); a("s_waitcnt lgkmcnt(0)")
    for m in (2, 3):
        T = 136 + 6*(m-2)
        a(f"ds_read_b128 {vr(T,4)}, v{E0} offset:{2048*m}"); a(f"ds_read_b64 {vr(T+4,2)}, v{E2} offset:{2048*m}")
    a("s_waitcnt lgkmcnt(2)")
    for x in phi_mm(Pb[0], 136): a(x)
    a("s_waitcnt lgkmcnt(0)")
    mm3 = phi_mm(Pb[1], 142)
    for x in mm3[:3]: a(x)
    if fl == 1:
        ktile(2, Pb[0], False, mm3[3:] + wo_list(3), 0)
        ktile(3, Pb[1], kpk, [fload], 1)
        a("s_waitcnt vmcnt(0)")
        for l in qloads: a(l)
    else:
        ktile(2, Pb[0], False, mm3[3:] + (wo_list(2) if ws else []) + (wo_list(3) if ws != 3 else []) + [fload], 0)
        ktile(3, Pb[1], kpk, [""]*fl + ["s_waitcnt vmcnt(0)\n" + qloads[0]] + qloads[1:], 1)
    def topcheck():
        a.recheck([tload], [230, 231], OT, sleep=8)
        a(f"v_readfirstlane_b32 s{sK1}, v230"); a(f"v_readfirstlane_b32 s{sK2}, v231")
    if kd: a.stamp(7, True)
    a(f"v_cmp_ne_u32 vcc, {SENT + 16:#x}, v44"); a("s_cbranch_vccz L_ah2")
    a.cnt_poll(4, 45, "s58", f"{SENT + 16:#x}", 44)
    a.label("L_ah2")
    a.stamp(3)
    if lpr: a("s_setprio 0")
    if lp2: a("s_setprio 2")
    a("s_waitcnt lgkmcnt(0)"); a("s_barrier")
    a("s_waitcnt vmcnt(0)")
    if ws == 3: wo_round(3)
    a("s_branch L_qchk")
    a.label("L_lq")
    a("v_cmp_ne_u32 vcc, s64, v44"); a(f"v_mov_b32 v46, {L_KVR}"); a("s_or_b32 s64, vcc_lo, vcc_hi")
    if not loc: a("s_mov_b32 s64, 1")
    a("v_mov_b32 v44, s64")
    a("s_cmp_eq_u32 s60, 0"); a("s_cbranch_scc0 L_lq1")
    a("ds_write_b32 v46, v44")
    a.label("L_lq1")
    if qw == 2: wo_round(1)
    a("s_lshl2_add_u32 s3, s54, s57"); a("s_lshl_b32 s3, s3, 7"); a(f"s_add_u32 s3, s3, {WS_FQ - 1024}")
    a("s_waitcnt lgkmcnt(0)"); a.stamp(2); a("s_barrier")
    a("s_setprio 0")
    a("s_cmp_eq_u32 s60, 0")
    a("s_barrier")
    a("s_cbranch_scc0 L_ophase")
    a("s_mov_b64 exec, 1"); a("s_cmp_eq_u32 s64, 0"); a("s_cbranch_scc1 L_lq2")
    a(f"buffer_store_dword v0, off, {WS}, s3 sc1"); a("s_mov_b64 exec, -1"); a("s_branch L_ophase")
    a.label("L_lq2")
    a(f"buffer_store_dword v0, off, {WS}, s3"); a("s_mov_b64 exec, -1"); a("s_branch L_ophase")

    a.label("L_mfma")
    a("s_setprio 0")
    srds()
    a(f"s_and_b32 s60, s{sWV}, 1"); a(f"s_lshr_b32 s61, s{sWV}, 1")
    lanefields()
    a(f"v_mul_u32_u24 v7, {WREG}, v3"); a("v_mul_u32_u24 v12, 320, v4"); a("s_movk_i32 s3, 16384"); a("v_add3_u32 v7, v7, v12, s3")
    a("s_mul_i32 s66, s60, 80"); a("s_sub_u32 s67, 240, s66")
    a("v_lshl_add_u32 v12, v5, 3, v7"); a("v_add_u32 v9, s66, v12"); a("v_add_u32 v10, s67, v12")
    a("v_mov_b32 v12, s66"); a("v_mov_b32 v13, s67"); a("v_cmp_lt_u32 vcc, 1, v5"); a("v_and_b32 v14, 1, v5"); a("v_mul_u32_u24 v14, 72, v14")
    a("v_cndmask_b32 v15, v12, v13, vcc"); a("v_add3_u32 v11, v7, v15, v14")
    a("v_and_b32 v7, 2, v0"); a("v_bfe_u32 v14, v0, 2, 1"); a("v_or_b32 v7, v7, v14"); a("v_bfe_u32 v14, v0, 3, 1"); a("v_lshl_add_u32 v7, v14, 2, v7")
    a("v_lshlrev_b32 v14, 1, v3"); a("v_xor_b32 v7, v7, v14"); a("v_lshlrev_b32 v7, 4, v7"); a("v_lshl_add_u32 v7, v6, 7, v7")
    a("s_lshl_b32 s3, s61, 13"); a("v_add_u32 v8, s3, v7")
    a(f"v_add_u32 v{XA[0]}, {RING}, v8"); a(f"v_add_u32 v{MK}, {RING}, v9"); a(f"v_add_u32 v{MV}, {RING}, v10"); a(f"v_add_u32 v{EX}, {RING}, v11")
    a(f"v_xor_b32 v{XA[1]}, 16, v{XA[0]}")
    a("v_min_u32 v7, 2, v3"); a("v_mul_u32_u24 v7, 640, v7"); a(f"v_add_u32 v7, {L_CS}, v7")
    a("v_lshl_add_u32 v14, v6, 2, v7"); a("v_lshl_add_u32 v173, v12, 1, v14"); a("v_lshl_add_u32 v174, v13, 1, v14")
    a("v_cmp_lt_u32 vcc, 1, v4"); a("v_and_b32 v14, 1, v4"); a("v_mul_u32_u24 v14, 144, v14")
    a("v_cndmask_b32 v15, v12, v13, vcc"); a("v_lshl_add_u32 v15, v15, 1, v14"); a("v_lshl_add_u32 v14, v5, 2, v7"); a("v_add_u32 v175, v14, v15")
    a("s_lshl_b32 s3, s61, 10"); a(f"s_add_u32 s3, s3, {L_STAT}"); a("v_lshl_add_u32 v206, v6, 4, s3")
    for r in range(0, 80, 2): a(f"v_mov_b64 {vr(ACC+r,2)}, 0")
    for r in range(0, 36, 2): a(f"v_mov_b64 {vr(SET[1]+r,2)}, 0")
    for t in range(5): a(f"v_mov_b32 v{AUG+2*t+1}, 0")
    a("s_mov_b32 s68, 0"); a(f"s_mov_b32 s69, {RING}")
    o_sgprs()
    a("s_cmp_lt_u32 s57, 8"); a("s_cbranch_scc0 L_qaddr")
    kepi_addr("s61", "s60")
    a("s_sub_u32 s59, 32768, s58")
    a("v_add_u32 v14, s59, v7"); a("v_lshlrev_b32 v15, 4, v12"); a(f"v_xor_b32 v{E3}, 64, v14"); a(f"v_xor_b32 v{E3}, v{E3}, v15"); a(f"v_lshl_add_u32 v{E3}, v13, 3, v{E3}")
    a("v_xor_b32 v14, 112, v14"); a("v_lshl_add_u32 v14, v13, 14, v14"); a("v_xor_b32 v12, 1, v12"); a(f"v_lshl_add_u32 v{E4}, v12, 3, v14")
    a("v_lshrrev_b32 v7, 5, v0"); a("v_lshl_add_u32 v12, v7, 3, v4"); a("v_lshlrev_b32 v12, 7, v12")
    a("v_and_b32 v13, 1, v4"); a("v_lshrrev_b32 v14, 1, v4"); a("v_lshl_or_b32 v13, v14, 2, v13"); a("v_lshl_or_b32 v12, v13, 4, v12")
    a(f"s_lshl_b32 s3, s{sWV}, 14"); a(f"s_add_u32 s3, s3, {TRI}"); a("v_add_u32 v12, s3, v12")
    a("v_and_b32 v13, 1, v5"); a("v_lshrrev_b32 v14, 1, v5"); a("v_and_b32 v15, 1, v3")
    a(f"v_lshl_or_b32 v{KA0}, v13, 1, v15"); a(f"v_lshlrev_b32 v{KA0}, 4, v{KA0}"); a(f"v_xor_b32 v{KA0}, v{KA0}, v12"); a(f"v_lshl_add_u32 v{KA0}, v14, 3, v{KA0}")
    a(f"v_xor_b32 v{KA1}, 96, v12"); a(f"v_lshl_add_u32 v{KA1}, v13, 3, v{KA1}")
    a("s_cmp_eq_u32 s60, 0"); a("s_mov_b32 s3, 0xfffeba98"); a("s_cselect_b32 s3, 0xfffba98e, s3")
    a("v_lshl_add_u32 v13, v15, 2, v5"); a("v_lshlrev_b32 v13, 2, v13"); a("v_bfe_u32 v13, s3, v13, 4"); a("v_lshlrev_b32 v13, 3, v13")
    a(f"v_xor_b32 v{KB}, v13, v12")
    for r in (KB, KA0, KA1): a(f"v_xor_b32 v{r+1}, 32, v{r}")
    a("v_and_b32 v13, 31, v0"); a("v_mul_u32_u24 v14, 21, v7"); a("v_add_u32 v14, v14, v13"); a("v_cmp_lt_u32 vcc, 20, v13")
    a(f"v_mov_b32 v15, {OOB:#x}"); a(f"v_lshlrev_b32 v{KP}, 4, v14"); a(f"v_lshlrev_b32 v{KP+1}, 3, v14")
    a(f"v_cndmask_b32 v{KP}, v{KP}, v15, vcc"); a(f"v_cndmask_b32 v{KP+1}, v{KP+1}, v15, vcc")
    a(f"s_lshl2_add_u32 s3, s57, s{sWV}"); a("s_lshl4_add_u32 s3, s3, s54")
    a("s_mul_i32 s62, s3, 1792"); a(f"s_add_u32 s62, s62, {WS_KV}")
    a("s_lshl_b32 s3, s57, 9"); a(f"s_add_u32 s3, s3, {WS_KH}")
    a(f"s_cmp_eq_u32 s{sWV}, 3"); a(f"s_cselect_b32 s{sHINT}, s3, {OOB:#x}")
    phi_addr("s65")
    a("s_waitcnt vmcnt(0)")
    phi_build()
    a.label("L_qaret")
    o_vgprs(96)
    def reads(s, st):
        X = [f"ds_read_b128 {vr(st+4*m,4)}, v{XA[s]} offset:{2048*m}" for m in range(4)]
        Wr = []
        for t in range(5):
            for j in range(2):
                reg = [MK, MK, MV, MV, EX][t]; off = s*2560 + j*1280 + [8, 40, 8, 40, 0][t]
                Wr.append(f"ds_read_b64_tr_b16 {vr(st+16+4*t+2*j,2)}, v{reg} offset:{off}")
        return [X[0]] + Wr[0:2] + X[1:] + Wr[2:]
    def mf(i, st):
        t, m = divmod(i, 4)
        return f"v_mfma_f32_16x16x32_bf16 {vr(ACC+20*m+4*t,4)}, {vr(st+16+4*t,4)}, {vr(st+4*m,4)}, {vr(ACC+20*m+4*t,4)}"
    need = lambda i: (3 + i if i < 4 else 6 + 2*(i//4))
    R0 = reads(0, SET[0]); R1 = reads(1, SET[1])
    seq = [(i, 1) for i in range(20 - defer, 20)] + [(i, 0) for i in range(20)] + [(i, 1) for i in range(20 - defer)]
    fill = [[] for _ in seq]
    k = 0; g = 0
    while k < 14: fill[g] += R0[k:k+2]; k += 2; g += 1
    g = max(g, defer); k = 0
    while k < 14: fill[g].append(R1[k]); k += 1; g += 1
    fill[g] += [f"s_add_u32 s69, s69, {SLOT}", f"s_cmp_eq_u32 s69, {RING_END}", f"s_cselect_b32 s69, {RING}, s69"]
    for q, h in enumerate([f"v_add_u32 v{XA[0]}, s69, v8", f"v_add_u32 v{MK}, s69, v9", f"v_add_u32 v{MV}, s69, v10", f"v_add_u32 v{EX}, s69, v11", f"v_xor_b32 v{XA[1]}, 16, v{XA[0]}"]):
        fill[g+1+q].append(h)
    fill[g+6] += ["s_add_u32 s68, s68, 1", "s_cmp_lt_u32 s68, 10"]
    a.stampw(1)
    a.label("L_mloop")
    a("s_barrier")
    issued = 0; done = 0
    for idx, (i, st) in enumerate(seq):
        if idx >= defer:
            n = need(i) + (14 if st == 1 else 0)
            if idx == len(seq) - 1: n = 28
            if n > done: a(f"s_waitcnt lgkmcnt({min(15, issued - n)})"); done = n
        a(mf(i, SET[st]))
        for f in fill[idx]:
            if f.startswith("ds_"): issued += 1
            a(f)
    a("s_cbranch_scc1 L_mloop")
    a("s_barrier")
    RA = [f"ds_read_b128 {vr(STAT+4*m,4)}, v206 offset:{256*m}" for m in range(4)]
    RA += [f"ds_read_b32 v{AUG+2*t}, v{[173,173,174,174,175][t]} offset:{[16,80,16,80,0][t]}" for t in range(5)]
    k = 0
    for i in range(20 - defer, 20):
        a(mf(i, SET[1]))
        for r in RA[k:k+2]: a(r)
        k += 2
    for r in RA[k:]: a(r)
    a("s_waitcnt lgkmcnt(0)")
    aug = lambda m: [f"v_mfma_f32_16x16x16_bf16 {vr(ACC+20*m+4*t,4)}, {vr(AUG+2*t,2)}, {vr(STAT+4*m,2)}, {vr(ACC+20*m+4*t,4)}" for t in range(5)]
    a.stampw(2)
    if cut: a("s_branch L_fin")
    a("s_cmp_lt_u32 s57, 8"); a("s_cbranch_scc0 L_qepi")

    KT = [136, 142, 148, 166]; VT = [8, 172]
    def kcv(m): return [f"v_cvt_pk_bf16_f32 v{KT[m]+q}, v{ACC+20*m+4*t+2*h}, v{ACC+20*m+4*t+2*h+1}" for q, (t, h) in enumerate([(0,0),(0,1),(1,0),(1,1),(4,0),(4,1)])]
    def vwork(m):
        A = ACC + 20*m; T = VT[m & 1]; X = KT[m] + 4
        return [f"v_cvt_pk_bf16_f32 v{T+q}, v{A+8+2*q}, v{A+9+2*q}" for q in range(4)] + [
                f"v_cndmask_b32 v{X}, v{X}, v{STAT+4*m+1}, vcc", f"v_cndmask_b32 v{X+1}, v{X+1}, v{AUG+1}, vcc",
                f"ds_write_b64 v{E3}, {vr(T,2)} offset:{2048*m}", f"ds_write_b64 v{E3}, {vr(T+2,2)} offset:{16384+2048*m}", f"ds_write_b64 v{E4}, {vr(X,2)} offset:{2048*m}"]
    def weave(main, fillers, n):
        k = 0
        for x in main:
            a(x)
            for y in fillers[k:k+n]: a(y)
            k += n
        for y in fillers[k:]: a(y)
    a("v_cmp_gt_u32 vcc, 32, v0")
    hand = lambda m: [f"ds_write_b128 v{E0}, {vr(KT[m],4)} offset:{2048*m}", f"ds_write_b64 v{E2}, {vr(KT[m]+4,2)} offset:{2048*m}"]
    t1 = []
    if ko == 0:
        for x in aug(2): a(x)
        weave(aug(3), ["", ""] + kcv(2), 2)
        for x in hand(2): a(x)
        weave(aug(0), kcv(3) + hand(3), 2)
        weave(aug(1), ["", ""] + kcv(0), 2)
    else:
        ak = lambda m: [aug(m)[t] for t in (0, 1, 4)]; av = lambda m: [aug(m)[t] for t in (2, 3)]
        for x in ak(2) + ak(3): a(x)
        weave(ak(0) + ak(1), kcv(2) + kcv(3), 2)
        for x in hand(2) + hand(3): a(x)
        weave(av(2) + av(3), kcv(0), 2)
    if kd: a.stamp(8, True)
    a("s_waitcnt lgkmcnt(0)"); a("s_barrier")
    if kd: a.stamp(4, True)
    if ko == 0:
        weave(phi_mm(Pb[0], KT[0]), kcv(1) + vwork(2) + vwork(3), 2)
        for x in vwork(0): a(x)
        ktile(0, Pb[0], False, phi_mm(Pb[1], KT[1]) + vwork(1), 0)
    else:
        weave(phi_mm(Pb[0], KT[0]), kcv(1) + vwork(2) + vwork(3)[:5], 2)
        for x in vwork(3)[5:]: a(x)
        if ko == 1: ktile(0, Pb[0], False, av(0) + av(1) + phi_mm(Pb[1], KT[1]) + vwork(0), 0); t1 = vwork(1)
        else: ktile(0, Pb[0], False, av(0) + av(1) + phi_mm(Pb[1], KT[1]), 0); t1 = vwork(0) + vwork(1)
    oareads0 = oareads; oareads = t1 + oareads
    if mq:
        ktile(1, Pb[1], kpk, [fload] + oareads if mq == 1 else oareads + ([fload] if mq == 2 else []), 1)
        if mq == 3: a(fload)
        a("s_waitcnt vmcnt(0)")
        for l in qloads: a(l)
        if pad: a("s_branch L_pad0"); a.label("L_pad0r")
    else:
        ktile(1, Pb[1], kpk, oareads, 1)
        a(fload)
    if kd: a.stamp(7, True)
    oareads = oareads0
    if kvp: a("s_setprio 1")
    a("s_waitcnt lgkmcnt(0)"); a("s_barrier")
    a.stampw(3)
    D0, D1, FR = 96, 112, 128
    def kvreads(ks):
        f = FR + 12*(ks % 3)
        return [f"ds_read_b64_tr_b16 {vr(f+4*o+2*j,2)}, v{[KB,KA0,KA1][o]+j} offset:{2048*ks+512*j}" for o in range(3) for j in range(2)]
    for x in kvreads(0) + kvreads(1): a(x)
    a("v_lshlrev_b32 v8, 7, v0"); a("v_mov_b32 v9, 1")
    if not mq:
        a("s_waitcnt vmcnt(0)")
        for l in qloads: a(l)
    khint = f"s_mov_b64 exec, 15\nbuffer_atomic_add v9, v8, {WS}, s{sHINT} offen sc1\ns_mov_b64 exec, -1"
    for ks in range(8):
        f = FR + 12*(ks % 3)
        if ks == khe: a(khint)
        a(f"s_waitcnt lgkmcnt({6 if ks < 7 else 0})")
        a(f"v_mfma_f32_32x32x16_bf16 {vr(D0,16)}, {vr(f+4,4)}, {vr(f,4)}, {vr(D0,16) if ks else 0}")
        if ks < 6:
            for x in kvreads(ks+2)[:3]: a(x)
        a(f"v_mfma_f32_32x32x16_bf16 {vr(D1,16)}, {vr(f+8,4)}, {vr(f,4)}, {vr(D1,16) if ks else 0}")
        if ks < 6:
            for x in kvreads(ks+2)[3:]: a(x)
    if khe == 8: a(khint)
    for q in range(4): a(f"v_cvt_pk_bf16_f32 v{FR+q}, v{D0+2*q}, v{D0+2*q+1}")
    a(f"buffer_store_dwordx4 {vr(FR,4)}, v{KP}, {WS}, s62 offen sc1")
    for q in range(4, 8): a(f"v_cvt_pk_bf16_f32 v{FR+q}, v{D0+2*q}, v{D0+2*q+1}")
    a(f"buffer_store_dwordx4 {vr(FR+4,4)}, v{KP}, {WS}, s62 offen offset:672 sc1")
    for q in range(8, 10): a(f"v_cvt_pk_bf16_f32 v{FR+q}, v{D0+2*q}, v{D0+2*q+1}")
    a(f"buffer_store_dwordx2 {vr(FR+8,2)}, v{KP+1}, {WS}, s62 offen offset:1344 sc1")
    if khe == 9: a(khint)
    if kvp: a("s_setprio 0")
    a(tload)
    a("s_waitcnt vmcnt(5)")
    if pad and mq: a("s_branch L_qchk"); a.label("L_pad0"); a("s_branch L_pad1")
    a.label("L_qchk")
    a(f"v_cmp_eq_u32 vcc, s{sSENT}, v253"); a("s_cbranch_vccnz L_qlate")

    a.label("L_phi")
    a.stampw(4)
    a(f"v_mfma_f32_32x32x16_bf16 {vr(P0,16)}, {vr(OA,4)}, {vr(QF,4)}, 0")
    a(f"v_mfma_f32_32x32x8_bf16 {vr(P0,16)}, {vr(OA+8,2)}, {vr(QF+4,2)}, {vr(P0,16)}")
    a(f"v_mfma_f32_32x32x16_bf16 {vr(P1,16)}, {vr(OA+4,4)}, {vr(QF,4)}, 0")
    a(f"v_mfma_f32_32x32x8_bf16 {vr(P1,16)}, {vr(OA+10,2)}, {vr(QF+4,2)}, {vr(P1,16)}")
    def gather_sgprs():
        a("s_mov_b32 s55, 0"); a(f"s_add_u32 s54, s{sKVA}, 3584")
    def qscale(r): a(f"v_and_b32 v{r}, 0xffff0000, v{r}"); a(f"v_rcp_f32 v{r}, v{r}"); a(f"v_mul_f32 v{r}, {LOG2E:#x}, v{r}")
    if lp2: a("s_setprio 0")
    qscale(OT+2); gather_sgprs()
    a(f"s_cmp_eq_u32 s{sWV}, 7")
    for n, x in enumerate(softmax_plain(list(range(P0, P0+20)), PHQ, OT, scale=OT+2)):
        if pp == 1 and n in (hk0, hk1): a(f"s_cbranch_scc1 L_hk{n}"); a.label(f"L_hr{n}")
        if pp == 2 and n == hk0:
            a("s_cbranch_scc0 L_hs"); a("s_mov_b64 exec, 1"); a("v_mov_b32 v18, 0"); a(f"buffer_atomic_or v18, v0, {WS}, s{sKHP} offen sc0 sc1"); a("s_mov_b64 exec, -1"); a.label("L_hs")
        a(x)
    a.stampw(5)
    a("s_cbranch_scc1 L_phix")
    if pad: a("s_branch L_pad3")
    a.label("L_kvwait")
    def woreads(st, dst):
        R = []
        for t in range(5):
            for j in range(2):
                if st < 8: R.append(f"ds_read_b64_tr_b16 {vr(dst+4*t+2*j,2)}, v6 offset:{6400*st+1280*j+32*t}")
                else: R.append(f"ds_read_b64_tr_b16 {vr(dst+4*t+2*j,2)}, v2 offset:{2560+25600*(st-8)+12800*j+32*t}")
        return R
    a("s_barrier")
    a.stampw(12)
    a.label("L_kfull")
    for r in range(4): a(f"buffer_load_dwordx4 {vr(KL+4*r,4)}, v15, {WS}, s{(sKVA, 54)[r//2]} offen offset:{1792*(r%2)} sc1")
    SEL = 24
    a("v_and_b32 v16, 1, v0"); a("v_lshlrev_b32 v16, 4, v16"); a("s_movk_i32 s3, 0x3f80"); a("v_lshlrev_b32 v16, v16, s3"); a("v_bfe_u32 v17, v0, 1, 2")
    for u in range(4): a(f"v_cmp_eq_u32 vcc, {u}, v17"); a(f"v_cndmask_b32 v{SEL+u}, 0, v16, vcc")
    o_late(96)
    a(f"s_cmp_lt_u32 s{sWV}, 4"); a("s_cbranch_scc1 L_fs0")
    f_setup(96, 1)
    a("s_branch L_fs1")
    a.label("L_fs0")
    f_setup(96, 0)
    a.label("L_fs1")
    for r in range(4):
        a(f"s_waitcnt vmcnt({3-r})")
        a(f"v_mfma_f32_16x16x32_bf16 v[16:19], {vr(SEL,4)}, {vr(KL+4*r,4)}, {'v[16:19]' if r else 0}")
        a(f"v_max3_u32 v{OT}, v{KL+4*r}, v{KL+4*r+1}, {vr(OT) if r else vr(KL+4*r)}"); a(f"v_max3_u32 v{OT}, v{OT}, v{KL+4*r+2}, v{KL+4*r+3}")
    a(f"v_cmp_eq_u32 vcc, s{sSENT}, v{OT}"); a("s_cbranch_vccnz L_kagain")
    a("v_cvt_pk_bf16_f32 v16, v16, v17"); a("v_cvt_pk_bf16_f32 v17, v18, v19")
    a("ds_write_b64 v14, v[16:17]")
    a.label("L_kred")
    a.stampw(6)
    a("s_waitcnt lgkmcnt(0)"); a("s_barrier")
    a(f"ds_read_b128 {vr(OA,4)}, v207"); a(f"ds_read_b128 {vr(OA+4,4)}, v207 offset:672"); a(f"ds_read_b64 {vr(OA+8,2)}, v254 offset:1344")
    def ohint():
        lb = a.newlab("L_oh")
        a(f"s_cmp_eq_u32 s{sWV}, 7"); a(f"s_cbranch_scc0 {lb}")
        a("s_mov_b64 exec, s[54:55]"); a(f"buffer_atomic_add v15, v14, {WS}, s{sHINT} offen sc1"); a("s_mov_b64 exec, -1")
        a.label(lb)
    def omfma(P, PHI): return [f"v_mfma_f32_32x32x16_bf16 {vr(P,16)}, {vr(OA,4)}, {vr(PHI,4)}, 0",
                               f"v_mfma_f32_32x32x16_bf16 {vr(P,16)}, {vr(OA+4,4)}, {vr(PHI+4,4)}, {vr(P,16)}",
                               f"v_mfma_f32_32x32x8_bf16 {vr(P,16)}, {vr(OA+8,2)}, {vr(PHI+8,2)}, {vr(P,16)}"]
    def ofin_ops(P, T, r, s0, s1):
        L = [f"v_add_f32 v{r}, 0x358637bd, v{P+12}", f"v_rcp_f32 v{r}, v{r}"]
        L += [f"v_mul_f32 v{P+q}, v{P+q}, v{r}" for q in range(8)] + [f"v_cvt_pk_bf16_f32 v{T+q}, v{P+2*q}, v{P+2*q+1}" for q in range(4)]
        L += [f"buffer_store_dwordx4 {vr(T,4)}, v12, {WS}, s{s0} offen sc1"]
        L += [f"v_mul_f32 v{P+q}, v{P+q}, v{r}" for q in range(8, 12)] + [f"v_cvt_pk_bf16_f32 v{T+q}, v{P+2*q}, v{P+2*q+1}" for q in range(4, 6)]
        return L + [f"buffer_store_dwordx2 {vr(T+4,2)}, v13, {WS}, s{s1} offen sc1"]
    def ofin(P, T):
        for x in ofin_ops(P, T, 16, sO0, sO1): a(x)
    if ohe == 2: ohint()
    a("s_cmp_lt_u32 s57, 8"); a("s_cbranch_scc0 L_o2")
    if ohe == 3: ohint()
    for q, x in enumerate(omfma(P0, PHQ)): a(f"s_waitcnt lgkmcnt({2-q})"); a(x)
    a.label("L_o1")
    if ohe == 1: ohint()
    ofin(P0, 18)
    if ohe == 0: ohint()
    a.stampw(7)

    a.label("L_final")
    yloads = [f"buffer_load_dwordx4 {vr(OF+4*t,4)}, v15, {WS}, s60 offen offset:{512*t} sc1" for t in range(5)]
    RT = WF + 160
    wo_a = sum((woreads(st, WF + 20*st) for st in (0, 1, 2, 3, 8)), [])
    wo_b = sum((woreads(st, WF + 20*st) for st in (4, 5, 6, 7)), [])
    oloads = [f"buffer_load_dwordx4 {vr(OF+4*st,4)}, v7, {WS}, s{sF0+st//4} offen offset:{1024*(st%4)} sc1" for st in range(8)]
    oloads += [f"buffer_load_dwordx2 {vr(OF+32+2*q,2)}, v1, {WS}, s{sF2} offen offset:{512*q} sc1" for q in range(4)]
    def otouch_addr():
        if not ot: return
        a(f"s_and_b32 s3, s{sJ}, 7"); a("v_lshl_add_u32 v14, v0, 3, s3"); a("v_lshlrev_b32 v14, 7, v14")
        a(f"s_sub_u32 s3, s{sF2}, s{sF1}"); a("s_sub_u32 s3, s3, 4096"); a("v_cmp_lt_u32 vcc, 3, v0"); a("v_add_u32 v15, s3, v14"); a("v_cndmask_b32 v14, v14, v15, vcc")
    def otouch():
        if ot: a("s_mov_b64 exec, 63"); a(f"buffer_load_dword v15, v14, {WS}, s{sF1} offen sc1"); a("s_mov_b64 exec, -1")
    a("v_lshlrev_b32 v1, 3, v0"); a("s_mov_b32 s63, 0")
    a(f"s_cmp_lt_u32 s{sWV}, 4"); a("s_cbranch_scc0 L_c2")
    topcheck()
    a.label("L_c1")
    smload = f"buffer_load_dword v14, v4, {WS}, s{sAUX} offen sc1"
    a(smload)
    a(f"s_not_b32 s3, s{sK1}"); a("s_bfe_u32 s3, s3, 0x70004"); a(f"s_cmp_eq_u32 s3, s{sT16}"); a("s_cselect_b32 s61, 1, 0")
    a(f"s_not_b32 s3, s{sK2}"); a("s_bfe_u32 s3, s3, 0x70004"); a(f"s_cmp_eq_u32 s3, s{sT16}"); a("s_cselect_b32 s3, 2, 0")
    a("s_or_b32 s61, s61, s3"); a("s_cbranch_scc1 L_y0")
    a.label("L_y1")
    for x in wo_a[:40] + wo_b: a(x)
    a("s_waitcnt vmcnt(0)")
    a(f"v_cmp_eq_u32 vcc, s{sSENT}, v14"); a("s_cbranch_vccnz L_smlate")
    a.label("L_smret")
    a("s_cmp_eq_u32 s61, 0")
    a("v_and_b32 v8, 0xffff0000, v14"); a("v_rcp_f32 v8, v8"); a("v_lshlrev_b32 v9, 16, v14")
    a("v_mul_f32 v9, v9, v8"); a("v_add_f32 v8, 1.0, v8")
    a("s_cbranch_scc0 L_y2")
    a.label("L_y3")
    otouch_addr()
    a.stampw(8)
    a("s_barrier")
    a.stampw(13)
    otouch()
    for l in oloads[:n0]: a(l)
    for t in range(5): a(f"ds_read_b64 {vr(RT+10+2*t,2)}, v3 offset:{32*t}")
    a("s_cmp_eq_u32 s61, 0")
    a("s_waitcnt lgkmcnt(0)")
    for q in range(10):
        a(f"v_lshlrev_b32 v{RT+2*q}, 16, v{RT+10+q}"); a(f"v_and_b32 v{RT+2*q+1}, 0xffff0000, v{RT+10+q}")
    resfma = lambda d: [f"v_pk_fma_f32 {vr(d+2*q,2)}, {vr(RT+2*q,2)}, v[8:9], v[8:9] op_sel:[0,0,1] op_sel_hi:[1,0,1] neg_lo:[0,0,1] neg_hi:[0,0,1]" for q in range(10)]
    a("s_cbranch_scc0 L_y4")
    for x in resfma(FA): a(x)
    a.label("L_y5")
    for x in wo_a[40:]: a(x)
    last = woreads(9, WF)
    groups = ((0, 1), (2, 3), (4, 5), (6, 7), (8, 9)); ends = (2, 4, 6, 8, 12)
    def project(kh, n):
        todo = oloads[n:]
        def vtree(g_):
            r = OF + 8*g_
            return [f"s_waitcnt vmcnt({12 - len(todo) - ends[g_]})\nv_max3_u32 v13, v{r}, v{r+1}, v{r+2}", f"v_max3_u32 v12, v{r+3}, v{r+4}, v{r+5}", f"v_max3_u32 v13, v13, v{r+6}, v{r+7}",
                    "v_max_u32 v13, v13, v12", f"v_cmp_eq_u32 vcc, s{sSENT}, v13"]
        a("s_waitcnt lgkmcnt(10)")
        for x in vtree(0): a(x)
        for g_, steps in enumerate(groups):
            a("s_cbranch_vccnz L_oretry")
            a.label(f"L_og{5*kh+g_}")
            if g_ == 0: a.stampw(9)
            if fd: a.stamp(g_ + 1, True)
            if g_ in (1, 4): a("s_waitcnt lgkmcnt(0)")
            if g_ == 4 and kh:
                a("s_barrier")
                for t in range(5): a(f"ds_read_b128 {vr(OF+4*t,4)}, v5 offset:{1024*t}")
            want = min(12, max(ends[min(g_+1, 4)], n + ramp*(g_+1) + (2 if n + ramp*(g_+1) > 8 else 0)), 12 - len(todo) + 5)
            now = todo[:max(0, want - (12 - len(todo)))]; del todo[:len(now)]
            nxt_ = vtree(g_+1) if g_ < 4 else []
            for k, st in enumerate(steps):
                for t in range(5):
                    a(f"v_mfma_f32_16x16x32_bf16 {vr(FA+4*t,4)}, {vr(WF+20*(st%9)+4*t,4)}, {vr(OF+4*st,4)}, {vr(FA+4*t,4)}")
                    if k == 0 and t < len(now): a(now[t])
                    if st in (2, 4): a(last[5*(st//2-1)+t])
                    if k == 0 and t == 4 and g_ < 4: a(f"s_mov_b32 s63, {5*kh+g_+1}")
                    if k == 1 and nxt_: a(nxt_[t])
        assert not todo
        if fd: a.stamp(6, True)
    project(0, n0)
    for t in range(5): a(f"ds_write_b128 v5, {vr(FA+4*t,4)} offset:{1024*t}")
    a("s_waitcnt lgkmcnt(0)"); a("s_barrier")
    a("s_branch L_fin")
    if pad: a.label("L_pad3"); a("s_branch L_pad4")
    a.label("L_c2")
    if ql: a("s_cmp_lt_u32 s57, 8"); a("s_cbranch_scc0 L_c2h")
    if wl == 0: wo_last()
    if wl == 2:
        a(f"s_cmp_lt_u32 s{sWV}, 6"); a("s_cbranch_scc0 L_c2h")
        for x in unit_list(rX, "s67", L_RES): a(x)
    a.label("L_c2h")
    for r in range(0, 20, 2): a(f"v_mov_b64 {vr(FA+r,2)}, 0")
    a("s_mov_b32 s63, 5")
    if tw == 1:
        a("s_mov_b64 exec, 1"); a(f"buffer_load_dword v15, off, s[{rOUT}:{rOUT+3}], s{sOUT}"); a("s_mov_b64 exec, -1")
    if tw == 2:
        for u in range(3): a(f"buffer_load_dword v15, v{8+u}, s[{rOUT}:{rOUT+3}], s{sOUT} offen offset:{1024*u}")
    otouch_addr()
    a(f"s_cmp_eq_u32 s{sWV}, 7"); a("s_cbranch_scc1 L_c7")
    for x in wo_a: a(x)
    if wl != 1: a("s_waitcnt vmcnt(0)")
    a.label("L_c4")
    a.stampw(8)
    a("s_barrier")
    a.stampw(13)
    otouch()
    for l in oloads[:n1]: a(l)
    for x in wo_b: a(x)
    project(1, n1)
    a("s_waitcnt lgkmcnt(0)")
    for t in range(5):
        if ft and t >= 1:
            for q in (0, 2): a(f"v_pk_add_f32 {vr(FA+4*t+q,2)}, {vr(FA+4*t+q,2)}, {vr(OF+4*t+q,2)}")
        else:
            for q in range(4): a(f"v_add_f32 v{FA+4*t+q}, v{FA+4*t+q}, v{OF+4*t+q}")
        a(f"v_cvt_pk_bf16_f32 v{FA+4*t}, v{FA+4*t}, v{FA+4*t+1}"); a(f"v_cvt_pk_bf16_f32 v{FA+4*t+1}, v{FA+4*t+2}, v{FA+4*t+3}")
        a(f"ds_write_b64 v3, {vr(FA+4*t,2)} offset:{32*t}")
    if not ft: a("s_waitcnt lgkmcnt(0)")
    for u in range(3): a(f"ds_read_b128 {vr(OF+4*u,4)}, v11 offset:{1024*u}")
    for u in range(3):
        a(f"s_waitcnt lgkmcnt({2-u})")
        a(f"buffer_store_dwordx4 {vr(OF+4*u,4)}, v{8+u}, s[{rOUT}:{rOUT+3}], s{sOUT} offen offset:{1024*u} {['', 'sc1', 'nt', 'sc0 sc1'][outfl]}")
    a.label("L_fin")
    if diag == 4:
        a.stampw(10); a("s_waitcnt vmcnt(0)"); a.stampw(11); a("s_waitcnt lgkmcnt(0)")
        a(f"s_cmp_lt_u32 s{sJR}, {plo}"); a("s_cbranch_scc1 L_pe"); a(f"s_cmp_ge_u32 s{sJR}, {phi}"); a("s_cbranch_scc1 L_pe")
        a(f"s_cmp_lt_u32 s{sWV}, {pw0}"); a("s_cbranch_scc1 L_pe"); a(f"s_cmp_ge_u32 s{sWV}, {pw1}"); a("s_cbranch_scc1 L_pe")
        a("s_sub_u32 s74, s74, s72"); a("s_min_u32 s74, s74, 5000"); a("s_lshl_b32 s74, s74, 2"); a("s_add_u32 s74, s74, 4000")
        a.label("L_pr"); a("s_memrealtime s[76:77]"); a("s_waitcnt lgkmcnt(0)"); a("s_sub_u32 s76, s76, s72"); a("s_cmp_lt_u32 s76, s74"); a("s_cbranch_scc1 L_pr")
        a.label("L_pe")
    elif diag:
        if not cut: a.stampw(10)
        a("s_waitcnt vmcnt(0)")
        a.stampw(11)
        a(f"s_lshl3_add_u32 s3, s2, s{sWV}"); a("s_lshl_b32 s3, s3, 6"); a(f"s_add_u32 s3, s3, {WS_DIAG}")
        a("s_mov_b64 exec, 1")
        for i in range(14):
            a(f"v_mov_b32 v8, s{72+2*i}"); a(f"buffer_store_dword v8, off, {WS}, s3 offset:{4*i}")
    a("s_endpgm")

    a.label("L_oretry")
    a.poll(oloads, range(OF, OF+40), 13, 0)
    a(f"s_cmp_gt_u32 s3, {SPIN}"); a(f"s_cselect_b32 s{sSENT}, 1, s{sSENT}")
    for g_ in range(9): a(f"s_cmp_eq_u32 s63, {g_}"); a(f"s_cbranch_scc1 L_og{g_}")
    a("s_branch L_og9")
    a.label("L_y0")
    a("s_cmp_eq_u32 s61, 2"); a("s_cselect_b32 s60, 20480, 0"); a(f"s_cselect_b32 s{sK1}, s{sK2}, s{sK1}")
    a(f"s_and_b32 s3, s{sJ}, 7"); a("s_mul_i32 s3, s3, 2560"); a("s_add_u32 s60, s60, s3"); a(f"s_add_u32 s60, s60, {WS_YP}")
    a("v_and_b32 v15, 7, v0"); a("v_lshlrev_b32 v15, 4, v15"); a("v_and_b32 v13, 48, v0"); a("v_lshl_add_u32 v15, v13, 3, v15")
    for l in yloads: a(l)
    for r in range(0, 20, 2): a(f"v_mov_b64 {vr(FA+r,2)}, 0")
    a("s_branch L_y1")
    a.label("L_y2")
    a.recheck(yloads, range(OF, OF+20), 13)
    a(f"s_and_b32 s53, s{sK1}, 0xffff0000"); a("s_cmp_lt_i32 s53, 0"); a("s_mov_b32 s3, 0xffff0000"); a("s_cselect_b32 s3, 0x80000000, s3"); a("s_xor_b32 s53, s53, s3")
    a(f"v_mov_b32 v12, {LOG2E|0x80000000:#x}"); a("v_mul_f32 v12, s53, v12"); a("v_exp_f32 v12, v12"); a("v_add_f32 v12, 1.0, v12"); a("v_rcp_f32 v12, v12")
    a(f"s_andn2_b32 s3, 15, s{sK1}"); a("v_and_b32 v13, 15, v0"); a("v_cmp_eq_u32 vcc, s3, v13")
    a("v_cvt_pk_bf16_f32 v12, v12, v12"); a("v_and_b32 v12, 0xffff0000, v12")
    for ctl in ("quad_perm:[1,0,3,2]", "quad_perm:[2,3,0,1]", "row_half_mirror"):
        for q in range(20): a(f"v_add_f32_dpp v{OF+q}, v{OF+q}, v{OF+q} {ctl} row_mask:0xf bank_mask:0xf")
    a("s_mov_b64 exec, vcc")
    for q in range(0, 20, 2): a(f"v_pk_mul_f32 {vr(FA+q,2)}, {vr(OF+q,2)}, v[12:13] op_sel_hi:[1,0]")
    a("s_mov_b64 exec, -1")
    a("s_cmp_eq_u32 s61, 3"); a("s_cbranch_scc0 L_y3")
    a("s_mov_b32 s61, 2"); a(f"s_mov_b32 s{sK1}, s{sK2}"); a("s_add_u32 s60, s60, 20480"); a(f"v_mov_b32 v{OF}, s{sSENT}"); a("s_branch L_y2")
    a.label("L_y4")
    for x in resfma(RT): a(x)
    for q in range(0, 20, 2): a(f"v_pk_add_f32 {vr(FA+q,2)}, {vr(FA+q,2)}, {vr(RT+q,2)}")
    a("s_branch L_y5")
    if pad: a.label("L_pad4"); a("s_branch L_kvwait")
    a.label("L_c7")
    a("v_lshlrev_b32 v4, 9, v0")
    if po == 1: a.cnt_watch(2, 4, f"s{sOHP}", f"{SENT + 16:#x}", OF + 37, [wo_a[:osam], wo_a[osam:(osam+50)//2], wo_a[(osam+50)//2:]], True)
    else:
        for x in wo_a[:osam]: a(x)
        a(f"v_mov_b32 v12, {SENT + 16:#x}"); a("s_mov_b64 exec, 3"); a("v_mov_b32 v12, 0"); a(f"buffer_atomic_or v12, v4, {WS}, s{sOHP} offen sc0 sc1"); a("s_mov_b64 exec, -1")
        for x in wo_a[osam:]: a(x)
        a("s_waitcnt vmcnt(0)"); a(f"v_cmp_ne_u32 vcc, {SENT + 16:#x}, v12"); a("s_cbranch_vccz L_c4")
        a.cnt_poll(2, 4, f"s{sOHP}", f"{SENT + 16:#x}", 12)
    a("s_branch L_c4")
    a.label("L_smlate")
    a.poll([smload], [14], 13, 0)
    a("s_branch L_smret")
    a.label("L_kagain")
    a("s_add_u32 s55, s55, 1"); a(f"s_cmp_gt_u32 s55, {SPIN}"); a("s_cbranch_scc0 L_kfull"); a("s_branch L_kred")
    a.label("L_qlate")
    a.poll([fload], [253], OT, 0)
    for l in qloads: a(l)
    a("s_waitcnt vmcnt(0)"); a("s_branch L_phi")

    a.label("L_qaddr")
    a("s_sub_u32 s3, s57, 8"); a("s_mul_i32 s58, s3, 655360")
    a("s_lshl1_add_u32 s3, s54, s61"); a("s_mul_i32 s3, s3, 2560"); a("s_add_u32 s58, s58, s3"); a(f"s_add_u32 s58, s58, {WS_Q}")
    a("s_mul_i32 s3, s60, 163840"); a("s_sub_u32 s62, 491520, s3")
    a("v_mov_b32 v12, s3"); a("v_mov_b32 v13, s62"); a("v_cmp_gt_u32 vcc, 32, v0")
    a("s_add_u32 s59, s58, s62"); a("s_add_u32 s62, s58, s3")
    a("v_and_b32 v7, 1, v3"); a("v_mul_u32_u24 v7, 81920, v7"); a("v_cndmask_b32 v12, v13, v12, vcc")
    a("v_lshrrev_b32 v14, 5, v0"); a("v_lshl_add_u32 v14, v14, 9, v7"); a(f"v_lshl_add_u32 v{E0}, v6, 4, v14")
    a("v_add_u32 v12, v12, v7"); a(f"v_lshl_add_u32 v{E1}, v6, 3, v12"); a(f"v_mov_b32 v{E2}, {L_KVR}")
    a(f"v_mov_b64 {vr(KP-1,2)}, 0"); a(f"v_mov_b32 v{KP+1}, 0")
    a(f"s_cmp_eq_u32 s{sJR}, 16"); a("s_cbranch_scc1 L_qaret")
    a("s_waitcnt vmcnt(0)"); a("s_branch L_qaret")
    a.label("L_qepi")
    a(f"ds_read_b32 v{E3}, v{E2}")
    for x in aug(2): a(x)
    for n, m in enumerate((2, 3, 0, 1)):
        A = ACC + 20*m; T = 96 + 12*m
        cv = [f"v_cvt_pk_bf16_f32 v{T+q}, v{A+2*q}, v{A+2*q+1}" for q in range(10)]
        if n < 3: weave(aug((3, 0, 1)[n]), ([""]*2 if n == 0 else []) + cv, 2)
        else:
            for x in cv: a(x)
        if n == 0: a("s_waitcnt lgkmcnt(0)"); a(f"v_readfirstlane_b32 s3, v{E3}")
        for q in (0, 1, 4, 5): a(f"v_permlane16_swap_b32 v{T+q}, v{T+q+2}")
        if n == 0: a("s_cmp_eq_u32 s3, 0" if loc != 2 else "s_cmp_eq_u32 0, 1")
        a(f"s_cbranch_scc1 L_qs{m}")
        for fl in ("sc1", ""):
            a(f"buffer_store_dwordx4 {vr(T,4)}, v{E0}, {WS}, s62 offen offset:{(m>>1)*1280+(m&1)*256} {fl}")
            a(f"buffer_store_dwordx4 {vr(T+4,4)}, v{E0}, {WS}, s59 offen offset:{(m>>1)*1280+(m&1)*256} {fl}")
            a(f"buffer_store_dwordx2 {vr(T+8,2)}, v{E1}, {WS}, s58 offen offset:{1024+(m>>1)*1280+(m&1)*128} {fl}")
            if fl: a(f"s_branch L_qe{m}"); a.label(f"L_qs{m}")
        a.label(f"L_qe{m}")
    a.stampw(3)
    for x in oareads: a(x)
    a("s_waitcnt vmcnt(0) lgkmcnt(0)"); a("s_barrier")
    a.label("L_ophase")
    if qd: a.stamp(6, True)
    def qrounds(r0, r1, lb):
        if r0 >= r1: return
        a(f"s_cmp_lt_u32 s{sWV}, 4"); a(f"s_cbranch_scc1 {lb}")
        for r in range(r0, r1): wo_round(r) if r < 4 else wo_last()
        a.label(lb)
    qa = max(qa, qw)
    qrounds(qw, qa, "L_op0")
    a("v_lshlrev_b32 v252, 10, v0"); a("s_mov_b64 exec, 3")
    a.poll([f"buffer_load_dword v253, v252, {WS}, s{sFQ} offen sc1"], [253], OT, 0)
    a("s_mov_b64 exec, -1")
    if qd: a.stamp(7, True)
    for l in qloads: a(l)
    a(f"s_add_u32 s3, s{sQA}, 10240")
    a(f"buffer_load_dwordx4 {vr(QF2,4)}, v7, {WS}, s3 offen sc1"); a(f"buffer_load_dwordx2 {vr(QF2+4,2)}, v1, {WS}, s3 offen offset:1024 sc1")
    a(f"buffer_load_dword v130, v255, {WS}, 0 offen offset:1024 sc1")
    gather_sgprs()
    a("s_waitcnt vmcnt(0)")
    if qd: a.stamp(8, True)
    for P, Q_ in ((96, QF), (P0, QF2)):
        a(f"v_mfma_f32_32x32x16_bf16 {vr(P,16)}, {vr(OA,4)}, {vr(Q_,4)}, 0")
        a(f"v_mfma_f32_32x32x8_bf16 {vr(P,16)}, {vr(OA+8,2)}, {vr(Q_+4,2)}, {vr(P,16)}")
        a(f"v_mfma_f32_32x32x16_bf16 {vr(P+16,16)}, {vr(OA+4,4)}, {vr(Q_,4)}, 0")
        a(f"v_mfma_f32_32x32x8_bf16 {vr(P+16,16)}, {vr(OA+10,2)}, {vr(Q_+4,2)}, {vr(P+16,16)}")
    qrounds(qa, qb, "L_op1")
    a(f"v_mov_b32 v128, v{OT+2}"); qscale(128); qscale(130)
    sa = softmax_ops(list(range(96, 116)), PHQ2, 128, OT); sb = softmax_ops(list(range(P0, P0+20)), PHQ, 130, OT)
    for x in sa[:11] + sb[:11] + sa[11:]: a(x)
    a.stampw(4)
    qrounds(qb, 4 + ql, "L_op2")
    for x in sb[11:]: a(x)
    a.stampw(5)
    a(f"s_cmp_lt_u32 s{sWV}, 4"); a("s_cbranch_scc0 L_op3")
    a(tload); a("s_branch L_pad2" if pad else "s_branch L_kvwait")
    a.label("L_op3")
    ksample = lambda r: f"s_mov_b64 exec, 1\nv_mov_b32 v{r}, 0\nbuffer_atomic_or v{r}, v0, {WS}, s{sKHP} offen sc0 sc1\ns_mov_b64 exec, -1"
    a(f"s_cmp_eq_u32 s{sWV}, 7"); a("s_cbranch_scc1 L_op4")
    a("s_branch L_kvwait")
    if pad and mq: a.label("L_pad1"); a("s_branch L_pad0r")
    a.label("L_op4")
    if pp: a(ksample(18))
    if pp == 1: a(ksample(19))
    a.label("L_phix")
    if pp == 2:
        fsample = f"s_mov_b64 exec, 3\nv_mov_b32 v21, 0\nbuffer_atomic_or v21, v16, {WS}, s56 offen sc0 sc1\ns_mov_b64 exec, -1"
        a(f"s_lshl_b32 s56, s{sX}, 7"); a(f"s_add_u32 s56, s56, {WS_FH}"); a("v_lshlrev_b32 v16, 10, v0"); a(f"v_mov_b32 v21, {SENT + 32:#x}")
        a(ksample(19))
        if fe and hb < 3: a(fsample)
        o_late(96); f_setup(96, 1)
        a("v_lshrrev_b32 v14, 2, v0"); a("v_lshlrev_b32 v14, 9, v14"); a("v_lshl_add_u32 v14, v0, 7, v14"); a("v_mov_b32 v15, 1")
        a(f"s_waitcnt vmcnt({2 if fe and hb < 3 else 1})"); a("v_readfirstlane_b32 s3, v18"); a(f"s_cmp_eq_u32 s3, {SENT + 16:#x}"); a("s_cbranch_scc1 L_kgo")
        a("s_waitcnt vmcnt(0)"); a("v_readfirstlane_b32 s3, v19"); a(f"s_cmp_eq_u32 s3, {SENT + 16:#x}"); a("s_cbranch_scc1 L_kgo")
    a.cnt_watch(1, 0, f"s{sKHP}", f"{SENT + 16:#x}", 18, [None, None, []] if pp == 1 else [[], [], []], pp == 1)
    a.label("L_kgo")
    a("s_barrier")
    a("s_cmp_lt_u32 s57, 8"); a("s_cselect_b64 s[54:55], 15, 0xff")
    if wl == 0: a.cnt_poll(2, 16, "s56", f"{SENT + 32:#x}", 21)
    else:
        if hb < 3 and not fe: a(fsample)
        if ql: a("s_cbranch_scc1 L_wl0"); a("s_waitcnt vmcnt(0)"); a("s_branch L_wl1"); a.label("L_wl0")
        a(f"s_add_u32 s68, s68, {655360 - 3*40960}"); a(f"s_sub_u32 s67, s67, {3*40960}"); a("s_mov_b32 s69, 0")
        for u in range(4):
            for x in unit_list(rWO, "s68", 81920 + 5120*u): a(x)
            a("s_add_u32 s68, s68, 40960")
        for u in range(2 if wl == 1 else 0):
            for x in unit_list(rX, "s67", L_RES + 5120*u): a(x)
            a("s_add_u32 s67, s67, 40960")
        a(f"s_waitcnt vmcnt({30 if wl == 1 else 20})")
        a.label("L_wl1")
        a(f"v_cmp_ne_u32 vcc, {SENT + 32:#x}, v21"); a("s_cbranch_vccz L_kred")
        a.cnt_poll(2, 16, "s56", f"{SENT + 32:#x}", 21)
    a("s_branch L_kred")
    for k, n in enumerate((hk0, hk1)):
        if pp == 1:
            a.label(f"L_hk{n}")
            a("s_mov_b64 exec, 1"); a(f"v_mov_b32 v{18+k}, 0"); a(f"buffer_atomic_or v{18+k}, v0, {WS}, s{sKHP} offen sc0 sc1"); a("s_mov_b64 exec, -1"); a(f"s_branch L_hr{n}")
    if pad: a.label("L_pad2"); a("s_branch L_pad3")
    a.label("L_o2")
    m1 = omfma(P1, PHQ2); m0 = omfma(P0, PHQ)
    for q in range(3): a(f"s_waitcnt lgkmcnt({2-q})"); a(m1[q])
    f1_ = ofin_ops(P1, 96, 17, sO0, sO1)
    if ohe == 3: ohint()
    a(m0[0]); a(m0[1])
    for x in f1_[:6]: a(x)
    a(m0[2])
    for x in f1_[6:]: a(x)
    a(f"s_add_u32 s{sO0}, s{sO0}, 327680"); a(f"s_add_u32 s{sO1}, s{sO1}, 327680")
    a("s_branch L_o1")

    a(".p2align 12")
    a.label("L_helper")
    for r, off in ((rWR, 40), (rG, 48), (rU, 56), (rDN, 64)): a(f"s_load_dwordx2 s[{r}:{r+1}], s[0:1], {off}")
    a.srdw(rWR, D*2)
    XR, CR, WR, FF = 16, 36, 56, 76
    a(f"s_sub_u32 s54, s{sJR}, 24"); a(f"s_lshl3_add_u32 s55, s{sX}, s54")
    a(f"s_lshl3_add_u32 s56, s55, s{sWV}")
    a("v_lshrrev_b32 v3, 4, v0"); a("v_and_b32 v4, 15, v0"); a("v_lshlrev_b32 v4, 4, v4")
    a("s_lshl_b32 s3, s56, 2"); a("v_add_u32 v5, s3, v3"); a("s_movk_i32 s3, 1280"); a("v_mad_u32_u24 v6, v5, s3, v4")
    if xm == 0:
        a(f"s_lshr_b32 s57, s{sX}, 1"); a(f"s_and_b32 s58, s{sX}, 1")
        a("s_lshl3_add_u32 s59, s57, s54"); a("s_lshr_b32 s60, s59, 1"); a("s_and_b32 s59, s59, 1")
    else:
        a(f"s_bfe_u32 s58, s{sX}, 0x10001"); a(f"s_lshr_b32 s59, s{sX}, 2")
        a(f"s_bitcmp0_b32 s{sX}, 0"); a("s_mov_b32 s60, 0xfced9843"); a("s_cselect_b32 s60, 0x72ba6510, s60"); a("s_lshl_b32 s3, s54, 2"); a("s_lshr_b32 s60, s60, s3"); a("s_and_b32 s60, s60, 15")
    a("s_mul_i32 s3, s60, 52"); a("s_lshr_b32 s3, s3, 8"); a("s_add_u32 s3, s3, s58"); a("s_mul_i32 s3, s3, 640"); a("s_lshl_b32 s61, s60, 7"); a("s_add_u32 s61, s61, s3")
    a(f"s_lshr_b32 s3, s{sWV}, 2"); a("s_lshl1_add_u32 s3, s3, s59"); a(f"s_and_b32 s53, s{sWV}, 3"); a("s_lshl2_add_u32 s3, s3, s53"); a("s_mul_i32 s3, s3, 30720"); a("s_add_u32 s3, s3, s61")
    a("s_cmp_eq_u32 s60, 15"); a(f"s_cselect_b32 s3, {OOB:#x}, s3")
    a("v_lshrrev_b32 v7, 3, v0"); a("v_mul_u32_u24 v7, 3840, v7"); a("v_and_b32 v8, 7, v0"); a("v_lshl_add_u32 v7, v8, 4, v7"); a("v_add_u32 v7, s3, v7")
    a("s_waitcnt lgkmcnt(0)")
    if cut: a.stamp(3)
    hv = VM(a)
    def early_clear():
        srds()
        a("v_lshlrev_b32 v2, 4, v0")
        for q in range(4): a(f"v_mov_b32 v{12+q}, s{sSENT}")
        n = 8 if hb >= 3 else 3
        a(f"s_mul_i32 s62, s56, {1024*n}"); a(f"s_add_u32 s62, s62, {WS_CLR}")
        for i in range(n):
            if i == 4: a("s_add_u32 s62, s62, 4096")
            hv(f"buffer_store_dwordx4 v[12:15], v2, {WS}, s62 offen offset:{1024*(i%4)} sc1", "clr")
    if hb == 4: early_clear()
    def hld(o):
        i = int(o[1])
        if o[0] == "x": hv(f"buffer_load_dwordx4 {vr(XR+4*i,4)}, v6, s[{rX}:{rX+3}], 0 offen offset:{256*i}", "x")
        else: a(f"s_mov_b32 s62, {491520*i}"); hv(f"buffer_load_dwordx4 {vr(CR+4*i,4)}, v7, s[{rW}:{rW+3}], s62 offen", "c")
    first, later = [("x1 c1 | x2 | x3 x4 x0", "c2 c3 c4 c0"), ("x1 c1 | x2 c2 | x3 x4 x0", "c3 c4 c0"), ("x1 c1 | x2 c2 | x3 c3 | x4 c4 | x0 c0", ""), ("x1 x2 | x3 x4 x0", "c1 c2 c3 c4 c0")][hord]
    later = later.split()
    for o in first.split():
        if o == "|": a("s_barrier")
        else: hld(o)
    for i in range(5): hv(f"buffer_load_dwordx4 {vr(WR+4*i,4)}, v4, s[{rWR}:{rWR+3}], 0 offen offset:{256*i}", "wr")
    a.srdw(rG, 0 if nofn else D*F*2)
    if hb != 4: early_clear()
    a("v_lshrrev_b32 v130, 3, v0"); a("v_mul_u32_u24 v130, 3072, v130"); a("v_lshl_add_u32 v130, v8, 4, v130")
    a(f"s_cmp_ge_u32 s{sWV}, 3"); a("s_cselect_b32 s64, 3, 0"); a(f"s_cselect_b64 s[{rG}:{rG+1}], s[{rU}:{rU+1}], s[{rG}:{rG+1}]")
    a(f"s_sub_u32 s65, s{sWV}, s64")
    a("s_mul_i32 s68, s54, 245760"); a(f"s_mul_i32 s3, s{sX}, 384"); a("s_add_u32 s68, s68, s3"); a("s_lshl_b32 s3, s65, 7"); a("s_add_u32 s68, s68, s3")
    a(f"s_mul_i32 s69, s{sWV}, 10240"); a("s_movk_i32 s70, 24576"); a("s_movk_i32 s71, 1024"); a("s_mov_b32 s67, -1")
    a(f"s_cmp_lt_u32 s{sWV}, 6"); a("s_cbranch_scc1 L_hsw")
    a(f"s_mov_b64 s[{rG}:{rG+1}], s[{rDN}:{rDN+1}]")
    a("v_mul_u32_u24 v130, 6554, v0"); a("v_lshrrev_b32 v130, 16, v130"); a("v_mul_u32_u24 v130, 1120, v130"); a("v_add_u32 v130, v130, v2")
    a(f"s_sub_u32 s3, 7, s{sWV}"); a(f"s_mul_i32 s69, s3, {960*(f0+f1)}"); a(f"s_add_u32 s69, s69, {L_DI}"); a(f"s_mul_i32 s3, s3, {7680*(f0+f1)}")
    a(f"s_mul_i32 s68, s{sX}, 245760"); a("s_add_u32 s68, s68, s3"); a("s_mul_i32 s3, s54, 160"); a("s_add_u32 s68, s68, s3")
    a("s_movk_i32 s70, 7680"); a("s_movk_i32 s71, 960"); a("s_mov_b32 s67, 0x0fffffff")
    a.label("L_hsw")
    def ffn_dma(n):
        if n == 0: return
        a("s_mov_b32 exec_hi, s67")
        for _ in range(n):
            a("s_mov_b32 m0, s69"); a("s_add_u32 s69, s69, s71")
            hv(f"buffer_load_dwordx4 v130, s[{rG}:{rG+3}], s68 offen {'nt' if fnt else ''} lds", "f")
            a("s_add_u32 s68, s68, s70")
        a("s_mov_b32 exec_hi, -1")
    def oclear():
        a("s_mul_i32 s66, s56, 5120"); a(f"s_add_u32 s66, s66, {OOB if nooc else WS_O}"); a("s_add_u32 s63, s66, 4096")
        for i in range(5): hv(f"buffer_store_dwordx4 v[12:15], v2, {WS}, s{66 if i < 4 else 63} offen offset:{1024*(i%4)} sc1", "oc")
    a.readyaddr(117)
    hv.wait("x")
    a.stampw(1)
    for o in later[:-2]: hld(o)
    for q in range(20):
        a(f"v_lshlrev_b32 v{FF+2*q}, 16, v{XR+q}"); a(f"v_and_b32 v{FF+2*q+1}, 0xffff0000, v{XR+q}")
    a(f"v_pk_add_f32 v[120:121], {vr(FF,2)}, {vr(FF+2,2)}"); a(f"v_pk_add_f32 v[122:123], {vr(FF+4,2)}, {vr(FF+6,2)}")
    for q in range(8, 40, 4):
        a(f"v_pk_add_f32 v[120:121], v[120:121], {vr(FF+q,2)}"); a(f"v_pk_add_f32 v[122:123], v[122:123], {vr(FF+q+2,2)}")
    a("v_pk_add_f32 v[120:121], v[120:121], v[122:123]"); a("v_add_f32 v120, v120, v121")
    a.rowsum16(120)
    a("v_mul_f32 v120, 0x3acccccd, v120")
    hv(a.readyload(118, 117), "rdy")
    for o in later[-2:]: hld(o)
    for q in range(20): a(f"v_pk_add_f32 {vr(FF+2*q,2)}, {vr(FF+2*q,2)}, v[120:121] op_sel_hi:[1,0] neg_lo:[0,1] neg_hi:[0,1]")
    a(f"v_pk_mul_f32 v[122:123], {vr(FF,2)}, {vr(FF,2)}"); a(f"v_pk_mul_f32 v[124:125], {vr(FF+2,2)}, {vr(FF+2,2)}")
    for q in range(4, 40, 4):
        a(f"v_pk_fma_f32 v[122:123], {vr(FF+q,2)}, {vr(FF+q,2)}, v[122:123]"); a(f"v_pk_fma_f32 v[124:125], {vr(FF+q+2,2)}, {vr(FF+q+2,2)}, v[124:125]")
    a("v_pk_add_f32 v[122:123], v[122:123], v[124:125]"); a("v_add_f32 v122, v122, v123")
    a.rowsum16(122)
    a("v_mul_f32 v122, 0x3acccccd, v122")
    a("v_cvt_pk_bf16_f32 v122, v122, v122"); a("v_and_b32 v122, 0xffff0000, v122"); a("v_add_f32 v122, 0x3727c5ac, v122")
    a("v_cvt_pk_bf16_f32 v122, v122, v122"); a("v_and_b32 v122, 0xffff0000, v122"); a("v_sqrt_f32 v122, v122")
    a("v_cvt_pk_bf16_f32 v126, v120, v122")
    a("v_and_b32 v122, 0xffff0000, v126"); a("v_rcp_f32 v124, v122"); a("v_lshlrev_b32 v121, 16, v126")
    a("v_sub_f32 v121, v120, v121"); a("v_mul_f32 v125, v121, v124")
    a("v_mov_b32 v128, 0"); a("v_mov_b32 v129, 0")
    for q in range(20): a(f"v_pk_fma_f32 {vr(FF+2*q,2)}, {vr(FF+2*q,2)}, v[124:125], v[124:125] op_sel:[0,0,1] op_sel_hi:[1,0,1]")
    for q in range(20): a(f"v_cvt_pk_bf16_f32 v{XR+q}, v{FF+2*q}, v{FF+2*q+1}")
    hv.wait("wr")
    for q in range(20): a(f"v_dot2c_f32_bf16 v{128+(q&1)}, v{XR+q}, v{WR+q}")
    a("v_add_f32 v128, v128, v129")
    a.rowsum16(128)
    a("v_cvt_pk_bf16_f32 v128, v128, v128"); a("v_ashrrev_i32 v129, 31, v128"); a("v_or_b32 v129, 0x80000000, v129"); a("v_xor_b32 v128, v128, v129")
    a("v_and_b32 v128, 0xffff0000, v128"); a("v_sub_u32 v129, 2047, v5"); a("v_or_b32 v127, v128, v129")
    a(f"s_lshl_b32 s3, s{sWV}, 5"); a(f"s_add_u32 s3, s3, {L_HM}"); a("v_lshl_add_u32 v129, v3, 3, s3")
    a("ds_write_b64 v129, v[126:127]")
    a(f"v_mov_b32 v1, {L_XN+512}"); a("v_mov_b64 v[120:121], 0"); a("ds_write_b64 v1, v[120:121] offset:16"); a("ds_write_b32 v1, v120 offset:24")
    hv.wait("clr", "rdy", lgkm=True)
    a.readycheck(118, 117)
    a("s_barrier")
    a(f"s_cmp_eq_u32 s{sWV}, 7"); a("s_cbranch_scc0 L_h2")
    a("s_setprio 1")
    a("v_and_b32 v129, 31, v0"); a(f"v_lshlrev_b32 v128, 3, v129"); a(f"v_add_u32 v128, {L_HM}, v128"); a("ds_read_b64 v[126:127], v128")
    a("s_lshl_b32 s63, s55, 7"); a(f"s_add_u32 s62, s63, {WS_SM}"); a(f"s_add_u32 s66, s63, {WS_C1}"); a("v_lshlrev_b32 v129, 2, v129"); a("v_mov_b32 v125, 0")
    a("s_getreg_b32 s3, hwreg(HW_REG_XCC_ID)"); a("v_mov_b32 v124, s3")
    a("s_waitcnt lgkmcnt(0)")
    a(f"buffer_store_dword v126, v129, {WS}, s62 offen sc1")
    a.top2(127, 125, 128, 62, 63)
    a("v_mov_b32 v122, s62"); a("v_mov_b32 v123, s63")
    a("s_mov_b64 exec, 1")
    a(f"buffer_store_dwordx3 v[122:124], off, {WS}, s66 sc1")
    a("s_mov_b64 exec, -1")
    a("s_and_b32 s3, s55, 3"); a("s_lshl_b32 s3, s3, 10")
    a.cnt_add(8, "s3", 126)
    a("s_waitcnt vmcnt(3)"); a("s_branch L_h2a")
    a.label("L_h2")
    a("s_waitcnt vmcnt(0)")
    a.label("L_h2a")
    a.stampw(2)
    ffn_dma(f0)
    a("s_mov_b32 s62, 0x00003f80"); a("s_mov_b32 s63, 0x3f800000")
    for r in range(0, 8, 2): a(f"v_mov_b64 {vr(FF+r,2)}, 0")
    for i in range(5):
        for q in range(4):
            a(f"v_dot2c_f32_bf16 v{FF+2*q}, s62, v{CR+4*i+q}"); a(f"v_dot2c_f32_bf16 v{FF+2*q+1}, s63, v{CR+4*i+q}")
    for q in range(4): a(f"v_permlane32_swap_b32 v{FF+q}, v{FF+q+4}")
    a(f"v_pk_add_f32 {vr(FF,2)}, {vr(FF,2)}, {vr(FF+4,2)}"); a(f"v_pk_add_f32 {vr(FF+2,2)}, {vr(FF+2,2)}, {vr(FF+6,2)}")
    for q in range(2): a(f"v_permlane16_swap_b32 v{FF+q}, v{FF+q+2}")
    a(f"v_pk_add_f32 {vr(FF,2)}, {vr(FF,2)}, {vr(FF+2,2)}")
    for q in range(2): a(f"v_add_f32_dpp v{FF+q}, v{FF+q}, v{FF+q} row_ror:8 row_mask:0xf bank_mask:0xf")
    a(f"s_lshl_b32 s3, s{sWV}, 8"); a(f"s_add_u32 s3, s3, {L_HM+256}"); a("v_lshl_add_u32 v129, v8, 5, s3"); a("v_lshl_add_u32 v129, v3, 3, v129")
    a(f"ds_write_b64 v129, {vr(FF,2)}")
    a("v_mov_b32 v39, v1")
    a("s_waitcnt lgkmcnt(0)"); a("s_barrier")
    a(f"s_cmp_eq_u32 s{sWV}, 0"); a("s_cbranch_scc0 L_h3")
    a("v_lshlrev_b32 v119, 2, v0"); a(f"v_add_u32 v128, {L_HM+256}, v119")
    for q in range(8): a(f"ds_read_b32 v{FF+q}, v128 offset:{256*q}")
    a("s_lshl_b32 s63, s61, 1"); a("s_mul_i32 s3, s59, 7680"); a("s_add_u32 s63, s63, s3"); a(f"s_add_u32 s63, s63, {WS_CS}")
    a("s_cmp_eq_u32 s60, 15"); a(f"s_cselect_b32 s63, {OOB:#x}, s63")
    a("s_waitcnt lgkmcnt(0)")
    a(f"v_pk_add_f32 {vr(FF,2)}, {vr(FF,2)}, {vr(FF+2,2)}"); a(f"v_pk_add_f32 {vr(FF+4,2)}, {vr(FF+4,2)}, {vr(FF+6,2)}")
    a(f"v_pk_add_f32 {vr(FF,2)}, {vr(FF,2)}, {vr(FF+4,2)}"); a(f"v_add_f32 v{FF}, v{FF}, v{FF+1}")
    a(f"v_and_b32 v{FF+1}, 0xffff0000, v{FF}"); a(f"v_sub_f32 v{FF}, v{FF}, v{FF+1}"); a(f"v_cvt_pk_bf16_f32 v{FF}, v{FF+1}, v{FF}")
    a(f"buffer_store_dword v{FF}, v119, {WS}, s63 offen sc1")
    a.label("L_h3")
    a("s_barrier")
    a(f"s_cmp_eq_u32 s{sWV}, 7"); a("s_cbranch_scc1 L_hroute")
    if p6:
        a(f"s_cmp_eq_u32 s{sWV}, 6"); a("s_cbranch_scc0 L_h3p"); a("s_setprio 1"); a.label("L_h3p")
    ffn_dma(10 - f0 - f1)
    a(f"s_cmp_eq_u32 s{sWV}, 6"); a("s_cbranch_scc0 L_h4")
    a("s_mov_b32 s53, 0")
    a.label("L_h4a"); ffn_dma(1); a("s_add_u32 s53, s53, 1"); a(f"s_cmp_lt_u32 s53, {22 - f0 - f1}"); a("s_cbranch_scc1 L_h4a")
    a.label("L_h4")
    if wt:
        a("s_mul_i32 s3, s56, 1600"); a("v_min_u32 v9, 12, v0"); a("v_lshlrev_b32 v9, 7, v9")
        a(f"buffer_load_dword v116, v9, s[{rWO}:{rWO+3}], s3 offen")
    if hb == 0:
        oclear()
        a("s_or_b32 s3, s56, 7"); a("s_mul_i32 s3, s3, 5120"); a(f"s_lshl_b32 s53, s{sWV}, 10"); a("s_add_u32 s3, s3, s53"); a(f"s_add_u32 s3, s3, {WS_O}")
        a(f"s_cmp_lt_u32 s{sWV}, 5"); a(f"s_cselect_b32 s3, s3, {OOB:#x}")
        a(f"buffer_store_dwordx4 v[12:15], v2, {WS}, s3 offen sc1")
    if cut: a("s_branch L_fin")
    a("v_lshrrev_b32 v5, 5, v0"); a("v_bfe_u32 v4, v0, 2, 2"); a("v_lshl_add_u32 v6, v5, 3, v4"); a("v_and_b32 v11, 1, v0")
    a("v_bfe_u32 v9, v0, 4, 1"); a("v_and_b32 v131, 3, v0"); a("v_lshl_add_u32 v131, v9, 2, v131"); a("v_lshlrev_b32 v131, 3, v131")
    GB = 132; DG = 176
    a("v_and_b32 v26, 31, v0"); a("v_lshlrev_b32 v36, 2, v26"); a("s_movk_i32 s3, 768"); a("v_mad_u32_u24 v36, v5, s3, v36")
    a("s_mul_i32 s62, s55, 3072"); a("s_lshl_b32 s3, s64, 9"); a("s_add_u32 s62, s62, s3"); a("s_lshl_b32 s3, s65, 8"); a("s_add_u32 s62, s62, s3"); a(f"s_add_u32 s62, s62, {WS_GP}")
    a("s_mov_b32 s60, 0")
    wo_addr()
    a("v_mul_u32_u24 v10, 160, v11"); a("v_lshl_add_u32 v10, v5, 4, v10"); a(f"v_add_u32 v10, {L_XN}, v10")
    a("v_cmp_gt_u32 vcc, 32, v0")
    a(f"s_cmp_lt_u32 s{sWV}, 6"); a("s_cbranch_scc0 L_h5a")
    a(f"s_mul_i32 s3, s{sWV}, 10240"); a("v_lshl_add_u32 v9, v6, 7, v131"); a("v_add_u32 v9, s3, v9")
    a(f"s_waitcnt vmcnt({6 if hb == 0 else 0})")
    for s_ in range(5):
        for nt in range(2):
            for j in range(2): a(f"ds_read_b64_tr_b16 {vr(GB+8*s_+4*nt+2*j,2)}, v9 offset:{2048*s_+512*j+64*nt}")
    a.label("L_h5a")
    def ldspoll(off, n):
        top = a.newlab("L_lp"); out = a.newlab("L_lo")
        a("s_mov_b32 s53, 0")
        a.label(top)
        a(f"ds_read_b32 v9, v39 offset:{off}"); a("s_add_u32 s53, s53, 1"); a(f"s_cmp_gt_u32 s53, {64*SPIN}"); a(f"s_cbranch_scc1 {out}")
        a("s_waitcnt lgkmcnt(0)"); a("v_readfirstlane_b32 s3, v9"); a(f"s_cmp_lt_u32 s3, {n}"); a(f"s_cbranch_scc1 {top}")
        a.label(out)
    if hb == 1:
        a(f"s_cmp_eq_u32 s{sWV}, 6"); a("s_cbranch_scc0 L_h5c")
        a("s_mul_i32 s66, s55, 40960"); a(f"s_add_u32 s66, s66, {WS_O}"); a("s_add_u32 s63, s66, 40960")
        a.label("L_h5d")
        for i in range(4): a(f"buffer_store_dwordx4 v[12:15], v2, {WS}, s66 offen offset:{1024*i} sc1")
        a("s_waitcnt vmcnt(40)")
        a("s_add_u32 s66, s66, 4096"); a("s_cmp_lt_u32 s66, s63"); a("s_cbranch_scc1 L_h5d")
        a.label("L_h5c")
    a("s_waitcnt vmcnt(0) lgkmcnt(0)" if hb != 1 else "s_waitcnt lgkmcnt(0)")
    a("v_mov_b32 v9, 1"); a("s_mov_b64 exec, 1"); a("ds_add_u32 v39, v9 offset:24"); a("s_mov_b64 exec, -1")
    a.stampw(12)
    a(f"s_cmp_eq_u32 s{sWV}, 6"); a("s_cbranch_scc1 L_hbulk")
    a("v_and_b32 v9, 15, v0"); a("v_lshlrev_b32 v37, 3, v9"); a("v_mul_u32_u24 v38, 768, v3"); a("v_add_u32 v37, v37, v38")
    a("v_bfe_u32 v38, v0, 4, 1"); a("v_mul_u32_u24 v38, 384, v38"); a("v_lshl_add_u32 v38, v9, 2, v38"); a("v_lshl_add_u32 v38, v5, 1, v38")
    a(f"s_lshl_b32 s3, s{sWV}, 6"); a(f"s_add_u32 s3, s3, {L_HB}"); a("v_add_u32 v38, s3, v38")
    a(f"s_mul_i32 s66, s{sX}, 24576"); a(f"s_lshl_b32 s3, s{sWV}, 7"); a("s_add_u32 s66, s66, s3"); a(f"s_add_u32 s66, s66, {WS_GP}")
    gl = ["s_mov_b32 s63, s66"]
    for p in range(8):
        gl.append(f"buffer_load_dwordx2 {vr(FF+2*p,2)}, v37, {WS}, s63 offen offset:{3072*(p&1)} sc1")
        if p & 1 and p < 7: gl.append("s_add_u32 s63, s63, 6144")
    for x in gl: a(x)
    ldspoll(16, 1)
    a.stampw(3)
    a("ds_read_b96 v[122:124], v39")
    for s_ in range(5): a(f"ds_read_b128 {vr(XR+4*s_,4)}, v10 offset:{32*s_}")
    for s_ in range(5):
        a(f"s_waitcnt lgkmcnt({4-s_})")
        for nt in range(2): a(f"v_mfma_f32_32x32x16_bf16 {vr(DG+16*nt,16)}, {vr(XR+4*s_,4)}, {vr(GB+8*s_+4*nt,4)}, {vr(DG+16*nt,16) if s_ else 0}")
    a("v_readfirstlane_b32 s53, v124")
    for nt in range(2): a(f"v_cndmask_b32 v{120+nt}, v{DG+16*nt+1}, v{DG+16*nt}, vcc")
    a("s_cmp_eq_u32 s53, 0"); a("s_cbranch_scc1 L_h7")
    for nt in range(2): a(f"buffer_store_dword v{120+nt}, v36, {WS}, s62 offen offset:{128*nt} sc1")
    a("s_branch L_h8")
    a.label("L_h7")
    for nt in range(2): a(f"buffer_store_dword v{120+nt}, v36, {WS}, s62 offen offset:{128*nt}")
    a.label("L_h8")
    a.stampw(4)
    if ga: a("s_waitcnt vmcnt(0)")
    a.poll(gl, range(FF, FF+16), 10, 0)
    for q in range(4): a(f"v_pk_add_f32 {vr(FF+2*q,2)}, {vr(FF+2*q,2)}, {vr(FF+2*q+8,2)}")
    for q in range(2): a(f"v_pk_add_f32 {vr(FF+2*q,2)}, {vr(FF+2*q,2)}, {vr(FF+2*q+4,2)}")
    a(f"v_pk_add_f32 {vr(FF,2)}, {vr(FF,2)}, {vr(FF+2,2)}")
    a(f"v_permlane32_swap_b32 v{FF}, v{FF+1}")
    a(f"v_cvt_pk_bf16_f32 v120, v{FF}, v{FF+1}"); a("v_lshlrev_b32 v121, 16, v120"); a("v_and_b32 v120, 0xffff0000, v120")
    a(f"v_mul_f32 v119, {LOG2E|0x80000000:#x}, v121"); a("v_exp_f32 v119, v119"); a("v_add_f32 v119, 1.0, v119"); a("v_rcp_f32 v119, v119")
    a("v_mul_f32 v121, v121, v119"); a("v_cvt_pk_bf16_f32 v121, v121, v121"); a("v_and_b32 v121, 0xffff0000, v121")
    a("v_mul_f32 v121, v121, v120"); a("v_cvt_pk_bf16_f32 v121, v121, v121")
    a("ds_write_b16 v38, v121")
    a("v_mov_b32 v9, 1"); a("s_mov_b64 exec, 1"); a("ds_add_u32 v39, v9 offset:20"); a("s_mov_b64 exec, -1")
    a(f"s_cmp_lt_u32 s{sWV}, 5"); a("s_cbranch_scc0 L_h13")
    ldspoll(24, 7)
    a("v_lshl_add_u32 v8, v3, 3, v4"); a("v_mul_u32_u24 v8, 160, v8"); a("v_and_b32 v10, 3, v0"); a("v_lshl_add_u32 v8, v10, 3, v8")
    a(f"s_lshl_b32 s3, s{sWV}, 5"); a(f"s_add_u32 s3, s3, {L_DI}"); a("v_add_u32 v8, s3, v8")
    for s_ in range(6):
        for j in range(2): a(f"ds_read_b64_tr_b16 {vr(GB+4*s_+2*j,2)}, v8 offset:{5120*s_+640*j}")
    a("v_mul_u32_u24 v10, 384, v11"); a("v_lshl_add_u32 v10, v3, 4, v10"); a(f"v_add_u32 v10, {L_HB}, v10")
    ldspoll(20, 6)
    a.stampw(5)
    for s_ in range(6):
        a(f"ds_read_b128 {vr(40+4*s_,4)}, v10 offset:{64*s_}")
    a("v_and_b32 v9, 3, v0"); a("v_lshlrev_b32 v9, 2, v9"); a("v_lshl_add_u32 v9, v4, 7, v9"); a("s_movk_i32 s3, 20480"); a("v_mad_u32_u24 v9, v3, s3, v9"); a("v_cmp_gt_u32 vcc, 16, v0")
    a(f"s_lshl_b32 s62, s{sX}, 4"); a("s_mul_i32 s3, s54, 2560"); a("s_add_u32 s62, s62, s3"); a(f"s_lshl_b32 s3, s{sWV}, 9"); a("s_add_u32 s62, s62, s3"); a(f"s_add_u32 s62, s62, {WS_YP}")
    a("s_waitcnt lgkmcnt(0)")
    for s_ in range(6): a(f"v_mfma_f32_16x16x32_bf16 {vr(DG,4)}, {vr(40+4*s_,4)}, {vr(GB+4*s_,4)}, {vr(DG,4) if s_ else 0}")
    a(f"v_cndmask_b32 v120, v{DG+1}, v{DG}, vcc")
    a("s_mov_b32 exec_hi, 0"); a(f"buffer_store_dword v120, v9, {WS}, s62 offen sc1"); a("s_mov_b32 exec_hi, -1")
    a.stampw(6)
    a("s_branch L_h13")
    a.label("L_hroute")
    a(f"s_lshl_b32 s53, s{sX}, 7"); a("v_lshlrev_b32 v124, 10, v0")
    a.cnt_poll(4, 124, "s53", f"{SENT + 16:#x}", 125)
    a.stampw(3)
    a("v_lshlrev_b32 v126, 7, v0"); a(f"v_add_u32 v126, {WS_C1}, v126")
    a.poll([f"buffer_load_dwordx3 v[122:124], v126, {WS}, 0 offen sc1"], [122, 123, 124], 125, 0)
    a.stampw(4)
    a("s_getreg_b32 s3, hwreg(HW_REG_XCC_ID)"); a("v_cmp_ne_u32 vcc, s3, v124"); a(f"s_lshl_b32 s3, s{sX}, 3"); a("s_lshr_b64 s[62:63], vcc, s3"); a("s_and_b32 s62, s62, 0xff")
    if not loc: a("s_mov_b32 s62, 1")
    a.top2(122, 123, 125, sK1, sK2)
    a(f"v_mov_b32 v122, s{sK1}"); a(f"v_mov_b32 v123, s{sK2}"); a("v_mov_b32 v124, s62"); a("ds_write_b96 v39, v[122:124]")
    a("s_cmp_eq_u32 s55, 0"); a(f"s_mov_b32 s3, {WS_TOP}"); a(f"s_cselect_b32 s3, s3, {OOB:#x}")
    a("s_mov_b64 exec, 1"); a(f"buffer_store_dwordx2 v[122:123], off, {WS}, s3 sc1"); a("s_mov_b64 exec, 0xfffff")
    a("v_cmp_lt_u32 vcc, 9, v0"); a("v_cndmask_b32 v9, v122, v123, vcc"); a("v_and_b32 v9, 0x7ff, v9"); a("v_sub_u32 v9, 2047, v9")
    a("v_lshlrev_b32 v10, 2, v9"); a(f"v_add_u32 v10, {WS_SM}, v10"); a("v_mul_u32_u24 v9, 1280, v9"); a("v_add_u32 v9, v9, v2")
    a("v_subrev_u32 v11, 160, v9"); a("v_cndmask_b32 v9, v9, v11, vcc"); a("s_mul_i32 s53, s54, 160")
    a.stampw(5)
    a(f"buffer_load_dwordx4 {vr(XR,4)}, v9, s[{rX}:{rX+3}], s53 offen")
    a.poll([f"buffer_load_dword v126, v10, {WS}, 0 offen sc1"], [126], 125, 0)
    a.stampw(6)
    a("v_and_b32 v122, 0xffff0000, v126"); a("v_rcp_f32 v124, v122"); a("v_lshlrev_b32 v120, 16, v126")
    for q in range(4):
        a(f"v_lshlrev_b32 v{FF+2*q}, 16, v{XR+q}"); a(f"v_and_b32 v{FF+2*q+1}, 0xffff0000, v{XR+q}")
    for q in range(4): a(f"v_pk_add_f32 {vr(FF+2*q,2)}, {vr(FF+2*q,2)}, v[120:121] op_sel_hi:[1,0] neg_lo:[0,1] neg_hi:[0,1]")
    for q in range(4): a(f"v_pk_mul_f32 {vr(FF+2*q,2)}, {vr(FF+2*q,2)}, v[124:125] op_sel_hi:[1,0]")
    for q in range(4): a(f"v_cvt_pk_bf16_f32 v{XR+q}, v{FF+2*q}, v{FF+2*q+1}")
    a(f"v_add_u32 v9, {L_XN}, v2"); a(f"ds_write_b128 v9, {vr(XR,4)}")
    a("s_mov_b64 exec, -1")
    a("v_mov_b32 v9, 1"); a("ds_write_b32 v39, v9 offset:16")
    a("s_setprio 0")
    if cut: a("s_branch L_fin")
    if hb == 2:
        a("s_mul_i32 s66, s55, 40960"); a(f"s_add_u32 s66, s66, {WS_O}"); a("s_add_u32 s63, s66, 40960")
        a.label("L_h5d")
        for i in range(4): a(f"buffer_store_dwordx4 v[12:15], v2, {WS}, s66 offen offset:{1024*i} sc1")
        a("s_add_u32 s66, s66, 4096"); a("s_cmp_lt_u32 s66, s63"); a("s_cbranch_scc1 L_h5d")
        a("s_waitcnt vmcnt(0)")
        a("s_and_b32 s3, s55, 1"); a("s_lshl_b32 s3, s3, 10"); a(f"s_add_u32 s3, s3, {WS_FH}")
        a.cnt_add(8, "s3", 120)
    a("s_branch L_h13")
    a.label("L_hbulk")
    ldspoll(24, 7)
    def fhadd():
        a("s_and_b32 s3, s55, 1"); a("s_lshl_b32 s3, s3, 10"); a(f"s_add_u32 s3, s3, {WS_FH}")
        a.cnt_add(8, "s3", 120)
    a(f"s_add_u32 s68, s68, {19*40960}"); a(f"s_mov_b32 s69, {19*5120}")
    if hb == 1:
        for u in range(3):
            for x in unit_list(rWO, "s68", 0): a(x)
            a("s_sub_u32 s68, s68, 40960"); a("s_sub_u32 s69, s69, 5120")
        a("s_waitcnt vmcnt(15)")
    if hb < 2: fhadd()
    a.label("L_hb1")
    for x in unit_list(rWO, "s68", 0): a(x)
    a(f"s_waitcnt vmcnt({thr})")
    a("s_sub_u32 s68, s68, 40960"); a("s_sub_u32 s69, s69, 5120"); a("s_cbranch_scc0 L_hb1")
    a("s_mov_b32 s69, 0")
    for x in unit_list(rX, "s67", L_RES): a(x)
    a("s_add_u32 s67, s67, 40960")
    for x in unit_list(rX, "s67", L_RES + 5120): a(x)
    a("s_setprio 0")
    f_setup(96, 1)
    a("s_waitcnt vmcnt(0)"); a("s_branch L_h15")
    a.label("L_h13")
    a(f"s_cmp_lt_u32 s{sWV}, 4"); a("s_cbranch_scc0 L_h14")
    f_setup(96, 0)
    a("s_branch L_h15")
    a.label("L_h14")
    f_setup(96, 1)
    a.label("L_h15")
    a("s_waitcnt lgkmcnt(0)"); a("s_barrier")
    a("ds_read_b64 v[122:123], v39"); a("s_waitcnt lgkmcnt(0)")
    a(f"v_readfirstlane_b32 s{sK1}, v122"); a(f"v_readfirstlane_b32 s{sK2}, v123")
    a.stampw(7)
    a("v_lshlrev_b32 v1, 3, v0"); a("s_mov_b32 s63, 0")
    a(f"s_cmp_lt_u32 s{sWV}, 4"); a("s_cbranch_scc1 L_c1"); a("s_branch L_c2h")
    a.label("L_end")
    body, nn = hazard.fix(a.text() + "    s_endpgm\n")
    return body, nn


HEADER = open(os.path.join(os.path.dirname(os.path.abspath(__file__)), "header.txt")).read()

def full(extra=0, **kw):
    body, nn = gen(**kw)
    t = HEADER + f"; @launch grid=(256,1,1) block=(512,1,1) lds={LDS_BYTES}\n"
    if extra:
        l0 = f"; @launch kernel={NAME} grid=(256,1,1) block=(512,1,1) lds={LDS_BYTES}\n"
        l1 = "; @launch kernel=nop_kernel grid=(256,1,1) block=(256,1,1) lds=0\n"
        t = HEADER + (l0 + l1*extra if extra > 0 else l1*(-extra) + l0)
        body += ".p2align 8\n.globl nop_kernel\n.type nop_kernel,@function\nnop_kernel:\n    s_endpgm\n"
    t += f'.amdgcn_target "amdgcn-amd-amdhsa--gfx950"\n.text\n.globl {NAME}\n.p2align 12\n.p2align 8\n.type {NAME},@function\n{NAME}:\n'
    t += body
    t += f""".section .rodata,"a"
.p2align 6
.amdhsa_kernel {NAME}
  .amdhsa_next_free_vgpr 256
  .amdhsa_next_free_sgpr 102
  .amdhsa_accum_offset 256
  .amdhsa_group_segment_fixed_size 0
  .amdhsa_kernarg_size 96
  .amdhsa_user_sgpr_count 2
  .amdhsa_user_sgpr_kernarg_segment_ptr 1
  .amdhsa_system_sgpr_workgroup_id_x 1
.end_amdhsa_kernel
"""
    if extra:
        t += """.p2align 6
.amdhsa_kernel nop_kernel
  .amdhsa_next_free_vgpr 8
  .amdhsa_next_free_sgpr 16
  .amdhsa_accum_offset 8
  .amdhsa_group_segment_fixed_size 0
  .amdhsa_kernarg_size 96
  .amdhsa_user_sgpr_count 2
  .amdhsa_user_sgpr_kernarg_segment_ptr 1
  .amdhsa_system_sgpr_workgroup_id_x 1
.end_amdhsa_kernel
"""
    return t

if __name__ == "__main__":
    out = sys.argv[1] if len(sys.argv) > 1 else "parallel_sum__linear_kernel_hedgehog__moe_arch_mod__prompt.s"
    kw = {}
    for x in sys.argv[2:]:
        k, v = x.split("="); kw[k] = int(v)
    open(out, "w").write(full(**kw))
```

```python
import sys, os
sys.path.insert(0, os.path.dirname(os.path.abspath(__file__)))
from asmlib import Asm, vr, sr
import hazard

NAME = "parallel_sum__linear_kernel_hedgehog__moe_arch_mod__prompt_kernel"
S, D, F = 2048, 640, 1536
SENT = 0xFF81FF81
OOB = 0x7FF00000
WS_SM = 0x2000
WS_CS = 0x4000
WS_C1 = 0x8000
WS_FQ = 0xB000
WS_AH = 0x0000
WS_FH = 0x1000
WS_KH = 0xD000
WS_OH = 0xE000
WS_XID = 0xA000
WS_TOP = 0x1800
WS_Q = 0x10000
WS_CLR = WS_Q + 2621440
WS_GP = WS_CLR
WS_YP = WS_GP + 196608
WS_KV = WS_YP + 40960
assert WS_KV + 917504 <= WS_CLR + 512*3072
WS_O = WS_CLR + 512*3072
WS_END = WS_O + 2621440
WS_DIAG = 0x1000000
WS_BYTES = 1 << 28
WREG = 5152
SLOT = 16384 + 4*WREG
RING = 40960
RING_END = RING + 3*SLOT
TRI = 86016
MISC = RING_END
L_PHIO = MISC
L_STAT = L_PHIO + 1024
L_CS = L_STAT + 2048
L_KVR = L_CS + 1920
L_HM = L_KVR + 2048
L_OA = L_HM
L_RES = 102400
L_XCH = L_RES + 10240
L_OUTS = L_XCH + 20480
L_DI = 112640
L_XN = L_STAT
L_HB = L_CS
LDS_BYTES = 163840
sWV, sX, sJ, sJR = 4, 5, 6, 7
rX, rW, rWS, rWO, rOUT, rDBG, rPHI, rWR, rG, rU, rDN = 8, 12, 16, 20, 24, 28, 32, 36, 40, 44, 48
sSENT = 52
LOG2E = 0x3FB8AA3B
SPIN = 200000


class K(Asm):
    def __init__(self, diag):
        super().__init__()
        self.diag = diag
    def srdw(self, r, n):
        self(f"s_mov_b32 s{r+2}, {n}"); self(f"s_mov_b32 s{r+3}, 0x20000")
    def capture(self, fn):
        keep = self.L; self.L = []; fn(); lines = [x.strip() for x in self.L]; self.L = keep
        rd = lambda x: x.startswith(("s_cselect", "s_cbranch_scc", "s_addc"))
        wr = lambda x: x.startswith("s_") and not x.startswith(("s_mov", "s_mul", "s_cselect", "s_cbranch", "s_waitcnt", "s_getreg", "s_branch", "s_sleep", "s_nop"))
        units = [[]]; pend = set(); masked = False
        for i, x in enumerate(lines):
            units[-1].append(x)
            if x.endswith(":"): pend.discard(x[:-1])
            if x.endswith(":") and any(y.endswith(" " + x[:-1]) for y in lines[i:]): pend.add("loop" + x)
            if x.startswith(("s_cbranch", "s_branch")):
                t = x.split()[1]
                if t + ":" in lines[i:]: pend.add(t)
                elif not any(y.endswith(" " + t) for y in lines[i+1:]): pend.discard("loop" + t + ":")
            if x.startswith("s_mov_b64 exec"): masked = not x.endswith("-1")
            live = next((rd(y) for y in lines[i+1:] if rd(y) or wr(y)), False)
            if not live and not pend and not masked: units.append([])
        return ["\n".join(u) for u in units if u]
    mute = ()
    def stamp(self, i, force=False):
        if i in self.mute and not force: return
        if self.diag == 4:
            if i in (0, self.probe): self(f"s_memrealtime s[{72+2*min(i,1)}:{73+2*min(i,1)}]")
            return
        if self.diag == 3: self(f"s_memtime s[{72+2*i}:{73+2*i}]")
        elif self.diag == 1 or (self.diag and i in (0, 11)): self(f"s_memrealtime s[{72+2*i}:{73+2*i}]")
    def stampw(self, i):
        if i in self.mute: return
        if self.diag == 4:
            if i == self.probe: self("s_memrealtime s[74:75]"); self("s_waitcnt lgkmcnt(0)")
            return
        if self.diag == 3: self(f"s_memtime s[{72+2*i}:{73+2*i}]"); self("s_waitcnt lgkmcnt(0)")
        elif self.diag == 1 or (self.diag and i in (0, 11)): self(f"s_memrealtime s[{72+2*i}:{73+2*i}]"); self("s_waitcnt lgkmcnt(0)")
    def maxtree(self, dst, regs):
        regs = list(regs)
        if len(regs) == 1: self(f"v_mov_b32 v{dst}, v{regs[0]}"); return
        if len(regs) == 2: self(f"v_max_u32 v{dst}, v{regs[0]}, v{regs[1]}"); return
        self(f"v_max3_u32 v{dst}, v{regs[0]}, v{regs[1]}, v{regs[2]}"); regs = regs[3:]
        while len(regs) >= 2:
            self(f"v_max3_u32 v{dst}, v{dst}, v{regs[0]}, v{regs[1]}"); regs = regs[2:]
        if regs: self(f"v_max_u32 v{dst}, v{dst}, v{regs[0]}")
    def poll(self, loads, regs, tmp, code, pre_issued=False, sleep=0):
        top = self.newlab("L_poll"); chk = self.newlab("L_chk"); out = self.newlab("L_pdone")
        self("s_mov_b32 s3, 0")
        if pre_issued: self(f"s_branch {chk}")
        self.label(top)
        self("s_add_u32 s3, s3, 1"); self(f"s_cmp_gt_u32 s3, {SPIN}"); self(f"s_cbranch_scc1 {out}")
        if sleep: self(f"s_sleep {sleep}")
        for l in loads: self(l)
        self.label(chk)
        self("s_waitcnt vmcnt(0)")
        self.maxtree(tmp, regs)
        self(f"v_cmp_eq_u32 vcc, s{sSENT}, v{tmp}")
        self(f"s_cbranch_vccnz {top}")
        self.label(out)
    def cnt_add(self, n, soff, t, stride=7):
        self(f"v_lshlrev_b32 v{t}, {stride}, v0"); self(f"v_mov_b32 v{t+1}, 1")
        self(f"s_mov_b64 exec, {(1 << n) - 1:#x}")
        self(f"buffer_atomic_add v{t+1}, v{t}, s[{rWS}:{rWS+3}], {soff} offen sc1")
        self("s_mov_b64 exec, -1")
    def cnt_poll(self, n, va, soff, ve, t, cmp="ne"):
        top = self.newlab("L_cp"); out = self.newlab("L_cdone")
        self(f"s_mov_b64 exec, {(1 << n) - 1:#x}"); self("s_mov_b32 s3, 0")
        self.label(top)
        self(f"v_mov_b32 v{t}, 0")
        self("s_add_u32 s3, s3, 1"); self(f"s_cmp_gt_u32 s3, {SPIN}"); self(f"s_cbranch_scc1 {out}")
        self(f"buffer_atomic_or v{t}, v{va}, s[{rWS}:{rWS+3}], {soff} offen sc0 sc1")
        self("s_waitcnt vmcnt(0)")
        self(f"v_cmp_{cmp}_u32 vcc, {ve}, v{t}"); self(f"s_cbranch_vccnz {top}")
        self.label(out)
        self("s_mov_b64 exec, -1")
    def cnt_watch(self, n, va, soff, ve, t, work, pipelined):
        mask = f"{(1 << n) - 1:#x}"
        sample = lambda r: [f"v_mov_b32 v{r}, 0", f"buffer_atomic_or v{r}, v{va}, s[{rWS}:{rWS+3}], {soff} offen sc0 sc1"]
        if not pipelined:
            for x in sum(work, []): self(x)
            self.cnt_poll(n, va, soff, ve, t); return
        top = self.newlab("L_cw"); out = self.newlab("L_cwdone")
        for k in range(3):
            if work[k] is None: continue
            for x in work[k]: self(x)
            self(f"s_mov_b64 exec, {mask}")
            for x in sample(t + k): self(x)
            if k < 2: self("s_mov_b64 exec, -1")
        self("s_mov_b32 s3, 0")
        self.label(top)
        for k in range(3):
            self("s_waitcnt vmcnt(2)"); self(f"v_cmp_ne_u32 vcc, {ve}, v{t+k}"); self(f"s_cbranch_vccz {out}")
            for x in sample(t + k): self(x)
        self("s_add_u32 s3, s3, 1"); self(f"s_cmp_gt_u32 s3, {SPIN}"); self(f"s_cbranch_scc0 {top}")
        self.label(out)
        self("s_mov_b64 exec, -1")
    def readyload(self, v, va): return f"buffer_load_dword v{v}, v{va}, s[{rDBG}:{rDBG+3}], 0 offen sc1"
    def readyaddr(self, va): self(f"v_and_b32 v{va}, 31, v0"); self(f"v_lshlrev_b32 v{va}, 3, v{va}")
    def readycheck(self, v, va):
        top = self.newlab("L_rp"); out = self.newlab("L_rdone")
        self("s_mov_b32 s3, 0")
        self.label(top)
        self(f"v_cmp_eq_u32 vcc, 0, v{v}"); self(f"s_cbranch_vccz {out}")
        self("s_add_u32 s3, s3, 1"); self(f"s_cmp_gt_u32 s3, {SPIN}"); self(f"s_cbranch_scc1 {out}")
        self("s_sleep 8")
        self(self.readyload(v, va)); self("s_waitcnt vmcnt(0)")
        self(f"s_branch {top}")
        self.label(out)
    def recheck(self, loads, regs, tmp, sleep=0):
        ok = self.newlab("L_ok")
        self.maxtree(tmp, regs); self(f"v_cmp_eq_u32 vcc, s{sSENT}, v{tmp}"); self(f"s_cbranch_vccz {ok}")
        self.poll(loads, regs, tmp, 0, sleep=sleep)
        self.label(ok)
    def wavemax_u32(self, v, t, sdst):
        self(f"v_max_u32_dpp v{t}, v{v}, v{v} row_ror:8 row_mask:0xf bank_mask:0xf")
        for k in (4, 2, 1): self(f"v_max_u32_dpp v{t}, v{t}, v{t} row_ror:{k} row_mask:0xf bank_mask:0xf")
        self(f"v_max_u32_dpp v{t}, v{t}, v{t} row_bcast:15 row_mask:0xa bank_mask:0xf")
        self(f"v_max_u32_dpp v{t}, v{t}, v{t} row_bcast:31 row_mask:0xc bank_mask:0xf")
        self(f"v_readlane_b32 s{sdst}, v{t}, 63")
    def top2(self, k1, k2, t, s1, s2):
        self.wavemax_u32(k1, t, s1)
        self(f"v_cmp_eq_u32 vcc, s{s1}, v{k1}")
        self(f"v_cndmask_b32 v{k1}, v{k1}, v{k2}, vcc")
        self.wavemax_u32(k1, t, s2)
    def rowsum16(self, v):
        for k in (8, 4, 2, 1): self(f"v_add_f32_dpp v{v}, v{v}, v{v} row_ror:{k} row_mask:0xf bank_mask:0xf")


def softmax_plain(P, O, t0, scale=None, npair=None):
    L = []
    a, b = t0, t0 + 1
    L.append(f"v_max3_f32 v{a}, v{P[0]}, v{P[1]}, v{P[2]}"); L.append(f"v_max3_f32 v{b}, v{P[3]}, v{P[4]}, v{P[5]}")
    for i in range(6, 18, 4):
        L.append(f"v_max3_f32 v{a}, v{a}, v{P[i]}, v{P[i+1]}"); L.append(f"v_max3_f32 v{b}, v{b}, v{P[i+2]}, v{P[i+3]}")
    L.append(f"v_max3_f32 v{a}, v{a}, v{P[18]}, v{P[19]}"); L.append(f"v_max_f32 v{a}, v{a}, v{b}")
    if scale is None:
        for i in range(20): L.append(f"v_sub_f32 v{P[i]}, v{P[i]}, v{a}")
    else:
        L.append(f"v_mul_f32 v{a}, v{scale}, v{a}")
        for i in range(20): L.append(f"v_fma_f32 v{P[i]}, v{P[i]}, v{scale}, -v{a}")
    for i in range(20): L.append(f"v_exp_f32 v{P[i]}, v{P[i]}")
    L.append(f"v_add_f32 v{a}, v{P[0]}, v{P[1]}"); L.append(f"v_add_f32 v{b}, v{P[2]}, v{P[3]}")
    for i in range(4, 20, 2): L.append(f"v_add_f32 v{a}, v{a}, v{P[i]}"); L.append(f"v_add_f32 v{b}, v{b}, v{P[i+1]}")
    L.append(f"v_add_f32 v{a}, v{a}, v{b}"); L.append(f"v_rcp_f32 v{a}, v{a}")
    if npair is not None: L.append(f"v_mul_f32 v{a}, v{a}, v{npair}")
    for i in range(20): L.append(f"v_mul_f32 v{P[i]}, v{P[i]}, v{a}")
    for i in range(0, 20, 2): L.append(f"v_cvt_pk_bf16_f32 v{O+i//2}, v{P[i]}, v{P[i+1]}")
    return L


def softmax_ops(P, O, cpair, t0, npair=None):
    L = []
    a, b = t0, t0 + 1
    L.append(f"v_max3_f32 v{a}, v{P[0]}, v{P[1]}, v{P[2]}"); L.append(f"v_max3_f32 v{b}, v{P[3]}, v{P[4]}, v{P[5]}")
    for i in range(6, 18, 4):
        L.append(f"v_max3_f32 v{a}, v{a}, v{P[i]}, v{P[i+1]}"); L.append(f"v_max3_f32 v{b}, v{b}, v{P[i+2]}, v{P[i+3]}")
    L.append(f"v_max3_f32 v{a}, v{a}, v{P[18]}, v{P[19]}"); L.append(f"v_max_f32 v{a}, v{a}, v{b}")
    L.append(f"v_mul_f32 v{cpair+1}, v{cpair}, v{a}")
    for i in range(0, 20, 2):
        L.append(f"v_pk_fma_f32 {vr(P[i],2)}, {vr(P[i],2)}, {vr(cpair,2)}, {vr(cpair,2)} op_sel:[0,0,1] op_sel_hi:[1,0,1] neg_lo:[0,0,1] neg_hi:[0,0,1]")
    for i in range(20): L.append(f"v_exp_f32 v{P[i]}, v{P[i]}")
    L.append(f"v_pk_add_f32 {vr(t0,2)}, {vr(P[0],2)}, {vr(P[2],2)}"); L.append(f"v_pk_add_f32 {vr(t0+2,2)}, {vr(P[4],2)}, {vr(P[6],2)}")
    for i in range(8, 20, 4):
        L.append(f"v_pk_add_f32 {vr(t0,2)}, {vr(t0,2)}, {vr(P[i],2)}"); L.append(f"v_pk_add_f32 {vr(t0+2,2)}, {vr(t0+2,2)}, {vr(P[i+2],2)}")
    L.append(f"v_pk_add_f32 {vr(t0,2)}, {vr(t0,2)}, {vr(t0+2,2)}")
    L.append(f"v_add_f32 v{a}, v{a}, v{b}"); L.append(f"v_rcp_f32 v{a}, v{a}")
    if npair is not None: L.append(f"v_mul_f32 v{a}, v{a}, v{npair}")
    for i in range(0, 20, 2): L.append(f"v_pk_mul_f32 {vr(P[i],2)}, {vr(P[i],2)}, {vr(t0,2)} op_sel_hi:[1,0]")
    for i in range(0, 20, 2): L.append(f"v_cvt_pk_bf16_f32 v{O+i//2}, v{P[i]}, v{P[i+1]}")
    return L


class VM:
    def __init__(self, a): self.a = a; self.ops = []
    def __call__(self, text, tag): self.a(text); self.ops.append(tag)
    def count(self, *tags, opt=False):
        last = max(i for i, t in enumerate(self.ops) if t in tags)
        return sum(1 for t in self.ops[last+1:] if opt or t != "opt")
    def wait(self, *tags, lgkm=False): self.a(f"s_waitcnt vmcnt({self.count(*tags)})" + (" lgkmcnt(0)" if lgkm else ""))


def gen(diag=False, touch=10, defer=8, rot=3, xp=1, cpf=2, cut=0, noclr=0, outfl=0, f0=4, hord=1, fd=0, fnt=1, po=0, wt=0, tw=0, wb=0, p6=0, ot=0, ramp=2, nowo=0, khe=3, ohe=2, loc=1, osam=0, qw=0, thr=30, qt=1, qd=0, kd=0, kno=0, kpk=1, lpr=0, fl=3, kvp=1, rev=1, wv=1, wrt=1, n0=4, n1=4, pp=2, qa=0, qb=3, wl=1, roff=24, xm=1, pad=0, mq=3, lp2=1, ko=0, ws=5, cst=0, bare=0, ini=1, xc=6, hb=0, ga=1, fe=1, ft=1, ksk=0, lsl=0, qpf=1, qes=1, f1=0, pg=2, ne=0, npre=60, oss=0, ohk=6, ohq=6, thq=20, ye=2, lp=3, nofn=0, nooc=0, hk0=50, hk1=82, probe=0, plo=0, phi=32, pw0=0, pw1=8, ql=0):
    assert pp == 2 and wl == 1
    a = K(diag); a.probe = probe; a.mute = (4, 5, 12, 6, 7, 8) if kd else (6, 7, 8, 13) if qd else (1, 2, 3, 4, 5, 6, 9) if fd else (2, 3, 4, 5, 6, 7, 8, 9, 10) if cst else ()
    WS = f"s[{rWS}:{rWS+3}]"
    sK1, sK2 = 100, 101
    ACC = 16; SET = [96, 132]; XA = [168, 169]; MK, MV, EX = 170, 171, 172
    PA = 176; PX = 196; STAT = 208; AUG = 224
    E0, E1, E2, E3, E4 = 240, 241, 242, 243, 244
    KB, KA0, KA1, KP = 245, 247, 249, 251
    Pb = [96, 116]; PH = 156; CP = 234; TT = 236
    QF = 16; QF2 = 22; OA = 28; P0 = 40; P1 = 56; PHQ = 72; PHQ2 = 82; OT = 92; KL = 40
    FA = 16; OF = 36; WF = 76; WST = (176, 96)
    def lanefields():
        a("v_lshrrev_b32 v3, 4, v0"); a("v_bfe_u32 v4, v0, 2, 2"); a("v_and_b32 v5, 3, v0"); a("v_and_b32 v6, 15, v0")
    def kepi_addr(th, ch):
        a("v_and_b32 v7, 1, v0"); a("v_bfe_u32 v12, v0, 1, 1"); a("v_lshl_or_b32 v7, v12, 2, v7"); a("v_bfe_u32 v12, v0, 2, 1"); a("v_lshl_or_b32 v7, v12, 1, v7")
        a("v_lshlrev_b32 v7, 4, v7")
        a(f"s_lshl_b32 s3, {th}, 13"); a(f"s_add_u32 s3, s3, {TRI}"); a("v_lshl_add_u32 v7, v6, 7, v7"); a("v_add_u32 v7, s3, v7")
        a(f"s_lshl_b32 s58, {ch}, 15")
        a("v_lshrrev_b32 v12, 1, v3"); a("v_and_b32 v13, 1, v3")
        a("v_lshl_add_u32 v14, v12, 14, v7"); a("v_add_u32 v14, s58, v14")
        a("v_lshlrev_b32 v15, 5, v13"); a(f"v_xor_b32 v{E0}, v14, v15"); a(f"v_xor_b32 v{E1}, 16, v{E0}")
        a(f"v_xor_b32 v{E2}, 96, v14"); a(f"v_lshl_add_u32 v{E2}, v13, 3, v{E2}")
    def phi_addr(base):
        a("v_lshrrev_b32 v7, 1, v5")
        a("v_mul_u32_u24 v12, 640, v7"); a("v_lshl_add_u32 v13, v3, 2, v4"); a("v_mul_u32_u24 v13, 40, v13"); a(f"v_add3_u32 v12, v12, v13, {base}")
        a("v_mul_u32_u24 v13, 1440, v7"); a("v_mul_u32_u24 v14, 40, v4"); a(f"v_add3_u32 v13, v13, v14, {base}")
        a("v_bfe_u32 v7, v0, 3, 1"); a("v_add_u32 v14, -1, v7"); a("v_not_b32 v15, v14")
        a("v_cmp_eq_u32 vcc, v7, v3"); a("v_bfe_i32 v2, v0, 2, 1"); a("v_and_b32 v2, 0x80008000, v2"); a("v_cndmask_b32 v7, 0, -1, vcc")
    def phi_build():
        for T in range(5):
            a(f"ds_read_b64_tr_b16 {vr(PA+4*T,2)}, v12 offset:{160+8*T}"); a(f"ds_read_b64_tr_b16 {vr(PX+2*T,2)}, v13 offset:{8*T}")
        a("s_waitcnt lgkmcnt(0)")
        for T in range(5):
            for q in range(2):
                a(f"v_bitop3_b32 v{PA+4*T+2+q}, v{PA+4*T+q}, v2, v15 bitop3:0x28")
                a(f"v_bitop3_b32 v{PA+4*T+q}, v{PA+4*T+q}, v2, v14 bitop3:0x28")
                a(f"v_bitop3_b32 v{PX+2*T+q}, v{PX+2*T+q}, v2, v7 bitop3:0x28")
    def phi_mm(P, T):
        mm = [f"v_mfma_f32_16x16x32_bf16 {vr(P+4*u,4)}, {vr(PA+4*u,4)}, {vr(T,4)}, 0" for u in range(5)]
        return mm + [f"v_mfma_f32_16x16x16_bf16 {vr(P+4*u,4)}, {vr(PX+2*u,2)}, {vr(T+4,2)}, {vr(P+4*u,4)}" for u in range(5)]
    def ktile(m, P, packed, ins, k):
        if kno & 1: ins = [x for x in ins if "buffer" not in x]
        if kd: a.stamp((12, 6)[k], True)
        if packed: sm = [f"v_mov_b32 v{CP}, v{STAT+4*m+3}"] + softmax_ops(list(range(P, P+20)), PH, CP, TT, npair=STAT+4*m+2)
        else: sm = softmax_plain(list(range(P, P+20)), PH, TT, scale=STAT+4*m+3, npair=STAT+4*m+2)
        slots = [i for i, x in enumerate(sm) if x.startswith(("v_exp", "v_fma", "v_max3"))]
        at = {}
        for q, x in enumerate(ins): at.setdefault(slots[q*len(slots)//len(ins)], []).append(x)
        wr = {f"v{PH+3},": f"ds_write_b128 v{E0}, {vr(PH,4)} offset:{2048*m}", f"v{PH+7},": f"ds_write_b128 v{E1}, {vr(PH+4,4)} offset:{2048*m}", f"v{PH+9},": f"ds_write_b64 v{E2}, {vr(PH+8,2)} offset:{2048*m}"}
        for idx, x in enumerate(sm):
            if not (ksk & (1 << k)) or x.startswith("v_cvt"): a(x)
            for y in at.get(idx, []): a(y)
            if x.startswith("v_cvt_pk") and x.split()[1] in wr: a(wr[x.split()[1]])
    sHD, sT32, sQA, sFQ, sKVA, sO0, sO1, sHINT, sKHP, sF0, sF1, sF2, sOUT, sAUX, sOHP, sT16 = range(36, 52)
    def ohead(dst):
        if xm == 0:
            a(f"s_lshr_b32 s{dst}, s{sJR}, 1"); a(f"s_sub_u32 s3, s{sJR}, 8"); a("s_cmp_lt_u32 s57, 8"); a(f"s_cselect_b32 s{dst}, s{dst}, s3")
            a(f"s_and_b32 s3, s{sX}, 1"); a(f"s_lshl4_add_u32 s{dst}, s3, s{dst}")
        else:
            a(f"s_lshr_b32 s{dst}, s{sJR}, 2"); a(f"s_lshr_b32 s3, s{sJR}, 1"); a("s_sub_u32 s3, s3, 4"); a("s_cmp_lt_u32 s57, 8"); a(f"s_cselect_b32 s{dst}, s{dst}, s3")
            a(f"s_and_b32 s3, s{sX}, 3"); a(f"s_lshl3_add_u32 s{dst}, s3, s{dst}")
    def o_sgprs():
        ohead(sHD)
        if xm == 0:
            a(f"s_and_b32 s3, s{sJR}, 1"); a("s_cmp_lt_u32 s57, 8"); a("s_cselect_b32 s3, s3, 0"); a(f"s_and_b32 s{sT32}, s{sX}, 6")
        else:
            a(f"s_lshl_b32 s3, s{sJR}, 1"); a("s_cmp_lt_u32 s57, 8"); a(f"s_cselect_b32 s3, s{sJR}, s3"); a("s_and_b32 s3, s3, 3"); a(f"s_and_b32 s{sT32}, s{sX}, 4")
        a(f"s_add_u32 s{sT32}, s{sT32}, s3"); a(f"s_lshl3_add_u32 s{sT32}, s{sT32}, s{sWV}")
        a(f"s_lshl_b32 s3, s{sHD}, 6"); a(f"s_add_u32 s3, s3, s{sT32}"); a(f"s_mul_i32 s{sQA}, s3, 1280"); a(f"s_add_u32 s{sQA}, s{sQA}, {WS_Q}")
        a(f"s_and_b32 s{sFQ}, s{sT32}, 60"); a(f"s_lshr_b32 s3, s{sHD}, 3"); a(f"s_add_u32 s{sFQ}, s{sFQ}, s3"); a(f"s_lshl_b32 s{sFQ}, s{sFQ}, 7"); a(f"s_add_u32 s{sFQ}, s{sFQ}, {WS_FQ}")
        a(f"s_and_b32 s3, s{sT32}, 2"); a(f"s_lshl3_add_u32 s{sFQ}, s3, s{sFQ}"); a(f"s_and_b32 s3, s{sHD}, 6"); a(f"s_lshl1_add_u32 s{sFQ}, s3, s{sFQ}")
        a(f"s_mul_i32 s{sKVA}, s{sHD}, 28672"); a(f"s_add_u32 s{sKVA}, s{sKVA}, {WS_KV}")
        a(f"s_mul_i32 s{sO0}, s{sT32}, 40960"); a(f"s_add_u32 s{sO0}, s{sO0}, {WS_O}"); a(f"s_lshl_b32 s3, s{sHD}, 7"); a(f"s_add_u32 s{sO1}, s{sO0}, s3"); a(f"s_add_u32 s{sO1}, s{sO1}, 16384")
        a(f"s_lshl2_add_u32 s{sO0}, s3, s{sO0}")
        if xm == 0: a(f"s_lshr_b32 s{sKHP}, s{sX}, 1")
        else: a(f"s_lshr_b32 s3, s{sX}, 2"); a(f"s_and_b32 s{sKHP}, s{sJR}, 1"); a(f"s_lshl1_add_u32 s{sKHP}, s3, s{sKHP}")
        a(f"s_and_b32 s3, s{sHD}, 28"); a(f"s_add_u32 s3, s3, s{sKHP}"); a("s_lshl_b32 s3, s3, 7"); a(f"s_add_u32 s{sKHP}, s3, {WS_KH}")
    def o_vgprs(T):
        a("v_lshlrev_b32 v7, 4, v0"); a(f"v_and_b32 v{T}, 31, v0"); a(f"v_lshlrev_b32 v1, 3, v{T}"); a(f"s_lshl_b32 s3, s{sT32}, 7"); a(f"s_add_u32 s3, s3, {WS_SM}"); a(f"v_lshl_add_u32 v255, v{T}, 2, s3")
        a(f"v_mov_b32 v{T+2}, {OOB:#x}"); a("v_mov_b32 v253, 0")
        a(f"s_lshl_b32 s3, s{sWV}, 4"); a("v_and_b32 v14, 15, v0"); a("v_add_u32 v14, s3, v14"); a("v_cmp_lt_u32 vcc, 104, v14"); a("v_lshlrev_b32 v14, 4, v14")
        a(f"v_lshrrev_b32 v{T+3}, 4, v0"); a(f"v_mul_u32_u24 v15, 7168, v{T+3}"); a("v_add_u32 v15, v15, v14"); a(f"v_cndmask_b32 v15, v15, v{T+2}, vcc")
        a(f"v_and_b32 v{T+3}, 1, v{T+3}"); a(f"v_lshl_add_u32 v14, v{T+3}, 3, v14"); a(f"v_add_u32 v14, {L_KVR}, v14")
    def o_late(T):
        a(f"v_and_b32 v{T}, 31, v0"); a(f"v_min_u32 v{T}, 20, v{T}"); a(f"v_lshrrev_b32 v{T+1}, 5, v0"); a(f"v_mov_b32 v{T+2}, {OOB:#x}")
        a(f"v_mul_u32_u24 v{T+3}, 21, v{T+1}"); a(f"v_add_u32 v{T}, v{T}, v{T+3}"); a(f"s_mov_b32 s3, {L_KVR}")
        a(f"v_lshl_add_u32 v23, v{T}, 3, s3"); a(f"v_lshl_add_u32 v22, v{T}, 4, s3")
        a("v_bfe_u32 v12, v0, 4, 1"); a("v_mul_u32_u24 v12, 20480, v12"); a(f"v_and_b32 v{T}, 15, v0"); a("v_cmp_gt_u32 vcc, 32, v0")
        a(f"v_lshl_add_u32 v13, v{T}, 3, v12"); a(f"v_lshl_add_u32 v12, v{T}, 4, v12"); a(f"v_lshl_add_u32 v12, v{T+1}, 8, v12"); a(f"v_cndmask_b32 v13, v{T+2}, v13, vcc")
    def f_setup(T, kh):
        a(f"s_lshr_b32 s3, s{sJ}, 3"); a(f"s_lshl3_add_u32 s{sOHP}, s{sX}, s3"); a(f"s_lshl_b32 s{sOHP}, s{sOHP}, 7"); a(f"s_add_u32 s{sOHP}, s{sOHP}, {WS_OH}")
        a(f"s_lshl2_add_u32 s3, s{sX}, s3"); a(f"s_and_b32 s53, s{sWV}, 3"); a(f"s_lshl2_add_u32 s{sT16}, s3, s53")
        a(f"s_mul_i32 s{sOUT}, s{sT16}, 20480"); a(f"s_add_u32 s{sF0}, s{sOUT}, {WS_O + 8192*kh}"); a(f"s_add_u32 s{sF1}, s{sF0}, 4096"); a(f"s_add_u32 s{sF2}, s{sOUT}, {WS_O + 16384 + 2048*kh}")
        a(f"s_and_b32 s3, s{sJ}, 7"); a("s_mul_i32 s3, s3, 160"); a(f"s_add_u32 s{sOUT}, s{sOUT}, s3")
        if not kh: a(f"s_lshl_b32 s{sAUX}, s{sT16}, 6"); a(f"s_add_u32 s{sAUX}, s{sAUX}, {WS_SM}")
        a("v_lshlrev_b32 v7, 4, v0"); a(f"v_lshrrev_b32 v{T}, 4, v0"); a(f"v_bfe_u32 v{T+1}, v0, 2, 2"); a(f"v_and_b32 v{T+2}, 3, v0")
        a(f"v_mul_u32_u24 v{T+1}, 160, v{T+1}"); a(f"v_lshl_add_u32 v{T+1}, v{T+2}, 3, v{T+1}")
        if kh: a(f"v_add_u32 v{T+1}, 51200, v{T+1}")
        a(f"v_lshrrev_b32 v{T+2}, 5, v0"); a(f"v_mul_u32_u24 v{T+2}, 3200, v{T+2}"); a(f"v_and_b32 v6, 1, v{T}"); a("v_mul_u32_u24 v6, 640, v6"); a(f"v_add3_u32 v6, v6, v{T+2}, v{T+1}")
        a(f"v_mul_u32_u24 v2, 3200, v{T}"); a(f"v_add_u32 v2, v2, v{T+1}")
        a("s_mul_i32 s3, s53, 2560"); a(f"s_add_u32 s3, s3, {L_OUTS if kh else L_RES}")
        a(f"v_and_b32 v{T+1}, 15, v0"); a(f"v_mul_u32_u24 v3, 160, v{T+1}"); a(f"v_lshl_add_u32 v3, v{T}, 3, v3"); a("v_add_u32 v3, s3, v3")
        if kh: a("v_add_u32 v11, s3, v7")
        else: a(f"v_lshlrev_b32 v4, 2, v{T+1}")
        a("s_mul_i32 s3, s53, 5120"); a(f"s_add_u32 s3, s3, {L_XCH}"); a("v_add_u32 v5, s3, v7")
        if kh:
            a(f"v_mul_u32_u24 v{T}, 6554, v0"); a("s_movk_i32 s3, 1120"); a("v_cmp_gt_u32 vcc, 32, v0")
            for u in range(3):
                if u: a(f"v_add_u32 v{T}, {64*6554}, v{T}")
                a(f"v_lshrrev_b32 v{T+1}, 16, v{T}"); a(f"v_mad_u32_u24 v{8+u}, v{T+1}, s3, v7")
            a(f"v_mov_b32 v{T}, {OOB:#x}"); a(f"v_cndmask_b32 v10, v{T}, v10, vcc")
    qloads = [f"buffer_load_dwordx4 {vr(QF,4)}, v7, {WS}, s{sQA} offen sc1", f"buffer_load_dwordx2 {vr(QF+4,2)}, v1, {WS}, s{sQA} offen offset:1024 sc1",
              f"buffer_load_dword v{OT+2}, v255, {WS}, 0 offen sc1"]
    fload = f"s_mov_b64 exec, 1\nbuffer_load_dword v253, off, {WS}, s{sFQ} sc1\ns_mov_b64 exec, -1"
    tload = f"s_mov_b32 s70, {WS_TOP}\nv_mov_b64 v[230:231], 0\ns_mov_b64 exec, 1\nbuffer_load_dwordx2 v[230:231], off, {WS}, s70 sc1\ns_mov_b64 exec, -1"
    smload = f"buffer_load_dword v229, v4, {WS}, s{sAUX} offen sc1"
    tsload = tload + f"\ns_lshr_b32 s3, s{sJ}, 3\ns_lshl2_add_u32 s3, s{sX}, s3\ns_lshl2_add_u32 s3, s3, s{sWV}\ns_lshl_b32 s3, s3, 6\ns_add_u32 s{sAUX}, s3, {WS_SM}\nv_and_b32 v4, 15, v0\nv_lshlrev_b32 v4, 2, v4\n" + smload
    oareads = [f"v_add_u32 v{OT}, {L_OA}, v7"] + [f"ds_read_b128 {vr(OA+4*i,4)}, v{OT} offset:{1024*i}" for i in range(3)]
    a("s_cmp_ge_u32 s2, 256"); a("s_cbranch_scc1 L_end")
    a.stamp(0)
    if diag == 2:
        for r in (74, 76, 78, 80): a(f"s_mov_b32 s{r}, 0")
    for r, off in ((rX, 0), (rW, 8), (rWS, 88), (rPHI, 16), (rWO, 24), (rOUT, 72), (rDBG, 80)):
        a(f"s_load_dwordx2 s[{r}:{r+1}], s[0:1], {off}")
    a("v_lshrrev_b32 v1, 6, v0"); a("v_and_b32 v0, 63, v0")
    a(f"s_lshr_b32 s{sJ}, s2, 3"); a(f"v_readfirstlane_b32 s{sWV}, v1")
    a(f"s_and_b32 s{sX}, s2, 7"); a(f"s_add_u32 s{sJR}, s{sJ}, {roff}"); a(f"s_and_b32 s{sJR}, s{sJR}, 31")
    if cpf:
        if cpf == 1: a(f"s_cmp_eq_u32 s{sWV}, 0")
        else: a(f"s_lshr_b32 s3, s{sJ}, 3"); a(f"s_or_b32 s3, s3, s{sWV}"); a("s_cmp_eq_u32 s3, 0")
        a("s_cbranch_scc0 L_nopf")
        a("s_getpc_b64 s[96:97]"); a.label("L_pc")
        a(f"s_mul_i32 s3, s{sJ}, 5"); a("s_bfe_u32 s3, s3, 0x30003"); a("s_lshl_b32 s3, s3, 13"); a("v_lshl_add_u32 v2, v0, 7, s3")
        a("v_min_u32 v2, L_end-L_pc, v2"); a("v_mov_b32 v3, s97"); a("v_add_co_u32 v2, vcc, s96, v2"); a("v_addc_co_u32 v3, vcc, 0, v3, vcc")
        a("global_load_dword v255, v[2:3], off")
        a.label("L_nopf")
    def srds():
        a.srdw(rWS, WS_BYTES); a.srdw(rPHI, 32*800); a.srdw(rWO, 0 if nowo else D*D*2); a.srdw(rOUT, S*D*2); a.srdw(rDBG, 256)
        a(f"s_mov_b32 s{sSENT}, {SENT:#x}")
    a.srdw(rX, S*D*2); a.srdw(rW, D*3*D*2)
    a(f"s_cmp_ge_u32 s{sJR}, 24"); a("s_cbranch_scc1 L_helper")
    if xm == 0:
        a(f"s_lshr_b32 s54, s{sX}, 1"); a(f"s_and_b32 s3, s{sJR}, 3"); a("s_lshl2_add_u32 s54, s54, s3"); a(f"s_lshr_b32 s53, s{sJR}, 2")
        a(f"s_and_b32 s3, s{sX}, 1"); a("s_lshl2_add_u32 s57, s3, s53"); a("s_lshl1_add_u32 s3, s3, s53"); a("s_add_u32 s3, s3, 4")
    else:
        a(f"s_lshr_b32 s54, s{sX}, 2"); a(f"s_and_b32 s3, s{sJR}, 7"); a("s_lshl3_add_u32 s54, s54, s3"); a(f"s_lshr_b32 s53, s{sJR}, 3")
        a(f"s_and_b32 s3, s{sX}, 3"); a("s_lshl1_add_u32 s57, s3, s53"); a("s_add_u32 s3, s3, 8")
    a(f"s_cmp_lt_u32 s{sJR}, 16"); a("s_cselect_b32 s57, s57, s3")
    a(f"s_cmp_lt_u32 s{sWV}, 4"); a("s_cbranch_scc0 L_loader")
    a("s_setprio 3")
    a.srdw(rPHI, 32*800)
    ohead(59)
    a(f"s_and_b32 s60, s{sWV}, 1"); a("s_lshl1_add_u32 s3, s57, s60"); a("s_mul_i32 s58, s3, 1600")
    a(f"s_lshl_b32 s65, s{sWV}, 11"); a("s_mov_b32 m0, s65"); a("v_lshlrev_b32 v2, 4, v0"); a("v_lshlrev_b32 v3, 2, v0")
    a("s_mul_i32 s59, s59, 800"); a(f"s_lshl_b32 s3, s{sWV}, 8"); a("s_add_u32 s59, s59, s3")
    a("s_waitcnt lgkmcnt(0)")
    a(f"buffer_load_dwordx4 v2, s[{rPHI}:{rPHI+3}], s58 offen lds")
    a(f"buffer_load_dwordx4 v2, s[{rPHI}:{rPHI+3}], s58 offen offset:1024 lds")
    a(f"s_add_u32 m0, s3, {L_PHIO}")
    a(f"s_cmp_eq_u32 s{sJR}, 16")
    a(f"buffer_load_dword v3, s[{rPHI}:{rPHI+3}], s59 offen lds")
    a("s_cbranch_scc0 L_mfma")
    a.srdw(rWS, WS_BYTES)
    for q in range(4): a(f"v_mov_b32 v{12+q}, {SENT:#x}")
    a(f"s_lshl_b32 s3, s{sX}, 13"); a("s_add_u32 s3, s3, s65")
    for i in range(2): a(f"buffer_store_dwordx4 v[12:15], v2, {WS}, s3 offen offset:{1024*i} sc1")
    a.srdw(rDBG, 256); a("s_lshr_b32 s3, s3, 8"); a("s_mov_b64 exec, 1"); a("s_waitcnt vmcnt(0)")
    a(f"buffer_store_dword v12, off, s[{rDBG}:{rDBG+3}], s3 sc1"); a("s_mov_b64 exec, -1")
    a("s_branch L_mfma")

    a.label("L_loader")
    a(f"s_setprio {2 if lp == 3 else lp}")
    a("s_mul_i32 s55, s57, 160"); a("s_sub_u32 s59, s55, 2560")
    a("s_cmp_lt_u32 s57, 8")
    a("s_cselect_b32 s56, 1120, 0"); a("s_cselect_b32 s59, 1280, s59")
    a("s_add_u32 s55, s55, s59")
    a(f"s_sub_u32 s60, s{sWV}, 4")
    XV = [16, 17, 18, 19]; WV = [20, 21, 22, 23, 24]; WOV = [224, 225, 226, 227, 228]
    a("v_lshrrev_b32 v8, 3, v0"); a("v_and_b32 v9, 7, v0")
    a("v_bfe_u32 v10, v0, 4, 1"); a("v_lshrrev_b32 v11, 5, v0"); a("v_lshl_add_u32 v10, v10, 1, v11")
    a("s_lshl2_add_u32 s3, s54, s60"); a("s_mul_i32 s3, s3, 40960")
    a("v_mul_u32_u24 v8, 1280, v8"); a("v_xor_b32 v9, v9, v10"); a("v_add_u32 v8, s3, v8")
    a(f"v_lshl_add_u32 v{XV[0]}, v9, 4, v8"); a(f"v_xor_b32 v11, 64, v{XV[0]}")
    a(f"v_add_u32 v{XV[1]}, {10240-1024}, v11"); a(f"v_add_u32 v{XV[2]}, {20480-2048}, v{XV[0]}"); a(f"v_add_u32 v{XV[3]}, {30720-3072}, v11")
    a("s_mul_i32 s3, s60, 61440"); a("s_add_u32 s3, s3, s55")
    a("s_lshl_b32 s61, s60, 12")
    a(f"s_mul_i32 s62, s60, {WREG}"); a("s_add_u32 s62, s62, 16384")
    a("s_movk_i32 s63, 3520")
    a("v_lshl_add_u32 v12, v0, 4, s3"); a("v_mul_u32_u24 v13, 6554, v0")
    for i in range(5):
        if i: a(f"v_add_u32 v13, {64*6554}, v13")
        a("v_lshrrev_b32 v10, 17, v13"); a("v_bfe_u32 v9, v13, 16, 1")
        a("v_mad_u32_u24 v8, v10, s63, v12"); a(f"v_mad_u32_u24 v{WV[i]}, v9, s56, v8")
    a(f"v_add_u32 v{WV[4]}, 4096, v{WV[4]}")
    if rot >= 2: a("s_lshl_b32 s53, s53, 1"); a(f"s_lshr_b32 s53, {[0, 0, 0x18, 0x1c, 0x34, 0x38][rot]}, s53")
    if rot: a(f"s_xor_b32 s71, s{sJR}, s53"); a("s_bfe_u32 s63, s71, 0x10001"); a("s_and_b32 s71, s71, 1")
    else: a("s_mov_b32 s71, 0"); a("s_mov_b32 s63, 0")
    a("s_waitcnt lgkmcnt(0)")
    if cut: a.stamp(10)
    vm = VM(a)
    def issue(c, extra=()):
        extra = list(extra); size = lambda u: u.count("\n") + 1
        total = sum(map(size, extra)); st = [0, 0]
        def more():
            st[0] += 1
            while extra and (st[0] == 9 or st[1] < total*st[0]/9): st[1] += size(extra[0]); a(extra.pop(0))
        slot = RING + (c % 3)*SLOT
        xs = [f"buffer_load_dwordx4 v{XV[i]}, s[{rX}:{rX+3}], s65 offen offset:{1024*i} lds" for i in range(4)]
        ws = [f"buffer_load_dwordx4 v{WV[i]}, s[{rW}:{rW+3}], s66 offen offset:{1024*(i%4)} lds" for i in range(5)]
        a(f"s_xor_b32 s66, s71, {c}")
        a(f"s_add_u32 m0, s61, {slot}")
        a("s_lshl_b32 s65, s66, 7"); a("s_mul_i32 s66, s66, 245760")
        two = rev and (rev == 2 or c % 2 == 0)
        if two: a("s_cmp_eq_u32 s63, 0"); a(f"s_cbranch_scc0 L_rv{c}")
        if two and extra: two = False; a.L.pop(); a.L.pop()
        for x in xs: more(); vm(x, c)
        a(f"s_add_u32 m0, s62, {slot}")
        for x in ws[:4]: more(); vm(x, c)
        a("s_add_u32 m0, m0, 4096")
        more(); vm(ws[4], c)
        if two:
            a(f"s_branch L_re{c}"); a.label(f"L_rv{c}")
            a(f"s_add_u32 m0, s62, {slot + 4096}"); a(ws[4])
            a(f"s_add_u32 m0, s62, {slot}")
            for x in ws[3::-1]: a(x)
            a(f"s_add_u32 m0, s61, {slot}")
            for x in xs[::-1]: a(x)
            a.label(f"L_re{c}")
    def bar(c, *extra, lgkm=False):
        if vm.count(c, *extra, opt=True) != vm.count(c, *extra):
            lb = a.newlab("L_bw")
            a("s_cmp_lt_u32 s57, 8"); a(f"s_waitcnt vmcnt({vm.count(c, *extra, opt=True)})"); a(f"s_cbranch_scc0 {lb}"); vm.wait(c, *extra); a.label(lb)
        else: vm.wait(c, *extra, lgkm=lgkm)
        a("s_barrier")
        if cut and c < 8: a.stamp(c + 2)
        if cst and c < 9: a.stamp(c + 2, True)
    def wo_addr():
        a("v_mul_u32_u24 v98, 6554, v0"); a("v_lshlrev_b32 v97, 4, v0"); a("s_movk_i32 s3, 1120")
        for i in range(5):
            if i: a(f"v_add_u32 v98, {64*6554}, v98")
            a("v_lshrrev_b32 v96, 16, v98"); a(f"v_mad_u32_u24 v{WOV[i]}, v96, s3, v97")
        a(f"v_add_u32 v{WOV[4]}, 4096, v{WOV[4]}")
        a(f"s_and_b32 s67, s{sJ}, 7"); a("s_mul_i32 s67, s67, 160")
        a("s_mul_i32 s68, s60, 40960"); a("s_add_u32 s68, s68, s67")
        a("s_mul_i32 s69, s60, 5120")
        a(f"s_lshr_b32 s3, s{sJ}, 3"); a(f"s_lshl2_add_u32 s3, s{sX}, s3"); a("s_mul_i32 s67, s3, 81920"); a("s_add_u32 s67, s67, s68")
        a(f"s_bfe_u32 s3, s{sJ}, 0x10003" if wrt else "s_mov_b32 s3, 0")
        a("s_mul_i32 s98, s3, 163840"); a("s_add_u32 s96, s68, s98"); a("s_sub_u32 s98, s68, s98")
        a("s_mul_i32 s99, s3, 20480"); a("s_add_u32 s97, s69, s99"); a("s_sub_u32 s99, s69, s99")
    def unit_list(srd, soff, m0):
        L = [f"buffer_load_dwordx4 v{WOV[i]}, s[{srd}:{srd+3}], {soff} offen offset:{1024*i} lds" for i in range(4)]
        L[0] = f"s_add_u32 m0, s69, {m0}\ns_nop 0\n" + L[0]
        return L + [f"s_add_u32 m0, m0, 4096\ns_nop 0\nbuffer_load_dwordx4 v{WOV[4]}, s[{srd}:{srd+3}], {soff} offen lds"]
    def wo_list(r):
        L = unit_list(rWO, "s65", 20480*r)
        L[0] = L[0].replace("s_nop 0", f"s_add_u32 s65, s{68 if r == 4 else 96 + 2*(r&1)}, {163840*r}")
        if r < 4: L[0] = L[0].replace("m0, s69", f"m0, s{97 + 2*(r&1)}")
        return L
    def wo_round(r):
        for x in wo_list(r): vm(x, "wo")
    def wo_last():
        wo_round(4)
        lb = a.newlab("L_res")
        a(f"s_cmp_lt_u32 s{sWV}, 6"); a(f"s_cbranch_scc0 {lb}")
        for x in unit_list(rX, "s67", L_RES): a(x)
        a.label(lb)
    def set1():
        srds()
        lanefields()
        a("s_lshr_b32 s64, s60, 1"); a("s_and_b32 s53, s60, 1")
        kepi_addr("s64", "s53")
        a("s_lshl_b32 s3, s64, 10"); a(f"s_add_u32 s3, s3, {L_STAT}"); a("v_lshl_add_u32 v206, v6, 4, s3")
        a("s_lshl_b32 s64, s60, 11")
        phi_addr("s64")
    def set_o():
        o_sgprs(); a.readyaddr(43)
        a(f"s_lshr_b32 s3, s{sT32}, 3"); a(f"s_and_b32 s53, s{sHD}, 1"); a("s_lshl1_add_u32 s3, s3, s53"); a("s_lshl_b32 s3, s3, 9"); a(f"s_add_u32 s{sHINT}, s3, {WS_OH}")
    def set_oa():
        a("v_lshrrev_b32 v96, 5, v0"); a("v_bfe_u32 v97, v0, 2, 2"); a("v_bfe_u32 v98, v0, 4, 1"); a("v_bfe_u32 v99, v0, 1, 1"); a("v_lshl_add_u32 v98, v98, 1, v99")
        a(f"s_bitcmp0_b32 s{sHD}, 0"); a("s_cselect_b32 s3, 160, 0"); a("s_cselect_b32 s53, 0, 640")
        a(f"s_add_u32 s3, s3, {L_PHIO}"); a(f"s_add_u32 s53, s53, {L_PHIO}")
        a("v_mul_u32_u24 v99, 40, v97"); a("v_add_u32 v100, s53, v99"); a("v_mul_u32_u24 v101, 320, v96"); a("v_add3_u32 v99, v99, v101, s3")
        a("v_lshl_add_u32 v101, v98, 3, v99"); a("v_lshl_add_u32 v98, v98, 3, v100")
        a(f"ds_read_b64_tr_b16 {vr(OA,2)}, v101"); a(f"ds_read_b64_tr_b16 {vr(OA+2,2)}, v101 offset:160")
        a(f"ds_read_b64_tr_b16 {vr(OA+4,2)}, v99 offset:32"); a(f"ds_read_b64_tr_b16 {vr(OA+6,2)}, v99 offset:192")
        a(f"ds_read_b64_tr_b16 {vr(OA+8,2)}, v98"); a(f"ds_read_b64_tr_b16 {vr(OA+10,2)}, v100 offset:32")
        a("v_bfe_i32 v102, v0, 2, 1"); a("v_and_b32 v102, 0x80008000, v102"); a("v_add_u32 v103, -1, v96"); a(f"v_add_u32 v104, {L_OA}, v7")
        a("s_waitcnt lgkmcnt(0)")
        for q in range(8): a(f"v_xor_b32 v{OA+q}, v102, v{OA+q}")
        for q in range(8, 12): a(f"v_bitop3_b32 v{OA+q}, v{OA+q}, v102, v103 bitop3:0x28")
        a("s_cmp_eq_u32 s60, 0"); a("s_cbranch_scc0 L_oa")
        for i in range(3): a(f"ds_write_b128 v104, {vr(OA+4*i,4)} offset:{1024*i}")
        a.label("L_oa")
    def set_st():
        wo_addr()
        a("v_and_b32 v56, 31, v0"); a("s_lshl2_add_u32 s3, s54, s60"); a("s_lshl_b32 s3, s3, 7"); a(f"s_add_u32 s3, s3, {WS_SM}")
        a("v_lshl_add_u32 v57, v56, 2, s3")
        a("s_lshr_b32 s58, s60, 1"); a("s_and_b32 s59, s60, 1")
        a("s_add_u32 s3, s56, 160"); a("s_mul_i32 s3, s3, s58"); a("s_add_u32 s3, s3, s55"); a("s_lshl_b32 s3, s3, 1")
        a("s_mul_i32 s53, s59, 7680"); a("s_add_u32 s3, s3, s53"); a(f"s_add_u32 s3, s3, {WS_CS}")
        a("v_min_u32 v59, 39, v0"); a("v_lshl_add_u32 v58, v59, 3, s3")
        a("s_lshl_b32 s3, s60, 9"); a(f"s_add_u32 s3, s3, {L_STAT}"); a("v_lshl_add_u32 v56, v56, 4, s3")
        a("s_mul_i32 s3, s59, 640"); a("s_mul_i32 s53, s58, 320"); a("s_add_u32 s3, s3, s53"); a(f"s_add_u32 s3, s3, {L_CS}"); a("v_lshl_add_u32 v68, v59, 3, s3")
        a("s_mul_i32 s3, s60, 160"); a(f"s_add_u32 s3, s3, {L_CS+1280}"); a("v_lshl_add_u32 v69, v59, 2, s3"); a("v_mov_b32 v61, 0")
        a("ds_write_b32 v69, v61")
    def pre_xid():
        a("s_getreg_b32 s64, hwreg(HW_REG_XCC_ID)"); a(f"s_lshl_b32 s70, s{sX}, 9"); a(f"s_add_u32 s70, s70, {WS_XID}")
        a("v_mov_b32 v44, s64"); a(f"s_and_b32 s3, s{sJR}, 3"); a("s_mul_i32 s3, s3, 127"); a(f"s_add_u32 s3, s3, s{sJR}"); a(f"s_add_u32 s{sAUX}, s3, s70")
        a("v_min_u32 v45, 23, v0"); a("v_and_b32 v46, 3, v45"); a("v_mul_u32_u24 v46, 127, v46"); a("v_add_u32 v45, v45, v46")
    def set_xid():
        a("v_cmp_eq_u32 vcc, 0, v42"); a("s_cbranch_vccnz L_rlate")
        a.label("L_rret")
        a("s_cmp_eq_u32 s60, 0"); a("s_cbranch_scc0 L_xid")
        a("s_mov_b64 exec, 1"); a(f"buffer_store_dword v44, off, {WS}, s{sAUX} sc1"); a("s_mov_b64 exec, -1")
        a.label("L_xid")
    def konly(units, n):
        out = []
        for i in range(0, len(units), n):
            lb = a.newlab("L_ko"); out.append("\n".join(["s_cmp_lt_u32 s57, 8", f"s_cbranch_scc0 {lb}"] + units[i:i+n] + [lb + ":"]))
        return out
    cap = a.capture
    plan = {1: cap(set1), 3: konly(cap(phi_build), 5) + cap(lambda: o_vgprs(96)), 5: cap(set_oa), 7: []}
    plan[1] += cap(pre_xid)
    if ini == 0: plan[3] = cap(set_o) + plan[3]; plan[7] += cap(set_st)
    if ini == 2: plan[1] += cap(set_o) + cap(set_st)
    for c in range(10):
        if c == xc - 2: vm(a.readyload(42, 43), "rdy")
        if c == xc and xp == 0: set_xid()
        issue(c, plan.get(c, []))
        if c == xc and xp == 1: set_xid()
        if c == 0 and ini == 1: set_o(); set_st()
        if c == 1 and lp == 3: a("s_setprio 0")
        if 0 < c < 9: bar(c - 1)
    statloads = [f"buffer_load_dword v60, v57, {WS}, 0 offen sc1", f"buffer_load_dwordx2 v[62:63], v58, {WS}, 0 offen sc1"]
    bar(8)
    if bare: bar(9); a.stamp(1); a("s_barrier"); a("s_branch L_fin")
    a("s_cmp_lt_u32 s57, 8"); a("s_cbranch_scc1 L_nx"); a("s_cmp_eq_u32 s60, 0"); a("s_cbranch_scc0 L_nx")
    a(f"buffer_load_dword v44, v45, {WS}, s70 offen sc1")
    a.label("L_nx")
    for l in statloads: vm(l, "st")
    a("s_cmp_lt_u32 s57, 8"); a("s_cbranch_scc1 L_r0")
    if qt:
        a("s_sub_u32 s3, s57, 8"); a("s_lshl2_add_u32 s3, s3, s60"); a("s_mul_i32 s58, s3, 163840")
        a("s_mul_i32 s3, s54, 5120"); a("s_add_u32 s58, s58, s3"); a(f"s_add_u32 s58, s58, {WS_Q}"); a("s_add_u32 s59, s58, 81920")
        a("v_lshlrev_b32 v47, 7, v0"); a("s_mov_b32 exec_hi, 0xff")
        for r in (58, 59): a(f"buffer_load_dword v48, v47, {WS}, s{r} offen")
        a("s_mov_b32 exec_hi, -1")
    a(fload)
    if qw <= 0: a(f"s_waitcnt vmcnt({3 if qt else 1})"); a("s_branch L_r0d")
    a.label("L_r0")
    wo_round(0)
    a.label("L_r0d")
    bar(9, "st")
    a.stamp(1)
    if cut: a("s_barrier"); a("s_branch L_fin")
    a.recheck(statloads, [60, 62, 63], 41)
    a("ds_write_b64 v68, v[62:63]")
    a("v_and_b32 v66, 0xffff0000, v60"); a("v_rcp_f32 v66, v66")
    a("v_and_b32 v64, 0xffff, v60"); a("v_lshl_or_b32 v64, v64, 16, v64"); a("v_xor_b32 v64, 0x80008000, v64")
    a("v_lshrrev_b32 v65, 16, v60"); a(f"v_mul_f32 v67, {LOG2E:#x}, v66")
    a("ds_write_b128 v56, v[64:67]")
    a("s_cmp_lt_u32 s57, 8"); a("s_cbranch_scc0 L_lq")
    if ws != 2: wo_round(1)
    a("s_waitcnt lgkmcnt(0)"); a.stamp(2); a("s_barrier")
    a(f"s_setprio {lpr}")
    for m in (2, 3): a(f"ds_read_b128 {vr(STAT+4*m,4)}, v206 offset:{256*m}")
    a(f"s_lshl_b32 s58, s{sX}, 7"); a("v_lshlrev_b32 v45, 10, v0"); a(f"v_mov_b32 v44, {SENT + 16:#x}")
    a(f"s_cmp_eq_u32 s{sWV}, 7"); a("s_cbranch_scc0 L_ah")
    a("s_mov_b64 exec, 15"); a("v_mov_b32 v44, 0"); a(f"buffer_atomic_or v44, v45, {WS}, s58 offen sc0 sc1"); a("s_mov_b64 exec, -1")
    a.label("L_ah")
    if not kno & 2 and ws in (0, 2, 4, 5): wo_round(2 if ws != 2 else 1)
    if kd: a.stamp(8, True)
    a("s_barrier")
    if kd: a.stamp(4, True); a("s_waitcnt lgkmcnt(0)")
    for m in (2, 3):
        T = 136 + 6*(m-2)
        a(f"ds_read_b128 {vr(T,4)}, v{E0} offset:{2048*m}"); a(f"ds_read_b64 {vr(T+4,2)}, v{E2} offset:{2048*m}")
    a("s_waitcnt lgkmcnt(2)")
    for x in phi_mm(Pb[0], 136): a(x)
    a("s_waitcnt lgkmcnt(0)")
    mm3 = phi_mm(Pb[1], 142)
    for x in mm3[:3]: a(x)
    if fl == 1:
        ktile(2, Pb[0], False, mm3[3:] + wo_list(3), 0)
        ktile(3, Pb[1], kpk, [fload], 1)
        a("s_waitcnt vmcnt(0)")
        for l in qloads: a(l)
    else:
        if ws == 4: wo_round(3)
        if ws == 5: ktile(2, Pb[0], False, wo_list(3) + mm3[3:] + [""]*6 + [fload], 0)
        else: ktile(2, Pb[0], False, mm3[3:] + (wo_list(2) if ws in (1, 2, 3) else []) + (wo_list(3) if ws < 3 else [""]*5) + [fload], 0)
        ktile(3, Pb[1], kpk, [""]*fl + ["s_waitcnt vmcnt(0)\n" + qloads[0]] + qloads[1:], 1)
    def topcheck():
        a.recheck([tload], [230, 231], OT, sleep=8)
        a(f"v_readfirstlane_b32 s{sK1}, v230"); a(f"v_readfirstlane_b32 s{sK2}, v231")
    if kd: a.stamp(7, True)
    a(f"v_cmp_ne_u32 vcc, {SENT + 16:#x}, v44"); a("s_cbranch_vccz L_ah2")
    a.cnt_poll(4, 45, "s58", f"{SENT + 16:#x}", 44)
    a.label("L_ah2")
    a.stamp(3)
    if lpr: a("s_setprio 0")
    if lp2: a("s_setprio 2")
    a("s_waitcnt lgkmcnt(0)"); a("s_barrier")
    a("s_waitcnt vmcnt(0)")
    if ws == 3: wo_round(3)
    a("s_branch L_qchk")
    a.label("L_lq")
    a("v_cmp_ne_u32 vcc, s64, v44"); a(f"v_mov_b32 v46, {L_KVR}"); a("s_or_b32 s64, vcc_lo, vcc_hi")
    if not loc: a("s_mov_b32 s64, 1")
    a("v_mov_b32 v44, s64")
    a("s_cmp_eq_u32 s60, 0"); a("s_cbranch_scc0 L_lq1")
    a("ds_write_b32 v46, v44")
    a.label("L_lq1")
    if qw == 2: wo_round(1)
    a("s_waitcnt lgkmcnt(0)"); a.stamp(2); a("s_barrier")
    a("s_setprio 0")
    a("v_lshlrev_b32 v252, 10, v0")
    a("s_barrier")
    a("s_branch L_ophase")

    a.label("L_mfma")
    a("s_setprio 0")
    srds()
    a(f"s_and_b32 s60, s{sWV}, 1"); a(f"s_lshr_b32 s61, s{sWV}, 1")
    lanefields()
    a(f"v_mul_u32_u24 v7, {WREG}, v3"); a("v_mul_u32_u24 v12, 320, v4"); a("s_movk_i32 s3, 16384"); a("v_add3_u32 v7, v7, v12, s3")
    a("s_mul_i32 s66, s60, 80"); a("s_sub_u32 s67, 240, s66")
    a("v_lshl_add_u32 v12, v5, 3, v7"); a("v_add_u32 v9, s66, v12"); a("v_add_u32 v10, s67, v12")
    a("v_mov_b32 v12, s66"); a("v_mov_b32 v13, s67"); a("v_cmp_lt_u32 vcc, 1, v5"); a("v_and_b32 v14, 1, v5"); a("v_mul_u32_u24 v14, 72, v14")
    a("v_cndmask_b32 v15, v12, v13, vcc"); a("v_add3_u32 v11, v7, v15, v14")
    a("v_and_b32 v7, 2, v0"); a("v_bfe_u32 v14, v0, 2, 1"); a("v_or_b32 v7, v7, v14"); a("v_bfe_u32 v14, v0, 3, 1"); a("v_lshl_add_u32 v7, v14, 2, v7")
    a("v_lshlrev_b32 v14, 1, v3"); a("v_xor_b32 v7, v7, v14"); a("v_lshlrev_b32 v7, 4, v7"); a("v_lshl_add_u32 v7, v6, 7, v7")
    a("s_lshl_b32 s3, s61, 13"); a("v_add_u32 v8, s3, v7")
    a(f"v_add_u32 v{XA[0]}, {RING}, v8"); a(f"v_add_u32 v{MK}, {RING}, v9"); a(f"v_add_u32 v{MV}, {RING}, v10"); a(f"v_add_u32 v{EX}, {RING}, v11")
    a(f"v_xor_b32 v{XA[1]}, 16, v{XA[0]}")
    a("v_min_u32 v7, 2, v3"); a("v_mul_u32_u24 v7, 640, v7"); a(f"v_add_u32 v7, {L_CS}, v7")
    a("v_lshl_add_u32 v14, v6, 2, v7"); a("v_lshl_add_u32 v173, v12, 1, v14"); a("v_lshl_add_u32 v174, v13, 1, v14")
    a("v_cmp_lt_u32 vcc, 1, v4"); a("v_and_b32 v14, 1, v4"); a("v_mul_u32_u24 v14, 144, v14")
    a("v_cndmask_b32 v15, v12, v13, vcc"); a("v_lshl_add_u32 v15, v15, 1, v14"); a("v_lshl_add_u32 v14, v5, 2, v7"); a("v_add_u32 v175, v14, v15")
    a("s_lshl_b32 s3, s61, 10"); a(f"s_add_u32 s3, s3, {L_STAT}"); a("v_lshl_add_u32 v206, v6, 4, s3")
    for r in range(0, 80, 2): a(f"v_mov_b64 {vr(ACC+r,2)}, 0")
    for r in range(0, 36, 2): a(f"v_mov_b64 {vr(SET[1]+r,2)}, 0")
    for t in range(5): a(f"v_mov_b32 v{AUG+2*t+1}, 0")
    a("s_mov_b32 s68, 0"); a(f"s_mov_b32 s69, {RING}")
    o_sgprs()
    a("s_cmp_lt_u32 s57, 8"); a("s_cbranch_scc0 L_qaddr")
    kepi_addr("s61", "s60")
    a("s_sub_u32 s59, 32768, s58")
    a("v_add_u32 v14, s59, v7"); a("v_lshlrev_b32 v15, 4, v12"); a(f"v_xor_b32 v{E3}, 64, v14"); a(f"v_xor_b32 v{E3}, v{E3}, v15"); a(f"v_lshl_add_u32 v{E3}, v13, 3, v{E3}")
    a("v_xor_b32 v14, 112, v14"); a("v_lshl_add_u32 v14, v13, 14, v14"); a("v_xor_b32 v12, 1, v12"); a(f"v_lshl_add_u32 v{E4}, v12, 3, v14")
    a("v_lshrrev_b32 v7, 5, v0"); a("v_lshl_add_u32 v12, v7, 3, v4"); a("v_lshlrev_b32 v12, 7, v12")
    a("v_and_b32 v13, 1, v4"); a("v_lshrrev_b32 v14, 1, v4"); a("v_lshl_or_b32 v13, v14, 2, v13"); a("v_lshl_or_b32 v12, v13, 4, v12")
    a(f"s_lshl_b32 s3, s{sWV}, 14"); a(f"s_add_u32 s3, s3, {TRI}"); a("v_add_u32 v12, s3, v12")
    a("v_and_b32 v13, 1, v5"); a("v_lshrrev_b32 v14, 1, v5"); a("v_and_b32 v15, 1, v3")
    a(f"v_lshl_or_b32 v{KA0}, v13, 1, v15"); a(f"v_lshlrev_b32 v{KA0}, 4, v{KA0}"); a(f"v_xor_b32 v{KA0}, v{KA0}, v12"); a(f"v_lshl_add_u32 v{KA0}, v14, 3, v{KA0}")
    a(f"v_xor_b32 v{KA1}, 96, v12"); a(f"v_lshl_add_u32 v{KA1}, v13, 3, v{KA1}")
    a("s_cmp_eq_u32 s60, 0"); a("s_mov_b32 s3, 0xfffeba98"); a("s_cselect_b32 s3, 0xfffba98e, s3")
    a("v_lshl_add_u32 v13, v15, 2, v5"); a("v_lshlrev_b32 v13, 2, v13"); a("v_bfe_u32 v13, s3, v13, 4"); a("v_lshlrev_b32 v13, 3, v13")
    a(f"v_xor_b32 v{KB}, v13, v12")
    for r in (KB, KA0, KA1): a(f"v_xor_b32 v{r+1}, 32, v{r}")
    a("v_and_b32 v13, 31, v0"); a("v_mul_u32_u24 v14, 21, v7"); a("v_add_u32 v14, v14, v13"); a("v_cmp_lt_u32 vcc, 20, v13")
    a(f"v_mov_b32 v15, {OOB:#x}"); a(f"v_lshlrev_b32 v{KP}, 4, v14"); a(f"v_lshlrev_b32 v{KP+1}, 3, v14")
    a(f"v_cndmask_b32 v{KP}, v{KP}, v15, vcc"); a(f"v_cndmask_b32 v{KP+1}, v{KP+1}, v15, vcc")
    a(f"s_lshl2_add_u32 s3, s57, s{sWV}"); a("s_lshl4_add_u32 s3, s3, s54")
    a("s_mul_i32 s62, s3, 1792"); a(f"s_add_u32 s62, s62, {WS_KV}")
    a("s_lshl_b32 s3, s57, 9"); a(f"s_add_u32 s3, s3, {WS_KH}")
    a(f"s_cmp_eq_u32 s{sWV}, 3"); a(f"s_cselect_b32 s{sHINT}, s3, {OOB:#x}")
    phi_addr("s65")
    a("s_waitcnt vmcnt(0)")
    phi_build()
    a.label("L_qaret")
    o_vgprs(96)
    def reads(s, st):
        X = [f"ds_read_b128 {vr(st+4*m,4)}, v{XA[s]} offset:{2048*m}" for m in range(4)]
        Wr = []
        for t in range(5):
            for j in range(2):
                reg = [MK, MK, MV, MV, EX][t]; off = s*2560 + j*1280 + [8, 40, 8, 40, 0][t]
                Wr.append(f"ds_read_b64_tr_b16 {vr(st+16+4*t+2*j,2)}, v{reg} offset:{off}")
        return [X[0]] + Wr[0:2] + X[1:] + Wr[2:]
    def mf(i, st):
        t, m = divmod(i, 4)
        return f"v_mfma_f32_16x16x32_bf16 {vr(ACC+20*m+4*t,4)}, {vr(st+16+4*t,4)}, {vr(st+4*m,4)}, {vr(ACC+20*m+4*t,4)}"
    need = lambda i: (3 + i if i < 4 else 6 + 2*(i//4))
    R0 = reads(0, SET[0]); R1 = reads(1, SET[1])
    seq = [(i, 1) for i in range(20 - defer, 20)] + [(i, 0) for i in range(20)] + [(i, 1) for i in range(20 - defer)]
    fill = [[] for _ in seq]
    k = 0; g = 0
    while k < 14: fill[g] += R0[k:k+2]; k += 2; g += 1
    g = max(g, defer); k = 0
    while k < 14: fill[g].append(R1[k]); k += 1; g += 1
    fill[g] += [f"s_add_u32 s69, s69, {SLOT}", f"s_cmp_eq_u32 s69, {RING_END}", f"s_cselect_b32 s69, {RING}, s69"]
    for q, h in enumerate([f"v_add_u32 v{XA[0]}, s69, v8", f"v_add_u32 v{MK}, s69, v9", f"v_add_u32 v{MV}, s69, v10", f"v_add_u32 v{EX}, s69, v11", f"v_xor_b32 v{XA[1]}, 16, v{XA[0]}"]):
        fill[g+1+q].append(h)
    fill[g+6] += ["s_add_u32 s68, s68, 1", "s_cmp_lt_u32 s68, 10"]
    a.stampw(1)
    a.label("L_mloop")
    a("s_barrier")
    issued = 0; done = 0
    for idx, (i, st) in enumerate(seq):
        if idx >= defer:
            n = need(i) + (14 if st == 1 else 0)
            if idx == len(seq) - 1: n = 28
            if n > done: a(f"s_waitcnt lgkmcnt({min(15, issued - n)})"); done = n
        a(mf(i, SET[st]))
        for f in fill[idx]:
            if f.startswith("ds_"): issued += 1
            a(f)
    a("s_cbranch_scc1 L_mloop")
    a("s_barrier")
    RA = [f"ds_read_b128 {vr(STAT+4*m,4)}, v206 offset:{256*m}" for m in range(4)]
    RA += [f"ds_read_b32 v{AUG+2*t}, v{[173,173,174,174,175][t]} offset:{[16,80,16,80,0][t]}" for t in range(5)]
    k = 0
    for i in range(20 - defer, 20):
        a(mf(i, SET[1]))
        for r in RA[k:k+2]: a(r)
        k += 2
    for r in RA[k:]: a(r)
    a("s_waitcnt lgkmcnt(0)")
    aug = lambda m: [f"v_mfma_f32_16x16x16_bf16 {vr(ACC+20*m+4*t,4)}, {vr(AUG+2*t,2)}, {vr(STAT+4*m,2)}, {vr(ACC+20*m+4*t,4)}" for t in range(5)]
    a.stampw(2)
    if cut: a("s_branch L_fin")
    a("s_cmp_lt_u32 s57, 8"); a("s_cbranch_scc0 L_qepi")

    KT = [136, 142, 148, 166]; VT = [8, 172]
    def kcv(m): return [f"v_cvt_pk_bf16_f32 v{KT[m]+q}, v{ACC+20*m+4*t+2*h}, v{ACC+20*m+4*t+2*h+1}" for q, (t, h) in enumerate([(0,0),(0,1),(1,0),(1,1),(4,0),(4,1)])]
    def vwork(m):
        A = ACC + 20*m; T = VT[m & 1]; X = KT[m] + 4
        return [f"v_cvt_pk_bf16_f32 v{T+q}, v{A+8+2*q}, v{A+9+2*q}" for q in range(4)] + [
                f"v_cndmask_b32 v{X}, v{X}, v{STAT+4*m+1}, vcc", f"v_cndmask_b32 v{X+1}, v{X+1}, v{AUG+1}, vcc",
                f"ds_write_b64 v{E3}, {vr(T,2)} offset:{2048*m}", f"ds_write_b64 v{E3}, {vr(T+2,2)} offset:{16384+2048*m}", f"ds_write_b64 v{E4}, {vr(X,2)} offset:{2048*m}"]
    def weave(main, fillers, n):
        k = 0
        for x in main:
            a(x)
            for y in fillers[k:k+n]: a(y)
            k += n
        for y in fillers[k:]: a(y)
    a("v_cmp_gt_u32 vcc, 32, v0")
    hand = lambda m: [f"ds_write_b128 v{E0}, {vr(KT[m],4)} offset:{2048*m}", f"ds_write_b64 v{E2}, {vr(KT[m]+4,2)} offset:{2048*m}"]
    t1 = []
    if ko == 0:
        for x in aug(2): a(x)
        weave(aug(3), ["", ""] + kcv(2), 2)
        for x in hand(2): a(x)
        weave(aug(0), kcv(3) + hand(3), 2)
        weave(aug(1), ["", ""] + kcv(0), 2)
    else:
        ak = lambda m: [aug(m)[t] for t in (0, 1, 4)]; av = lambda m: [aug(m)[t] for t in (2, 3)]
        for x in ak(2) + ak(3): a(x)
        weave(ak(0) + ak(1), kcv(2) + kcv(3), 2)
        for x in hand(2) + hand(3): a(x)
        weave(av(2) + av(3), kcv(0), 2)
    if kd: a.stamp(8, True)
    a("s_waitcnt lgkmcnt(0)"); a("s_barrier")
    if kd: a.stamp(4, True)
    if ko == 0:
        weave(phi_mm(Pb[0], KT[0]), kcv(1) + vwork(2) + vwork(3), 2)
        for x in vwork(0): a(x)
        ktile(0, Pb[0], False, phi_mm(Pb[1], KT[1]) + vwork(1), 0)
    else:
        weave(phi_mm(Pb[0], KT[0]), kcv(1) + vwork(2) + vwork(3)[:5], 2)
        for x in vwork(3)[5:]: a(x)
        if ko == 1: ktile(0, Pb[0], False, av(0) + av(1) + phi_mm(Pb[1], KT[1]) + vwork(0), 0); t1 = vwork(1)
        else: ktile(0, Pb[0], False, av(0) + av(1) + phi_mm(Pb[1], KT[1]), 0); t1 = vwork(0) + vwork(1)
    oareads0 = oareads; oareads = t1 + oareads
    if mq:
        ktile(1, Pb[1], kpk, [fload] + oareads if mq == 1 else oareads + ([fload] if mq == 2 else []), 1)
        if mq == 3: a(fload)
        a("s_waitcnt vmcnt(0)")
        for l in qloads: a(l)
        if pad: a("s_branch L_pad0"); a.label("L_pad0r")
    else:
        ktile(1, Pb[1], kpk, oareads, 1)
        a(fload)
    if kd: a.stamp(7, True)
    oareads = oareads0
    if kvp: a("s_setprio 1")
    a("s_waitcnt lgkmcnt(0)"); a("s_barrier")
    a.stampw(3)
    D0, D1, FR = 96, 112, 128
    def kvreads(ks):
        f = FR + 12*(ks % 3)
        return [f"ds_read_b64_tr_b16 {vr(f+4*o+2*j,2)}, v{[KB,KA0,KA1][o]+j} offset:{2048*ks+512*j}" for o in range(3) for j in range(2)]
    for x in kvreads(0) + kvreads(1): a(x)
    a("v_lshlrev_b32 v8, 7, v0"); a("v_mov_b32 v9, 1")
    if not mq:
        a("s_waitcnt vmcnt(0)")
        for l in qloads: a(l)
    khint = f"s_mov_b64 exec, 15\nbuffer_atomic_add v9, v8, {WS}, s{sHINT} offen sc1\ns_mov_b64 exec, -1"
    for ks in range(8):
        f = FR + 12*(ks % 3)
        if ks == khe: a(khint)
        a(f"s_waitcnt lgkmcnt({6 if ks < 7 else 0})")
        a(f"v_mfma_f32_32x32x16_bf16 {vr(D0,16)}, {vr(f+4,4)}, {vr(f,4)}, {vr(D0,16) if ks else 0}")
        if ks < 6:
            for x in kvreads(ks+2)[:3]: a(x)
        a(f"v_mfma_f32_32x32x16_bf16 {vr(D1,16)}, {vr(f+8,4)}, {vr(f,4)}, {vr(D1,16) if ks else 0}")
        if ks < 6:
            for x in kvreads(ks+2)[3:]: a(x)
    if khe == 8: a(khint)
    for q in range(4): a(f"v_cvt_pk_bf16_f32 v{FR+q}, v{D0+2*q}, v{D0+2*q+1}")
    a(f"buffer_store_dwordx4 {vr(FR,4)}, v{KP}, {WS}, s62 offen sc1")
    for q in range(4, 8): a(f"v_cvt_pk_bf16_f32 v{FR+q}, v{D0+2*q}, v{D0+2*q+1}")
    a(f"buffer_store_dwordx4 {vr(FR+4,4)}, v{KP}, {WS}, s62 offen offset:672 sc1")
    for q in range(8, 10): a(f"v_cvt_pk_bf16_f32 v{FR+q}, v{D0+2*q}, v{D0+2*q+1}")
    a(f"buffer_store_dwordx2 {vr(FR+8,2)}, v{KP+1}, {WS}, s62 offen offset:1344 sc1")
    if khe == 9: a(khint)
    if kvp: a("s_setprio 0")
    a(tsload)
    a("s_waitcnt vmcnt(6)")
    if pad and mq: a("s_branch L_qchk"); a.label("L_pad0"); a("s_branch L_pad1")
    a.label("L_qchk")
    a(f"v_cmp_eq_u32 vcc, s{sSENT}, v253"); a("s_cbranch_vccnz L_qlate")

    a.label("L_phi")
    a.stampw(4)
    a(f"v_mfma_f32_32x32x16_bf16 {vr(P0,16)}, {vr(OA,4)}, {vr(QF,4)}, 0")
    a(f"v_mfma_f32_32x32x8_bf16 {vr(P0,16)}, {vr(OA+8,2)}, {vr(QF+4,2)}, {vr(P0,16)}")
    a(f"v_mfma_f32_32x32x16_bf16 {vr(P1,16)}, {vr(OA+4,4)}, {vr(QF,4)}, 0")
    a(f"v_mfma_f32_32x32x8_bf16 {vr(P1,16)}, {vr(OA+10,2)}, {vr(QF+4,2)}, {vr(P1,16)}")
    def gather_sgprs():
        a("s_mov_b32 s55, 0"); a(f"s_add_u32 s54, s{sKVA}, 3584")
    def qscale(r): a(f"v_and_b32 v{r}, 0xffff0000, v{r}"); a(f"v_rcp_f32 v{r}, v{r}"); a(f"v_mul_f32 v{r}, {LOG2E:#x}, v{r}")
    if lp2: a("s_setprio 0")
    qscale(OT+2); gather_sgprs()
    a(f"s_cmp_eq_u32 s{sWV}, 7")
    for n, x in enumerate(softmax_plain(list(range(P0, P0+20)), PHQ, OT, scale=OT+2)):
        if pp == 1 and n in (hk0, hk1): a(f"s_cbranch_scc1 L_hk{n}"); a.label(f"L_hr{n}")
        if pp == 2 and n == hk0:
            a("s_cbranch_scc0 L_hs"); a("s_mov_b64 exec, 1"); a("v_mov_b32 v18, 0"); a(f"buffer_atomic_or v18, v0, {WS}, s{sKHP} offen sc0 sc1"); a("s_mov_b64 exec, -1"); a.label("L_hs")
        a(x)
    a.stampw(5)
    a("s_cbranch_scc1 L_phix")
    if pad: a("s_branch L_pad3")
    a.label("L_kvwait")
    def woreads(st, dst):
        R = []
        for t in range(5):
            for j in range(2):
                if st < 8: R.append(f"ds_read_b64_tr_b16 {vr(dst+4*t+2*j,2)}, v6 offset:{6400*st+1280*j+32*t}")
                else: R.append(f"ds_read_b64_tr_b16 {vr(dst+4*t+2*j,2)}, v2 offset:{2560+25600*(st-8)+12800*j+32*t}")
        return R
    a("s_barrier")
    a.stampw(12)
    a.label("L_kfull")
    for r in range(4): a(f"buffer_load_dwordx4 {vr(KL+4*r,4)}, v15, {WS}, s{(sKVA, 54)[r//2]} offen offset:{1792*(r%2)} sc1")
    SEL = 24
    a("v_and_b32 v16, 1, v0"); a("v_lshlrev_b32 v16, 4, v16"); a("s_movk_i32 s3, 0x3f80"); a("v_lshlrev_b32 v16, v16, s3"); a("v_bfe_u32 v17, v0, 1, 2")
    for u in range(4): a(f"v_cmp_eq_u32 vcc, {u}, v17"); a(f"v_cndmask_b32 v{SEL+u}, 0, v16, vcc")
    wo_e = [sum((woreads(st, WF + 20*st) for st in sts), []) for sts in ((1, 2, 3, 4), (1, 2, 3, 8))]
    def keys_stats():
        a.recheck([smload], [229], 56)
        a("v_and_b32 v8, 0xffff0000, v229"); a("v_rcp_f32 v8, v8"); a("v_lshlrev_b32 v9, 16, v229")
        a(f"s_not_b32 s3, s{sK1}"); a("s_bfe_u32 s3, s3, 0x70004"); a(f"s_cmp_eq_u32 s3, s{sT16}"); a("s_cselect_b32 s61, 1, 0")
        a("v_mul_f32 v9, v9, v8"); a("v_add_f32 v8, 1.0, v8")
        a(f"s_not_b32 s3, s{sK2}"); a("s_bfe_u32 s3, s3, 0x70004"); a(f"s_cmp_eq_u32 s3, s{sT16}"); a("s_cselect_b32 s3, 2, 0"); a("s_or_b32 s61, s61, s3")
    o_late(56)
    a(f"s_cmp_lt_u32 s{sWV}, 4"); a("s_cbranch_scc1 L_fs0")
    f_setup(56, 1)
    for x in wo_e[1][:ne]: a(x)
    a("s_branch L_fs1")
    a.label("L_fs0")
    f_setup(56, 0)
    for x in wo_e[0][:ne]: a(x)
    a("s_waitcnt vmcnt(4)")
    topcheck(); keys_stats()
    a.label("L_fs1")
    for r in range(4):
        a(f"s_waitcnt vmcnt({3-r})")
        a(f"v_mfma_f32_16x16x32_bf16 v[16:19], {vr(SEL,4)}, {vr(KL+4*r,4)}, {'v[16:19]' if r else 0}")
        a(f"v_max3_u32 v{OT}, v{KL+4*r}, v{KL+4*r+1}, {vr(OT) if r else vr(KL+4*r)}"); a(f"v_max3_u32 v{OT}, v{OT}, v{KL+4*r+2}, v{KL+4*r+3}")
    a(f"v_cmp_eq_u32 vcc, s{sSENT}, v{OT}"); a("s_cbranch_vccnz L_kagain")
    a("v_cvt_pk_bf16_f32 v16, v16, v17"); a("v_cvt_pk_bf16_f32 v17, v18, v19")
    a("ds_write_b64 v14, v[16:17]")
    a.label("L_kred")
    a.stampw(6)
    a("s_waitcnt lgkmcnt(0)"); a("s_barrier")
    a(f"ds_read_b128 {vr(OA,4)}, v22"); a(f"ds_read_b128 {vr(OA+4,4)}, v22 offset:672"); a(f"ds_read_b64 {vr(OA+8,2)}, v23 offset:1344")
    def ohint():
        lb = a.newlab("L_oh")
        a(f"s_cmp_eq_u32 s{sWV}, 7"); a(f"s_cbranch_scc0 {lb}")
        a("s_mov_b64 exec, s[54:55]"); a(f"buffer_atomic_add v15, v14, {WS}, s{sHINT} offen sc1"); a("s_mov_b64 exec, -1")
        a.label(lb)
    OS = OF + 2
    osample = f"v_mov_b32 v{OS}, {SENT + 16:#x}\ns_mov_b64 exec, 3\nv_mov_b32 v{OS}, 0\nbuffer_atomic_or v{OS}, v4, {WS}, s{sOHP} offen sc0 sc1\ns_mov_b64 exec, -1"
    def omfma(P, PHI): return [f"v_mfma_f32_32x32x16_bf16 {vr(P,16)}, {vr(OA,4)}, {vr(PHI,4)}, 0",
                               f"v_mfma_f32_32x32x16_bf16 {vr(P,16)}, {vr(OA+4,4)}, {vr(PHI+4,4)}, {vr(P,16)}",
                               f"v_mfma_f32_32x32x8_bf16 {vr(P,16)}, {vr(OA+8,2)}, {vr(PHI+8,2)}, {vr(P,16)}"]
    def ofin_ops(P, T, r, s0, s1):
        L = [f"v_add_f32 v{r}, 0x358637bd, v{P+12}", f"v_rcp_f32 v{r}, v{r}"]
        L += [f"v_mul_f32 v{P+q}, v{P+q}, v{r}" for q in range(8)] + [f"v_cvt_pk_bf16_f32 v{T+q}, v{P+2*q}, v{P+2*q+1}" for q in range(4)]
        L += [f"buffer_store_dwordx4 {vr(T,4)}, v12, {WS}, s{s0} offen sc1"]
        L += [f"v_mul_f32 v{P+q}, v{P+q}, v{r}" for q in range(8, 12)] + [f"v_cvt_pk_bf16_f32 v{T+q}, v{P+2*q}, v{P+2*q+1}" for q in range(4, 6)]
        return L + [f"buffer_store_dwordx2 {vr(T+4,2)}, v13, {WS}, s{s1} offen sc1"]
    def ofin(P, T):
        for x in ofin_ops(P, T, 16, sO0, sO1): a(x)
    if ohe == 2: ohint()
    a("s_cmp_lt_u32 s57, 8"); a("s_cbranch_scc0 L_o2")
    if ohe == 3: ohint()
    for q, x in enumerate(omfma(P0, PHQ)): a(f"s_waitcnt lgkmcnt({2-q})"); a(x)
    a.label("L_o1")
    if ohe == 1: ohint()
    if oss: a(f"s_cmp_eq_u32 s{sWV}, 7"); a("s_cbranch_scc0 L_os"); a(osample); a.label("L_os")
    ofin(P0, 18)
    if ohe == 0: ohint()
    a.stampw(7)

    a.label("L_final")
    YT = OF + 20
    assert n0 <= 5 and not ot
    yloads = [f"buffer_load_dwordx4 {vr(YT+4*t,4)}, v15, {WS}, s60 offen offset:{512*t} sc1" for t in range(5)]
    RT = WF + 160
    wo_l0 = woreads(0, WF) + wo_e[0][ne:] + sum((woreads(st, WF + 20*st) for st in (5, 6, 7)), [])
    wo_a = woreads(0, WF) + wo_e[1][ne:]
    wo_b = sum((woreads(st, WF + 20*st) for st in (4, 5, 6, 7)), [])
    oloads = [f"buffer_load_dwordx4 {vr(OF+4*st,4)}, v7, {WS}, s{sF0+st//4} offen offset:{1024*(st%4)} sc1" for st in range(8)]
    oloads += [f"buffer_load_dwordx2 {vr(OF+32+2*q,2)}, v1, {WS}, s{sF2} offen offset:{512*q} sc1" for q in range(4)]
    def otouch_addr():
        if not ot: return
        a(f"s_and_b32 s3, s{sJ}, 7"); a("v_lshl_add_u32 v14, v0, 3, s3"); a("v_lshlrev_b32 v14, 7, v14")
        a(f"s_sub_u32 s3, s{sF2}, s{sF1}"); a("s_sub_u32 s3, s3, 4096"); a("v_cmp_lt_u32 vcc, 3, v0"); a("v_add_u32 v15, s3, v14"); a("v_cndmask_b32 v14, v14, v15, vcc")
    def otouch():
        if ot: a("s_mov_b64 exec, 63"); a(f"buffer_load_dword v15, v14, {WS}, s{sF1} offen sc1"); a("s_mov_b64 exec, -1")
    a("v_lshlrev_b32 v1, 3, v0"); a("s_mov_b32 s63, 0")
    a(f"s_cmp_lt_u32 s{sWV}, 4"); a("s_cbranch_scc0 L_c2")
    a.label("L_c1")
    a("s_cmp_eq_u32 s61, 0"); a("s_cbranch_scc0 L_y0")
    a.label("L_y1")
    for x in wo_l0[:npre]: a(x)
    a("s_cmp_eq_u32 s61, 0"); a("s_cbranch_scc0 L_y4")
    a.label("L_y5")
    otouch_addr()
    a.stampw(8)
    a("s_barrier")
    a.stampw(13)
    otouch()
    for l in oloads[:n0]: a(l)
    for t in range(5): a(f"ds_read_b64 {vr(RT+10+2*t,2)}, v3 offset:{32*t}")
    for x in wo_l0[npre:]: a(x)
    a("s_cmp_eq_u32 s61, 0")
    a(f"s_waitcnt lgkmcnt({min(14, len(wo_l0[npre:]))})")
    for q in range(10):
        a(f"v_lshlrev_b32 v{RT+2*q}, 16, v{RT+10+q}"); a(f"v_and_b32 v{RT+2*q+1}, 0xffff0000, v{RT+10+q}")
    resfma = lambda d: [f"v_pk_fma_f32 {vr(d+2*q,2)}, {vr(RT+2*q,2)}, v[8:9], v[8:9] op_sel:[0,0,1] op_sel_hi:[1,0,1] neg_lo:[0,0,1] neg_hi:[0,0,1]" for q in range(10)]
    for x in resfma(FA): a(x)
    for x in woreads(8, RT): a(x)
    a("s_cbranch_scc0 L_y2")
    a.label("L_y3")
    last = woreads(9, WF)
    groups = ((0, 1), (2, 3), (4, 5), (6, 7), (8, 9)); ends = (2, 4, 6, 8, 12)
    def project(kh, n):
        todo = oloads[n:]
        def vtree(g_):
            r = OF + 8*g_
            return [f"s_waitcnt vmcnt({12 - len(todo) - ends[g_]})\nv_max3_u32 v13, v{r}, v{r+1}, v{r+2}", f"v_max3_u32 v12, v{r+3}, v{r+4}, v{r+5}", f"v_max3_u32 v13, v13, v{r+6}, v{r+7}",
                    "v_max_u32 v13, v13, v12", f"v_cmp_eq_u32 vcc, s{sSENT}, v13"]
        a("s_waitcnt lgkmcnt(10)")
        for x in vtree(0): a(x)
        for g_, steps in enumerate(groups):
            a("s_cbranch_vccnz L_oretry")
            a.label(f"L_og{5*kh+g_}")
            if g_ == 0: a.stampw(9)
            if fd: a.stamp(g_ + 1, True)
            if g_ in (1, 4): a("s_waitcnt lgkmcnt(0)")
            if g_ == 4 and kh:
                a("s_barrier")
                for t in range(5): a(f"ds_read_b128 {vr(OF+4*t,4)}, v5 offset:{1024*t}")
            want = min(12, max(ends[min(g_+1, 4)], n + ramp*(g_+1) + (2 if n + ramp*(g_+1) > 8 else 0)), 12 - len(todo) + 5)
            now = todo[:max(0, want - (12 - len(todo)))]; del todo[:len(now)]
            nxt_ = vtree(g_+1) if g_ < 4 else []
            for k, st in enumerate(steps):
                for t in range(5):
                    a(f"v_mfma_f32_16x16x32_bf16 {vr(FA+4*t,4)}, {vr(WF+20*(st%9)+4*t,4)}, {vr(OF+4*st,4)}, {vr(FA+4*t,4)}")
                    if k == 0 and t < len(now): a(now[t])
                    if st in (2, 4): a(last[5*(st//2-1)+t])
                    if k == 0 and t == 4 and g_ < 4: a(f"s_mov_b32 s63, {5*kh+g_+1}")
                    if k == 1 and nxt_: a(nxt_[t])
        assert not todo
        if fd: a.stamp(6, True)
    project(0, n0)
    for t in range(5): a(f"ds_write_b128 v5, {vr(FA+4*t,4)} offset:{1024*t}")
    a("s_waitcnt lgkmcnt(0)"); a("s_barrier")
    a("s_branch L_fin")
    if pad: a.label("L_pad3"); a("s_branch L_pad4")
    a.label("L_c2")
    if ql: a("s_cmp_lt_u32 s57, 8"); a("s_cbranch_scc0 L_c2h")
    if wl == 0: wo_last()
    if wl == 2:
        a(f"s_cmp_lt_u32 s{sWV}, 6"); a("s_cbranch_scc0 L_c2h")
        for x in unit_list(rX, "s67", L_RES): a(x)
    a.label("L_c2h")
    for r in range(0, 20, 2): a(f"v_mov_b64 {vr(FA+r,2)}, 0")
    a("s_mov_b32 s63, 5")
    if tw == 1:
        a("s_mov_b64 exec, 1"); a(f"buffer_load_dword v15, off, s[{rOUT}:{rOUT+3}], s{sOUT}"); a("s_mov_b64 exec, -1")
    if tw == 2:
        for u in range(3): a(f"buffer_load_dword v15, v{8+u}, s[{rOUT}:{rOUT+3}], s{sOUT} offen offset:{1024*u}")
    otouch_addr()
    a(f"s_cmp_eq_u32 s{sWV}, 7"); a("s_cbranch_scc1 L_c7")
    for x in wo_a: a(x)
    if wl != 1: a("s_waitcnt vmcnt(0)")
    a.label("L_c4")
    a.stampw(8)
    a("s_barrier")
    a.stampw(13)
    otouch()
    for l in oloads[:n1]: a(l)
    for x in wo_b: a(x)
    project(1, n1)
    a("s_waitcnt lgkmcnt(0)")
    for t in range(5):
        if ft and t >= 1:
            for q in (0, 2): a(f"v_pk_add_f32 {vr(FA+4*t+q,2)}, {vr(FA+4*t+q,2)}, {vr(OF+4*t+q,2)}")
        else:
            for q in range(4): a(f"v_add_f32 v{FA+4*t+q}, v{FA+4*t+q}, v{OF+4*t+q}")
        a(f"v_cvt_pk_bf16_f32 v{FA+4*t}, v{FA+4*t}, v{FA+4*t+1}"); a(f"v_cvt_pk_bf16_f32 v{FA+4*t+1}, v{FA+4*t+2}, v{FA+4*t+3}")
        a(f"ds_write_b64 v3, {vr(FA+4*t,2)} offset:{32*t}")
    if not ft: a("s_waitcnt lgkmcnt(0)")
    for u in range(3): a(f"ds_read_b128 {vr(OF+4*u,4)}, v11 offset:{1024*u}")
    for u in range(3):
        a(f"s_waitcnt lgkmcnt({2-u})")
        a(f"buffer_store_dwordx4 {vr(OF+4*u,4)}, v{8+u}, s[{rOUT}:{rOUT+3}], s{sOUT} offen offset:{1024*u} {['', 'sc1', 'nt', 'sc0 sc1'][outfl]}")
    a.label("L_fin")
    if diag == 4:
        a.stampw(10); a("s_waitcnt vmcnt(0)"); a.stampw(11); a("s_waitcnt lgkmcnt(0)")
        a(f"s_cmp_lt_u32 s{sJR}, {plo}"); a("s_cbranch_scc1 L_pe"); a(f"s_cmp_ge_u32 s{sJR}, {phi}"); a("s_cbranch_scc1 L_pe")
        a(f"s_cmp_lt_u32 s{sWV}, {pw0}"); a("s_cbranch_scc1 L_pe"); a(f"s_cmp_ge_u32 s{sWV}, {pw1}"); a("s_cbranch_scc1 L_pe")
        a("s_sub_u32 s74, s74, s72"); a("s_min_u32 s74, s74, 5000"); a("s_lshl_b32 s74, s74, 2"); a("s_add_u32 s74, s74, 4000")
        a.label("L_pr"); a("s_memrealtime s[76:77]"); a("s_waitcnt lgkmcnt(0)"); a("s_sub_u32 s76, s76, s72"); a("s_cmp_lt_u32 s76, s74"); a("s_cbranch_scc1 L_pr")
        a.label("L_pe")
    elif diag:
        if not cut: a.stampw(10)
        a("s_waitcnt vmcnt(0)")
        a.stampw(11)
        a(f"s_lshl3_add_u32 s3, s2, s{sWV}"); a("s_lshl_b32 s3, s3, 6"); a(f"s_add_u32 s3, s3, {WS_DIAG}")
        a("s_mov_b64 exec, 1")
        for i in range(14):
            a(f"v_mov_b32 v8, s{72+2*i}"); a(f"buffer_store_dword v8, off, {WS}, s3 offset:{4*i}")
    a("s_endpgm")

    a.label("L_oretry")
    if diag == 2: a("s_add_u32 s74, s74, 1")
    a.poll(oloads, range(OF, OF+40), 13, 0)
    a(f"s_cmp_gt_u32 s3, {SPIN}"); a(f"s_cselect_b32 s{sSENT}, 1, s{sSENT}")
    for g_ in range(9): a(f"s_cmp_eq_u32 s63, {g_}"); a(f"s_cbranch_scc1 L_og{g_}")
    a("s_branch L_og9")
    a.label("L_y0")
    a("s_cmp_eq_u32 s61, 2"); a("s_cselect_b32 s60, 20480, 0"); a(f"s_cselect_b32 s{sK1}, s{sK2}, s{sK1}")
    a(f"s_and_b32 s3, s{sJ}, 7"); a("s_mul_i32 s3, s3, 2560"); a("s_add_u32 s60, s60, s3"); a(f"s_add_u32 s60, s60, {WS_YP}")
    a("v_and_b32 v15, 7, v0"); a("v_lshlrev_b32 v15, 4, v15"); a("v_and_b32 v13, 48, v0"); a("v_lshl_add_u32 v15, v13, 3, v15")
    for l in yloads: a(l)
    a("s_branch L_y1")
    def yreduce():
        a(f"s_and_b32 s53, s{sK1}, 0xffff0000"); a("s_cmp_lt_i32 s53, 0"); a("s_mov_b32 s3, 0xffff0000"); a("s_cselect_b32 s3, 0x80000000, s3"); a("s_xor_b32 s53, s53, s3")
        a(f"v_mov_b32 v10, {LOG2E|0x80000000:#x}"); a("v_mul_f32 v10, s53, v10"); a("v_exp_f32 v10, v10"); a("v_add_f32 v10, 1.0, v10"); a("v_rcp_f32 v10, v10")
        a(f"s_andn2_b32 s3, 15, s{sK1}"); a("v_and_b32 v13, 15, v0"); a("v_cmp_eq_u32 s[58:59], s3, v13")
        a("v_cvt_pk_bf16_f32 v10, v10, v10"); a("v_and_b32 v10, 0xffff0000, v10")
    a.label("L_y4")
    yreduce()
    a("s_waitcnt vmcnt(0)")
    a.recheck(yloads, range(YT, YT+20), 13)
    steps3 = [[f"v_add_f32_dpp v{YT+q}, v{YT+q}, v{YT+q} {ctl} row_mask:0xf bank_mask:0xf" for q in range(20)] for ctl in ("quad_perm:[1,0,3,2]", "quad_perm:[2,3,0,1]", "row_half_mirror")]
    for x in sum(steps3[:ye], []): a(x)
    a("s_branch L_y5")
    a.label("L_y6")
    a.poll(yloads, range(YT, YT+20), 13, 0)
    yreduce()
    for x in sum(steps3[:ye], []): a(x)
    a.label("L_y2")
    for x in sum(steps3[ye:], []): a(x)
    a("s_mov_b64 exec, s[58:59]")
    for q in range(0, 20, 2): a(f"v_pk_fma_f32 {vr(FA+q,2)}, {vr(YT+q,2)}, v[10:11], {vr(FA+q,2)} op_sel_hi:[1,0,1]")
    a("s_mov_b64 exec, -1")
    a("s_cmp_eq_u32 s61, 3"); a("s_cbranch_scc0 L_y3")
    a("s_mov_b32 s61, 2"); a(f"s_mov_b32 s{sK1}, s{sK2}"); a("s_add_u32 s60, s60, 20480"); a("s_branch L_y6")
    if pad: a.label("L_pad4"); a("s_branch L_kvwait")
    a.label("L_c7")
    if not oss: a(osample)
    for x in wo_a: a(x)
    a(f"s_waitcnt vmcnt({2 if oss else 0})"); a(f"v_cmp_ne_u32 vcc, {SENT + 16:#x}, v{OS}"); a("s_cbranch_vccz L_c4")
    a.cnt_poll(2, 4, f"s{sOHP}", f"{SENT + 16:#x}", 12)
    a("s_branch L_c4")
    a.label("L_rlate")
    if diag == 2: a("s_add_u32 s80, s80, 1")
    a.readycheck(42, 43)
    a("s_branch L_rret")
    a.label("L_kagain")
    if diag == 2: a("s_add_u32 s76, s76, 1")
    a("s_add_u32 s55, s55, 1"); a(f"s_cmp_gt_u32 s55, {SPIN}"); a("s_cbranch_scc0 L_kfull"); a("s_branch L_kred")
    a.label("L_qlate")
    if diag == 2: a("s_add_u32 s78, s78, 1")
    a.poll([fload], [253], OT, 0)
    for l in qloads: a(l)
    a("s_waitcnt vmcnt(0)"); a("s_branch L_phi")

    a.label("L_qaddr")
    a("s_sub_u32 s3, s57, 8"); a("s_mul_i32 s58, s3, 655360")
    a("s_lshl1_add_u32 s3, s54, s61"); a("s_mul_i32 s3, s3, 2560"); a("s_add_u32 s58, s58, s3"); a(f"s_add_u32 s58, s58, {WS_Q}")
    a("s_mul_i32 s3, s60, 163840"); a("s_sub_u32 s62, 491520, s3")
    a("v_mov_b32 v12, s3"); a("v_mov_b32 v13, s62"); a("v_cmp_gt_u32 vcc, 32, v0")
    a("s_add_u32 s59, s58, s62"); a("s_add_u32 s62, s58, s3")
    a("v_and_b32 v7, 1, v3"); a("v_mul_u32_u24 v7, 81920, v7"); a("v_cndmask_b32 v12, v13, v12, vcc")
    a("v_lshrrev_b32 v14, 5, v0"); a("v_lshl_add_u32 v14, v14, 9, v7"); a(f"v_lshl_add_u32 v{E0}, v6, 4, v14")
    a("v_add_u32 v12, v12, v7"); a(f"v_lshl_add_u32 v{E1}, v6, 3, v12"); a(f"v_mov_b32 v{E2}, {L_KVR}")
    a(f"v_mov_b64 {vr(KP-1,2)}, 0"); a("v_lshlrev_b32 v252, 10, v0")
    a("s_lshl2_add_u32 s3, s54, s57"); a("s_lshl_b32 s3, s3, 7"); a("s_lshl4_add_u32 s3, s61, s3"); a(f"s_add_u32 s3, s3, {WS_FQ - 1024}")
    a("s_lshl2_add_u32 s56, s60, s3"); a("s_xor_b32 s55, s56, 12")
    a(f"s_cmp_eq_u32 s{sJR}, 16"); a("s_cbranch_scc1 L_qaret")
    a("s_waitcnt vmcnt(0)"); a("s_branch L_qaret")
    a.label("L_qepi")
    a(f"ds_read_b32 v{E3}, v{E2}")
    def either(lines):
        l1 = a.newlab("L_qs"); l2 = a.newlab("L_qe")
        a(f"s_cbranch_scc1 {l1}")
        for x in lines: a(x + (" sc1" if x.startswith("buffer") else ""))
        a(f"s_branch {l2}"); a.label(l1)
        for x in lines: a(x)
        a.label(l2)
    a1 = lambda m: aug(m)[2:]; a2 = lambda m: aug(m)[:2]
    qcv = lambda m, r: [f"v_cvt_pk_bf16_f32 v{96+12*m+q}, v{ACC+20*m+2*q}, v{ACC+20*m+2*q+1}" for q in r]
    qsw = lambda m, r: [f"v_permlane16_swap_b32 v{96+12*m+q}, v{96+12*m+q+2}" for q in r]
    off = lambda m, n: (m >> 1)*1280 + (m & 1)*n
    for x in a1(0) + a1(1): a(x)
    a("s_waitcnt lgkmcnt(0)"); a(f"v_readfirstlane_b32 s64, v{E3}")
    nxt = [a1(2), a1(3), a2(0) + a2(1), a2(2) + a2(3)]
    for m in range(4):
        T = 96 + 12*m
        weave(nxt[m], qcv(m, range(4, 10)), 2)
        for x in qsw(m, (4, 5)): a(x)
        if m == 0: a("s_cmp_eq_u32 s64, 0")
        either([f"buffer_store_dwordx4 {vr(T+4,4)}, v{E0}, {WS}, s59 offen offset:{off(m,256)}", f"buffer_store_dwordx2 {vr(T+8,2)}, v{E1}, {WS}, s58 offen offset:{1024+off(m,128)}"])
    for m in range(4):
        for x in qcv(m, range(4)): a(x)
    for x in oareads: a(x)
    for m in range(4):
        for x in qsw(m, (0, 1)): a(x)
    flag = lambda r: ["s_mov_b64 exec, 1", f"buffer_store_dword v0, off, {WS}, s{r}", "s_mov_b64 exec, -1"]
    a("s_waitcnt vmcnt(0)")
    either(flag(55) + [f"buffer_store_dwordx4 {vr(96+12*m,4)}, v{E0}, {WS}, s62 offen offset:{off(m,256)}" for m in range(4)])
    a.stampw(3)
    a("s_barrier")
    f2load = f"buffer_load_dword v253, v252, {WS}, s{sFQ} offen sc1"
    a("s_mov_b64 exec, 3"); a(f2load); a("s_mov_b64 exec, -1"); a("s_waitcnt vmcnt(0) lgkmcnt(0)")
    either(flag(56))
    a(f"v_cmp_eq_u32 vcc, s{sSENT}, v253"); a("s_cbranch_vccz L_opq")
    a.label("L_ophase")
    if qd: a.stamp(6, True)
    def qrounds(r0, r1, lb):
        if r0 >= r1: return
        a(f"s_cmp_lt_u32 s{sWV}, 4"); a(f"s_cbranch_scc1 {lb}")
        for r in range(r0, r1): wo_round(r) if r < 4 else wo_last()
        a.label(lb)
    qa = max(qa, qw)
    qrounds(qw, qa, "L_op0")
    a("s_mov_b64 exec, 3")
    a.poll([f2load], [253], OT, 0)
    a("s_mov_b64 exec, -1")
    a.label("L_opq")
    if qd: a.stamp(7, True)
    for l in qloads: a(l)
    a(f"s_add_u32 s3, s{sQA}, 10240")
    a(f"buffer_load_dwordx4 {vr(QF2,4)}, v7, {WS}, s3 offen sc1"); a(f"buffer_load_dwordx2 {vr(QF2+4,2)}, v1, {WS}, s3 offen offset:1024 sc1")
    a(f"buffer_load_dword v130, v255, {WS}, 0 offen offset:1024 sc1")
    gather_sgprs()
    a("s_waitcnt vmcnt(0)")
    if qd: a.stamp(8, True)
    for P, Q_ in ((96, QF), (P0, QF2)):
        a(f"v_mfma_f32_32x32x16_bf16 {vr(P,16)}, {vr(OA,4)}, {vr(Q_,4)}, 0")
        a(f"v_mfma_f32_32x32x8_bf16 {vr(P,16)}, {vr(OA+8,2)}, {vr(Q_+4,2)}, {vr(P,16)}")
        a(f"v_mfma_f32_32x32x16_bf16 {vr(P+16,16)}, {vr(OA+4,4)}, {vr(Q_,4)}, 0")
        a(f"v_mfma_f32_32x32x8_bf16 {vr(P+16,16)}, {vr(OA+10,2)}, {vr(Q_+4,2)}, {vr(P+16,16)}")
    qrounds(qa, qb, "L_op1")
    a(f"v_mov_b32 v128, v{OT+2}"); qscale(128); qscale(130)
    sa = softmax_ops(list(range(96, 116)), PHQ2, 128, OT); sb = softmax_ops(list(range(P0, P0+20)), PHQ, 130, OT)
    if qpf: sa = sa[:11] + [f"v_fma_f32 v{96+q}, v{96+q}, v128, -v129" for q in range(20)] + sa[21:]
    for x in sa[:11] + sb[:11] + sa[11:]: a(x)
    a.stampw(4)
    qrounds(qb, 4 + ql, "L_op2")
    ksample = lambda r: f"s_mov_b64 exec, 1\nv_mov_b32 v{r}, 0\nbuffer_atomic_or v{r}, v0, {WS}, s{sKHP} offen sc0 sc1\ns_mov_b64 exec, -1"
    if qes: a(f"s_cmp_eq_u32 s{sWV}, 7"); a("s_cbranch_scc0 L_op5"); a(ksample(18)); a.label("L_op5")
    for x in sb[11:]: a(x)
    a.stampw(5)
    a(f"s_cmp_lt_u32 s{sWV}, 4"); a("s_cbranch_scc0 L_op3")
    a(tsload); a("s_branch L_pad2" if pad else "s_branch L_kvwait")
    a.label("L_op3")
    ksample = lambda r: f"s_mov_b64 exec, 1\nv_mov_b32 v{r}, 0\nbuffer_atomic_or v{r}, v0, {WS}, s{sKHP} offen sc0 sc1\ns_mov_b64 exec, -1"
    a(f"s_cmp_eq_u32 s{sWV}, 7"); a("s_cbranch_scc1 L_op4")
    a("s_waitcnt vmcnt(0)"); a("s_branch L_kvwait")
    if pad and mq: a.label("L_pad1"); a("s_branch L_pad0r")
    a.label("L_op4")
    if pp and not qes: a(ksample(18))
    if pp == 1: a(ksample(19))
    a.label("L_phix")
    if pp == 2:
        fsample = f"s_mov_b64 exec, 3\nv_mov_b32 v21, 0\nbuffer_atomic_or v21, v16, {WS}, s56 offen sc0 sc1\ns_mov_b64 exec, -1"
        a(f"s_lshl_b32 s56, s{sX}, 7"); a(f"s_add_u32 s56, s56, {WS_FH}"); a("v_lshlrev_b32 v16, 10, v0"); a(f"v_mov_b32 v21, {SENT + 32:#x}")
        a(ksample(19))
        if fe and hb < 3: a(fsample)
        o_late(56); f_setup(56, 1); a("v_lshlrev_b32 v4, 9, v0")
        a("v_lshrrev_b32 v14, 2, v0"); a("v_lshlrev_b32 v14, 9, v14"); a("v_lshl_add_u32 v14, v0, 7, v14"); a("v_mov_b32 v15, 1")
        a(f"s_waitcnt vmcnt({2 if fe and hb < 3 else 1})"); a("v_readfirstlane_b32 s3, v18"); a(f"s_cmp_eq_u32 s3, {SENT + 16:#x}"); a("s_cbranch_scc1 L_kgo")
        a("s_waitcnt vmcnt(0)"); a("v_readfirstlane_b32 s3, v19"); a(f"s_cmp_eq_u32 s3, {SENT + 16:#x}"); a("s_cbranch_scc1 L_kgo")
    a.cnt_watch(1, 0, f"s{sKHP}", f"{SENT + 16:#x}", 18, [None, None, []] if pp == 1 else [[], [], []], pp == 1)
    a.label("L_kgo")
    a("s_barrier")
    a("s_cmp_lt_u32 s57, 8"); a("s_cselect_b64 s[54:55], 15, 0xff")
    assert fe and not ql
    a("s_waitcnt vmcnt(0)"); a(f"v_cmp_ne_u32 vcc, {SENT + 32:#x}, v21"); a("s_cbranch_vccz L_wl1")
    a.cnt_poll(2, 16, "s56", f"{SENT + 32:#x}", 21)
    a.label("L_wl1")
    def ehint(u):
        for pos, br in ((ohk, "scc0"), (ohq, "scc1")):
            if ohe == 4 and u == pos:
                lb = a.newlab("L_eh"); a("s_cmp_lt_u32 s57, 8"); a(f"s_cbranch_{br} {lb}")
                a("s_mov_b64 exec, s[54:55]"); a(f"buffer_atomic_add v15, v14, {WS}, s{sHINT} offen sc1"); a("s_mov_b64 exec, -1"); a.label(lb)
    a(f"s_add_u32 s68, s68, {655360 - 3*40960}"); a(f"s_sub_u32 s67, s67, {3*40960}"); a("s_mov_b32 s69, 0")
    for u in range(4):
        ehint(u)
        for x in unit_list(rWO, "s68", 81920 + 5120*u): a(x)
        a("s_add_u32 s68, s68, 40960")
    for u in range(2):
        ehint(4 + u)
        for x in unit_list(rX, "s67", L_RES + 5120*u): a(x)
        a("s_add_u32 s67, s67, 40960")
    ehint(6)
    for x in wo_e[1][:ne]: a(x)
    a("s_branch L_kred")
    for k, n in enumerate((hk0, hk1)):
        if pp == 1:
            a.label(f"L_hk{n}")
            a("s_mov_b64 exec, 1"); a(f"v_mov_b32 v{18+k}, 0"); a(f"buffer_atomic_or v{18+k}, v0, {WS}, s{sKHP} offen sc0 sc1"); a("s_mov_b64 exec, -1"); a(f"s_branch L_hr{n}")
    if pad: a.label("L_pad2"); a("s_branch L_pad3")
    a.label("L_o2")
    if ohe == 4 and ohq == 7: ohint()
    m1 = omfma(P1, PHQ2); m0 = omfma(P0, PHQ)
    for q in range(3): a(f"s_waitcnt lgkmcnt({2-q})"); a(m1[q])
    f1_ = ofin_ops(P1, 24, 17, sO0, sO1)
    if ohe == 3: ohint()
    a(m0[0]); a(m0[1])
    for x in f1_[:6]: a(x)
    a(m0[2])
    for x in f1_[6:]: a(x)
    a(f"s_add_u32 s{sO0}, s{sO0}, 327680"); a(f"s_add_u32 s{sO1}, s{sO1}, 327680")
    a("s_branch L_o1")

    a(".p2align 12")
    a.label("L_helper")
    for r, off in ((rWR, 40), (rG, 48), (rU, 56), (rDN, 64)): a(f"s_load_dwordx2 s[{r}:{r+1}], s[0:1], {off}")
    a.srdw(rWR, D*2)
    XR, CR, WR, FF = 16, 36, 56, 76
    a(f"s_sub_u32 s54, s{sJR}, 24"); a(f"s_lshl3_add_u32 s55, s{sX}, s54")
    a(f"s_lshl3_add_u32 s56, s55, s{sWV}")
    a("v_lshrrev_b32 v3, 4, v0"); a("v_and_b32 v4, 15, v0"); a("v_lshlrev_b32 v4, 4, v4")
    a("s_lshl_b32 s3, s56, 2"); a("v_add_u32 v5, s3, v3"); a("s_movk_i32 s3, 1280"); a("v_mad_u32_u24 v6, v5, s3, v4")
    if xm == 0:
        a(f"s_lshr_b32 s57, s{sX}, 1"); a(f"s_and_b32 s58, s{sX}, 1")
        a("s_lshl3_add_u32 s59, s57, s54"); a("s_lshr_b32 s60, s59, 1"); a("s_and_b32 s59, s59, 1")
    else:
        a(f"s_bfe_u32 s58, s{sX}, 0x10001"); a(f"s_lshr_b32 s59, s{sX}, 2")
        a(f"s_bitcmp0_b32 s{sX}, 0"); a("s_mov_b32 s60, 0xfced9843"); a("s_cselect_b32 s60, 0x72ba6510, s60"); a("s_lshl_b32 s3, s54, 2"); a("s_lshr_b32 s60, s60, s3"); a("s_and_b32 s60, s60, 15")
    a("s_mul_i32 s3, s60, 52"); a("s_lshr_b32 s3, s3, 8"); a("s_add_u32 s3, s3, s58"); a("s_mul_i32 s3, s3, 640"); a("s_lshl_b32 s61, s60, 7"); a("s_add_u32 s61, s61, s3")
    a(f"s_lshr_b32 s3, s{sWV}, 2"); a("s_lshl1_add_u32 s3, s3, s59"); a(f"s_and_b32 s53, s{sWV}, 3"); a("s_lshl2_add_u32 s3, s3, s53"); a("s_mul_i32 s3, s3, 30720"); a("s_add_u32 s3, s3, s61")
    a("s_cmp_eq_u32 s60, 15"); a(f"s_cselect_b32 s3, {OOB:#x}, s3")
    a("v_lshrrev_b32 v7, 3, v0"); a("v_mul_u32_u24 v7, 3840, v7"); a("v_and_b32 v8, 7, v0"); a("v_lshl_add_u32 v7, v8, 4, v7"); a("v_add_u32 v7, s3, v7")
    a("s_waitcnt lgkmcnt(0)")
    if cut: a.stamp(3)
    hv = VM(a)
    def early_clear():
        srds()
        a("v_lshlrev_b32 v2, 4, v0")
        for q in range(4): a(f"v_mov_b32 v{12+q}, s{sSENT}")
        n = 8 if hb >= 3 else 3
        a(f"s_mul_i32 s62, s56, {1024*n}"); a(f"s_add_u32 s62, s62, {WS_CLR}")
        for i in range(n):
            if i == 4: a("s_add_u32 s62, s62, 4096")
            hv(f"buffer_store_dwordx4 v[12:15], v2, {WS}, s62 offen offset:{1024*(i%4)} sc1", "clr")
    if hb == 4: early_clear()
    def hld(o):
        i = int(o[1])
        if o[0] == "x": hv(f"buffer_load_dwordx4 {vr(XR+4*i,4)}, v6, s[{rX}:{rX+3}], 0 offen offset:{256*i}", "x")
        else: a(f"s_mov_b32 s62, {491520*i}"); hv(f"buffer_load_dwordx4 {vr(CR+4*i,4)}, v7, s[{rW}:{rW+3}], s62 offen", "c")
    first, later = [("x1 c1 | x2 | x3 x4 x0", "c2 c3 c4 c0"), ("x1 c1 | x2 c2 | x3 x4 x0", "c3 c4 c0"), ("x1 c1 | x2 c2 | x3 c3 | x4 c4 | x0 c0", ""), ("x1 x2 | x3 x4 x0", "c1 c2 c3 c4 c0")][hord]
    later = later.split()
    for o in first.split():
        if o == "|": a("s_barrier")
        else: hld(o)
    for i in range(5): hv(f"buffer_load_dwordx4 {vr(WR+4*i,4)}, v4, s[{rWR}:{rWR+3}], 0 offen offset:{256*i}", "wr")
    a.srdw(rG, 0 if nofn else D*F*2)
    if hb != 4: early_clear()
    a("v_lshrrev_b32 v130, 3, v0"); a("v_mul_u32_u24 v130, 3072, v130"); a("v_lshl_add_u32 v130, v8, 4, v130")
    a(f"s_cmp_ge_u32 s{sWV}, 3"); a("s_cselect_b32 s64, 3, 0"); a(f"s_cselect_b64 s[{rG}:{rG+1}], s[{rU}:{rU+1}], s[{rG}:{rG+1}]")
    a(f"s_sub_u32 s65, s{sWV}, s64")
    a("s_mul_i32 s68, s54, 245760"); a(f"s_mul_i32 s3, s{sX}, 384"); a("s_add_u32 s68, s68, s3"); a("s_lshl_b32 s3, s65, 7"); a("s_add_u32 s68, s68, s3")
    a(f"s_mul_i32 s69, s{sWV}, 10240"); a("s_movk_i32 s70, 24576"); a("s_movk_i32 s71, 1024"); a("s_mov_b32 s67, -1")
    a(f"s_cmp_lt_u32 s{sWV}, 6"); a("s_cbranch_scc1 L_hsw")
    a(f"s_mov_b64 s[{rG}:{rG+1}], s[{rDN}:{rDN+1}]")
    a("v_mul_u32_u24 v130, 6554, v0"); a("v_lshrrev_b32 v130, 16, v130"); a("v_mul_u32_u24 v130, 1120, v130"); a("v_add_u32 v130, v130, v2")
    a(f"s_sub_u32 s3, 7, s{sWV}"); a(f"s_mul_i32 s69, s3, {960*(f0+f1)}"); a(f"s_add_u32 s69, s69, {L_DI}"); a(f"s_mul_i32 s3, s3, {7680*(f0+f1)}")
    a(f"s_mul_i32 s68, s{sX}, 245760"); a("s_add_u32 s68, s68, s3"); a("s_mul_i32 s3, s54, 160"); a("s_add_u32 s68, s68, s3")
    a("s_movk_i32 s70, 7680"); a("s_movk_i32 s71, 960"); a("s_mov_b32 s67, 0x0fffffff")
    a.label("L_hsw")
    def ffn_dma(n):
        if n == 0: return
        a("s_mov_b32 exec_hi, s67")
        for _ in range(n):
            a("s_mov_b32 m0, s69"); a("s_add_u32 s69, s69, s71")
            hv(f"buffer_load_dwordx4 v130, s[{rG}:{rG+3}], s68 offen {'nt' if fnt else ''} lds", "f")
            a("s_add_u32 s68, s68, s70")
        a("s_mov_b32 exec_hi, -1")
    def oclear():
        a("s_mul_i32 s66, s56, 5120"); a(f"s_add_u32 s66, s66, {OOB if nooc else WS_O}"); a("s_add_u32 s63, s66, 4096")
        for i in range(5): hv(f"buffer_store_dwordx4 v[12:15], v2, {WS}, s{66 if i < 4 else 63} offen offset:{1024*(i%4)} sc1", "oc")
    a.readyaddr(117)
    hv.wait("x")
    a.stampw(1)
    for o in later[:-2]: hld(o)
    for q in range(20):
        a(f"v_lshlrev_b32 v{FF+2*q}, 16, v{XR+q}"); a(f"v_and_b32 v{FF+2*q+1}, 0xffff0000, v{XR+q}")
    a(f"v_pk_add_f32 v[120:121], {vr(FF,2)}, {vr(FF+2,2)}"); a(f"v_pk_add_f32 v[122:123], {vr(FF+4,2)}, {vr(FF+6,2)}")
    for q in range(8, 40, 4):
        a(f"v_pk_add_f32 v[120:121], v[120:121], {vr(FF+q,2)}"); a(f"v_pk_add_f32 v[122:123], v[122:123], {vr(FF+q+2,2)}")
    a("v_pk_add_f32 v[120:121], v[120:121], v[122:123]"); a("v_add_f32 v120, v120, v121")
    a.rowsum16(120)
    a("v_mul_f32 v120, 0x3acccccd, v120")
    hv(a.readyload(118, 117), "rdy")
    for o in later[-2:]: hld(o)
    if wt == 3:
        a("s_mul_i32 s3, s56, 1600"); a("v_min_u32 v9, 12, v0"); a("v_lshlrev_b32 v9, 7, v9")
        hv(f"buffer_load_dword v116, v9, s[{rWO}:{rWO+3}], s3 offen", "c")
    for q in range(20): a(f"v_pk_add_f32 {vr(FF+2*q,2)}, {vr(FF+2*q,2)}, v[120:121] op_sel_hi:[1,0] neg_lo:[0,1] neg_hi:[0,1]")
    a(f"v_pk_mul_f32 v[122:123], {vr(FF,2)}, {vr(FF,2)}"); a(f"v_pk_mul_f32 v[124:125], {vr(FF+2,2)}, {vr(FF+2,2)}")
    for q in range(4, 40, 4):
        a(f"v_pk_fma_f32 v[122:123], {vr(FF+q,2)}, {vr(FF+q,2)}, v[122:123]"); a(f"v_pk_fma_f32 v[124:125], {vr(FF+q+2,2)}, {vr(FF+q+2,2)}, v[124:125]")
    a("v_pk_add_f32 v[122:123], v[122:123], v[124:125]"); a("v_add_f32 v122, v122, v123")
    a.rowsum16(122)
    a("v_mul_f32 v122, 0x3acccccd, v122")
    a("v_cvt_pk_bf16_f32 v122, v122, v122"); a("v_and_b32 v122, 0xffff0000, v122"); a("v_add_f32 v122, 0x3727c5ac, v122")
    a("v_cvt_pk_bf16_f32 v122, v122, v122"); a("v_and_b32 v122, 0xffff0000, v122"); a("v_sqrt_f32 v122, v122")
    a("v_cvt_pk_bf16_f32 v126, v120, v122")
    a("v_and_b32 v122, 0xffff0000, v126"); a("v_rcp_f32 v124, v122"); a("v_lshlrev_b32 v121, 16, v126")
    a("v_sub_f32 v121, v120, v121"); a("v_mul_f32 v125, v121, v124")
    a("v_mov_b32 v128, 0"); a("v_mov_b32 v129, 0")
    ffn_dma(f1)
    for q in range(20): a(f"v_pk_fma_f32 {vr(FF+2*q,2)}, {vr(FF+2*q,2)}, v[124:125], v[124:125] op_sel:[0,0,1] op_sel_hi:[1,0,1]")
    for q in range(20): a(f"v_cvt_pk_bf16_f32 v{XR+q}, v{FF+2*q}, v{FF+2*q+1}")
    hv.wait("wr")
    for q in range(20): a(f"v_dot2c_f32_bf16 v{128+(q&1)}, v{XR+q}, v{WR+q}")
    a("v_add_f32 v128, v128, v129")
    a.rowsum16(128)
    a("v_cvt_pk_bf16_f32 v128, v128, v128"); a("v_ashrrev_i32 v129, 31, v128"); a("v_or_b32 v129, 0x80000000, v129"); a("v_xor_b32 v128, v128, v129")
    a("v_and_b32 v128, 0xffff0000, v128"); a("v_sub_u32 v129, 2047, v5"); a("v_or_b32 v127, v128, v129")
    a(f"s_lshl_b32 s3, s{sWV}, 5"); a(f"s_add_u32 s3, s3, {L_HM}"); a("v_lshl_add_u32 v129, v3, 3, s3")
    a("ds_write_b64 v129, v[126:127]")
    a(f"v_mov_b32 v1, {L_XN+512}"); a("v_mov_b64 v[120:121], 0"); a("ds_write_b64 v1, v[120:121] offset:16"); a("ds_write_b32 v1, v120 offset:24")
    hv.wait("clr", "rdy", lgkm=True)
    a.readycheck(118, 117)
    a("s_barrier")
    a(f"s_cmp_eq_u32 s{sWV}, 7"); a("s_cbranch_scc0 L_h2")
    a("s_setprio 1")
    a("v_and_b32 v129, 31, v0"); a(f"v_lshlrev_b32 v128, 3, v129"); a(f"v_add_u32 v128, {L_HM}, v128"); a("ds_read_b64 v[126:127], v128")
    a("s_lshl_b32 s63, s55, 7"); a(f"s_add_u32 s62, s63, {WS_SM}"); a(f"s_add_u32 s66, s63, {WS_C1}"); a("v_lshlrev_b32 v129, 2, v129"); a("v_mov_b32 v125, 0")
    a("s_getreg_b32 s3, hwreg(HW_REG_XCC_ID)"); a("v_mov_b32 v124, s3")
    a("s_waitcnt lgkmcnt(0)")
    a(f"buffer_store_dword v126, v129, {WS}, s62 offen sc1")
    a.top2(127, 125, 128, 62, 63)
    a("v_mov_b32 v122, s62"); a("v_mov_b32 v123, s63")
    a("s_mov_b64 exec, 1")
    a(f"buffer_store_dwordx3 v[122:124], off, {WS}, s66 sc1")
    a("s_mov_b64 exec, -1")
    a("s_and_b32 s3, s55, 3"); a("s_lshl_b32 s3, s3, 10")
    a.cnt_add(8, "s3", 126)
    a(f"s_waitcnt vmcnt({3 + f1})"); a("s_branch L_h2a")
    a.label("L_h2")
    a(f"s_waitcnt vmcnt({f1})")
    a.label("L_h2a")
    a.stampw(2)
    ffn_dma(f0)
    a("s_mov_b32 s62, 0x00003f80"); a("s_mov_b32 s63, 0x3f800000")
    for r in range(0, 8, 2): a(f"v_mov_b64 {vr(FF+r,2)}, 0")
    for i in range(5):
        for q in range(4):
            a(f"v_dot2c_f32_bf16 v{FF+2*q}, s62, v{CR+4*i+q}"); a(f"v_dot2c_f32_bf16 v{FF+2*q+1}, s63, v{CR+4*i+q}")
    for q in range(4): a(f"v_permlane32_swap_b32 v{FF+q}, v{FF+q+4}")
    a(f"v_pk_add_f32 {vr(FF,2)}, {vr(FF,2)}, {vr(FF+4,2)}"); a(f"v_pk_add_f32 {vr(FF+2,2)}, {vr(FF+2,2)}, {vr(FF+6,2)}")
    for q in range(2): a(f"v_permlane16_swap_b32 v{FF+q}, v{FF+q+2}")
    a(f"v_pk_add_f32 {vr(FF,2)}, {vr(FF,2)}, {vr(FF+2,2)}")
    for q in range(2): a(f"v_add_f32_dpp v{FF+q}, v{FF+q}, v{FF+q} row_ror:8 row_mask:0xf bank_mask:0xf")
    a(f"s_lshl_b32 s3, s{sWV}, 8"); a(f"s_add_u32 s3, s3, {L_HM+256}"); a("v_lshl_add_u32 v129, v8, 5, s3"); a("v_lshl_add_u32 v129, v3, 3, v129")
    a(f"ds_write_b64 v129, {vr(FF,2)}")
    a("v_mov_b32 v39, v1")
    a("s_waitcnt lgkmcnt(0)"); a("s_barrier")
    a(f"s_cmp_eq_u32 s{sWV}, 0"); a("s_cbranch_scc0 L_h3")
    a("v_lshlrev_b32 v119, 2, v0"); a(f"v_add_u32 v128, {L_HM+256}, v119")
    for q in range(8): a(f"ds_read_b32 v{FF+q}, v128 offset:{256*q}")
    a("s_lshl_b32 s63, s61, 1"); a("s_mul_i32 s3, s59, 7680"); a("s_add_u32 s63, s63, s3"); a(f"s_add_u32 s63, s63, {WS_CS}")
    a("s_cmp_eq_u32 s60, 15"); a(f"s_cselect_b32 s63, {OOB:#x}, s63")
    a("s_waitcnt lgkmcnt(0)")
    a(f"v_pk_add_f32 {vr(FF,2)}, {vr(FF,2)}, {vr(FF+2,2)}"); a(f"v_pk_add_f32 {vr(FF+4,2)}, {vr(FF+4,2)}, {vr(FF+6,2)}")
    a(f"v_pk_add_f32 {vr(FF,2)}, {vr(FF,2)}, {vr(FF+4,2)}"); a(f"v_add_f32 v{FF}, v{FF}, v{FF+1}")
    a(f"v_and_b32 v{FF+1}, 0xffff0000, v{FF}"); a(f"v_sub_f32 v{FF}, v{FF}, v{FF+1}"); a(f"v_cvt_pk_bf16_f32 v{FF}, v{FF+1}, v{FF}")
    a(f"buffer_store_dword v{FF}, v119, {WS}, s63 offen sc1")
    a.label("L_h3")
    a("s_barrier")
    a(f"s_cmp_eq_u32 s{sWV}, 7"); a("s_cbranch_scc1 L_hroute")
    if p6:
        a(f"s_cmp_eq_u32 s{sWV}, 6"); a("s_cbranch_scc0 L_h3p"); a("s_setprio 1"); a.label("L_h3p")
    ffn_dma(10 - f0 - f1)
    a(f"s_cmp_eq_u32 s{sWV}, 6"); a("s_cbranch_scc0 L_h4")
    a("s_mov_b32 s53, 0")
    a.label("L_h4a"); ffn_dma(1); a("s_add_u32 s53, s53, 1"); a(f"s_cmp_lt_u32 s53, {22 - f0 - f1}"); a("s_cbranch_scc1 L_h4a")
    a.label("L_h4")
    if wt == 1:
        a("s_mul_i32 s3, s56, 1600"); a("v_min_u32 v9, 12, v0"); a("v_lshlrev_b32 v9, 7, v9")
        a(f"buffer_load_dword v116, v9, s[{rWO}:{rWO+3}], s3 offen")
    if hb == 0:
        oclear()
        a("s_or_b32 s3, s56, 7"); a("s_mul_i32 s3, s3, 5120"); a(f"s_lshl_b32 s53, s{sWV}, 10"); a("s_add_u32 s3, s3, s53"); a(f"s_add_u32 s3, s3, {WS_O}")
        a(f"s_cmp_lt_u32 s{sWV}, 5"); a(f"s_cselect_b32 s3, s3, {OOB:#x}")
        a(f"buffer_store_dwordx4 v[12:15], v2, {WS}, s3 offen sc1")
    if cut: a("s_branch L_fin")
    a("v_lshrrev_b32 v5, 5, v0"); a("v_bfe_u32 v4, v0, 2, 2"); a("v_lshl_add_u32 v6, v5, 3, v4"); a("v_and_b32 v11, 1, v0")
    a("v_bfe_u32 v9, v0, 4, 1"); a("v_and_b32 v131, 3, v0"); a("v_lshl_add_u32 v131, v9, 2, v131"); a("v_lshlrev_b32 v131, 3, v131")
    GB = 132; DG = 176
    a("v_and_b32 v26, 31, v0"); a("v_lshlrev_b32 v36, 2, v26"); a("s_movk_i32 s3, 768"); a("v_mad_u32_u24 v36, v5, s3, v36")
    a("s_mul_i32 s62, s55, 3072"); a("s_lshl_b32 s3, s64, 9"); a("s_add_u32 s62, s62, s3"); a("s_lshl_b32 s3, s65, 8"); a("s_add_u32 s62, s62, s3"); a(f"s_add_u32 s62, s62, {WS_GP}")
    a("s_mov_b32 s60, 0")
    wo_addr()
    a("v_mul_u32_u24 v10, 160, v11"); a("v_lshl_add_u32 v10, v5, 4, v10"); a(f"v_add_u32 v10, {L_XN}, v10")
    a("v_cmp_gt_u32 vcc, 32, v0")
    a(f"s_cmp_lt_u32 s{sWV}, 6"); a("s_cbranch_scc0 L_h5a")
    a(f"s_mul_i32 s3, s{sWV}, 10240"); a("v_lshl_add_u32 v9, v6, 7, v131"); a("v_add_u32 v9, s3, v9")
    a(f"s_waitcnt vmcnt({6 if hb == 0 else 0})")
    for s_ in range(5):
        for nt in range(2):
            for j in range(2): a(f"ds_read_b64_tr_b16 {vr(GB+8*s_+4*nt+2*j,2)}, v9 offset:{2048*s_+512*j+64*nt}")
    a.label("L_h5a")
    def ldspoll(off, n):
        top = a.newlab("L_lp"); out = a.newlab("L_lo")
        a("s_mov_b32 s53, 0")
        a.label(top)
        if lsl: a(f"s_sleep {lsl}")
        a(f"ds_read_b32 v9, v39 offset:{off}"); a("s_add_u32 s53, s53, 1"); a(f"s_cmp_gt_u32 s53, {64*SPIN}"); a(f"s_cbranch_scc1 {out}")
        a("s_waitcnt lgkmcnt(0)"); a("v_readfirstlane_b32 s3, v9"); a(f"s_cmp_lt_u32 s3, {n}"); a(f"s_cbranch_scc1 {top}")
        a.label(out)
    if hb == 1:
        a(f"s_cmp_eq_u32 s{sWV}, 6"); a("s_cbranch_scc0 L_h5c")
        a("s_mul_i32 s66, s55, 40960"); a(f"s_add_u32 s66, s66, {WS_O}"); a("s_add_u32 s63, s66, 40960")
        a.label("L_h5d")
        for i in range(4): a(f"buffer_store_dwordx4 v[12:15], v2, {WS}, s66 offen offset:{1024*i} sc1")
        a("s_waitcnt vmcnt(40)")
        a("s_add_u32 s66, s66, 4096"); a("s_cmp_lt_u32 s66, s63"); a("s_cbranch_scc1 L_h5d")
        a.label("L_h5c")
    a("s_waitcnt vmcnt(0) lgkmcnt(0)" if hb != 1 else "s_waitcnt lgkmcnt(0)")
    a("v_mov_b32 v9, 1"); a("s_mov_b64 exec, 1"); a("ds_add_u32 v39, v9 offset:24"); a("s_mov_b64 exec, -1")
    a.stampw(12)
    a(f"s_cmp_eq_u32 s{sWV}, 6"); a("s_cbranch_scc1 L_hbulk")
    a("v_and_b32 v9, 15, v0"); a("v_lshlrev_b32 v37, 3, v9"); a("v_mul_u32_u24 v38, 768, v3"); a("v_add_u32 v37, v37, v38")
    a("v_bfe_u32 v38, v0, 4, 1"); a("v_mul_u32_u24 v38, 384, v38"); a("v_lshl_add_u32 v38, v9, 2, v38"); a("v_lshl_add_u32 v38, v5, 1, v38")
    a(f"s_lshl_b32 s3, s{sWV}, 6"); a(f"s_add_u32 s3, s3, {L_HB}"); a("v_add_u32 v38, s3, v38")
    a(f"s_mul_i32 s66, s{sX}, 24576"); a(f"s_lshl_b32 s3, s{sWV}, 7"); a("s_add_u32 s66, s66, s3"); a(f"s_add_u32 s66, s66, {WS_GP}")
    gl = ["s_mov_b32 s63, s66"]
    for p in range(8):
        gl.append(f"buffer_load_dwordx2 {vr(FF+2*p,2)}, v37, {WS}, s63 offen offset:{3072*(p&1)} sc1")
        if p & 1 and p < 7: gl.append("s_add_u32 s63, s63, 6144")
    if pg == 1:
        for x in gl: a(x)
    if pg == 2:
        for nt in range(2): a(f"buffer_load_dword v{FF+nt}, v36, {WS}, s62 offen offset:{128*nt} sc1")
    ldspoll(16, 1)
    a.stampw(3)
    a("ds_read_b96 v[122:124], v39")
    for s_ in range(5): a(f"ds_read_b128 {vr(XR+4*s_,4)}, v10 offset:{32*s_}")
    for s_ in range(5):
        a(f"s_waitcnt lgkmcnt({4-s_})")
        for nt in range(2): a(f"v_mfma_f32_32x32x16_bf16 {vr(DG+16*nt,16)}, {vr(XR+4*s_,4)}, {vr(GB+8*s_+4*nt,4)}, {vr(DG+16*nt,16) if s_ else 0}")
    a("v_readfirstlane_b32 s53, v124")
    for nt in range(2): a(f"v_cndmask_b32 v{120+nt}, v{DG+16*nt+1}, v{DG+16*nt}, vcc")
    a("s_cmp_eq_u32 s53, 0"); a("s_cbranch_scc1 L_h7")
    for nt in range(2): a(f"buffer_store_dword v{120+nt}, v36, {WS}, s62 offen offset:{128*nt} sc1")
    a("s_branch L_h8")
    a.label("L_h7")
    for nt in range(2): a(f"buffer_store_dword v{120+nt}, v36, {WS}, s62 offen offset:{128*nt}")
    a.label("L_h8")
    a.stampw(4)
    if ga: a("s_waitcnt vmcnt(0)")
    a.poll(gl, range(FF, FF+16), 10, 0)
    for q in range(4): a(f"v_pk_add_f32 {vr(FF+2*q,2)}, {vr(FF+2*q,2)}, {vr(FF+2*q+8,2)}")
    for q in range(2): a(f"v_pk_add_f32 {vr(FF+2*q,2)}, {vr(FF+2*q,2)}, {vr(FF+2*q+4,2)}")
    a(f"v_pk_add_f32 {vr(FF,2)}, {vr(FF,2)}, {vr(FF+2,2)}")
    a(f"v_permlane32_swap_b32 v{FF}, v{FF+1}")
    a(f"v_cvt_pk_bf16_f32 v120, v{FF}, v{FF+1}"); a("v_lshlrev_b32 v121, 16, v120"); a("v_and_b32 v120, 0xffff0000, v120")
    a(f"v_mul_f32 v119, {LOG2E|0x80000000:#x}, v121"); a("v_exp_f32 v119, v119"); a("v_add_f32 v119, 1.0, v119"); a("v_rcp_f32 v119, v119")
    a("v_mul_f32 v121, v121, v119"); a("v_cvt_pk_bf16_f32 v121, v121, v121"); a("v_and_b32 v121, 0xffff0000, v121")
    a("v_mul_f32 v121, v121, v120"); a("v_cvt_pk_bf16_f32 v121, v121, v121")
    a("ds_write_b16 v38, v121")
    a("v_mov_b32 v9, 1"); a("s_mov_b64 exec, 1"); a("ds_add_u32 v39, v9 offset:20"); a("s_mov_b64 exec, -1")
    a(f"s_cmp_lt_u32 s{sWV}, 5"); a("s_cbranch_scc0 L_h13")
    ldspoll(24, 7)
    a("v_lshl_add_u32 v8, v3, 3, v4"); a("v_mul_u32_u24 v8, 160, v8"); a("v_and_b32 v10, 3, v0"); a("v_lshl_add_u32 v8, v10, 3, v8")
    a(f"s_lshl_b32 s3, s{sWV}, 5"); a(f"s_add_u32 s3, s3, {L_DI}"); a("v_add_u32 v8, s3, v8")
    for s_ in range(6):
        for j in range(2): a(f"ds_read_b64_tr_b16 {vr(GB+4*s_+2*j,2)}, v8 offset:{5120*s_+640*j}")
    a("v_mul_u32_u24 v10, 384, v11"); a("v_lshl_add_u32 v10, v3, 4, v10"); a(f"v_add_u32 v10, {L_HB}, v10")
    ldspoll(20, 6)
    a.stampw(5)
    for s_ in range(6):
        a(f"ds_read_b128 {vr(40+4*s_,4)}, v10 offset:{64*s_}")
    a("v_and_b32 v9, 3, v0"); a("v_lshlrev_b32 v9, 2, v9"); a("v_lshl_add_u32 v9, v4, 7, v9"); a("s_movk_i32 s3, 20480"); a("v_mad_u32_u24 v9, v3, s3, v9"); a("v_cmp_gt_u32 vcc, 16, v0")
    a(f"s_lshl_b32 s62, s{sX}, 4"); a("s_mul_i32 s3, s54, 2560"); a("s_add_u32 s62, s62, s3"); a(f"s_lshl_b32 s3, s{sWV}, 9"); a("s_add_u32 s62, s62, s3"); a(f"s_add_u32 s62, s62, {WS_YP}")
    a("s_waitcnt lgkmcnt(0)")
    for s_ in range(6): a(f"v_mfma_f32_16x16x32_bf16 {vr(DG,4)}, {vr(40+4*s_,4)}, {vr(GB+4*s_,4)}, {vr(DG,4) if s_ else 0}")
    a(f"v_cndmask_b32 v120, v{DG+1}, v{DG}, vcc")
    a("s_mov_b32 exec_hi, 0"); a(f"buffer_store_dword v120, v9, {WS}, s62 offen sc1"); a("s_mov_b32 exec_hi, -1")
    a.stampw(6)
    a("s_branch L_h13")
    a.label("L_hroute")
    a(f"s_lshl_b32 s53, s{sX}, 7"); a("v_lshlrev_b32 v124, 10, v0")
    a.cnt_poll(4, 124, "s53", f"{SENT + 16:#x}", 125)
    a.stampw(3)
    a("v_lshlrev_b32 v126, 7, v0"); a(f"v_add_u32 v126, {WS_C1}, v126")
    a.poll([f"buffer_load_dwordx3 v[122:124], v126, {WS}, 0 offen sc1"], [122, 123, 124], 125, 0)
    a.stampw(4)
    a("s_getreg_b32 s3, hwreg(HW_REG_XCC_ID)"); a("v_cmp_ne_u32 vcc, s3, v124"); a(f"s_lshl_b32 s3, s{sX}, 3"); a("s_lshr_b64 s[62:63], vcc, s3"); a("s_and_b32 s62, s62, 0xff")
    if not loc: a("s_mov_b32 s62, 1")
    a.top2(122, 123, 125, sK1, sK2)
    a(f"v_mov_b32 v122, s{sK1}"); a(f"v_mov_b32 v123, s{sK2}"); a("v_mov_b32 v124, s62"); a("ds_write_b96 v39, v[122:124]")
    a("s_cmp_eq_u32 s55, 0"); a(f"s_mov_b32 s3, {WS_TOP}"); a(f"s_cselect_b32 s3, s3, {OOB:#x}")
    a("s_mov_b64 exec, 1"); a(f"buffer_store_dwordx2 v[122:123], off, {WS}, s3 sc1"); a("s_mov_b64 exec, 0xfffff")
    a("v_cmp_lt_u32 vcc, 9, v0"); a("v_cndmask_b32 v9, v122, v123, vcc"); a("v_and_b32 v9, 0x7ff, v9"); a("v_sub_u32 v9, 2047, v9")
    a("v_lshlrev_b32 v10, 2, v9"); a(f"v_add_u32 v10, {WS_SM}, v10"); a("v_mul_u32_u24 v9, 1280, v9"); a("v_add_u32 v9, v9, v2")
    a("v_subrev_u32 v11, 160, v9"); a("v_cndmask_b32 v9, v9, v11, vcc"); a("s_mul_i32 s53, s54, 160")
    a.stampw(5)
    a(f"buffer_load_dwordx4 {vr(XR,4)}, v9, s[{rX}:{rX+3}], s53 offen")
    a.poll([f"buffer_load_dword v126, v10, {WS}, 0 offen sc1"], [126], 125, 0)
    a.stampw(6)
    a("v_and_b32 v122, 0xffff0000, v126"); a("v_rcp_f32 v124, v122"); a("v_lshlrev_b32 v120, 16, v126")
    for q in range(4):
        a(f"v_lshlrev_b32 v{FF+2*q}, 16, v{XR+q}"); a(f"v_and_b32 v{FF+2*q+1}, 0xffff0000, v{XR+q}")
    for q in range(4): a(f"v_pk_add_f32 {vr(FF+2*q,2)}, {vr(FF+2*q,2)}, v[120:121] op_sel_hi:[1,0] neg_lo:[0,1] neg_hi:[0,1]")
    for q in range(4): a(f"v_pk_mul_f32 {vr(FF+2*q,2)}, {vr(FF+2*q,2)}, v[124:125] op_sel_hi:[1,0]")
    for q in range(4): a(f"v_cvt_pk_bf16_f32 v{XR+q}, v{FF+2*q}, v{FF+2*q+1}")
    a(f"v_add_u32 v9, {L_XN}, v2"); a(f"ds_write_b128 v9, {vr(XR,4)}")
    a("s_mov_b64 exec, -1")
    a("v_mov_b32 v9, 1"); a("ds_write_b32 v39, v9 offset:16")
    a("s_setprio 0")
    if cut: a("s_branch L_fin")
    if hb == 2:
        a("s_mul_i32 s66, s55, 40960"); a(f"s_add_u32 s66, s66, {WS_O}"); a("s_add_u32 s63, s66, 40960")
        a.label("L_h5d")
        for i in range(4): a(f"buffer_store_dwordx4 v[12:15], v2, {WS}, s66 offen offset:{1024*i} sc1")
        a("s_add_u32 s66, s66, 4096"); a("s_cmp_lt_u32 s66, s63"); a("s_cbranch_scc1 L_h5d")
        a("s_waitcnt vmcnt(0)")
        a("s_and_b32 s3, s55, 1"); a("s_lshl_b32 s3, s3, 10"); a(f"s_add_u32 s3, s3, {WS_FH}")
        a.cnt_add(8, "s3", 120)
    a("s_branch L_h13")
    a.label("L_hbulk")
    ldspoll(24, 7)
    def fhadd():
        a("s_and_b32 s3, s55, 1"); a("s_lshl_b32 s3, s3, 10"); a(f"s_add_u32 s3, s3, {WS_FH}")
        a.cnt_add(8, "s3", 120)
    a(f"s_add_u32 s68, s68, {19*40960}"); a(f"s_mov_b32 s69, {19*5120}")
    if hb == 1:
        for u in range(3):
            for x in unit_list(rWO, "s68", 0): a(x)
            a("s_sub_u32 s68, s68, 40960"); a("s_sub_u32 s69, s69, 5120")
        a("s_waitcnt vmcnt(15)")
    if hb < 2: fhadd()
    a.label("L_hb1")
    if thq < thr: a("ds_read_b32 v9, v39 offset:20")
    for x in unit_list(rWO, "s68", 0): a(x)
    a(f"s_waitcnt vmcnt({thr}) lgkmcnt(0)")
    if thq < thr:
        a("v_readfirstlane_b32 s3, v9"); a("s_cmp_lt_u32 s3, 6"); a("s_cbranch_scc0 L_hb2"); a(f"s_waitcnt vmcnt({thq})"); a.label("L_hb2")
    a("s_sub_u32 s68, s68, 40960"); a("s_sub_u32 s69, s69, 5120"); a("s_cbranch_scc0 L_hb1")
    a("s_mov_b32 s69, 0")
    for x in unit_list(rX, "s67", L_RES): a(x)
    a("s_add_u32 s67, s67, 40960")
    for x in unit_list(rX, "s67", L_RES + 5120): a(x)
    a("s_setprio 0")
    f_setup(96, 1)
    a("s_waitcnt vmcnt(0)"); a("s_branch L_h15")
    a.label("L_h13")
    a(f"s_cmp_lt_u32 s{sWV}, 4"); a("s_cbranch_scc0 L_h14")
    f_setup(96, 0)
    a("s_branch L_h15")
    a.label("L_h14")
    f_setup(96, 1)
    a.label("L_h15")
    a("s_waitcnt lgkmcnt(0)"); a("s_barrier")
    a("ds_read_b64 v[122:123], v39"); a("s_waitcnt lgkmcnt(0)")
    a(f"v_readfirstlane_b32 s{sK1}, v122"); a(f"v_readfirstlane_b32 s{sK2}, v123")
    a.stampw(7)
    a("v_lshlrev_b32 v1, 3, v0"); a("s_mov_b32 s63, 0")
    a(f"s_cmp_lt_u32 s{sWV}, 4"); a("s_cbranch_scc0 L_h16")
    a(smload)
    for x in wo_e[0][:ne]: a(x)
    a("s_waitcnt vmcnt(0)")
    keys_stats()
    a("s_branch L_c1")
    a.label("L_h16")
    a("v_lshlrev_b32 v4, 9, v0"); a(f"v_mov_b32 v{OS}, 0")
    for x in wo_e[1][:ne]: a(x)
    a("s_branch L_c2h")
    a.label("L_end")
    body, nn = hazard.fix(a.text() + "    s_endpgm\n")
    return body, nn


HEADER = open(os.path.join(os.path.dirname(os.path.abspath(__file__)), "header.txt")).read()

def full(extra=0, **kw):
    body, nn = gen(**kw)
    t = HEADER + f"; @launch grid=(256,1,1) block=(512,1,1) lds={LDS_BYTES}\n"
    if extra:
        l0 = f"; @launch kernel={NAME} grid=(256,1,1) block=(512,1,1) lds={LDS_BYTES}\n"
        l1 = "; @launch kernel=nop_kernel grid=(256,1,1) block=(256,1,1) lds=0\n"
        t = HEADER + (l0 + l1*extra if extra > 0 else l1*(-extra) + l0)
        body += ".p2align 8\n.globl nop_kernel\n.type nop_kernel,@function\nnop_kernel:\n    s_endpgm\n"
    t += f'.amdgcn_target "amdgcn-amd-amdhsa--gfx950"\n.text\n.globl {NAME}\n.p2align 12\n.p2align 8\n.type {NAME},@function\n{NAME}:\n'
    t += body
    t += f""".section .rodata,"a"
.p2align 6
.amdhsa_kernel {NAME}
  .amdhsa_next_free_vgpr 256
  .amdhsa_next_free_sgpr 102
  .amdhsa_accum_offset 256
  .amdhsa_group_segment_fixed_size 0
  .amdhsa_kernarg_size 96
  .amdhsa_user_sgpr_count 2
  .amdhsa_user_sgpr_kernarg_segment_ptr 1
  .amdhsa_system_sgpr_workgroup_id_x 1
.end_amdhsa_kernel
"""
    if extra:
        t += """.p2align 6
.amdhsa_kernel nop_kernel
  .amdhsa_next_free_vgpr 8
  .amdhsa_next_free_sgpr 16
  .amdhsa_accum_offset 8
  .amdhsa_group_segment_fixed_size 0
  .amdhsa_kernarg_size 96
  .amdhsa_user_sgpr_count 2
  .amdhsa_user_sgpr_kernarg_segment_ptr 1
  .amdhsa_system_sgpr_workgroup_id_x 1
.end_amdhsa_kernel
"""
    return t

if __name__ == "__main__":
    out = sys.argv[1] if len(sys.argv) > 1 else "parallel_sum__linear_kernel_hedgehog__moe_arch_mod__prompt.s"
    kw = {}
    for x in sys.argv[2:]:
        k, v = x.split("="); kw[k] = int(v)
    open(out, "w").write(full(**kw))
```
